```python
import torch

def _softmax(x, axis=-1):
    return torch.softmax(x, dim=axis)
def _gelu(x):
    return torch.nn.functional.gelu(x, approximate="tanh")
def _silu(x):
    return torch.nn.functional.silu(x)
def _sigmoid(x):
    return torch.sigmoid(x)
def _layernorm(x, axis=-1, eps=1e-5):
    m = x.mean(dim=axis, keepdim=True)
    v = x.var(dim=axis, keepdim=True, unbiased=False)
    return (x - m) / torch.sqrt(v + eps)
def _scatter_add(tgt, idx, src, axis=0):
    return tgt.clone().index_add_(axis, idx, src)
def _segment_sum(src, seg, n):
    out = torch.zeros((n,) + src.shape[1:], dtype=src.dtype)
    return out.index_add_(0, seg, src)
def _pad(x, pw):
    flat = tuple(v for pair in reversed(pw) for v in pair)
    return torch.nn.functional.pad(x, flat)

kernel_name = 'gather_scatter__edge_featured_mpnn_egc__graph'

def setup_inputs():

    _w = (lambda a: (lambda t: t.to(torch.bfloat16) if t.is_floating_point() else t)(torch.as_tensor(a)))
    N, deg, D, De = 25000, 16, 128, max(4, 1)
    E = N * deg
    return {
        "x": _w((lambda *s: torch.randn(*s, dtype=torch.bfloat16) * 0.1)(N, D)),
        "e_attr": _w((lambda *s: torch.randn(*s, dtype=torch.bfloat16) * 0.1)(E, De)),
        "src": _w((lambda lo, hi, *s: torch.randint(lo, hi, s))(0, N, E).to(torch.int64)),
        "dst": _w((lambda lo, hi, *s: torch.randint(lo, hi, s))(0, N, E).to(torch.int64)),
        "u_w": _w((lambda *s: torch.randn(*s, dtype=torch.bfloat16) * 0.05)(D, D)),
        "v_w": _w((lambda *s: torch.randn(*s, dtype=torch.bfloat16) * 0.05)(D, D)),
        "g_w": _w((lambda *s: torch.randn(*s, dtype=torch.bfloat16) * 0.1)(2 * D + De, D)),
    }

def reference(x, e_attr, src, dst, u_w, v_w, g_w):
    N, D = x.shape
    g_in = torch.concatenate([x[dst], x[src], e_attr], axis=-1)
    eta = _sigmoid(g_in @ g_w)
    hv = x @ v_w
    msg = eta * hv[src]
    agg = _segment_sum(msg, dst, N)
    return _silu(x @ u_w + agg)
```

```python
import sys

N = 25000
E = 400000
NAME = "gather_scatter__edge_featured_mpnn_egc__graph"

TS = 25024 * 128
REC_OFF = 0x1000000
REC_BYTES = 250 * 19200
HDR_OFF = 0x1800000
HDR_BYTES = 64 * 256 * 8
TFL_OFF = HDR_BYTES
HDR_SRD_BYTES = HDR_BYTES + 4 * 64 * 8
MAGIC_OFF = 0x4B000000

CNT = 0
LCNT = 256
NONCE = 384
CAP = 500
LS = 564
KEYB = 512
EB = KEYB + 16 * LS * 4
EOFF = EB - 2 * KEYB
IMG = EB + 16 * LS * 8
XB = 512
XT = 26 * 256
WB = IMG
STG = IMG + 32768
LDS_BYTES = STG + 19200
NI = 14
CFAST = 4 * NI
assert XB + 16 * XT + 6 * 256 <= IMG

SRD_X, SRD_E, SRD_SRC, SRD_DST, SRD_W, SRD_OUT, SRD_TS, SRD_TG, SRD_REC, SRD_HDR, SRD_G = [4 + 4 * i for i in range(11)]
SRD_DBG = SRD_E
KP = 48
sXM = 3
sWV, sBIN, sSL, sSPIN, sNODE0, sNN = 68, 69, 70, 71, 72, 73
sNL2E, sMAXF, sSELLO, sSELHI, sMAGIC, s127, sM1, sM2, sM3, sM4, sSTG, sKMAX = range(74, 86)
sHM = 86
sT0, sT1, sT2, sT3 = 88, 89, 90, 91
sRB, sC, sNT, sIT = 92, 93, 94, 95
sEX = 96
sNON, sNOH = 98, 99
MASKS = [4 + 2 * i for i in range(10)] + [44, 46, 56, 58]
SPIN_MAX = 40000

vLANE = 1
T1 = 16; ACC = 32; RING = 48; REC = 72
POP, AEX, SAG = 48, 56, 64
OFF = 16
RA, RBUF, Z = 72, 88, 104


class A:
    def __init__(self):
        self.l = []
    def __call__(self, s):
        for x in s.strip("\n").split("\n"):
            self.l.append("    " + x.strip())
    def lab(self, s):
        self.l.append(s + ":")
    def c(self, s):
        self.l.append("    ; " + s)
    def text(self):
        return "\n".join(self.l) + "\n"


def vr(a, n):
    return f"v[{a}:{a+n-1}]"
def sr(a, n):
    return f"s[{a}:{a+n-1}]"


STAMPS = False
PRIO = True
DIAG = set()
STAMP_OFF = 0x2000000
def sreg(i):
    return KP + i if i < 8 else KP + 4 + i
def stamp(a, i):
    if not STAMPS: return
    a(f"s_memrealtime s[100:101]")
    a(f"s_waitcnt lgkmcnt(0)")
    a(f"s_mov_b32 s{sreg(i)}, s100")

def stamp_out(a, kidx, n):
    if not STAMPS: return
    a(f"s_mov_b64 exec, -1")
    a(f"s_add_u32 s{sT2}, s{KP+18}, 0x{STAMP_OFF + kidx * 0x100000:x}")
    a(f"s_addc_u32 s{sT3}, s{KP+19}, 0")
    srd(a, SRD_W, sT2, sT3, 0x100000)
    a(f"s_lshl_b32 s{sT0}, s2, 4")
    a(f"s_add_u32 s{sT0}, s{sT0}, s{sWV}")
    a(f"s_lshl_b32 s{sT0}, s{sT0}, 6")
    a(f"v_mov_b32 v6, s{sT0}")
    for i in range(n):
        a(f"v_mov_b32 v7, s{sreg(i)}")
        a(f"buffer_store_dword v7, v6, {sr(SRD_W,4)}, 0 offen offset:{4*i}")


def srd(a, d, lo, hi, nbytes):
    a(f"s_mov_b32 s{d}, s{lo}")
    a(f"s_mov_b32 s{d+1}, s{hi}")
    a(f"s_mov_b32 s{d+2}, {nbytes}")
    a(f"s_mov_b32 s{d+3}, 0x00020000")


vXD, vWD = 5, 4
def setup(a, p, do_bin):
    a.c("---------------- setup")
    a(f"s_cmp_ge_u32 s2, 256")
    a(f"s_cbranch_scc1 {p}_end")
    a(f"s_load_dwordx16 {sr(KP,16)}, s[0:1], 0")
    a(f"s_load_dwordx4 {sr(KP+16,4)}, s[0:1], 64")
    a(f"v_lshrrev_b32 v2, 6, v0")
    a(f"v_and_b32 v{vLANE}, 63, v0")
    a(f"v_readfirstlane_b32 s{sWV}, v2")
    a(f"s_and_b32 s{sT0}, s2, 7")
    a(f"s_lshr_b32 s{sSL}, s{sT0}, 1")
    a(f"s_lshr_b32 s{sBIN}, s2, 3")
    a(f"s_lshl_b32 s{sBIN}, s{sBIN}, 1")
    a(f"s_and_b32 s{sT0}, s2, 1")
    a(f"s_or_b32 s{sBIN}, s{sBIN}, s{sT0}")
    a(f"s_lshl_b32 s{sT0}, s{sBIN}, 4")
    a(f"s_add_u32 s{sT0}, s{sT0}, s{sWV}")
    a(f"s_mul_i32 s{sT0}, s{sT0}, 3125")
    a(f"s_lshr_b32 s{sNODE0}, s{sT0}, 7")
    a(f"s_add_u32 s{sT0}, s{sT0}, 3125")
    a(f"s_lshr_b32 s{sNN}, s{sT0}, 7")
    a(f"s_sub_u32 s{sNN}, s{sNN}, s{sNODE0}")
    a(f"s_mul_i32 s{sXM}, s{sWV}, {XT}")
    a(f"s_add_u32 s{sXM}, s{sXM}, {XB}")
    a(f"s_mov_b32 s{sHM}, 0")
    a(f"s_mov_b32 s{sHM+1}, -1")
    a(f"s_mul_i32 s{sT1}, s{sSL}, {TS}")
    if do_bin:
        a(f"s_mul_i32 s{sT0}, s2, 6400")
        a(f"v_lshl_add_u32 v3, v0, 3, s{sT0}")
        a(f"v_lshlrev_b32 v6, 1, v3")
    a(f"s_waitcnt lgkmcnt(0)")
    x, e, src, dst, u, v, g, out, dbg, ws = [KP + 2 * i for i in range(10)]
    if do_bin:
        srd(a, SRD_DST, dst, dst + 1, E * 4)
        srd(a, SRD_SRC, src, src + 1, E * 4)
        srd(a, SRD_E, e, e + 1, E * 8)
        a(f"s_cmp_ge_u32 s{sWV}, 13")
        a(f"s_cbranch_scc1 {p}_noedge")
        a(f"buffer_load_dwordx2 {vr(vD,2)}, v3, {sr(SRD_DST,4)}, 0 offen")
        a(f"buffer_load_dwordx2 {vr(vS,2)}, v3, {sr(SRD_SRC,4)}, 0 offen")
        a(f"buffer_load_dwordx4 {vr(vE,4)}, v6, {sr(SRD_E,4)}, 0 offen")
        a.lab(f"{p}_noedge")
    srd(a, SRD_X, x, x + 1, N * 256)
    srd(a, SRD_OUT, out, out + 1, N * 256)
    srd(a, SRD_G, g, g + 1, 260 * 256)
    a(f"s_add_u32 s{sT2}, s{ws}, s{sT1}")
    a(f"s_addc_u32 s{sT3}, s{ws+1}, 0")
    srd(a, SRD_TS, sT2, sT3, (N + 1) * 128)
    a(f"s_sub_u32 s{sT2}, s{sT2}, 0x{MAGIC_OFF:x}")
    a(f"s_subb_u32 s{sT3}, s{sT3}, 0")
    srd(a, SRD_TG, sT2, sT3, MAGIC_OFF + (N + 1) * 128)
    a(f"s_add_u32 s{sT2}, s{ws}, 0x{REC_OFF:x}")
    a(f"s_addc_u32 s{sT3}, s{ws+1}, 0")
    srd(a, SRD_REC, sT2, sT3, REC_BYTES)
    a(f"s_add_u32 s{sT2}, s{ws}, 0x{HDR_OFF:x}")
    a(f"s_addc_u32 s{sT3}, s{ws+1}, 0")
    srd(a, SRD_HDR, sT2, sT3, HDR_SRD_BYTES)
    a(f"s_cmp_lt_u32 s{sWV}, 12")
    a(f"s_cselect_b64 {sr(SRD_W,2)}, {sr(v,2)}, {sr(u,2)}")
    a(f"s_and_b32 s{sT0}, s{sWV}, 3")
    a(f"s_mov_b32 s{SRD_W+2}, 32768")
    a(f"s_cmp_lt_u32 s{sWV}, 8")
    a(f"s_cselect_b64 {sr(SRD_W,2)}, {sr(g,2)}, {sr(SRD_W,2)}")
    a(f"s_cselect_b32 s{SRD_W+2}, 65536, s{SRD_W+2}")
    a(f"s_cselect_b32 s{sT0}, s{sWV}, s{sT0}")
    a(f"s_mov_b32 s{SRD_W+3}, 0x00020000")
    a(f"s_lshl_b32 s{sT0}, s{sT0}, 13")
    a(f"s_lshl_b32 s{sT1}, s{sSL}, 6")
    a(f"s_add_u32 s{sT0}, s{sT0}, s{sT1}")
    a(f"v_lshrrev_b32 v{vWD}, 2, v{vLANE}")
    a(f"v_lshl_add_u32 v{vWD}, v{vWD}, 8, s{sT0}")
    a(f"v_and_b32 v6, 3, v{vLANE}")
    a(f"v_lshl_add_u32 v{vWD}, v6, 4, v{vWD}")
    a(f"v_lshrrev_b32 v6, 4, v{vLANE}")
    a(f"v_xor_b32 v7, v6, v{vLANE}")
    a(f"v_and_b32 v7, 15, v7")
    a(f"v_add_u32 v6, s{sNODE0}, v6")
    a(f"v_lshlrev_b32 v{vXD}, 8, v6")
    a(f"v_lshl_add_u32 v{vXD}, v7, 4, v{vXD}")
    a(f"s_mov_b32 s{sNL2E}, 0xbfb8aa3b")
    a(f"s_mov_b32 s{sMAXF}, 0x7f7f0000")
    a(f"s_mov_b32 s{sSELLO}, 0x07060100")
    a(f"s_mov_b32 s{sSELHI}, 0x07060302")
    a(f"s_mov_b32 s{sMAGIC}, 10995117")
    a(f"s_mov_b32 s{s127}, 127")
    a(f"s_mov_b32 s{sM1}, 0x260000")
    a(f"s_mov_b32 s{sM2}, 0x100000")
    a(f"s_mov_b32 s{sM3}, 0x080000")
    a(f"s_mov_b32 s{sM4}, 0x3c000000")
    a(f"s_mov_b32 s{sSTG}, {STG}")
    a(f"s_mov_b32 s{sKMAX}, {EB - 4}")
    a(f"s_mov_b32 s{sNON}, 0")
    a(f"s_mov_b32 s{sNOH}, 0")


def wdma(a):
    a(f"s_lshl_b32 s{sT0}, s{sWV}, 11")
    a(f"s_add_u32 m0, s{sT0}, {WB}")
    a(f"s_mov_b32 s{sT1}, 4096")
    a(f"buffer_load_dwordx4 v{vWD}, {sr(SRD_W,4)}, 0 offen lds")
    a(f"s_add_u32 m0, s{sT0}, {WB + 1024}")
    a(f"s_nop 0")
    a(f"buffer_load_dwordx4 v{vWD}, {sr(SRD_W,4)}, s{sT1} offen lds")


def xdma(a, i):
    a(f"s_add_u32 m0, s{sXM}, {1024 * i}")
    if i == 0:
        a(f"s_nop 0")
        src = vXD
    else:
        if i & 3:
            a(f"v_xor_b32 v6, {64 * (i & 3)}, v{vXD}")
            a(f"v_add_u32 v6, {1024 * i}, v6")
        else:
            a(f"v_add_u32 v6, {1024 * i}, v{vXD}")
        src = 6
    if i == 6:
        a(f"s_not_b64 exec, {sr(sHM,2)}")
    a(f"buffer_load_dwordx4 v{src}, {sr(SRD_X,4)}, 0 offen lds")
    if i == 6:
        a(f"s_mov_b64 exec, -1")


def init_counters(a, p, tag, with_cnt):
    a.c("wave 0: bin counters = 0, list cursors = list starts")
    a(f"s_cmp_lg_u32 s{sWV}, 0")
    a(f"s_cbranch_scc1 {p}_ic{tag}")
    a(f"v_lshlrev_b32 v7, 2, v{vLANE}")
    a(f"v_mul_u32_u24 v8, {LS}, v7")
    a(f"v_add_u32 v8, {KEYB}, v8")
    a(f"v_cmp_gt_u32 vcc, 16, v{vLANE}")
    a(f"v_mov_b32 v9, 0")
    a(f"s_nop 0")
    a(f"v_cndmask_b32 v8, 0, v8, vcc")
    if with_cnt:
        a(f"ds_write_b32 v7, v9 offset:{CNT}")
        a(f"ds_write_b32 v7, v8 offset:{LCNT}")
    else:
        a(f"s_not_b64 exec, {sr(sHM,2)}")
        a(f"ds_write_b32 v7, v8 offset:{LCNT}")
        a(f"s_mov_b64 exec, -1")
    a.lab(f"{p}_ic{tag}")


def scan64(a, v):
    for sh in (1, 2, 4, 8):
        a(f"s_nop 1")
        a(f"v_add_u32_dpp v{v}, v{v}, v{v} row_shr:{sh} row_mask:0xf bank_mask:0xf bound_ctrl:0")
    a(f"s_nop 1")
    a(f"v_add_u32_dpp v{v}, v{v}, v{v} row_bcast:15 row_mask:0xa bank_mask:0xf")
    a(f"s_nop 1")
    a(f"v_add_u32_dpp v{v}, v{v}, v{v} row_bcast:31 row_mask:0xc bank_mask:0xf")


vD, vS, vE = 72, 74, 76
vK0, vK1, vB0, vB1, vR0, vR1 = 80, 81, 82, 83, 84, 85
vTa, vTb, vTc = 86, 87, 88
vONE = 2


def offsets_scan(a):
    a(f"v_lshlrev_b32 v{vTa}, 2, v{vLANE}")
    a(f"ds_read_b32 v{vTb}, v{vTa} offset:{CNT}")
    a(f"s_waitcnt lgkmcnt(0)")
    a(f"v_mov_b32 v{vTc}, v{vTb}")
    scan64(a, vTc)
    a(f"v_sub_u32 v{vTc}, v{vTc}, v{vTb}")


def noh_from_non(a):
    a(f"s_mul_i32 s{sNOH}, s{sNON}, 0x9e3779b1")
    a(f"s_and_b32 s{sNOH}, s{sNOH}, 0xf800f800")


def bin_phase(a, p, fused):
    a.c("---------------- BIN: sort this workgroup's 1600 edges by destination bin")
    sc = " sc1" if fused else ""
    a(f"s_cmp_ge_u32 s{sWV}, 13")
    a(f"s_cbranch_scc1 {p}_bin_other")
    init_counters(a, p, "a", True)
    a(f"v_mov_b32 v{vONE}, 1")
    a(f"s_waitcnt lgkmcnt(0)")
    a(f"s_barrier")
    stamp(a, 10)
    wdma(a)
    xdma(a, 0)
    a(f"s_waitcnt vmcnt(3)")
    stamp(a, 1)
    for e, (k, b) in enumerate(((vK0, vB0), (vK1, vB1))):
        d, s = vD + e, vS + e
        a(f"v_lshl_or_b32 v{vTa}, v{d}, 7, s{s127}")
        a(f"v_mul_hi_u32 v{vTa}, v{vTa}, s{sMAGIC}")
        a(f"v_lshrrev_b32 v{vTa}, 3, v{vTa}")
        a(f"v_lshrrev_b32 v{b}, 2, v{vTa}")
        a(f"v_and_b32 v{b}, 0xfc, v{b}")
        a(f"v_mul_u32_u24 v{vTb}, 3125, v{vTa}")
        a(f"v_lshrrev_b32 v{vTb}, 7, v{vTb}")
        a(f"v_sub_u32 v{vTb}, v{d}, v{vTb}")
        a(f"v_lshlrev_b32 v{vTc}, 17, v{vTb}")
        a(f"v_and_or_b32 v{k}, v{vTc}, s{sM1}, v{s}")
        a(f"v_lshlrev_b32 v{vTc}, 18, v{vTb}")
        a(f"v_and_or_b32 v{k}, v{vTc}, s{sM2}, v{k}")
        a(f"v_lshlrev_b32 v{vTc}, 16, v{vTb}")
        a(f"v_and_or_b32 v{k}, v{vTc}, s{sM3}, v{k}")
        a(f"v_lshlrev_b32 v{vTc}, 26, v{vTa}")
        a(f"v_and_or_b32 v{k}, v{vTc}, s{sM4}, v{k}")
    a(f"s_cmp_lt_u32 s2, 250")
    a(f"s_cselect_b32 s{sT0}, 800, 0")
    a(f"v_cmp_gt_u32 vcc, s{sT0}, v0")
    a(f"s_mov_b64 {sr(sEX,2)}, vcc")
    a(f"s_mov_b64 exec, vcc")
    a(f"ds_add_rtn_u32 v{vR0}, v{vB0}, v{vONE} offset:{CNT}")
    a(f"ds_add_rtn_u32 v{vR1}, v{vB1}, v{vONE} offset:{CNT}")
    a(f"s_mov_b64 exec, -1")
    for i in (1, 2, 3):
        xdma(a, i)
    a(f"s_waitcnt vmcnt(4) lgkmcnt(0)")
    a(f"s_barrier")
    stamp(a, 11)
    offsets_scan(a)
    a(f"ds_bpermute_b32 v{vB0}, v{vB0}, v{vTc}")
    a(f"ds_bpermute_b32 v{vB1}, v{vB1}, v{vTc}")
    a(f"s_waitcnt lgkmcnt(0)")
    a(f"v_add_u32 v{vR0}, v{vR0}, v{vB0}")
    a(f"v_add_u32 v{vR1}, v{vR1}, v{vB1}")
    a(f"v_mad_u32_u24 v{vR0}, v{vR0}, 12, s{sSTG}")
    a(f"v_mad_u32_u24 v{vR1}, v{vR1}, 12, s{sSTG}")
    a(f"s_mov_b64 exec, {sr(sEX,2)}")
    a(f"ds_write2_b32 v{vR0}, v{vE}, v{vE+1} offset0:0 offset1:1")
    a(f"ds_write_b32 v{vR0}, v{vK0} offset:8")
    a(f"ds_write2_b32 v{vR1}, v{vE+2}, v{vE+3} offset0:0 offset1:1")
    a(f"ds_write_b32 v{vR1}, v{vK1} offset:8")
    a(f"s_mov_b64 exec, -1")
    for i in (4, 5, 6):
        xdma(a, i)
    a(f"s_waitcnt lgkmcnt(0)")
    a(f"s_barrier")
    a(f"s_branch {p}_bin_done")

    a.lab(f"{p}_bin_other")
    a.c("waves 13-15: no edges")
    wdma(a)
    for i in range(7):
        xdma(a, i)
    a(f"s_barrier")
    a(f"s_cmp_eq_u32 s{sWV}, 15")
    a(f"s_cbranch_scc1 {p}_bin_w15")
    a(f"s_waitcnt vmcnt(7)")
    a(f"s_barrier")
    a(f"s_barrier")
    a(f"s_branch {p}_bin_done")
    a.lab(f"{p}_bin_w15")
    if fused:
        a.c("launch tag: workgroup 0 publishes a clock value in d_debug, everyone picks it up")
        srd(a, SRD_DBG, KP + 16, KP + 17, 256)
        a(f"v_mov_b32 v8, 0")
        a(f"s_cmp_lg_u32 s2, 0")
        a(f"s_cbranch_scc1 {p}_tag_poll")
        a(f"s_memrealtime s[100:101]")
        a(f"s_waitcnt lgkmcnt(0)")
        a(f"s_or_b32 s{sT0}, s100, 1")
        a(f"v_mov_b32 v9, s{sT0}")
        a(f"s_mov_b64 exec, 1")
        a(f"buffer_store_dword v9, v8, {sr(SRD_DBG,4)}, 0 offen sc1")
        a(f"s_mov_b64 exec, -1")
        a.lab(f"{p}_tag_poll")
        a(f"buffer_load_dword v9, v8, {sr(SRD_DBG,4)}, 0 offen sc1")
        a(f"s_waitcnt vmcnt(8)")
    else:
        a(f"s_waitcnt vmcnt(7)")
    a(f"s_barrier")
    offsets_scan(a)
    a(f"v_lshl_or_b32 v10, v{vTb}, 16, v{vTc}")
    a(f"s_barrier")
    a.c("wave 15: copy the sorted records out, then the headers")
    a(f"v_lshlrev_b32 v3, 4, v{vLANE}")
    a(f"s_mul_i32 s{sT0}, s2, 19200")
    a(f"v_add_u32 v4, s{sT0}, v3")
    a(f"v_add_u32 v3, {STG}, v3")
    for lo, hi in ((0, 14), (14, 19)):
        for i in range(lo, hi):
            a(f"ds_read_b128 {vr(REC + 4*(i-lo), 4)}, v3 offset:{1024*i}")
        for i in range(lo, hi):
            a(f"s_waitcnt lgkmcnt({hi-1-i})")
            if i == 18:
                a(f"s_mov_b32 exec_hi, 0xffff")
            a(f"buffer_store_dwordx4 {vr(REC + 4*(i-lo), 4)}, v4, {sr(SRD_REC,4)}, 0 offen{sc}")
            if i < 18:
                a(f"v_add_u32 v4, 1024, v4")
        if lo == 0:
            a(f"s_nop 1")
    a(f"s_mov_b64 exec, -1")
    a(f"v_lshlrev_b32 v3, 11, v{vLANE}")
    a(f"s_lshl_b32 s{sT0}, s2, 3")
    a(f"v_add_u32 v3, s{sT0}, v3")
    if fused:
        a(f"s_mov_b32 s{sSPIN}, {SPIN_MAX}")
        a.lab(f"{p}_tag_loop")
        a(f"s_waitcnt vmcnt(0)")
        a(f"v_readfirstlane_b32 s{sNON}, v9")
        a(f"s_cmp_lg_u32 s{sNON}, 0")
        a(f"s_cbranch_scc1 {p}_tag_ok")
        a(f"buffer_load_dword v9, v8, {sr(SRD_DBG,4)}, 0 offen sc1")
        a(f"s_sub_u32 s{sSPIN}, s{sSPIN}, 1")
        a(f"s_cbranch_scc0 {p}_tag_loop")
        a(f"s_mov_b32 s{sNON}, 1")
        a.lab(f"{p}_tag_ok")
        noh_from_non(a)
        a(f"v_mov_b32 v11, s{sNON}")
        a(f"v_or_b32 v10, s{sNOH}, v10")
        a(f"ds_write_b32 v8, v11 offset:{NONCE}")
    else:
        a(f"v_mov_b32 v11, 0")
    a(f"buffer_store_dwordx2 v[10:11], v3, {sr(SRD_HDR,4)}, 0 offen{sc}")
    a.lab(f"{p}_bin_done")


vXA, vWA, vTMP = 3, 4, 5
def gemm_setup(a):
    a.c("---------------- GEMM addresses")
    a(f"v_and_b32 v6, 31, v{vLANE}")
    a(f"v_lshrrev_b32 v7, 5, v{vLANE}")
    a(f"v_xor_b32 v7, v7, v6")
    a(f"v_and_b32 v7, 15, v7")
    a(f"v_lshl_add_u32 v{vXA}, v6, 8, s{sXM}")
    a(f"v_lshl_add_u32 v{vXA}, v7, 4, v{vXA}")
    a(f"v_lshrrev_b32 v6, 5, v{vLANE}")
    a(f"v_lshlrev_b32 v{vWA}, 9, v6")
    a(f"v_bfe_u32 v6, v{vLANE}, 2, 2")
    a(f"v_lshl_add_u32 v{vWA}, v6, 6, v{vWA}")
    a(f"v_and_b32 v6, 1, v{vLANE}")
    a(f"v_lshl_add_u32 v{vWA}, v6, 5, v{vWA}")
    a(f"v_and_b32 v6, 16, v{vLANE}")
    a(f"v_add_u32 v{vWA}, v6, v{vWA}")
    a(f"v_and_b32 v6, 2, v{vLANE}")
    a(f"v_lshl_add_u32 v{vWA}, v6, 2, v{vWA}")
    a(f"v_add_u32 v{vWA}, {WB}, v{vWA}")


def gemm_pass(a, m1, m2, swap2):
    def load(s):
        r = RING + 12 * (s % 2)
        if s:
            a(f"v_xor_b32 v{vTMP}, {32*s}, v{vXA}")
        a(f"ds_read_b128 {vr(r,4)}, v{vTMP if s else vXA}")
        for k, m in enumerate((m1, m2)):
            for u in range(2):
                a(f"ds_read_b64_tr_b16 {vr(r+4+4*k+2*u,2)}, v{vWA} offset:{m*8192 + s*1024 + u*256}")
    load(0)
    load(1)
    for s in range(8):
        r = RING + 12 * (s % 2)
        a(f"s_waitcnt lgkmcnt({5 if s < 7 else 0})")
        c1 = "0" if s == 0 else vr(T1, 16)
        c2 = "0" if s == 0 else vr(ACC, 16)
        a(f"v_mfma_f32_32x32x16_bf16 {vr(T1,16)}, {vr(r,4)}, {vr(r+4,4)}, {c1}")
        if swap2:
            a(f"v_mfma_f32_32x32x16_bf16 {vr(ACC,16)}, {vr(r+8,4)}, {vr(r,4)}, {c2}")
        else:
            a(f"v_mfma_f32_32x32x16_bf16 {vr(ACC,16)}, {vr(r,4)}, {vr(r+8,4)}, {c2}")
        if s + 2 < 8:
            load(s + 2)


def table_store(a, fused):
    a.c("table rows: hi16 = -log2e * (x B), lo16 = bf16(1 / (x V))")
    sc = " sc1" if fused else ""
    a(f"v_lshrrev_b32 v6, 5, v{vLANE}")
    a(f"v_lshlrev_b32 v6, 9, v6")
    a(f"v_and_b32 v7, 31, v{vLANE}")
    a(f"v_lshl_add_u32 v6, v7, 2, v6")
    a(f"s_lshl_b32 s{sT0}, s{sNODE0}, 7")
    a(f"v_add_u32 v6, s{sT0}, v6")
    a(f"s_nop 7")
    for j in range(0, 14, 2):
        for k in (j, j + 1):
            a(f"v_rcp_f32 v{ACC+k}, v{ACC+k}")
            a(f"v_mul_f32 v{T1+k}, s{sNL2E}, v{T1+k}")
        for k in (j, j + 1):
            a(f"v_med3_f32 v{ACC+k}, v{ACC+k}, s{sMAXF}, -s{sMAXF}")
        a(f"v_cvt_pk_bf16_f32 v{ACC+j}, v{ACC+j}, v{ACC+j+1}")
        a(f"v_perm_b32 v{T1+j}, v{T1+j}, v{ACC+j}, s{sSELLO}")
        a(f"v_perm_b32 v{T1+j+1}, v{T1+j+1}, v{ACC+j}, s{sSELHI}")
        if j == 12:
            a(f"s_not_b64 exec, {sr(sHM,2)}")
        for k in (j, j + 1):
            a(f"buffer_store_dword v{T1+k}, v6, {sr(SRD_TS,4)}, 0 offen offset:{(8*(k>>2) + (k&3))*128}{sc}")
    a(f"s_mov_b64 exec, -1")


vC0 = 8
def load_C(a):
    a.c("edge-feature weights g_w[256+k][32*slice + pi(n)]")
    a(f"v_bfe_u32 v6, v{vLANE}, 2, 1")
    a(f"v_lshlrev_b32 v6, 5, v6")
    a(f"v_bfe_u32 v7, v{vLANE}, 3, 2")
    a(f"v_lshl_add_u32 v6, v7, 3, v6")
    a(f"v_and_b32 v7, 3, v{vLANE}")
    a(f"v_lshl_add_u32 v6, v7, 1, v6")
    a(f"s_lshl_b32 s{sT0}, s{sSL}, 6")
    a(f"s_add_u32 s{sT0}, s{sT0}, 65536")
    a(f"v_add_u32 v6, s{sT0}, v6")
    for k in range(4):
        a(f"buffer_load_ushort v{vC0+k}, v6, {sr(SRD_G,4)}, 0 offen offset:{256*k}")


def pop_pack(a):
    a.c("P' operand (rows 26.. replaced by the edge-feature weights / zero)")
    for k in range(4):
        a(f"v_lshlrev_b32 v{vC0+k}, 16, v{vC0+k}")
    for k in range(4):
        a(f"v_mul_f32 v{vC0+k}, s{sNL2E}, v{vC0+k}")
    a(f"v_cvt_pk_bf16_f32 v{vC0}, v{vC0}, v{vC0+1}")
    a(f"v_cvt_pk_bf16_f32 v{vC0+1}, v{vC0+2}, v{vC0+3}")
    a(f"s_nop 3")
    for k in range(14):
        a(f"v_mul_f32 v{T1+k}, s{sNL2E}, v{T1+k}")
    for k in range(7):
        a(f"v_cvt_pk_bf16_f32 v{POP+k}, v{T1+2*k}, v{T1+2*k+1}")
    a(f"v_cndmask_b32 v{POP+6}, v{POP+6}, v{vC0}, {sr(sHM,2)}")
    a(f"v_cndmask_b32 v{POP+7}, 0, v{vC0+1}, {sr(sHM,2)}")


vHS, vHL = 12, 13
def hdr_load(a, fused, addr=7):
    a(f"buffer_load_dwordx2 v[14:15], v{addr}, {sr(SRD_HDR,4)}, 0 offen{' sc1' if fused else ''}")

def hdr_addr(a, addr=7):
    a(f"v_lshrrev_b32 v{addr}, 2, v0")
    a(f"s_lshl_b32 s{sT0}, s{sBIN}, 11")
    a(f"v_lshl_add_u32 v{addr}, v{addr}, 3, s{sT0}")


def hdr_decode(a):
    a(f"v_and_b32 v6, 3, v0")
    a(f"v_and_b32 v7, 0x7ff, v14")
    a(f"v_add_u32 v7, v7, v6")
    a(f"v_mul_u32_u24 v7, 12, v7")
    a(f"v_lshrrev_b32 v{vHS}, 2, v0")
    a(f"v_mul_u32_u24 v{vHS}, 19200, v{vHS}")
    a(f"v_add_u32 v{vHS}, v{vHS}, v7")
    a(f"v_bfe_u32 v{vHL}, v14, 16, 11")
    a(f"v_sub_u32 v{vHL}, v{vHL}, v6")
    a(f"s_mov_b32 s{sRB}, 0")
    a(f"s_mov_b32 s{sC}, {CFAST}")


def rec_loads(a, p, tag, fused):
    sc = " sc1" if fused else ""
    a(f"v_subrev_u32 v7, s{sRB}, v{vHL}")
    a(f"v_and_b32 v6, 3, v0")
    a(f"v_sub_u32 v6, s{sC}, v6")
    a(f"v_min_i32 v7, v7, v6")
    a(f"s_mul_i32 s{sT0}, s{sRB}, 12")
    a(f"v_add_u32 v6, s{sT0}, v{vHS}")
    for i in range(NI):
        a(f"v_cmp_lt_i32 {sr(MASKS[i],2)}, {4*i}, v7")
    for i in range(NI):
        a(f"s_mov_b64 exec, {sr(MASKS[i],2)}")
        a(f"s_cbranch_execz {p}_rl_done{tag}")
        a(f"buffer_load_dwordx3 {vr(REC+4*i,3)}, v6, {sr(SRD_REC,4)}, 0 offen offset:{48*i}{sc}")
    a.lab(f"{p}_rl_done{tag}")
    a(f"s_mov_b64 exec, -1")


def append1(a, p, tag):
    a.c("---------------- list slots for the records (16 sub-block lists)")
    a(f"s_add_u32 s{sT0}, s{sRB}, s{sC}")
    a(f"v_and_b32 v6, 3, v0")
    a(f"v_add_u32 v6, v6, v{vHL}")
    a(f"v_cmp_lt_i32 vcc, s{sT0}, v6")
    a(f"v_mov_b32 v6, 4")
    a(f"v_mov_b32 v7, 64")
    a(f"s_mov_b64 exec, vcc")
    a(f"ds_add_u32 v7, v6 offset:{LCNT}")
    a(f"s_mov_b64 exec, -1")
    a(f"v_mov_b32 v7, 0x3c")
    for i in range(NI):
        q = REC + 4 * i
        a(f"s_mov_b64 exec, {sr(MASKS[i],2)}")
        a(f"s_cbranch_execz {p}_ap1{tag}")
        a(f"v_and_b32_sdwa v{q+3}, v{q+2}, v7 dst_sel:DWORD dst_unused:UNUSED_PAD src0_sel:BYTE_3 src1_sel:DWORD")
        a(f"ds_add_rtn_u32 v{q+3}, v{q+3}, v6 offset:{LCNT}")
    a.lab(f"{p}_ap1{tag}")
    a(f"s_mov_b64 exec, -1")


def append2(a, p):
    for i in range(NI):
        q = REC + 4 * i
        a(f"s_mov_b64 exec, {sr(MASKS[i],2)}")
        a(f"s_cbranch_execz {p}_ap2")
        a(f"v_min_u32 v{q+3}, s{sKMAX}, v{q+3}")
        a(f"v_lshlrev_b32 v6, 1, v{q+3}")
        a(f"ds_write_b32 v{q+3}, v{q+2}")
        a(f"ds_write_b64 v6, {vr(q,2)} offset:{EOFF}")
    a.lab(f"{p}_ap2")
    a(f"s_mov_b64 exec, -1")


vKR, vER, vIW, vIE, vIA0, vIA1, vIT0, vIT1, vOLD, vKEY = 4, 5, 120, 121, 122, 123, 124, 125, 126, 127
vEE, vB16, vZERO = 8, 10, 11
AD, BD = 2, 14


def image_setup(a):
    a.c("---------------- selection image addresses; zero the image")
    a(f"s_lshl_b32 s{sT0}, s{sWV}, 11")
    a(f"s_add_u32 s{sT0}, s{sT0}, {IMG}")
    a(f"v_lshl_add_u32 v6, v{vLANE}, 4, s{sT0}")
    for k in range(4):
        a(f"v_mov_b32 v{AEX+k}, 0")
    a(f"ds_write_b128 v6, {vr(AEX,4)}")
    a(f"ds_write_b128 v6, {vr(AEX,4)} offset:1024")
    a(f"v_mov_b32 v{vB16}, 0x3f80")
    a(f"v_mov_b32 v{vZERO}, 0")
    a(f"v_and_b32 v6, 31, v{vLANE}")
    a(f"v_mov_b32 v{AD+1}, 0x3f803f80")
    a(f"v_lshlrev_b32 v7, 2, v6")
    a(f"v_cvt_f32_u32 v7, v7")
    a(f"v_lshrrev_b32 v7, 16, v7")
    a(f"v_or_b32 v7, 0x4b000000, v7")
    a(f"v_mov_b32 v{BD}, 0x47004300")
    a(f"v_cndmask_b32 v{BD}, v{BD}, v{vZERO}, {sr(sHM,2)}")
    a(f"v_cndmask_b32 v{BD+1}, v7, v{vZERO}, {sr(sHM,2)}")
    a(f"v_lshl_add_u32 v6, v6, 6, s{sT0}")
    a(f"v_bfe_u32 v7, v{vLANE}, 2, 2")
    a(f"v_lshl_add_u32 v{vIW}, v7, 4, v6")
    a(f"v_xor_b32 v{vIE}, 56, v{vIW}")
    a(f"v_lshrrev_b32 v6, 5, v{vLANE}")
    a(f"v_lshlrev_b32 v{vIA0}, 4, v6")
    a(f"v_xor_b32 v{vIA0}, v{vIA0}, v{vIW}")
    a(f"v_xor_b32 v{vIA1}, 32, v{vIA0}")
    a(f"v_mov_b32 v{vOLD}, v{vIW}")
    a(f"v_lshl_add_u32 v7, v6, 2, v7")
    a(f"v_lshl_add_u32 v{vIT0}, v7, 6, s{sT0}")
    a(f"v_bfe_u32 v7, v{vLANE}, 4, 1")
    a(f"v_lshlrev_b32 v7, 1, v7")
    a(f"v_and_b32 v{vIT1}, 1, v{vLANE}")
    a(f"v_or_b32 v7, v7, v{vIT1}")
    a(f"v_xor_b32 v7, v7, v6")
    a(f"v_lshl_add_u32 v{vIT0}, v7, 4, v{vIT0}")
    a(f"v_and_b32 v7, 2, v{vLANE}")
    a(f"v_lshl_add_u32 v{vIT0}, v7, 2, v{vIT0}")
    a(f"v_xor_b32 v{vIT1}, 32, v{vIT0}")
    a(f"v_add_u32 v{vIT1}, 512, v{vIT1}")


def gathers(a, R, fused):
    sc = " sc1" if fused else ""
    if "nogather" in DIAG: return
    for k in range(16):
        a(f"buffer_load_dword v{R+k}, v{OFF+k}, {sr(SRD_TG,4)}, 0 offen{sc}")

def rec_reads(a, toff):
    a(f"ds_read_b32 v{vKEY}, v{vKR} offset:{toff*128}")
    a(f"ds_read_b64 {vr(vEE,2)}, v{vER} offset:{EOFF + toff*256}")

def image_build(a):
    a(f"ds_write_b16 v{vOLD}, v{vZERO}")
    a(f"v_xor_b32_sdwa v{vOLD}, v{vKEY}, v{vIW} dst_sel:DWORD dst_unused:UNUSED_PAD src0_sel:BYTE_2 src1_sel:DWORD")
    a(f"ds_write_b64 v{vIE}, {vr(vEE,2)}")
    a(f"ds_write_b16 v{vOLD}, v{vB16}")

def aex_reads(a):
    a(f"ds_read_b128 {vr(AEX,4)}, v{vIA0}")
    a(f"ds_read_b128 {vr(AEX+4,4)}, v{vIA1}")

def sag_reads(a):
    for s in range(2):
        a(f"ds_read_b64_tr_b16 {vr(SAG+4*s,2)}, v{vIT0} offset:{1024*s}")
        a(f"ds_read_b64_tr_b16 {vr(SAG+4*s+2,2)}, v{vIT1} offset:{1024*s}")

def addr_cvt(a):
    a(f"v_cvt_f32_ubyte0 v6, v{vKEY}")
    a(f"v_cvt_f32_ubyte1 v7, v{vKEY}")
def addr_pack(a):
    a(f"v_perm_b32 v{AD}, v7, v6, s{sSELHI}")
def addr_mfma(a):
    a(f"v_mfma_f32_32x32x8_bf16 {vr(OFF,16)}, {vr(AD,2)}, {vr(BD,2)}, 0")


def tile_body(a, R, Rn, fused):
    gathers(a, Rn, fused)
    a(f"s_waitcnt vmcnt(16)")
    a(f"v_mfma_f32_32x32x16_bf16 {vr(Z,16)}, {vr(AEX,4)}, {vr(POP,4)}, {vr(R,16)}")
    a(f"v_mfma_f32_32x32x16_bf16 {vr(Z,16)}, {vr(AEX+4,4)}, {vr(POP+4,4)}, {vr(Z,16)}")
    if "nolds" not in DIAG:
        sag_reads(a)
        image_build(a)
        aex_reads(a)
    else:
        a("s_nop 9")
    rec_reads(a, 2)
    a(f"v_add_u32 v{vKR}, 128, v{vKR}")
    a(f"v_add_u32 v{vER}, 256, v{vER}")
    for j in range(16):
        if "notrans" not in DIAG: a(f"v_exp_f32 v{Z+j}, v{Z+j}")
        a(f"v_lshlrev_b32 v{R+j}, 16, v{R+j}")
    a(f"s_waitcnt lgkmcnt(0)")
    addr_cvt(a)
    for j in range(0, 16, 2):
        if "nopk" in DIAG:
            a(f"v_fma_f32 v{Z+j}, v{Z+j}, v{R+j}, v{R+j}")
            a(f"v_fma_f32 v{Z+j+1}, v{Z+j+1}, v{R+j+1}, v{R+j+1}")
        else:
            a(f"v_pk_fma_f32 {vr(Z+j,2)}, {vr(Z+j,2)}, {vr(R+j,2)}, {vr(R+j,2)}")
        if j == 0:
            addr_pack(a)
    addr_mfma(a)
    for j in range(16):
        if "notrans" not in DIAG: a(f"v_rcp_f32 v{Z+j}, v{Z+j}")
        if j >= 3 and j % 2 == 1:
            k = (j - 3) // 2
            a(f"v_cvt_pk_bf16_f32 v{R+k}, v{Z+2*k}, v{Z+2*k+1}")
    a(f"s_add_u32 s{sIT}, s{sIT}, 1")
    a(f"v_cvt_pk_bf16_f32 v{R+7}, v{Z+14}, v{Z+15}")
    a(f"s_cmp_lt_u32 s{sIT}, s{sNT}")
    a(f"v_mfma_f32_32x32x16_bf16 {vr(ACC,16)}, {vr(R,4)}, {vr(SAG,4)}, {vr(ACC,16)}")
    a(f"v_mfma_f32_32x32x16_bf16 {vr(ACC,16)}, {vr(R+4,4)}, {vr(SAG+4,4)}, {vr(ACC,16)}")


def tflag_wait(a, p):
    a.c("wave 0: wait until all 64 workgroups of this slice have published their table rows")
    a(f"s_cmp_lg_u32 s{sWV}, 0")
    a(f"s_cbranch_scc1 {p}_tf_done")
    a(f"s_lshl_b32 s{sT0}, s{sSL}, 9")
    a(f"s_add_u32 s{sT0}, s{sT0}, {TFL_OFF}")
    a(f"v_lshl_add_u32 v6, v{vLANE}, 3, s{sT0}")
    a(f"s_not_b32 s{sT1}, s{sNON}")
    a(f"s_mov_b32 s{sSPIN}, {SPIN_MAX}")
    a.lab(f"{p}_tf_loop")
    a(f"buffer_load_dwordx2 v[8:9], v6, {sr(SRD_HDR,4)}, 0 offen sc1")
    a(f"s_waitcnt vmcnt(0)")
    a(f"v_cmp_ne_u32 vcc, s{sNON}, v8")
    a(f"v_cmp_ne_u32 {sr(sEX,2)}, s{sT1}, v9")
    a(f"s_or_b64 vcc, vcc, {sr(sEX,2)}")
    a(f"s_cbranch_scc0 {p}_tf_done")
    a(f"s_sleep 1")
    a(f"s_sub_u32 s{sSPIN}, s{sSPIN}, 1")
    a(f"s_cbranch_scc0 {p}_tf_loop")
    a.lab(f"{p}_tf_done")


def main_phase(a, p, fused):
    a.lab(f"{p}_round")
    append2(a, p)
    image_setup(a)
    if fused:
        tflag_wait(a, p)
    a(f"s_waitcnt lgkmcnt(0)")
    a(f"s_barrier")
    stamp(a, 6)
    if STAMPS:
        a("s_memtime s[100:101]")
        a("s_waitcnt lgkmcnt(0)")
        a(f"s_mov_b32 s{sreg(10)}, s100")
    a(f"v_and_b32 v6, 31, v{vLANE}")
    a(f"v_lshlrev_b32 v{vKR}, 2, v6")
    a(f"ds_read_b32 v7, v{vKR} offset:{LCNT}")
    a(f"v_mul_u32_u24 v6, {LS}, v{vKR}")
    a(f"v_add_u32 v6, {KEYB + 4*CAP}, v6")
    a(f"s_mul_i32 s{sT0}, s{sWV}, {LS*4}")
    a(f"s_add_u32 s{sT0}, s{sT0}, {KEYB}")
    a(f"v_add_u32 v{vKR}, s{sT0}, v{vKR}")
    a(f"v_lshlrev_b32 v{vER}, 1, v{vKR}")
    a(f"v_mov_b32 v8, 0")
    a(f"v_mov_b32 v9, 0")
    a(f"s_waitcnt lgkmcnt(0)")
    a(f"v_readlane_b32 s{sT1}, v7, s{sWV}")
    a(f"v_readlane_b32 s{sT3}, v7, 16")
    a(f"v_cmp_lt_u32 vcc, v6, v7")
    a(f"s_and_b32 s{sT2}, vcc_lo, 0xffff")
    a(f"s_cbranch_scc1 {p}_overflow")
    a.c("pad the list with 64 dummy edges")
    a(f"v_lshl_add_u32 v6, v{vLANE}, 2, s{sT1}")
    a(f"v_lshlrev_b32 v7, 1, v6")
    a(f"v_mov_b32 v{vKEY}, 0x{N | (46 << 16):x}")
    a(f"ds_write_b32 v6, v{vKEY}")
    a(f"ds_write_b64 v7, v[8:9] offset:{EOFF}")
    a(f"s_sub_u32 s{sNT}, s{sT1}, s{sT0}")
    a(f"s_add_u32 s{sNT}, s{sNT}, 127")
    a(f"s_lshr_b32 s{sNT}, s{sNT}, 7")
    a(f"s_cbranch_scc0 {p}_tiles_done")
    a(f"s_mov_b32 s{sIT}, 0")
    rec_reads(a, 0)
    a(f"s_waitcnt lgkmcnt(0)")
    addr_cvt(a)
    addr_pack(a)
    image_build(a)
    addr_mfma(a)
    aex_reads(a)
    rec_reads(a, 1)
    a(f"s_nop 15")
    a(f"s_waitcnt lgkmcnt(0)")
    addr_cvt(a)
    addr_pack(a)
    gathers(a, RA, fused)
    addr_mfma(a)
    a(f"s_nop 15")
    a(f"s_nop 3")
    a.lab(f"{p}_tile")
    for k in range(4):
        if PRIO: a(f"s_setprio {3 - k}")
        tile_body(a, (RA, RBUF)[k & 1], (RBUF, RA)[k & 1], fused)
        a(f"s_cbranch_scc0 {p}_tiles_done" if k < 3 else f"s_cbranch_scc1 {p}_tile")
    a.lab(f"{p}_tiles_done")
    a(f"s_cmp_eq_u32 s{sT3}, 0")
    a(f"s_cbranch_scc1 {p}_epi")
    a(f"s_add_u32 s{sRB}, s{sRB}, s{sC}")
    a(f"s_branch {p}_next")
    a.lab(f"{p}_overflow")
    a(f"s_mov_b32 s{sC}, 2")
    a.lab(f"{p}_next")
    a.c("rare path: another round over the runs")
    a(f"s_waitcnt vmcnt(0) lgkmcnt(0)")
    a(f"s_barrier")
    init_counters(a, p, "r", False)
    rec_loads(a, p, "r", fused)
    a(f"s_waitcnt vmcnt(0) lgkmcnt(0)")
    a(f"s_barrier")
    append1(a, p, "r")
    a(f"s_waitcnt lgkmcnt(0)")
    a(f"s_branch {p}_round")
    a.lab(f"{p}_epi")
    stamp(a, 7)
    if STAMPS:
        a("s_memtime s[100:101]")
        a("s_waitcnt lgkmcnt(0)")
        a(f"s_sub_u32 s{sreg(11)}, s100, s{sreg(10)}")
    a.c("---------------- epilogue: silu, pack, store")
    a(f"v_and_b32 v6, 31, v{vLANE}")
    a(f"v_cmp_gt_u32 vcc, s{sNN}, v6")
    a(f"v_add_u32 v6, s{sNODE0}, v6")
    a(f"v_lshlrev_b32 v6, 8, v6")
    a(f"v_lshrrev_b32 v7, 5, v{vLANE}")
    a(f"v_lshl_add_u32 v6, v7, 5, v6")
    a(f"s_lshl_b32 s{sT0}, s{sSL}, 6")
    a(f"v_add_u32 v6, s{sT0}, v6")
    a(f"s_nop 7")
    for j in range(16):
        a(f"v_mul_f32 v{Z+j}, s{sNL2E}, v{ACC+j}")
    for j in range(16):
        a(f"v_exp_f32 v{Z+j}, v{Z+j}")
    for j in range(16):
        a(f"v_add_f32 v{Z+j}, 1.0, v{Z+j}")
    for j in range(16):
        a(f"v_rcp_f32 v{Z+j}, v{Z+j}")
    for j in range(16):
        a(f"v_mul_f32 v{Z+j}, v{Z+j}, v{ACC+j}")
    for k in range(8):
        a(f"v_cvt_pk_bf16_f32 v{AEX+k}, v{Z+2*k}, v{Z+2*k+1}")
    a(f"s_mov_b64 exec, vcc")
    a(f"buffer_store_dwordx4 {vr(AEX,4)}, v6, {sr(SRD_OUT,4)}, 0 offen")
    a(f"buffer_store_dwordx4 {vr(AEX+4,4)}, v6, {sr(SRD_OUT,4)}, 0 offen offset:16")


def kernel_header(name):
    return f""".globl {name}
.p2align 8
.type {name},@function
{name}:
"""

def kernel_desc(name):
    return f""".amdhsa_kernel {name}
  .amdhsa_next_free_vgpr 128
  .amdhsa_next_free_sgpr 102
  .amdhsa_accum_offset 128
  .amdhsa_group_segment_fixed_size 0
  .amdhsa_kernarg_size 80
  .amdhsa_user_sgpr_count 2
  .amdhsa_user_sgpr_kernarg_segment_ptr 1
  .amdhsa_system_sgpr_workgroup_id_x 1
.end_amdhsa_kernel
"""

def file_head():
    return open("cdna_kernels/" + NAME + ".s.ref").read().split("; Override launch geometry")[0]


def finish(a, kidx):
    stamp(a, 8)
    if STAMPS: a("s_waitcnt vmcnt(0)")
    stamp(a, 9)
    stamp_out(a, kidx, 12)


def gen_2k():
    k1, k2 = "mpnn_prep_kernel", NAME + "_kernel"
    a = A(); p = "K1"
    setup(a, p, True)
    stamp(a, 0)
    bin_phase(a, p, False)
    stamp(a, 2)
    gemm_setup(a)
    a("s_waitcnt vmcnt(0)")
    stamp(a, 3)
    gemm_pass(a, 1, 2, False)
    table_store(a, False)
    finish(a, 0)
    a.lab(f"{p}_end")
    a("s_endpgm")
    b = A(); p = "K2"
    setup(b, p, False)
    stamp(b, 0)
    hdr_addr(b)
    hdr_load(b, False)
    wdma(b)
    for i in range(7):
        xdma(b, i)
    init_counters(b, p, "a", True)
    load_C(b)
    gemm_setup(b)
    b("s_waitcnt vmcnt(11) lgkmcnt(0)")
    b("s_barrier")
    stamp(b, 1)
    hdr_decode(b)
    b("s_waitcnt vmcnt(0)")
    stamp(b, 2)
    rec_loads(b, p, "a", False)
    gemm_pass(b, 0, 3, True)
    stamp(b, 3)
    pop_pack(b)
    b("s_waitcnt vmcnt(0)")
    stamp(b, 4)
    append1(b, p, "a")
    b("s_waitcnt lgkmcnt(0)")
    b("s_barrier")
    stamp(b, 5)
    main_phase(b, p, False)
    finish(b, 1)
    b.lab(f"{p}_end")
    b("s_endpgm")
    s = file_head()
    s += f"; @launch kernel={k1} grid=(256,1,1) block=(1024,1,1) lds={LDS_BYTES}\n"
    s += f"; @launch kernel={k2} grid=(256,1,1) block=(1024,1,1) lds={LDS_BYTES}\n"
    s += '.amdgcn_target "amdgcn-amd-amdhsa--gfx950"\n.text\n'
    s += kernel_header(k1) + a.text() + kernel_header(k2) + b.text()
    s += '.section .rodata,"a"\n.p2align 6\n' + kernel_desc(k1) + ".p2align 6\n" + kernel_desc(k2)
    return s


def hdr_check(a):
    a(f"v_and_b32 v6, 0xf800f800, v14")
    a(f"v_cmp_ne_u32 vcc, s{sNON}, v15")
    a(f"v_cmp_ne_u32 {sr(sEX,2)}, s{sNOH}, v6")
    a(f"s_or_b64 vcc, vcc, {sr(sEX,2)}")


def gen_1k():
    k = NAME + "_kernel"
    a = A(); p = "K"
    setup(a, p, True)
    stamp(a, 0)
    bin_phase(a, p, True)
    stamp(a, 2)
    gemm_setup(a)
    load_C(a)
    hdr_addr(a, vHS)
    a("s_waitcnt vmcnt(0)")
    stamp(a, 3)
    hdr_load(a, True, vHS)
    a(f"v_mov_b32 v7, 0")
    a(f"ds_read_b32 v{vHL}, v7 offset:{NONCE}")
    gemm_pass(a, 1, 2, False)
    a(f"v_readfirstlane_b32 s{sNON}, v{vHL}")
    a(f"s_waitcnt vmcnt(0)")
    noh_from_non(a)
    hdr_check(a)
    a(f"s_cbranch_scc1 {p}_late")
    a(f"s_cmp_eq_u32 s{sNON}, 0")
    a(f"s_cbranch_scc1 {p}_late")
    hdr_decode(a)
    rec_loads(a, p, "a", True)
    table_store(a, True)
    a(f"s_branch {p}_pass2")
    a.lab(f"{p}_late")
    table_store(a, True)
    a(f"s_mov_b32 s{sSPIN}, {SPIN_MAX}")
    a.lab(f"{p}_hpoll")
    hdr_load(a, True, vHS)
    a(f"v_mov_b32 v7, 0")
    a(f"ds_read_b32 v{vHL}, v7 offset:{NONCE}")
    a(f"s_waitcnt vmcnt(0) lgkmcnt(0)")
    a(f"v_readfirstlane_b32 s{sNON}, v{vHL}")
    a(f"s_sub_u32 s{sSPIN}, s{sSPIN}, 1")
    a(f"s_cbranch_scc1 {p}_hok")
    noh_from_non(a)
    hdr_check(a)
    a(f"s_cbranch_scc1 {p}_hpoll")
    a(f"s_cmp_eq_u32 s{sNON}, 0")
    a(f"s_cbranch_scc1 {p}_hpoll")
    a.lab(f"{p}_hok")
    hdr_decode(a)
    rec_loads(a, p, "b", True)
    a.lab(f"{p}_pass2")
    stamp(a, 4)
    gemm_pass(a, 0, 3, True)
    pop_pack(a)
    a("s_waitcnt vmcnt(0)")
    append1(a, p, "a")
    a("s_waitcnt lgkmcnt(0)")
    a("s_barrier")
    stamp(a, 5)
    a.c("publish this workgroup's table rows")
    a(f"s_cmp_lg_u32 s{sWV}, 1")
    a(f"s_cbranch_scc1 {p}_nopub")
    a(f"s_lshl_b32 s{sT0}, s{sSL}, 6")
    a(f"s_add_u32 s{sT0}, s{sT0}, s{sBIN}")
    a(f"s_lshl_b32 s{sT0}, s{sT0}, 3")
    a(f"s_add_u32 s{sT0}, s{sT0}, {TFL_OFF}")
    a(f"s_not_b32 s{sT1}, s{sNON}")
    a(f"v_mov_b32 v6, s{sT0}")
    a(f"v_mov_b32 v8, s{sNON}")
    a(f"v_mov_b32 v9, s{sT1}")
    a(f"s_mov_b64 exec, 1")
    a(f"buffer_store_dwordx2 v[8:9], v6, {sr(SRD_HDR,4)}, 0 offen sc1")
    a(f"s_mov_b64 exec, -1")
    a.lab(f"{p}_nopub")
    main_phase(a, p, True)
    finish(a, 0)
    a.lab(f"{p}_end")
    a("s_endpgm")
    s = file_head()
    s += f"; @launch grid=(256,1,1) block=(1024,1,1) lds={LDS_BYTES}\n"
    s += '.amdgcn_target "amdgcn-amd-amdhsa--gfx950"\n.text\n'
    s += kernel_header(k) + a.text()
    s += '.section .rodata,"a"\n.p2align 6\n' + kernel_desc(k)
    return s


if __name__ == "__main__":
    if "-stamps" in sys.argv:
        STAMPS = True; sys.argv.remove("-stamps")
    if "-noprio" in sys.argv:
        PRIO = False; sys.argv.remove("-noprio")
    for x in list(sys.argv):
        if x.startswith("-D"):
            DIAG.add(x[2:]); sys.argv.remove(x)
    mode = gen_2k
    if "-1k" in sys.argv:
        mode = gen_1k; sys.argv.remove("-1k")
    out = sys.argv[1] if len(sys.argv) > 1 else "cdna_kernels/" + NAME + ".s"
    open(out, "w").write(mode())
    print("wrote", out, "LDS", LDS_BYTES)
```

```python
import sys

N = 25000
E = 400000
NAME = "gather_scatter__edge_featured_mpnn_egc__graph"

TS = 25024 * 128
REC_OFF = 0x1000000
REC_BYTES = 250 * 19200
HDR_OFF = 0x1800000
HDR_BYTES = 64 * 256 * 16
TFL_OFF = HDR_BYTES
HDR_SRD_BYTES = HDR_BYTES + 4 * 64 * 128
MAGIC_OFF = 0x4B000000

CNT = 0
LCNT = 256
NONCE = 384
DONE = 388
NON2 = 392
S2, S3, WF, XF = 396, 400, 404, 416
CSUM = 512
CAP = 500
LS = 564
KEYB = 768
EB = KEYB + 16 * LS * 4
EOFF = EB - 2 * KEYB
IMG = EB + 16 * LS * 8
XB = 768
XT = 26 * 256
WB = IMG
STG = IMG + 32768
LDS_BYTES = 163840
NI = 14
CFAST = 4 * NI
assert XB + 16 * XT + 6 * 256 <= IMG

SRD_X, SRD_E, SRD_SRC, SRD_DST, SRD_W, SRD_OUT, SRD_TS, SRD_TG, SRD_REC, SRD_HDR, SRD_G = [4 + 4 * i for i in range(11)]
SRD_DBG = SRD_E
KP = 48
sXM = 3
sWV, sBIN, sSL, sSPIN, sNODE0, sNN = 68, 69, 70, 71, 72, 73
sNL2E, sMAXF, sSELLO, sSELHI, sMAGIC, s127, sM1, sM2, sM3, sM4, sSTG, sKMAX = range(74, 86)
sHM = 86
sT0, sT1, sT2, sT3 = 88, 89, 90, 91
sRB, sC, sNT, sIT = 92, 93, 94, 95
sEX = 96
sNON, sNOH = 98, 99
sRET = 64
MASKS = [4 + 2 * i for i in range(10)] + [44, 46, 56, 58]
SPIN_MAX = 40000

vLANE = 1
T1 = 16; ACC = 32; RING = 48; REC = 72
POP, AEX, SAG = 48, 56, 64
OFF = 16
RA, RBUF, Z = 72, 88, 104


class A:
    def __init__(self):
        self.l = []
    def __call__(self, s):
        for x in s.strip("\n").split("\n"):
            self.l.append("    " + x.strip())
    def lab(self, s):
        self.l.append(s + ":")
    def c(self, s):
        self.l.append("    ; " + s)
    def text(self):
        return "\n".join(self.l) + "\n"


def vr(a, n):
    return f"v[{a}:{a+n-1}]"
def sr(a, n):
    return f"s[{a}:{a+n-1}]"


STAMPS = False
PRIO = True
DIAG = set()
STAMP_OFF = 0x2000000
def sreg(i):
    return KP + i if i < 8 else KP + 4 + i
def stamp(a, i):
    if not STAMPS: return
    a(f"s_memrealtime s[100:101]")
    a(f"s_waitcnt lgkmcnt(0)")
    a(f"s_mov_b32 s{sreg(i)}, s100")

def stamp_out(a, kidx, n):
    if not STAMPS: return
    a(f"s_mov_b64 exec, -1")
    a(f"s_add_u32 s{sT2}, s{KP+18}, 0x{STAMP_OFF + kidx * 0x100000:x}")
    a(f"s_addc_u32 s{sT3}, s{KP+19}, 0")
    srd(a, SRD_W, sT2, sT3, 0x100000)
    a(f"s_lshl_b32 s{sT0}, s2, 4")
    a(f"s_add_u32 s{sT0}, s{sT0}, s{sWV}")
    a(f"s_lshl_b32 s{sT0}, s{sT0}, 6")
    a(f"v_mov_b32 v6, s{sT0}")
    for i in range(n):
        a(f"v_mov_b32 v7, s{sreg(i)}")
        a(f"buffer_store_dword v7, v6, {sr(SRD_W,4)}, 0 offen offset:{4*i}")


def srd(a, d, lo, hi, nbytes):
    a(f"s_mov_b32 s{d}, s{lo}")
    a(f"s_mov_b32 s{d+1}, s{hi}")
    a(f"s_mov_b32 s{d+2}, {nbytes}")
    a(f"s_mov_b32 s{d+3}, 0x00020000")


def setup(a, p):
    a.c("---------------- setup")
    a(f"s_cmp_ge_u32 s2, 256")
    a(f"s_cbranch_scc1 {p}_end")
    a(f"s_load_dwordx16 {sr(KP,16)}, s[0:1], 0")
    a(f"s_load_dwordx4 {sr(KP+16,4)}, s[0:1], 64")
    a(f"v_lshrrev_b32 v2, 6, v0")
    a(f"v_and_b32 v{vLANE}, 63, v0")
    a(f"v_readfirstlane_b32 s{sWV}, v2")
    a(f"s_and_b32 s{sT0}, s2, 7")
    a(f"s_lshr_b32 s{sSL}, s{sT0}, 1")
    a(f"s_lshr_b32 s{sBIN}, s2, 3")
    a(f"s_and_b32 s{sT0}, s2, 1")
    a(f"s_lshl_b32 s{sT0}, s{sT0}, 5")
    a(f"s_or_b32 s{sBIN}, s{sBIN}, s{sT0}")
    a(f"s_mul_i32 s{sT0}, s2, 6400")
    a(f"v_lshl_add_u32 v3, v0, 4, s{sT0}")
    a(f"v_lshlrev_b32 v4, 1, v3")
    a(f"s_mul_i32 s{sT1}, s{sSL}, {TS}")
    a(f"s_waitcnt lgkmcnt(0)")
    x, e, src, dst, u, v, g, out, dbg, ws = [KP + 2 * i for i in range(10)]
    srd(a, SRD_DST, dst, dst + 1, E * 4)
    srd(a, SRD_SRC, src, src + 1, E * 4)
    srd(a, SRD_E, e, e + 1, E * 8)
    a(f"s_cmp_ge_u32 s{sWV}, 7")
    a(f"s_cbranch_scc1 {p}_noedge")
    a(f"buffer_load_dwordx4 {vr(vD,4)}, v3, {sr(SRD_DST,4)}, 0 offen")
    a(f"buffer_load_dwordx4 {vr(vS,4)}, v3, {sr(SRD_SRC,4)}, 0 offen")
    a(f"buffer_load_dwordx4 {vr(vE,4)}, v4, {sr(SRD_E,4)}, 0 offen")
    a(f"buffer_load_dwordx4 {vr(vE+4,4)}, v4, {sr(SRD_E,4)}, 0 offen offset:16")
    a.lab(f"{p}_noedge")
    a(f"s_lshl_b32 s{sT0}, s{sBIN}, 4")
    a(f"s_add_u32 s{sT0}, s{sT0}, s{sWV}")
    a(f"s_mul_i32 s{sT0}, s{sT0}, 3125")
    a(f"s_lshr_b32 s{sNODE0}, s{sT0}, 7")
    a(f"s_add_u32 s{sT0}, s{sT0}, 3125")
    a(f"s_lshr_b32 s{sNN}, s{sT0}, 7")
    a(f"s_sub_u32 s{sNN}, s{sNN}, s{sNODE0}")
    a(f"s_mul_i32 s{sXM}, s{sWV}, {XT}")
    a(f"s_add_u32 s{sXM}, s{sXM}, {XB}")
    a(f"s_mov_b32 s{sHM}, 0")
    a(f"s_mov_b32 s{sHM+1}, -1")
    srd(a, SRD_X, x, x + 1, N * 256)
    srd(a, SRD_OUT, out, out + 1, N * 256)
    srd(a, SRD_G, g, g + 1, 260 * 256)
    a(f"s_add_u32 s{sT2}, s{ws}, s{sT1}")
    a(f"s_addc_u32 s{sT3}, s{ws+1}, 0")
    srd(a, SRD_TS, sT2, sT3, (N + 1) * 128)
    a(f"s_sub_u32 s{sT2}, s{sT2}, 0x{MAGIC_OFF:x}")
    a(f"s_subb_u32 s{sT3}, s{sT3}, 0")
    srd(a, SRD_TG, sT2, sT3, MAGIC_OFF + (N + 1) * 128)
    a(f"s_add_u32 s{sT2}, s{ws}, 0x{REC_OFF:x}")
    a(f"s_addc_u32 s{sT3}, s{ws+1}, 0")
    srd(a, SRD_REC, sT2, sT3, REC_BYTES)
    a(f"s_add_u32 s{sT2}, s{ws}, 0x{HDR_OFF:x}")
    a(f"s_addc_u32 s{sT3}, s{ws+1}, 0")
    srd(a, SRD_HDR, sT2, sT3, HDR_SRD_BYTES)
    a(f"s_mov_b32 s{sNL2E}, 0xbfb8aa3b")
    a(f"s_mov_b32 s{sMAXF}, 0x7f7f0000")
    a(f"s_mov_b32 s{sSELLO}, 0x07060100")
    a(f"s_mov_b32 s{sSELHI}, 0x07060302")
    a(f"s_mov_b32 s{sMAGIC}, 10995117")
    a(f"s_mov_b32 s{s127}, 127")
    a(f"s_mov_b32 s{sM1}, 0x260000")
    a(f"s_mov_b32 s{sM2}, 0x100000")
    a(f"s_mov_b32 s{sM3}, 0x080000")
    a(f"s_mov_b32 s{sM4}, 0x3c000000")
    a(f"s_mov_b32 s{sSTG}, {STG}")
    a(f"s_mov_b32 s{sKMAX}, {EB - 4}")
    a(f"v_mov_b32 v{vONE}, 1")
    a(f"v_mov_b32 v10, 0")


def spin(a, lab, off, val):
    a.lab(lab)
    a(f"ds_read_b32 v11, v10 offset:{off}")
    a(f"s_waitcnt lgkmcnt(0)")
    a(f"v_readfirstlane_b32 s{sT0}, v11")
    a(f"s_cmp_lt_u32 s{sT0}, {val}")
    a(f"s_cbranch_scc1 {lab}")


def signal(a, off):
    a(f"s_mov_b64 exec, 1")
    a(f"ds_add_u32 v10, v{vONE} offset:{off}")
    a(f"s_mov_b64 exec, -1")


def init_counters(a, p, tag, with_cnt):
    a.c("wave 0: bin counters = 0, list cursors = list starts")
    a(f"s_cmp_lg_u32 s{sWV}, 0")
    a(f"s_cbranch_scc1 {p}_ic{tag}")
    a(f"v_lshlrev_b32 v7, 2, v{vLANE}")
    a(f"v_mul_u32_u24 v8, {LS}, v7")
    a(f"v_add_u32 v8, {KEYB}, v8")
    a(f"v_cmp_gt_u32 vcc, 16, v{vLANE}")
    a(f"v_mov_b32 v9, 0")
    a(f"s_nop 0")
    a(f"v_cndmask_b32 v8, 0, v8, vcc")
    if with_cnt:
        a(f"ds_write_b32 v7, v9 offset:{CNT}")
        a(f"ds_write_b32 v7, v9 offset:{CSUM}")
        a(f"ds_write_b32 v7, v8 offset:{LCNT}")
    else:
        a(f"s_not_b64 exec, {sr(sHM,2)}")
        a(f"ds_write_b32 v7, v8 offset:{LCNT}")
        a(f"s_mov_b64 exec, -1")
    a.lab(f"{p}_ic{tag}")


def scan64(a, v):
    for sh in (1, 2, 4, 8):
        a(f"s_nop 1")
        a(f"v_add_u32_dpp v{v}, v{v}, v{v} row_shr:{sh} row_mask:0xf bank_mask:0xf bound_ctrl:0")
    a(f"s_nop 1")
    a(f"v_add_u32_dpp v{v}, v{v}, v{v} row_bcast:15 row_mask:0xa bank_mask:0xf")
    a(f"s_nop 1")
    a(f"v_add_u32_dpp v{v}, v{v}, v{v} row_bcast:31 row_mask:0xc bank_mask:0xf")


vD, vS, vE, vK, vB, vR = 72, 76, 80, 88, 92, 96
vTa, vTb, vTc = 100, 101, 102
vONE = 2


def offsets_scan(a):
    a(f"v_lshlrev_b32 v{vTa}, 2, v{vLANE}")
    a(f"ds_read_b32 v{vTb}, v{vTa} offset:{CNT}")
    a(f"s_waitcnt lgkmcnt(0)")
    a(f"v_mov_b32 v{vTc}, v{vTb}")
    scan64(a, vTc)
    a(f"v_sub_u32 v{vTc}, v{vTc}, v{vTb}")


def noh_from_non(a):
    a(f"s_mul_i32 s{sNOH}, s{sNON}, 0x9e3779b1")
    a(f"s_and_b32 s{sNOH}, s{sNOH}, 0xf800f800")


def front(a, p):
    a(f"s_cmp_lg_u32 s{sWV}, 7")
    a(f"s_cbranch_scc1 {p}_f_noinit")
    a.c("wave 7: bin counters, checksums, flags = 0, list cursors = list starts")
    a(f"v_lshlrev_b32 v7, 2, v{vLANE}")
    a(f"v_mul_u32_u24 v8, {LS}, v7")
    a(f"v_add_u32 v8, {KEYB}, v8")
    a(f"v_cmp_gt_u32 vcc, 16, v{vLANE}")
    a(f"ds_write_b32 v7, v10 offset:{CNT}")
    a(f"ds_write_b32 v7, v10 offset:{CSUM}")
    a(f"v_cndmask_b32 v8, 0, v8, vcc")
    a(f"ds_write_b32 v7, v8 offset:{LCNT}")
    a(f"s_waitcnt lgkmcnt(0)")
    a.lab(f"{p}_f_noinit")
    a(f"s_cmp_lg_u32 s{sWV}, 15")
    a(f"s_cbranch_scc1 {p}_tag_done")
    a.c("launch tag: workgroup 0 publishes a clock value in d_debug, everyone picks it up")
    srd(a, SRD_DBG, KP + 16, KP + 17, 256)
    a(f"s_cmp_lg_u32 s2, 0")
    a(f"s_cbranch_scc1 {p}_tag_done")
    a(f"s_memrealtime s[100:101]")
    a(f"s_waitcnt lgkmcnt(0)")
    a(f"s_or_b32 s{sT0}, s100, 1")
    a(f"v_mov_b32 v13, s{sT0}")
    a(f"s_mov_b64 exec, 1")
    a(f"buffer_store_dword v13, v10, {sr(SRD_DBG,4)}, 0 offen sc1")
    a(f"s_mov_b64 exec, -1")
    a.lab(f"{p}_tag_done")
    a(f"s_barrier")
    a(f"s_cmp_eq_u32 s{sWV}, 15")
    a(f"s_cbranch_scc1 {p}_f_w15")
    a(f"s_cmp_ge_u32 s{sWV}, 7")
    a(f"s_cbranch_scc1 {p}_f_loader")

    a.c("---------------- waves 0-6: sort this workgroup's 1600 edges by destination bin")
    a(f"s_cmp_lt_u32 s2, 250")
    a(f"s_cselect_b32 s{sT0}, 400, 0")
    a(f"v_cmp_gt_u32 vcc, s{sT0}, v0")
    a(f"s_mov_b64 {sr(sEX,2)}, vcc")
    a(f"s_waitcnt vmcnt(3)")
    stamp(a, 1)
    for e in range(4):
        a(f"v_lshl_or_b32 v{vK+e}, v{vD+e}, 7, s{s127}")
        a(f"v_mul_hi_u32 v{vK+e}, v{vK+e}, s{sMAGIC}")
        a(f"v_lshrrev_b32 v{vB+e}, 5, v{vK+e}")
        a(f"v_and_b32 v{vB+e}, 0xfc, v{vB+e}")
    a(f"s_mov_b64 exec, {sr(sEX,2)}")
    for e in range(4):
        a(f"ds_add_rtn_u32 v{vR+e}, v{vB+e}, v{vONE} offset:{CNT}")
    signal(a, S2)
    for e in range(4):
        d, k = vD + e, vK + e
        a(f"v_lshrrev_b32 v{vTa}, 3, v{k}")
        a(f"v_mul_u32_u24 v{vTb}, 3125, v{vTa}")
        a(f"v_lshrrev_b32 v{vTb}, 7, v{vTb}")
        a(f"v_sub_u32 v{vTb}, v{d}, v{vTb}")
        a(f"v_lshlrev_b32 v{k}, 26, v{vTa}")
        a(f"v_and_b32 v{k}, s{sM4}, v{k}")
        a(f"v_lshlrev_b32 v{vTc}, 17, v{vTb}")
        a(f"v_and_or_b32 v{k}, v{vTc}, s{sM1}, v{k}")
        a(f"v_lshlrev_b32 v{vTc}, 18, v{vTb}")
        a(f"v_and_or_b32 v{k}, v{vTc}, s{sM2}, v{k}")
        a(f"v_lshlrev_b32 v{vTc}, 16, v{vTb}")
        a(f"v_and_or_b32 v{k}, v{vTc}, s{sM3}, v{k}")
    a(f"s_lshl_b32 s{sT1}, s{sWV}, 10")
    a(f"v_lshl_add_u32 v3, v{vLANE}, 4, s{sT1}")
    a(f"v_add_u32 v7, {STG}, v3")
    a(f"s_mul_i32 s{sT1}, s2, 19200")
    a(f"v_add_u32 v3, s{sT1}, v3")
    spin(a, f"{p}_f_s2", S2, 7)
    stamp(a, 10)
    offsets_scan(a)
    for e in range(4):
        a(f"ds_bpermute_b32 v{vD+e}, v{vB+e}, v{vTc}")
    a(f"s_waitcnt vmcnt(0)")
    for e in range(4):
        a(f"v_or_b32 v{vK+e}, v{vK+e}, v{vS+e}")
        a(f"v_add3_u32 v{vS+e}, v{vE+2*e}, v{vE+2*e+1}, v{vK+e}")
    a(f"s_waitcnt lgkmcnt(0)")
    for e in range(4):
        a(f"v_add_u32 v{vR+e}, v{vR+e}, v{vD+e}")
        a(f"v_mad_u32_u24 v{vR+e}, v{vR+e}, 12, s{sSTG}")
    a(f"s_mov_b64 exec, {sr(sEX,2)}")
    for e in range(4):
        a(f"ds_write2_b32 v{vR+e}, v{vE+2*e}, v{vE+2*e+1} offset0:0 offset1:1")
        a(f"ds_write_b32 v{vR+e}, v{vK+e} offset:8")
        a(f"ds_add_u32 v{vB+e}, v{vS+e} offset:{CSUM}")
    signal(a, S3)
    spin(a, f"{p}_f_s3", S3, 7)
    a.c("copy the sorted records out: 1 KiB pieces wv, wv + 7, wv + 14")
    for k in range(3):
        a(f"ds_read_b128 {vr(104 + 4*k, 4)}, v7 offset:{7168*k}")
    signal(a, S3)
    a(f"v_add_u32 v4, 7168, v3")
    a(f"v_add_u32 v5, 14336, v3")
    a(f"s_waitcnt lgkmcnt(3)")
    a(f"buffer_store_dwordx4 {vr(104,4)}, v3, {sr(SRD_REC,4)}, 0 offen sc1")
    a(f"s_waitcnt lgkmcnt(2)")
    a(f"buffer_store_dwordx4 {vr(108,4)}, v4, {sr(SRD_REC,4)}, 0 offen sc1")
    a(f"s_cmp_gt_u32 s{sWV}, 4")
    a(f"s_cbranch_scc1 {p}_f_done")
    a(f"s_cmp_eq_u32 s{sWV}, 4")
    a(f"s_cselect_b32 exec_hi, 0xffff, -1")
    a(f"s_waitcnt lgkmcnt(1)")
    a(f"buffer_store_dwordx4 {vr(112,4)}, v5, {sr(SRD_REC,4)}, 0 offen sc1")
    a(f"s_mov_b64 exec, -1")
    a(f"s_branch {p}_f_done")

    a.c("---------------- waves 7-14: stream the weights and the x tiles into LDS")
    a.lab(f"{p}_f_loader")
    a(f"s_setprio 2")
    u, v, g = KP + 8, KP + 10, KP + 12
    a(f"s_sub_u32 s{sT3}, s{sWV}, 7")
    a(f"s_cmp_lt_u32 s{sT3}, 6")
    a(f"s_cselect_b64 {sr(SRD_W,2)}, {sr(v,2)}, {sr(u,2)}")
    a(f"s_mov_b32 s{SRD_W+2}, 32768")
    a(f"s_and_b32 s{sT0}, s{sT3}, 1")
    a(f"s_cmp_lt_u32 s{sT3}, 4")
    a(f"s_cselect_b64 {sr(SRD_W,2)}, {sr(g,2)}, {sr(SRD_W,2)}")
    a(f"s_cselect_b32 s{SRD_W+2}, 65536, s{SRD_W+2}")
    a(f"s_cselect_b32 s{sT0}, s{sT3}, s{sT0}")
    a(f"s_mov_b32 s{SRD_W+3}, 0x00020000")
    a(f"s_lshl_b32 s{sT0}, s{sT0}, 14")
    a(f"s_lshl_b32 s{sT1}, s{sSL}, 6")
    a(f"s_add_u32 s{sT0}, s{sT0}, s{sT1}")
    a(f"v_lshrrev_b32 v4, 2, v{vLANE}")
    a(f"v_lshl_add_u32 v4, v4, 8, s{sT0}")
    a(f"v_and_b32 v6, 3, v{vLANE}")
    a(f"v_lshl_add_u32 v4, v6, 4, v4")
    a(f"s_lshl_b32 s{sT0}, s{sT3}, 12")
    for d in range(4):
        a(f"s_add_u32 m0, s{sT0}, {WB + 1024 * d}")
        a(f"s_mov_b32 s{sT1}, {4096 * d}")
        a(f"buffer_load_dwordx4 v4, {sr(SRD_W,4)}, s{sT1} offen lds")
    a(f"s_setprio 1")
    a(f"v_lshrrev_b32 v6, 4, v{vLANE}")
    a(f"v_xor_b32 v7, v6, v{vLANE}")
    a(f"v_and_b32 v7, 15, v7")
    a(f"v_lshlrev_b32 v72, 8, v6")
    a(f"v_lshl_add_u32 v72, v7, 4, v72")
    for k in range(1, 4):
        a(f"v_xor_b32 v{72+k}, {64*k}, v72")
    a(f"s_cmp_eq_u32 s{sT3}, 7")
    a(f"s_cselect_b32 s{sT3}, 15, s{sT3}")
    for n, tw in enumerate((sT3, sWV)):
        a(f"s_mul_i32 s{sT2}, s{tw}, {XT}")
        a(f"s_lshl_b32 s{sT1}, s{sBIN}, 4")
        a(f"s_add_u32 s{sT1}, s{sT1}, s{tw}")
        a(f"s_mul_i32 s{sT1}, s{sT1}, 3125")
        a(f"s_lshr_b32 s{sT1}, s{sT1}, 7")
        a(f"s_lshl_b32 s{sT1}, s{sT1}, 8")
        for i in range(7):
            a(f"s_add_u32 m0, s{sT2}, {XB + 1024 * i}")
            a(f"v_add_u32 v6, s{sT1}, v{72 + (i & 3)}")
            if i < 6:
                a(f"s_add_u32 s{sT1}, s{sT1}, 1024")
            else:
                a(f"s_not_b64 exec, {sr(sHM,2)}")
            a(f"buffer_load_dwordx4 v6, {sr(SRD_X,4)}, 0 offen lds")
        a(f"s_mov_b64 exec, -1")
        if n == 0:
            a(f"s_setprio 0")
            a(f"s_waitcnt vmcnt(7)")
            signal(a, WF)
            stamp(a, 10)
        a(f"s_lshl_b32 s{sT0}, s{tw}, 2")
        a(f"v_mov_b32 v6, s{sT0}")
        a(f"s_waitcnt vmcnt(0)")
        a(f"ds_write_b32 v6, v{vONE} offset:{XF}")
        if n == 0:
            stamp(a, 1)
    a(f"s_branch {p}_f_done")

    a.c("---------------- wave 15 publishes / collects the headers")
    a.lab(f"{p}_f_w15")
    a(f"s_setprio 3")
    a(f"s_lshl_b32 s{sT0}, s2, 10")
    a(f"v_lshl_add_u32 v4, v{vLANE}, 4, s{sT0}")
    a(f"s_mov_b32 s{sSPIN}, {SPIN_MAX}")
    a.lab(f"{p}_tag_loop")
    a(f"buffer_load_dword v13, v10, {sr(SRD_DBG,4)}, 0 offen sc1")
    a(f"s_waitcnt vmcnt(0)")
    a(f"v_readfirstlane_b32 s{sNON}, v13")
    a(f"s_cmp_lg_u32 s{sNON}, 0")
    a(f"s_cbranch_scc1 {p}_tag_ok")
    a(f"s_sub_u32 s{sSPIN}, s{sSPIN}, 1")
    a(f"s_cbranch_scc0 {p}_tag_loop")
    a(f"v_mov_b32 v13, 1")
    a(f"s_mov_b32 s{sNON}, 1")
    a.lab(f"{p}_tag_ok")
    a(f"ds_write_b32 v10, v13 offset:{NON2}")
    noh_from_non(a)
    spin(a, f"{p}_f_s2b", S2, 7)
    offsets_scan(a)
    a(f"v_lshl_or_b32 v12, v{vTb}, 16, v{vTc}")
    a(f"v_or_b32 v12, s{sNOH}, v12")
    spin(a, f"{p}_f_s3b", S3, 7)
    a(f"ds_read_b32 v14, v{vTa} offset:{CSUM}")
    a(f"s_waitcnt lgkmcnt(0)")
    a(f"buffer_store_dwordx4 v[12:15], v4, {sr(SRD_HDR,4)}, 0 offen sc1")
    stamp(a, 1)
    a(f"s_lshl_b32 s{sT0}, s{sBIN}, 4")
    a(f"v_lshl_add_u32 v3, v{vLANE}, 12, s{sT0}")
    a(f"s_mov_b32 s{sSPIN}, {SPIN_MAX}")
    a(f"s_sleep 24")
    a.lab(f"{p}_hpoll")
    for k in range(4):
        a(f"buffer_load_dwordx3 {vr(72+4*k,3)}, v3, {sr(SRD_HDR,4)}, 0 offen offset:{1024*k} sc1")
    a(f"s_waitcnt vmcnt(0)")
    a(f"s_sub_u32 s{sSPIN}, s{sSPIN}, 1")
    a(f"s_cbranch_scc1 {p}_hok")
    for k in range(4):
        a(f"v_xor_b32 v{88+k}, s{sNON}, v{73+4*k}")
        a(f"v_xor_b32 v{92+k}, s{sNOH}, v{72+4*k}")
        a(f"v_and_b32 v{92+k}, 0xf800f800, v{92+k}")
    a(f"v_or3_b32 v88, v88, v89, v90")
    a(f"v_or3_b32 v92, v92, v93, v94")
    a(f"v_or3_b32 v88, v88, v91, v95")
    a(f"v_or_b32 v88, v88, v92")
    a(f"v_cmp_ne_u32 vcc, 0, v88")
    a(f"s_and_b64 exec, exec, vcc")
    a(f"s_cbranch_scc0 {p}_hok")
    a(f"s_sleep 8")
    a(f"s_branch {p}_hpoll")
    a.lab(f"{p}_hok")
    a(f"s_mov_b64 exec, -1")
    spin(a, f"{p}_f_s3c", S3, 14)
    a(f"v_lshlrev_b32 v7, 5, v{vLANE}")
    a(f"v_add_u32 v7, {STG}, v7")
    for k in range(4):
        a(f"ds_write2_b32 v7, v{72+4*k}, v{74+4*k} offset0:{2*k} offset1:{2*k+1}")
    a(f"ds_write_b32 v10, v13 offset:{NONCE}")
    stamp(a, 10)
    a(f"s_setprio 0")
    a.lab(f"{p}_f_done")


def wait_tile(a, p):
    a.c("wait for the weights, this wave's x tile and the end of the record copy-out (staging area reused)")
    a(f"s_lshl_b32 s{sT1}, s{sWV}, 2")
    a(f"v_mov_b32 v6, s{sT1}")
    a.lab(f"{p}_xw")
    a(f"ds_read_b32 v7, v6 offset:{XF}")
    a(f"ds_read2_b32 v[14:15], v{vZ0} offset0:{S3//4} offset1:{WF//4}")
    a(f"s_waitcnt lgkmcnt(0)")
    a(f"v_add3_u32 v7, v7, v14, v15")
    a(f"s_nop 0")
    a(f"v_readfirstlane_b32 s{sT0}, v7")
    a(f"s_cmp_eq_u32 s{sT0}, {1 + 14 + 8}")
    a(f"s_cbranch_scc1 {p}_xok")
    a(f"s_sleep 1")
    a(f"s_branch {p}_xw")
    a.lab(f"{p}_xok")


vZ0 = 2
vXA, vWA, vTMP = 3, 4, 5
def gemm_setup(a):
    a.c("---------------- GEMM addresses")
    a(f"v_and_b32 v6, 31, v{vLANE}")
    a(f"v_lshrrev_b32 v7, 5, v{vLANE}")
    a(f"v_xor_b32 v7, v7, v6")
    a(f"v_and_b32 v7, 15, v7")
    a(f"v_lshl_add_u32 v{vXA}, v6, 8, s{sXM}")
    a(f"v_lshl_add_u32 v{vXA}, v7, 4, v{vXA}")
    a(f"v_lshrrev_b32 v6, 5, v{vLANE}")
    a(f"v_lshlrev_b32 v{vWA}, 9, v6")
    a(f"v_bfe_u32 v6, v{vLANE}, 2, 2")
    a(f"v_lshl_add_u32 v{vWA}, v6, 6, v{vWA}")
    a(f"v_and_b32 v6, 1, v{vLANE}")
    a(f"v_lshl_add_u32 v{vWA}, v6, 5, v{vWA}")
    a(f"v_and_b32 v6, 16, v{vLANE}")
    a(f"v_add_u32 v{vWA}, v6, v{vWA}")
    a(f"v_and_b32 v6, 2, v{vLANE}")
    a(f"v_lshl_add_u32 v{vWA}, v6, 2, v{vWA}")
    a(f"v_add_u32 v{vWA}, {WB}, v{vWA}")


def gemm_pass(a, m1, m2, swap2):
    def load(s):
        r = RING + 12 * (s % 2)
        if s:
            a(f"v_xor_b32 v{vTMP}, {32*s}, v{vXA}")
        a(f"ds_read_b128 {vr(r,4)}, v{vTMP if s else vXA}")
        for k, m in enumerate((m1, m2)):
            for u in range(2):
                a(f"ds_read_b64_tr_b16 {vr(r+4+4*k+2*u,2)}, v{vWA} offset:{m*8192 + s*1024 + u*256}")
    load(0)
    load(1)
    for s in range(8):
        r = RING + 12 * (s % 2)
        a(f"s_waitcnt lgkmcnt({5 if s < 7 else 0})")
        c1 = "0" if s == 0 else vr(T1, 16)
        c2 = "0" if s == 0 else vr(ACC, 16)
        a(f"v_mfma_f32_32x32x16_bf16 {vr(T1,16)}, {vr(r,4)}, {vr(r+4,4)}, {c1}")
        if swap2:
            a(f"v_mfma_f32_32x32x16_bf16 {vr(ACC,16)}, {vr(r+8,4)}, {vr(r,4)}, {c2}")
        else:
            a(f"v_mfma_f32_32x32x16_bf16 {vr(ACC,16)}, {vr(r,4)}, {vr(r+8,4)}, {c2}")
        if s + 2 < 8:
            load(s + 2)


def table_store(a, fused):
    a.c("table rows: hi16 = -log2e * (x B), lo16 = bf16(1 / (x V)); 8 rows at a time through LDS, whole lines out")
    a(f"s_lshl_b32 s{sT1}, s{sWV}, 10")
    a(f"s_add_u32 s{sT1}, s{sT1}, {STG + 2048}")
    a(f"v_lshrrev_b32 v6, 5, v{vLANE}")
    a(f"v_lshl_add_u32 v6, v6, 9, s{sT1}")
    a(f"v_and_b32 v7, 31, v{vLANE}")
    a(f"v_lshl_add_u32 v6, v7, 2, v6")
    a(f"v_lshl_add_u32 v7, v{vLANE}, 4, s{sT1}")
    a(f"s_lshl_b32 s{sT0}, s{sNODE0}, 7")
    a(f"v_lshl_add_u32 v{vTMP}, v{vLANE}, 4, s{sT0}")
    a(f"s_nop 5")
    for j in range(0, 14, 2):
        for k in (j, j + 1):
            a(f"v_rcp_f32 v{ACC+k}, v{ACC+k}")
            a(f"v_mul_f32 v{T1+k}, s{sNL2E}, v{T1+k}")
        for k in (j, j + 1):
            a(f"v_med3_f32 v{ACC+k}, v{ACC+k}, s{sMAXF}, -s{sMAXF}")
        a(f"v_cvt_pk_bf16_f32 v{ACC+j}, v{ACC+j}, v{ACC+j+1}")
        a(f"v_perm_b32 v{T1+j}, v{T1+j}, v{ACC+j}, s{sSELLO}")
        a(f"v_perm_b32 v{T1+j+1}, v{T1+j+1}, v{ACC+j}, s{sSELHI}")
        for k in (j, j + 1):
            a(f"ds_write_b32 v6, v{T1+k} offset:{(k&3)*128}")
        if j % 4 == 2 or j == 12:
            g = j // 4
            a(f"ds_read_b128 {vr(RING+4*g,4)}, v7")
    for g in range(4):
        a(f"s_waitcnt lgkmcnt({(10, 5, 3, 0)[g] if False else 0})") if g == 0 else None
        if g == 3:
            a(f"s_mov_b64 exec, 0xffff")
        a(f"buffer_store_dwordx4 {vr(RING+4*g,4)}, v{vTMP}, {sr(SRD_TS,4)}, 0 offen offset:{1024*g} sc1")
    a(f"s_mov_b64 exec, -1")
    a(f"s_nop 0")


vC0 = 8
def load_C(a):
    a.c("edge-feature weights g_w[256+k][32*slice + pi(n)]")
    a(f"v_bfe_u32 v6, v{vLANE}, 2, 1")
    a(f"v_lshlrev_b32 v6, 5, v6")
    a(f"v_bfe_u32 v7, v{vLANE}, 3, 2")
    a(f"v_lshl_add_u32 v6, v7, 3, v6")
    a(f"v_and_b32 v7, 3, v{vLANE}")
    a(f"v_lshl_add_u32 v6, v7, 1, v6")
    a(f"s_lshl_b32 s{sT0}, s{sSL}, 6")
    a(f"s_add_u32 s{sT0}, s{sT0}, 65536")
    a(f"v_add_u32 v6, s{sT0}, v6")
    for k in range(4):
        a(f"buffer_load_ushort v{vC0+k}, v6, {sr(SRD_G,4)}, 0 offen offset:{256*k}")


def pop_pack(a):
    a.c("P' operand (rows 26.. replaced by the edge-feature weights / zero)")
    for k in range(4):
        a(f"v_lshlrev_b32 v{vC0+k}, 16, v{vC0+k}")
    for k in range(4):
        a(f"v_mul_f32 v{vC0+k}, s{sNL2E}, v{vC0+k}")
    a(f"v_cvt_pk_bf16_f32 v{vC0}, v{vC0}, v{vC0+1}")
    a(f"v_cvt_pk_bf16_f32 v{vC0+1}, v{vC0+2}, v{vC0+3}")
    a(f"s_nop 3")
    for k in range(14):
        a(f"v_mul_f32 v{T1+k}, s{sNL2E}, v{T1+k}")
    for k in range(7):
        a(f"v_cvt_pk_bf16_f32 v{POP+k}, v{T1+2*k}, v{T1+2*k+1}")
    a(f"v_cndmask_b32 v{POP+6}, v{POP+6}, v{vC0}, {sr(sHM,2)}")
    a(f"v_cndmask_b32 v{POP+7}, 0, v{vC0+1}, {sr(sHM,2)}")


vHS, vHL = 12, 13
def hdr_load(a, fused, addr=7):
    a(f"buffer_load_dwordx2 v[14:15], v{addr}, {sr(SRD_HDR,4)}, 0 offen{' sc1' if fused else ''}")

def hdr_addr(a, addr=7):
    a(f"v_lshrrev_b32 v{addr}, 2, v0")
    a(f"s_lshl_b32 s{sT0}, s{sBIN}, 4")
    a(f"v_lshl_add_u32 v{addr}, v{addr}, 10, s{sT0}")


def hdr_decode(a):
    a(f"v_and_b32 v6, 3, v0")
    a(f"v_and_b32 v7, 0x7ff, v14")
    a(f"v_add_u32 v7, v7, v6")
    a(f"v_mul_u32_u24 v7, 12, v7")
    a(f"v_lshrrev_b32 v{vHS}, 2, v0")
    a(f"v_mul_u32_u24 v{vHS}, 19200, v{vHS}")
    a(f"v_add_u32 v{vHS}, v{vHS}, v7")
    a(f"v_bfe_u32 v{vHL}, v14, 16, 11")
    a(f"v_sub_u32 v{vHL}, v{vHL}, v6")
    a(f"s_mov_b32 s{sRB}, 0")
    a(f"s_mov_b32 s{sC}, {CFAST}")


def rec_loads(a, p, tag, fused):
    sc = " sc1" if fused else ""
    a(f"v_subrev_u32 v7, s{sRB}, v{vHL}")
    a(f"v_and_b32 v6, 3, v0")
    a(f"v_sub_u32 v6, s{sC}, v6")
    a(f"v_min_i32 v7, v7, v6")
    a(f"s_mul_i32 s{sT0}, s{sRB}, 12")
    a(f"v_add_u32 v6, s{sT0}, v{vHS}")
    for i in range(NI):
        a(f"v_cmp_lt_i32 {sr(MASKS[i],2)}, {4*i}, v7")
    for i in range(NI):
        a(f"s_mov_b64 exec, {sr(MASKS[i],2)}")
        a(f"s_cbranch_execz {p}_rl_done{tag}")
        a(f"buffer_load_dwordx3 {vr(REC+4*i,3)}, v6, {sr(SRD_REC,4)}, 0 offen offset:{48*i}{sc}")
    a.lab(f"{p}_rl_done{tag}")
    a(f"s_mov_b64 exec, -1")


def append1(a, p, tag):
    a.c("---------------- list slots for the records (16 sub-block lists)")
    a(f"s_add_u32 s{sT0}, s{sRB}, s{sC}")
    a(f"v_and_b32 v6, 3, v0")
    a(f"v_add_u32 v6, v6, v{vHL}")
    a(f"v_cmp_lt_i32 vcc, s{sT0}, v6")
    a(f"v_mov_b32 v6, 4")
    a(f"v_mov_b32 v7, 64")
    a(f"s_mov_b64 exec, vcc")
    a(f"ds_add_u32 v7, v6 offset:{LCNT}")
    a(f"s_mov_b64 exec, -1")
    a(f"v_mov_b32 v7, 0x3c")
    for i in range(NI):
        q = REC + 4 * i
        a(f"s_mov_b64 exec, {sr(MASKS[i],2)}")
        a(f"s_cbranch_execz {p}_ap1{tag}")
        a(f"v_and_b32_sdwa v{q+3}, v{q+2}, v7 dst_sel:DWORD dst_unused:UNUSED_PAD src0_sel:BYTE_3 src1_sel:DWORD")
        a(f"ds_add_rtn_u32 v{q+3}, v{q+3}, v6 offset:{LCNT}")
    a.lab(f"{p}_ap1{tag}")
    a(f"s_mov_b64 exec, -1")


def append2(a, p):
    for i in range(NI):
        q = REC + 4 * i
        a(f"s_mov_b64 exec, {sr(MASKS[i],2)}")
        a(f"s_cbranch_execz {p}_ap2")
        a(f"v_min_u32 v{q+3}, s{sKMAX}, v{q+3}")
        a(f"v_lshlrev_b32 v6, 1, v{q+3}")
        a(f"ds_write_b32 v{q+3}, v{q+2}")
        a(f"ds_write_b64 v6, {vr(q,2)} offset:{EOFF}")
    a.lab(f"{p}_ap2")
    a(f"s_mov_b64 exec, -1")


vKR, vER, vIW, vIE, vIA0, vIA1, vIT0, vIT1, vOLD, vKEY = 4, 5, 120, 121, 122, 123, 124, 125, 126, 127
vEE, vB16, vZERO = 8, 10, 11
AD, BD = 2, 14


def image_setup(a):
    a.c("---------------- selection image addresses; zero the image")
    a(f"s_lshl_b32 s{sT0}, s{sWV}, 11")
    a(f"s_add_u32 s{sT0}, s{sT0}, {IMG}")
    a(f"v_lshl_add_u32 v6, v{vLANE}, 4, s{sT0}")
    for k in range(4):
        a(f"v_mov_b32 v{AEX+k}, 0")
    a(f"ds_write_b128 v6, {vr(AEX,4)}")
    a(f"ds_write_b128 v6, {vr(AEX,4)} offset:1024")
    a(f"v_mov_b32 v{vB16}, 0x3f80")
    a(f"v_mov_b32 v{vZERO}, 0")
    a(f"v_and_b32 v6, 31, v{vLANE}")
    a(f"v_mov_b32 v{AD+1}, 0x3f803f80")
    a(f"v_lshlrev_b32 v7, 2, v6")
    a(f"v_cvt_f32_u32 v7, v7")
    a(f"v_lshrrev_b32 v7, 16, v7")
    a(f"v_or_b32 v7, 0x4b000000, v7")
    a(f"v_mov_b32 v{BD}, 0x47004300")
    a(f"v_cndmask_b32 v{BD}, v{BD}, v{vZERO}, {sr(sHM,2)}")
    a(f"v_cndmask_b32 v{BD+1}, v7, v{vZERO}, {sr(sHM,2)}")
    a(f"v_lshl_add_u32 v6, v6, 6, s{sT0}")
    a(f"v_bfe_u32 v7, v{vLANE}, 2, 2")
    a(f"v_lshl_add_u32 v{vIW}, v7, 4, v6")
    a(f"v_xor_b32 v{vIE}, 56, v{vIW}")
    a(f"v_lshrrev_b32 v6, 5, v{vLANE}")
    a(f"v_lshlrev_b32 v{vIA0}, 4, v6")
    a(f"v_xor_b32 v{vIA0}, v{vIA0}, v{vIW}")
    a(f"v_xor_b32 v{vIA1}, 32, v{vIA0}")
    a(f"v_mov_b32 v{vOLD}, v{vIW}")
    a(f"v_lshl_add_u32 v7, v6, 2, v7")
    a(f"v_lshl_add_u32 v{vIT0}, v7, 6, s{sT0}")
    a(f"v_bfe_u32 v7, v{vLANE}, 4, 1")
    a(f"v_lshlrev_b32 v7, 1, v7")
    a(f"v_and_b32 v{vIT1}, 1, v{vLANE}")
    a(f"v_or_b32 v7, v7, v{vIT1}")
    a(f"v_xor_b32 v7, v7, v6")
    a(f"v_lshl_add_u32 v{vIT0}, v7, 4, v{vIT0}")
    a(f"v_and_b32 v7, 2, v{vLANE}")
    a(f"v_lshl_add_u32 v{vIT0}, v7, 2, v{vIT0}")
    a(f"v_xor_b32 v{vIT1}, 32, v{vIT0}")
    a(f"v_add_u32 v{vIT1}, 512, v{vIT1}")


def gathers(a, R, fused):
    sc = " sc1" if fused and "sc1g" in DIAG else ""
    if "nogather" in DIAG: return
    for k in range(16):
        a(f"buffer_load_dword v{R+k}, v{OFF+k}, {sr(SRD_TG,4)}, 0 offen{sc}")

def rec_reads(a, toff):
    a(f"ds_read_b32 v{vKEY}, v{vKR} offset:{toff*128}")
    a(f"ds_read_b64 {vr(vEE,2)}, v{vER} offset:{EOFF + toff*256}")

def image_build(a):
    a(f"ds_write_b16 v{vOLD}, v{vZERO}")
    a(f"v_xor_b32_sdwa v{vOLD}, v{vKEY}, v{vIW} dst_sel:DWORD dst_unused:UNUSED_PAD src0_sel:BYTE_2 src1_sel:DWORD")
    a(f"ds_write_b64 v{vIE}, {vr(vEE,2)}")
    a(f"ds_write_b16 v{vOLD}, v{vB16}")

def aex_reads(a):
    a(f"ds_read_b128 {vr(AEX,4)}, v{vIA0}")
    a(f"ds_read_b128 {vr(AEX+4,4)}, v{vIA1}")

def sag_reads(a):
    for s in range(2):
        a(f"ds_read_b64_tr_b16 {vr(SAG+4*s,2)}, v{vIT0} offset:{1024*s}")
        a(f"ds_read_b64_tr_b16 {vr(SAG+4*s+2,2)}, v{vIT1} offset:{1024*s}")

def addr_cvt(a):
    a(f"v_cvt_f32_ubyte0 v6, v{vKEY}")
    a(f"v_cvt_f32_ubyte1 v7, v{vKEY}")
def addr_pack(a):
    a(f"v_perm_b32 v{AD}, v7, v6, s{sSELHI}")
def addr_mfma(a):
    a(f"v_mfma_f32_32x32x8_bf16 {vr(OFF,16)}, {vr(AD,2)}, {vr(BD,2)}, 0")


def tile_body(a, R, Rn, fused, lb):
    gathers(a, Rn, fused)
    if PRIO:
        a(f"s_sub_u32 s{sT0}, s{sNT}, s{sIT}")
        for lvl, r in enumerate((1, 3, 6)):
            a(f"s_cmp_lg_u32 s{sT0}, {r}")
            a(f"s_cbranch_scc1 {lb}_p{lvl}")
            a(f"s_setprio {lvl}")
            a.lab(f"{lb}_p{lvl}")
    a(f"s_waitcnt vmcnt(16)")
    a(f"v_mfma_f32_32x32x16_bf16 {vr(Z,16)}, {vr(AEX,4)}, {vr(POP,4)}, {vr(R,16)}")
    a(f"v_mfma_f32_32x32x16_bf16 {vr(Z,16)}, {vr(AEX+4,4)}, {vr(POP+4,4)}, {vr(Z,16)}")
    if "nolds" not in DIAG:
        sag_reads(a)
        image_build(a)
        aex_reads(a)
    else:
        a("s_nop 9")
    rec_reads(a, 2)
    a(f"v_add_u32 v{vKR}, 128, v{vKR}")
    a(f"v_add_u32 v{vER}, 256, v{vER}")
    for j in range(16):
        if "notrans" not in DIAG: a(f"v_exp_f32 v{Z+j}, v{Z+j}")
        a(f"v_lshlrev_b32 v{R+j}, 16, v{R+j}")
    a(f"s_waitcnt lgkmcnt(0)")
    addr_cvt(a)
    for j in range(0, 16, 2):
        if "nopk" in DIAG:
            a(f"v_fma_f32 v{Z+j}, v{Z+j}, v{R+j}, v{R+j}")
            a(f"v_fma_f32 v{Z+j+1}, v{Z+j+1}, v{R+j+1}, v{R+j+1}")
        else:
            a(f"v_pk_fma_f32 {vr(Z+j,2)}, {vr(Z+j,2)}, {vr(R+j,2)}, {vr(R+j,2)}")
        if j == 0:
            addr_pack(a)
    addr_mfma(a)
    for j in range(16):
        if "notrans" not in DIAG: a(f"v_rcp_f32 v{Z+j}, v{Z+j}")
        if j >= 3 and j % 2 == 1:
            k = (j - 3) // 2
            a(f"v_cvt_pk_bf16_f32 v{R+k}, v{Z+2*k}, v{Z+2*k+1}")
    a(f"s_add_u32 s{sIT}, s{sIT}, 1")
    a(f"v_cvt_pk_bf16_f32 v{R+7}, v{Z+14}, v{Z+15}")
    a(f"s_cmp_lt_u32 s{sIT}, s{sNT}")
    a(f"v_mfma_f32_32x32x16_bf16 {vr(ACC,16)}, {vr(R,4)}, {vr(SAG,4)}, {vr(ACC,16)}")
    a(f"v_mfma_f32_32x32x16_bf16 {vr(ACC,16)}, {vr(R+4,4)}, {vr(SAG+4,4)}, {vr(ACC,16)}")


def tflag_wait(a, p):
    a.c("wave 0: wait until all 64 workgroups of this slice have published their table rows")
    a(f"s_cmp_lg_u32 s{sWV}, 0")
    a(f"s_cbranch_scc1 {p}_tf_done")
    a(f"ds_read_b32 v8, v{vZERO} offset:{NON2}")
    a(f"s_lshl_b32 s{sT0}, s{sSL}, 13")
    a(f"s_add_u32 s{sT0}, s{sT0}, {TFL_OFF}")
    a(f"v_lshl_add_u32 v6, v{vLANE}, 7, s{sT0}")
    a(f"s_waitcnt lgkmcnt(0)")
    a(f"v_readfirstlane_b32 s{sNON}, v8")
    a(f"s_not_b32 s{sT1}, s{sNON}")
    a(f"s_mov_b32 s{sSPIN}, {SPIN_MAX}")
    a.lab(f"{p}_tf_loop")
    a(f"buffer_load_dwordx2 v[8:9], v6, {sr(SRD_HDR,4)}, 0 offen sc1")
    a(f"s_waitcnt vmcnt(0)")
    a(f"v_cmp_ne_u32 vcc, s{sNON}, v8")
    a(f"v_cmp_ne_u32 {sr(sEX,2)}, s{sT1}, v9")
    a(f"s_or_b64 vcc, vcc, {sr(sEX,2)}")
    a(f"s_and_b64 exec, exec, vcc")
    a(f"s_cbranch_scc0 {p}_tf_end")
    a(f"s_sleep 4")
    a(f"s_sub_u32 s{sSPIN}, s{sSPIN}, 1")
    a(f"s_cbranch_scc0 {p}_tf_loop")
    a.lab(f"{p}_tf_end")
    a(f"s_mov_b64 exec, -1")
    a.lab(f"{p}_tf_done")


def main_phase(a, p, fused):
    a.lab(f"{p}_round")
    append2(a, p)
    image_setup(a)
    if fused:
        tflag_wait(a, p)
    a(f"s_waitcnt lgkmcnt(0)")
    a(f"s_barrier")
    stamp(a, 6)
    if STAMPS:
        a("s_memtime s[100:101]")
        a("s_waitcnt lgkmcnt(0)")
        a(f"s_mov_b32 s{sXM}, s100")
    a(f"v_and_b32 v6, 31, v{vLANE}")
    a(f"v_lshlrev_b32 v{vKR}, 2, v6")
    a(f"ds_read_b32 v7, v{vKR} offset:{LCNT}")
    a(f"v_mul_u32_u24 v6, {LS}, v{vKR}")
    a(f"v_add_u32 v6, {KEYB + 4*CAP}, v6")
    a(f"s_mul_i32 s{sT0}, s{sWV}, {LS*4}")
    a(f"s_add_u32 s{sT0}, s{sT0}, {KEYB}")
    a(f"v_add_u32 v{vKR}, s{sT0}, v{vKR}")
    a(f"v_lshlrev_b32 v{vER}, 1, v{vKR}")
    a(f"v_mov_b32 v8, 0")
    a(f"v_mov_b32 v9, 0")
    a(f"s_waitcnt lgkmcnt(0)")
    a(f"v_readlane_b32 s{sT1}, v7, s{sWV}")
    a(f"v_readlane_b32 s{sT3}, v7, 16")
    a(f"v_cmp_lt_u32 vcc, v6, v7")
    a(f"s_and_b32 s{sT2}, vcc_lo, 0xffff")
    a(f"s_cbranch_scc1 {p}_overflow")
    a.c("pad the list with 64 dummy edges")
    a(f"v_lshl_add_u32 v6, v{vLANE}, 2, s{sT1}")
    a(f"v_lshlrev_b32 v7, 1, v6")
    a(f"v_mov_b32 v{vKEY}, 0x{N | (46 << 16):x}")
    a(f"ds_write_b32 v6, v{vKEY}")
    a(f"ds_write_b64 v7, v[8:9] offset:{EOFF}")
    a(f"s_sub_u32 s{sNT}, s{sT1}, s{sT0}")
    a(f"s_add_u32 s{sNT}, s{sNT}, 127")
    a(f"s_lshr_b32 s{sNT}, s{sNT}, 7")
    a(f"s_cbranch_scc0 {p}_tiles_done")
    a(f"s_mov_b32 s{sIT}, 0")
    rec_reads(a, 0)
    a(f"s_waitcnt lgkmcnt(0)")
    addr_cvt(a)
    addr_pack(a)
    image_build(a)
    addr_mfma(a)
    aex_reads(a)
    rec_reads(a, 1)
    a(f"s_nop 15")
    a(f"s_waitcnt lgkmcnt(0)")
    addr_cvt(a)
    addr_pack(a)
    gathers(a, RA, fused)
    addr_mfma(a)
    a(f"s_nop 15")
    a(f"s_nop 3")
    if PRIO: a(f"s_setprio 3")
    a.lab(f"{p}_tile")
    for k in range(2):
        tile_body(a, (RA, RBUF)[k & 1], (RBUF, RA)[k & 1], fused, f"{p}_b{k}")
        a(f"s_cbranch_scc0 {p}_tiles_done" if k < 1 else f"s_cbranch_scc1 {p}_tile")
    a.lab(f"{p}_tiles_done")
    a(f"s_cmp_eq_u32 s{sT3}, 0")
    a(f"s_cbranch_scc1 {p}_epi")
    a(f"s_add_u32 s{sRB}, s{sRB}, s{sC}")
    a(f"s_branch {p}_next")
    a.lab(f"{p}_overflow")
    a(f"s_mov_b32 s{sC}, 2")
    a.lab(f"{p}_next")
    a.c("rare path: another round over the runs")
    a(f"s_waitcnt vmcnt(0) lgkmcnt(0)")
    a(f"s_barrier")
    init_counters(a, p, "r", False)
    rec_loads(a, p, "r", fused)
    a(f"s_waitcnt vmcnt(0) lgkmcnt(0)")
    a(f"s_barrier")
    append1(a, p, "r")
    a(f"s_waitcnt lgkmcnt(0)")
    a(f"s_branch {p}_round")
    a.lab(f"{p}_epi")
    stamp(a, 7)
    if STAMPS:
        a("s_memtime s[100:101]")
        a("s_waitcnt lgkmcnt(0)")
        a(f"s_sub_u32 s{sreg(9)}, s100, s{sXM}")
    a.c("---------------- epilogue: silu, pack, store")
    a(f"v_and_b32 v6, 31, v{vLANE}")
    a(f"v_cmp_gt_u32 vcc, s{sNN}, v6")
    a(f"v_add_u32 v6, s{sNODE0}, v6")
    a(f"v_lshlrev_b32 v6, 8, v6")
    a(f"v_lshrrev_b32 v7, 5, v{vLANE}")
    a(f"v_lshl_add_u32 v6, v7, 5, v6")
    a(f"s_lshl_b32 s{sT0}, s{sSL}, 6")
    a(f"v_add_u32 v6, s{sT0}, v6")
    a(f"s_nop 7")
    for j in range(16):
        a(f"v_mul_f32 v{Z+j}, s{sNL2E}, v{ACC+j}")
    for j in range(16):
        a(f"v_exp_f32 v{Z+j}, v{Z+j}")
    for j in range(16):
        a(f"v_add_f32 v{Z+j}, 1.0, v{Z+j}")
    for j in range(16):
        a(f"v_rcp_f32 v{Z+j}, v{Z+j}")
    for j in range(16):
        a(f"v_mul_f32 v{Z+j}, v{Z+j}, v{ACC+j}")
    for k in range(8):
        a(f"v_cvt_pk_bf16_f32 v{AEX+k}, v{Z+2*k}, v{Z+2*k+1}")
    a(f"s_mov_b64 exec, vcc")
    a(f"buffer_store_dwordx4 {vr(AEX,4)}, v6, {sr(SRD_OUT,4)}, 0 offen")
    a(f"buffer_store_dwordx4 {vr(AEX+4,4)}, v6, {sr(SRD_OUT,4)}, 0 offen offset:16")


def kernel_header(name):
    return f""".globl {name}
.p2align 8
.type {name},@function
{name}:
"""

def kernel_desc(name):
    return f""".amdhsa_kernel {name}
  .amdhsa_next_free_vgpr 128
  .amdhsa_next_free_sgpr 102
  .amdhsa_accum_offset 128
  .amdhsa_group_segment_fixed_size 0
  .amdhsa_kernarg_size 80
  .amdhsa_user_sgpr_count 2
  .amdhsa_user_sgpr_kernarg_segment_ptr 1
  .amdhsa_system_sgpr_workgroup_id_x 1
.end_amdhsa_kernel
"""

def file_head():
    return open("cdna_kernels/" + NAME + ".s.ref").read().split("; Override launch geometry")[0]


def finish(a, kidx):
    stamp(a, 8)
    stamp_out(a, kidx, 12)


def hdr_peek(a):
    a(f"v_mov_b32 v7, 0")
    a(f"ds_read_b32 v13, v7 offset:{NONCE}")
    a(f"ds_read_b64 v[14:15], v{vHS}")


def hdr_try(a, p, tag):
    a(f"v_readfirstlane_b32 s{sNT}, v13")
    a(f"s_cmp_eq_u32 s{sNT}, 0")
    a(f"s_cbranch_scc1 {p}_try{tag}")
    a(f"s_call_b64 {sr(sRET,2)}, {p}_sub_first")
    a.lab(f"{p}_try{tag}")


def csum_acc(a, p, tag):
    for i in range(NI):
        q = REC + 4 * i
        a(f"s_mov_b64 exec, {sr(MASKS[i],2)}")
        a(f"s_cbranch_execz {p}_cs{tag}")
        a(f"v_add3_u32 v2, v2, v{q}, v{q+1}")
        a(f"v_add_u32 v2, v2, v{q+2}")
    a.lab(f"{p}_cs{tag}")
    a(f"s_mov_b64 exec, -1")


def csum_check(a):
    a(f"s_nop 1")
    a(f"v_add_u32_dpp v2, v2, v2 quad_perm:[1,0,3,2] row_mask:0xf bank_mask:0xf")
    a(f"s_nop 1")
    a(f"v_add_u32_dpp v2, v2, v2 quad_perm:[2,3,0,1] row_mask:0xf bank_mask:0xf")
    a(f"v_cmp_ne_u32 vcc, v2, v15")
    a(f"s_cmp_lg_u64 vcc, 0")


def gen_1k():
    k = NAME + "_kernel"
    a = A(); p = "K"
    setup(a, p)
    stamp(a, 0)
    front(a, p)
    stamp(a, 2)
    if "frontonly" in DIAG:
        stamp_out(a, 0, 12)
        a("s_endpgm")
    load_C(a)
    gemm_setup(a)
    a(f"v_mov_b32 v{vZ0}, 0")
    a(f"v_lshrrev_b32 v{vHS}, 2, v0")
    a(f"v_lshlrev_b32 v{vHS}, 3, v{vHS}")
    a(f"v_add_u32 v{vHS}, {STG}, v{vHS}")
    wait_tile(a, p)
    stamp(a, 3)
    hdr_peek(a)
    a(f"s_waitcnt lgkmcnt(0)")
    hdr_try(a, p, "a")
    gemm_pass(a, 1, 2, False)
    a(f"s_cmp_lg_u32 s{sNT}, 0")
    a(f"s_cbranch_scc1 {p}_tryb")
    hdr_peek(a)
    a(f"s_waitcnt lgkmcnt(0)")
    hdr_try(a, p, "b")
    table_store(a, True)
    stamp(a, 4)
    gemm_pass(a, 0, 3, True)
    a(f"v_mov_b32 v7, 0")
    a(f"v_mov_b32 v6, 1")
    a("s_waitcnt vmcnt(0)")
    a.c("the last wave whose table rows are out publishes the workgroup's flag")
    a(f"s_mov_b64 exec, 1")
    a(f"ds_add_rtn_u32 v6, v7, v6 offset:{DONE}")
    a(f"s_mov_b64 exec, -1")
    a(f"ds_read_b32 v7, v7 offset:{NON2}")
    pop_pack(a)
    a(f"s_waitcnt lgkmcnt(0)")
    a(f"v_readfirstlane_b32 s{sT0}, v6")
    a(f"v_readfirstlane_b32 s{sNON}, v7")
    a(f"s_cmp_lg_u32 s{sT0}, 15")
    a(f"s_cbranch_scc1 {p}_nopub")
    a(f"s_lshl_b32 s{sT0}, s{sSL}, 6")
    a(f"s_add_u32 s{sT0}, s{sT0}, s{sBIN}")
    a(f"s_lshl_b32 s{sT0}, s{sT0}, 7")
    a(f"s_add_u32 s{sT0}, s{sT0}, {TFL_OFF}")
    a(f"s_not_b32 s{sT1}, s{sNON}")
    a(f"v_mov_b32 v6, s{sT0}")
    a(f"v_mov_b32 v8, s{sNON}")
    a(f"v_mov_b32 v9, s{sT1}")
    a(f"s_mov_b64 exec, 1")
    a(f"buffer_store_dwordx2 v[8:9], v6, {sr(SRD_HDR,4)}, 0 offen sc1")
    a(f"s_mov_b64 exec, -1")
    a.lab(f"{p}_nopub")
    a(f"s_cmp_lg_u32 s{sNT}, 0")
    a(f"s_cbranch_scc1 {p}_recs")
    a.lab(f"{p}_hwait")
    hdr_peek(a)
    a(f"s_waitcnt lgkmcnt(0)")
    a(f"v_readfirstlane_b32 s{sNT}, v13")
    a(f"s_cmp_eq_u32 s{sNT}, 0")
    a(f"s_cbranch_scc1 {p}_hwait")
    a(f"s_call_b64 {sr(sRET,2)}, {p}_sub_first")
    a("s_waitcnt vmcnt(0)")
    a.lab(f"{p}_recs")
    stamp(a, 11)
    a.c("the records must add up to the checksums published with the headers")
    csum_acc(a, p, "a")
    a(f"v_and_b32 v6, 3, v0")
    a(f"v_add_u32 v6, v6, v{vHL}")
    a(f"v_cmp_lt_i32 {sr(sEX,2)}, {CFAST}, v6")
    csum_check(a)
    a(f"s_cbranch_scc1 {p}_vslow")
    a(f"s_cmp_lg_u64 {sr(sEX,2)}, 0")
    a(f"s_cbranch_scc1 {p}_vslow")
    a.lab(f"{p}_valid")
    append1(a, p, "a")
    a("s_waitcnt lgkmcnt(0)")
    a("s_barrier")
    stamp(a, 5)
    if "nopf" not in DIAG:
        a.c("pull this workgroup's own table rows into the L2 (scratch destination in LDS)")
        a(f"s_mul_i32 s{sT0}, s{sBIN}, {16*3125}")
        a(f"s_lshr_b32 s{sT0}, s{sT0}, 7")
        a(f"s_lshl_b32 s{sT0}, s{sT0}, 7")
        a(f"s_mul_i32 s{sT1}, s{sWV}, 3072")
        a(f"s_add_u32 s{sT0}, s{sT0}, s{sT1}")
        a(f"v_lshl_add_u32 v6, v{vLANE}, 4, s{sT0}")
        a(f"s_mov_b32 m0, {STG + 2048}")
        a(f"s_nop 0")
        for kk in range(3):
            a(f"buffer_load_dwordx4 v6, {sr(SRD_TS,4)}, 0 offen offset:{1024*kk} lds")
    main_phase(a, p, True)
    finish(a, 0)
    a.lab(f"{p}_end")
    a("s_endpgm")
    a.c("---------------- subroutines / rare paths")
    a.lab(f"{p}_sub_first")
    hdr_decode(a)
    a.lab(f"{p}_sub_loads")
    rec_loads(a, p, "s", True)
    a(f"s_setpc_b64 {sr(sRET,2)}")
    a.lab(f"{p}_vslow")
    a.c("long runs, or records not yet visible: add up every run completely, again until it fits")
    a(f"s_mov_b32 s{sSPIN}, {SPIN_MAX}")
    a.lab(f"{p}_vs_retry")
    a(f"s_mov_b32 s{sRB}, 0")
    a(f"v_mov_b32 v2, 0")
    a.lab(f"{p}_vs_part")
    a(f"s_call_b64 {sr(sRET,2)}, {p}_sub_loads")
    a(f"s_waitcnt vmcnt(0)")
    csum_acc(a, p, "v")
    a(f"s_add_u32 s{sRB}, s{sRB}, {CFAST}")
    a(f"v_and_b32 v6, 3, v0")
    a(f"v_add_u32 v6, v6, v{vHL}")
    a(f"v_cmp_lt_i32 vcc, s{sRB}, v6")
    a(f"s_cmp_lg_u64 vcc, 0")
    a(f"s_cbranch_scc1 {p}_vs_part")
    csum_check(a)
    a(f"s_cbranch_scc0 {p}_vs_ok")
    a(f"s_sub_u32 s{sSPIN}, s{sSPIN}, 1")
    a(f"s_cbranch_scc0 {p}_vs_retry")
    a.lab(f"{p}_vs_ok")
    a(f"s_mov_b32 s{sRB}, 0")
    a(f"s_call_b64 {sr(sRET,2)}, {p}_sub_loads")
    a(f"s_waitcnt vmcnt(0)")
    a(f"s_branch {p}_valid")
    s = file_head()
    s += f"; @launch grid=(256,1,1) block=(1024,1,1) lds={LDS_BYTES}\n"
    s += '.amdgcn_target "amdgcn-amd-amdhsa--gfx950"\n.text\n'
    s += kernel_header(k) + a.text()
    s += '.section .rodata,"a"\n.p2align 6\n' + kernel_desc(k)
    return s


if __name__ == "__main__":
    if "-stamps" in sys.argv:
        STAMPS = True; sys.argv.remove("-stamps")
    if "-noprio" in sys.argv:
        PRIO = False; sys.argv.remove("-noprio")
    for x in list(sys.argv):
        if x.startswith("-D"):
            DIAG.add(x[2:]); sys.argv.remove(x)
    mode = gen_1k
    if "-1k" in sys.argv:
        mode = gen_1k; sys.argv.remove("-1k")
    out = sys.argv[1] if len(sys.argv) > 1 else "cdna_kernels/" + NAME + ".s"
    open(out, "w").write(mode())
    print("wrote", out, "LDS", LDS_BYTES)
```

```python
import sys

N = 25000
E = 400000
NAME = "gather_scatter__edge_featured_mpnn_egc__graph"

TS = 25024 * 128
REC_OFF = 0x1000000
REC_BYTES = 250 * 19200
HDR_OFF = 0x1800000
HDR_BYTES = 64 * 256 * 16
TFL_OFF = HDR_BYTES
HDR_SRD_BYTES = HDR_BYTES + 4 * 64 * 128
MAGIC_OFF = 0x4B000000

CNT = 0
LCNT = 256
NONCE = 384
DONE = 388
NON2 = 392
S2, S3, WF, XF = 396, 400, 404, 416
CSUM = 512
CAP = 500
LS = 564
KEYB = 768
EB = KEYB + 16 * LS * 4
EOFF = EB - 2 * KEYB
IMG = EB + 16 * LS * 8
XB = 768
XT = 26 * 256
WB = IMG
STG = IMG + 32768
LDS_BYTES = 163840
NI = 14
CFAST = 4 * NI
assert XB + 16 * XT + 6 * 256 <= IMG

SRD_X, SRD_E, SRD_SRC, SRD_DST, SRD_W, SRD_OUT, SRD_TS, SRD_TG, SRD_REC, SRD_HDR, SRD_G = [4 + 4 * i for i in range(11)]
SRD_DBG = SRD_E
KP = 48
sXM = 3
sWV, sBIN, sSL, sSPIN, sNODE0, sNN = 68, 69, 70, 71, 72, 73
sNL2E, sMAXF, sSELLO, sSELHI, sMAGIC, s127, sM1, sM2, sM3, sM4, sSTG, sKMAX = range(74, 86)
sHM = 86
sT0, sT1, sT2, sT3 = 88, 89, 90, 91
sRB, sC, sNT, sIT = 92, 93, 94, 95
sEX = 96
sNON, sNOH = 98, 99
sRET = 64
MASKS = [4 + 2 * i for i in range(10)] + [44, 46, 56, 58]
SPIN_MAX = 40000

vLANE = 1
T1 = 16; ACC = 32; RING = 48; REC = 72
POP, AEX, SAG = 48, 56, 64
OFF = 16
RA, RBUF, Z = 72, 88, 104


class A:
    def __init__(self):
        self.l = []
    def __call__(self, s):
        for x in s.strip("\n").split("\n"):
            self.l.append("    " + x.strip())
    def lab(self, s):
        self.l.append(s + ":")
    def c(self, s):
        self.l.append("    ; " + s)
    def text(self):
        return "\n".join(self.l) + "\n"


def vr(a, n):
    return f"v[{a}:{a+n-1}]"
def sr(a, n):
    return f"s[{a}:{a+n-1}]"


STAMPS = False
PRIO = True
DIAG = set()
STAMP_OFF = 0x2000000
def sreg(i):
    return KP + i if i < 8 else KP + 4 + i
def stamp(a, i):
    if not STAMPS: return
    a(f"s_memrealtime s[100:101]")
    a(f"s_waitcnt lgkmcnt(0)")
    a(f"s_mov_b32 s{sreg(i)}, s100")

def stamp_out(a, kidx, n):
    if not STAMPS: return
    a(f"s_mov_b64 exec, -1")
    if "dbgmax" in DIAG:
        a(f"s_load_dwordx2 {sr(sT2,2)}, s[0:1], 64")
        a(f"s_waitcnt lgkmcnt(0)")
        srd(a, SRD_W, sT2, sT3, 256)
        a(f"v_mov_b32 v6, 0")
        a(f"ds_read_b32 v8, v6 offset:{NON2}")
        a(f"s_waitcnt lgkmcnt(0)")
        a(f"s_mov_b64 exec, 1")
        for i in (0, 2, 3, 4, 11, 5, 6, 7, 8):
            a(f"v_sub_u32 v7, s{sreg(i)}, v8")
            a(f"v_max_i32 v7, 0, v7")
            a(f"buffer_atomic_umax v7, v6, {sr(SRD_W,4)}, 0 offen offset:{4*(i+1)}")
        return
    a(f"s_add_u32 s{sT2}, s{KP+18}, 0x{STAMP_OFF + kidx * 0x100000:x}")
    a(f"s_addc_u32 s{sT3}, s{KP+19}, 0")
    srd(a, SRD_W, sT2, sT3, 0x100000)
    a(f"s_lshl_b32 s{sT0}, s2, 4")
    a(f"s_add_u32 s{sT0}, s{sT0}, s{sWV}")
    a(f"s_lshl_b32 s{sT0}, s{sT0}, 6")
    a(f"v_mov_b32 v6, s{sT0}")
    for i in range(n):
        a(f"v_mov_b32 v7, s{sreg(i)}")
        a(f"buffer_store_dword v7, v6, {sr(SRD_W,4)}, 0 offen offset:{4*i}")


def srd(a, d, lo, hi, nbytes):
    a(f"s_mov_b32 s{d}, s{lo}")
    a(f"s_mov_b32 s{d+1}, s{hi}")
    a(f"s_mov_b32 s{d+2}, {nbytes}")
    a(f"s_mov_b32 s{d+3}, 0x00020000")


def setup(a, p):
    a.c("---------------- setup")
    a(f"s_cmp_ge_u32 s2, 256")
    a(f"s_cbranch_scc1 {p}_end")
    a(f"s_load_dwordx16 {sr(KP,16)}, s[0:1], 0")
    a(f"s_load_dwordx4 {sr(KP+16,4)}, s[0:1], 64")
    a(f"v_lshrrev_b32 v2, 6, v0")
    a(f"v_and_b32 v{vLANE}, 63, v0")
    a(f"v_readfirstlane_b32 s{sWV}, v2")
    a(f"s_and_b32 s{sT0}, s2, 7")
    a(f"s_lshr_b32 s{sSL}, s{sT0}, 1")
    a(f"s_lshr_b32 s{sBIN}, s2, 3")
    a(f"s_and_b32 s{sT0}, s2, 1")
    a(f"s_lshl_b32 s{sT0}, s{sT0}, 5")
    a(f"s_or_b32 s{sBIN}, s{sBIN}, s{sT0}")
    a(f"s_mul_i32 s{sT0}, s2, 6400")
    a(f"v_lshl_add_u32 v3, v0, 4, s{sT0}")
    a(f"v_lshlrev_b32 v4, 1, v3")
    a(f"s_mul_i32 s{sT1}, s{sSL}, {TS}")
    a(f"s_waitcnt lgkmcnt(0)")
    x, e, src, dst, u, v, g, out, dbg, ws = [KP + 2 * i for i in range(10)]
    srd(a, SRD_DST, dst, dst + 1, E * 4)
    srd(a, SRD_SRC, src, src + 1, E * 4)
    srd(a, SRD_E, e, e + 1, E * 8)
    a(f"s_cmp_ge_u32 s{sWV}, 7")
    a(f"s_cbranch_scc1 {p}_noedge")
    a(f"buffer_load_dwordx4 {vr(vD,4)}, v3, {sr(SRD_DST,4)}, 0 offen")
    a(f"buffer_load_dwordx4 {vr(vS,4)}, v3, {sr(SRD_SRC,4)}, 0 offen")
    a(f"buffer_load_dwordx4 {vr(vE,4)}, v4, {sr(SRD_E,4)}, 0 offen")
    a(f"buffer_load_dwordx4 {vr(vE+4,4)}, v4, {sr(SRD_E,4)}, 0 offen offset:16")
    a.lab(f"{p}_noedge")
    a(f"s_lshl_b32 s{sT0}, s{sBIN}, 4")
    a(f"s_add_u32 s{sT0}, s{sT0}, s{sWV}")
    a(f"s_mul_i32 s{sT0}, s{sT0}, 3125")
    a(f"s_lshr_b32 s{sNODE0}, s{sT0}, 7")
    a(f"s_add_u32 s{sT0}, s{sT0}, 3125")
    a(f"s_lshr_b32 s{sNN}, s{sT0}, 7")
    a(f"s_sub_u32 s{sNN}, s{sNN}, s{sNODE0}")
    a(f"s_mul_i32 s{sXM}, s{sWV}, {XT}")
    a(f"s_add_u32 s{sXM}, s{sXM}, {XB}")
    a(f"s_mov_b32 s{sHM}, 0")
    a(f"s_mov_b32 s{sHM+1}, -1")
    srd(a, SRD_X, x, x + 1, N * 256)
    srd(a, SRD_OUT, out, out + 1, N * 256)
    srd(a, SRD_G, g, g + 1, 260 * 256)
    a(f"s_add_u32 s{sT2}, s{ws}, s{sT1}")
    a(f"s_addc_u32 s{sT3}, s{ws+1}, 0")
    srd(a, SRD_TS, sT2, sT3, (N + 1) * 128)
    a(f"s_sub_u32 s{sT2}, s{sT2}, 0x{MAGIC_OFF:x}")
    a(f"s_subb_u32 s{sT3}, s{sT3}, 0")
    srd(a, SRD_TG, sT2, sT3, MAGIC_OFF + (N + 1) * 128)
    a(f"s_add_u32 s{sT2}, s{ws}, 0x{REC_OFF:x}")
    a(f"s_addc_u32 s{sT3}, s{ws+1}, 0")
    srd(a, SRD_REC, sT2, sT3, REC_BYTES)
    a(f"s_add_u32 s{sT2}, s{ws}, 0x{HDR_OFF:x}")
    a(f"s_addc_u32 s{sT3}, s{ws+1}, 0")
    srd(a, SRD_HDR, sT2, sT3, HDR_SRD_BYTES)
    a(f"s_mov_b32 s{sNL2E}, 0xbfb8aa3b")
    a(f"s_mov_b32 s{sMAXF}, 0x7f7f0000")
    a(f"s_mov_b32 s{sSELLO}, 0x07060100")
    a(f"s_mov_b32 s{sSELHI}, 0x07060302")
    a(f"s_mov_b32 s{sMAGIC}, 10995117")
    a(f"s_mov_b32 s{s127}, 127")
    a(f"s_mov_b32 s{sM1}, 0x260000")
    a(f"s_mov_b32 s{sM2}, 0x100000")
    a(f"s_mov_b32 s{sM3}, 0x080000")
    a(f"s_mov_b32 s{sM4}, 0x3c000000")
    a(f"s_mov_b32 s{sSTG}, {STG}")
    a(f"s_mov_b32 s{sKMAX}, {EB - 4}")
    a(f"v_mov_b32 v{vONE}, 1")
    a(f"v_mov_b32 v10, 0")


def spin(a, lab, off, val):
    a.lab(lab)
    a(f"ds_read_b32 v11, v10 offset:{off}")
    a(f"s_waitcnt lgkmcnt(0)")
    a(f"v_readfirstlane_b32 s{sT0}, v11")
    a(f"s_cmp_lt_u32 s{sT0}, {val}")
    a(f"s_cbranch_scc1 {lab}")


def signal(a, off):
    a(f"s_mov_b64 exec, 1")
    a(f"ds_add_u32 v10, v{vONE} offset:{off}")
    a(f"s_mov_b64 exec, -1")


def init_counters(a, p, tag, with_cnt):
    a.c("wave 0: bin counters = 0, list cursors = list starts")
    a(f"s_cmp_lg_u32 s{sWV}, 0")
    a(f"s_cbranch_scc1 {p}_ic{tag}")
    a(f"v_lshlrev_b32 v7, 2, v{vLANE}")
    a(f"v_mul_u32_u24 v8, {LS}, v7")
    a(f"v_add_u32 v8, {KEYB}, v8")
    a(f"v_cmp_gt_u32 vcc, 16, v{vLANE}")
    a(f"v_mov_b32 v9, 0")
    a(f"s_nop 0")
    a(f"v_cndmask_b32 v8, 0, v8, vcc")
    if with_cnt:
        a(f"ds_write_b32 v7, v9 offset:{CNT}")
        a(f"ds_write_b32 v7, v9 offset:{CSUM}")
        a(f"ds_write_b32 v7, v8 offset:{LCNT}")
    else:
        a(f"s_not_b64 exec, {sr(sHM,2)}")
        a(f"ds_write_b32 v7, v8 offset:{LCNT}")
        a(f"s_mov_b64 exec, -1")
    a.lab(f"{p}_ic{tag}")


def scan64(a, v):
    for sh in (1, 2, 4, 8):
        a(f"s_nop 1")
        a(f"v_add_u32_dpp v{v}, v{v}, v{v} row_shr:{sh} row_mask:0xf bank_mask:0xf bound_ctrl:0")
    a(f"s_nop 1")
    a(f"v_add_u32_dpp v{v}, v{v}, v{v} row_bcast:15 row_mask:0xa bank_mask:0xf")
    a(f"s_nop 1")
    a(f"v_add_u32_dpp v{v}, v{v}, v{v} row_bcast:31 row_mask:0xc bank_mask:0xf")


vD, vS, vE, vK, vB, vR = 72, 76, 80, 88, 92, 96
vTa, vTb, vTc = 100, 101, 102
vONE = 2


def offsets_scan(a):
    a(f"v_lshlrev_b32 v{vTa}, 2, v{vLANE}")
    a(f"ds_read_b32 v{vTb}, v{vTa} offset:{CNT}")
    a(f"s_waitcnt lgkmcnt(0)")
    a(f"v_mov_b32 v{vTc}, v{vTb}")
    scan64(a, vTc)
    a(f"v_sub_u32 v{vTc}, v{vTc}, v{vTb}")


def noh_from_non(a):
    a(f"s_mul_i32 s{sNOH}, s{sNON}, 0x9e3779b1")
    a(f"s_and_b32 s{sNOH}, s{sNOH}, 0xf800f800")


def front(a, p):
    a(f"s_cmp_lg_u32 s{sWV}, 7")
    a(f"s_cbranch_scc1 {p}_f_noinit")
    a.c("wave 7: bin counters, checksums, flags = 0, list cursors = list starts")
    a(f"v_lshlrev_b32 v7, 2, v{vLANE}")
    a(f"v_mul_u32_u24 v8, {LS}, v7")
    a(f"v_add_u32 v8, {KEYB}, v8")
    a(f"v_cmp_gt_u32 vcc, 16, v{vLANE}")
    a(f"ds_write_b32 v7, v10 offset:{CNT}")
    a(f"ds_write_b32 v7, v10 offset:{CSUM}")
    a(f"v_cndmask_b32 v8, 0, v8, vcc")
    a(f"ds_write_b32 v7, v8 offset:{LCNT}")
    a(f"s_waitcnt lgkmcnt(0)")
    a.lab(f"{p}_f_noinit")
    a(f"s_cmp_lg_u32 s{sWV}, 15")
    a(f"s_cbranch_scc1 {p}_tag_done")
    a.c("launch tag: workgroup 0 publishes a clock value in d_debug, everyone picks it up")
    srd(a, SRD_DBG, KP + 16, KP + 17, 256)
    a(f"s_cmp_lg_u32 s2, 0")
    a(f"s_cbranch_scc1 {p}_tag_done")
    a(f"s_memrealtime s[100:101]")
    a(f"s_waitcnt lgkmcnt(0)")
    a(f"s_or_b32 s{sT0}, s100, 1")
    a(f"v_mov_b32 v13, s{sT0}")
    a(f"s_mov_b64 exec, 1")
    a(f"buffer_store_dword v13, v10, {sr(SRD_DBG,4)}, 0 offen sc1")
    a(f"s_mov_b64 exec, -1")
    a.lab(f"{p}_tag_done")
    a(f"s_barrier")
    a(f"s_cmp_eq_u32 s{sWV}, 15")
    a(f"s_cbranch_scc1 {p}_f_w15")
    a(f"s_cmp_ge_u32 s{sWV}, 7")
    a(f"s_cbranch_scc1 {p}_f_loader")

    a.c("---------------- waves 0-6: sort this workgroup's 1600 edges by destination bin")
    a(f"s_cmp_lt_u32 s2, 250")
    a(f"s_cselect_b32 s{sT0}, 400, 0")
    a(f"v_cmp_gt_u32 vcc, s{sT0}, v0")
    a(f"s_mov_b64 {sr(sEX,2)}, vcc")
    a(f"s_waitcnt vmcnt(3)")
    stamp(a, 1)
    for e in range(4):
        a(f"v_lshl_or_b32 v{vK+e}, v{vD+e}, 7, s{s127}")
        a(f"v_mul_hi_u32 v{vK+e}, v{vK+e}, s{sMAGIC}")
        a(f"v_lshrrev_b32 v{vB+e}, 5, v{vK+e}")
        a(f"v_and_b32 v{vB+e}, 0xfc, v{vB+e}")
    a(f"s_mov_b64 exec, {sr(sEX,2)}")
    for e in range(4):
        a(f"ds_add_rtn_u32 v{vR+e}, v{vB+e}, v{vONE} offset:{CNT}")
    signal(a, S2)
    for e in range(4):
        d, k = vD + e, vK + e
        a(f"v_lshrrev_b32 v{vTa}, 3, v{k}")
        a(f"v_mul_u32_u24 v{vTb}, 3125, v{vTa}")
        a(f"v_lshrrev_b32 v{vTb}, 7, v{vTb}")
        a(f"v_sub_u32 v{vTb}, v{d}, v{vTb}")
        a(f"v_lshlrev_b32 v{k}, 26, v{vTa}")
        a(f"v_and_b32 v{k}, s{sM4}, v{k}")
        a(f"v_lshlrev_b32 v{vTc}, 17, v{vTb}")
        a(f"v_and_or_b32 v{k}, v{vTc}, s{sM1}, v{k}")
        a(f"v_lshlrev_b32 v{vTc}, 18, v{vTb}")
        a(f"v_and_or_b32 v{k}, v{vTc}, s{sM2}, v{k}")
        a(f"v_lshlrev_b32 v{vTc}, 16, v{vTb}")
        a(f"v_and_or_b32 v{k}, v{vTc}, s{sM3}, v{k}")
    a(f"s_lshl_b32 s{sT1}, s{sWV}, 10")
    a(f"v_lshl_add_u32 v3, v{vLANE}, 4, s{sT1}")
    a(f"v_add_u32 v7, {STG}, v3")
    a(f"s_mul_i32 s{sT1}, s2, 19200")
    a(f"v_add_u32 v3, s{sT1}, v3")
    spin(a, f"{p}_f_s2", S2, 7)
    stamp(a, 10)
    offsets_scan(a)
    for e in range(4):
        a(f"ds_bpermute_b32 v{vD+e}, v{vB+e}, v{vTc}")
    a(f"s_waitcnt vmcnt(0)")
    for e in range(4):
        a(f"v_or_b32 v{vK+e}, v{vK+e}, v{vS+e}")
        a(f"v_add3_u32 v{vS+e}, v{vE+2*e}, v{vE+2*e+1}, v{vK+e}")
    a(f"s_waitcnt lgkmcnt(0)")
    for e in range(4):
        a(f"v_add_u32 v{vR+e}, v{vR+e}, v{vD+e}")
        a(f"v_mad_u32_u24 v{vR+e}, v{vR+e}, 12, s{sSTG}")
    a(f"s_mov_b64 exec, {sr(sEX,2)}")
    for e in range(4):
        a(f"ds_write2_b32 v{vR+e}, v{vE+2*e}, v{vE+2*e+1} offset0:0 offset1:1")
        a(f"ds_write_b32 v{vR+e}, v{vK+e} offset:8")
        a(f"ds_add_u32 v{vB+e}, v{vS+e} offset:{CSUM}")
    signal(a, S3)
    spin(a, f"{p}_f_s3", S3, 7)
    a.c("copy the sorted records out: 1 KiB pieces wv, wv + 7, wv + 14")
    for k in range(3):
        a(f"ds_read_b128 {vr(104 + 4*k, 4)}, v7 offset:{7168*k}")
    signal(a, S3)
    a(f"v_add_u32 v4, 7168, v3")
    a(f"v_add_u32 v5, 14336, v3")
    a(f"s_waitcnt lgkmcnt(3)")
    a(f"buffer_store_dwordx4 {vr(104,4)}, v3, {sr(SRD_REC,4)}, 0 offen sc1")
    a(f"s_waitcnt lgkmcnt(2)")
    a(f"buffer_store_dwordx4 {vr(108,4)}, v4, {sr(SRD_REC,4)}, 0 offen sc1")
    a(f"s_cmp_gt_u32 s{sWV}, 4")
    a(f"s_cbranch_scc1 {p}_f_done")
    a(f"s_cmp_eq_u32 s{sWV}, 4")
    a(f"s_cselect_b32 exec_hi, 0xffff, -1")
    a(f"s_waitcnt lgkmcnt(1)")
    a(f"buffer_store_dwordx4 {vr(112,4)}, v5, {sr(SRD_REC,4)}, 0 offen sc1")
    a(f"s_mov_b64 exec, -1")
    a(f"s_branch {p}_f_done")

    a.c("---------------- waves 7-14: stream the weights and the x tiles into LDS")
    a.lab(f"{p}_f_loader")
    a(f"s_setprio 2")
    u, v, g = KP + 8, KP + 10, KP + 12
    a(f"s_sub_u32 s{sT3}, s{sWV}, 7")
    a(f"s_cmp_lt_u32 s{sT3}, 6")
    a(f"s_cselect_b64 {sr(SRD_W,2)}, {sr(v,2)}, {sr(u,2)}")
    a(f"s_mov_b32 s{SRD_W+2}, 32768")
    a(f"s_and_b32 s{sT0}, s{sT3}, 1")
    a(f"s_cmp_lt_u32 s{sT3}, 4")
    a(f"s_cselect_b64 {sr(SRD_W,2)}, {sr(g,2)}, {sr(SRD_W,2)}")
    a(f"s_cselect_b32 s{SRD_W+2}, 65536, s{SRD_W+2}")
    a(f"s_cselect_b32 s{sT0}, s{sT3}, s{sT0}")
    a(f"s_mov_b32 s{SRD_W+3}, 0x00020000")
    a(f"s_lshl_b32 s{sT0}, s{sT0}, 14")
    a(f"s_lshl_b32 s{sT1}, s{sSL}, 6")
    a(f"s_add_u32 s{sT0}, s{sT0}, s{sT1}")
    a(f"v_lshrrev_b32 v4, 2, v{vLANE}")
    a(f"v_lshl_add_u32 v4, v4, 8, s{sT0}")
    a(f"v_and_b32 v6, 3, v{vLANE}")
    a(f"v_lshl_add_u32 v4, v6, 4, v4")
    a(f"s_lshl_b32 s{sT0}, s{sT3}, 12")
    for d in range(4):
        a(f"s_add_u32 m0, s{sT0}, {WB + 1024 * d}")
        a(f"s_mov_b32 s{sT1}, {4096 * d}")
        a(f"buffer_load_dwordx4 v4, {sr(SRD_W,4)}, s{sT1} offen lds")
    a(f"s_setprio 1")
    a(f"v_lshrrev_b32 v6, 4, v{vLANE}")
    a(f"v_xor_b32 v7, v6, v{vLANE}")
    a(f"v_and_b32 v7, 15, v7")
    a(f"v_lshlrev_b32 v72, 8, v6")
    a(f"v_lshl_add_u32 v72, v7, 4, v72")
    for k in range(1, 4):
        a(f"v_xor_b32 v{72+k}, {64*k}, v72")
    a(f"s_cmp_eq_u32 s{sT3}, 7")
    a(f"s_cselect_b32 s{sT3}, 15, s{sT3}")
    for n, tw in enumerate((sT3, sWV)):
        a(f"s_mul_i32 s{sT2}, s{tw}, {XT}")
        a(f"s_lshl_b32 s{sT1}, s{sBIN}, 4")
        a(f"s_add_u32 s{sT1}, s{sT1}, s{tw}")
        a(f"s_mul_i32 s{sT1}, s{sT1}, 3125")
        a(f"s_lshr_b32 s{sT1}, s{sT1}, 7")
        a(f"s_lshl_b32 s{sT1}, s{sT1}, 8")
        for i in range(7):
            a(f"s_add_u32 m0, s{sT2}, {XB + 1024 * i}")
            a(f"v_add_u32 v6, s{sT1}, v{72 + (i & 3)}")
            if i < 6:
                a(f"s_add_u32 s{sT1}, s{sT1}, 1024")
            else:
                a(f"s_not_b64 exec, {sr(sHM,2)}")
            a(f"buffer_load_dwordx4 v6, {sr(SRD_X,4)}, 0 offen lds")
        a(f"s_mov_b64 exec, -1")
        if n == 0:
            a(f"s_setprio 0")
            a(f"s_waitcnt vmcnt(7)")
            signal(a, WF)
            stamp(a, 10)
        a(f"s_lshl_b32 s{sT0}, s{tw}, 2")
        a(f"v_mov_b32 v6, s{sT0}")
        a(f"s_waitcnt vmcnt(0)")
        a(f"ds_write_b32 v6, v{vONE} offset:{XF}")
        if n == 0:
            stamp(a, 1)
    a(f"s_branch {p}_f_done")

    a.c("---------------- wave 15 publishes / collects the headers")
    a.lab(f"{p}_f_w15")
    a(f"s_setprio 3")
    a(f"s_lshl_b32 s{sT0}, s2, 10")
    a(f"v_lshl_add_u32 v4, v{vLANE}, 4, s{sT0}")
    a(f"s_mov_b32 s{sSPIN}, {SPIN_MAX}")
    a.lab(f"{p}_tag_loop")
    a(f"buffer_load_dword v13, v10, {sr(SRD_DBG,4)}, 0 offen sc1")
    a(f"s_waitcnt vmcnt(0)")
    a(f"v_readfirstlane_b32 s{sNON}, v13")
    a(f"s_cmp_lg_u32 s{sNON}, 0")
    a(f"s_cbranch_scc1 {p}_tag_ok")
    a(f"s_sub_u32 s{sSPIN}, s{sSPIN}, 1")
    a(f"s_cbranch_scc0 {p}_tag_loop")
    a(f"v_mov_b32 v13, 1")
    a(f"s_mov_b32 s{sNON}, 1")
    a.lab(f"{p}_tag_ok")
    a(f"ds_write_b32 v10, v13 offset:{NON2}")
    noh_from_non(a)
    spin(a, f"{p}_f_s2b", S2, 7)
    offsets_scan(a)
    a(f"v_lshl_or_b32 v12, v{vTb}, 16, v{vTc}")
    a(f"v_or_b32 v12, s{sNOH}, v12")
    spin(a, f"{p}_f_s3b", S3, 7)
    a(f"ds_read_b32 v14, v{vTa} offset:{CSUM}")
    a(f"s_waitcnt lgkmcnt(0)")
    a(f"buffer_store_dwordx4 v[12:15], v4, {sr(SRD_HDR,4)}, 0 offen sc1")
    stamp(a, 1)
    a(f"s_lshl_b32 s{sT0}, s{sBIN}, 4")
    a(f"v_lshl_add_u32 v3, v{vLANE}, 12, s{sT0}")
    a(f"s_mov_b32 s{sSPIN}, {SPIN_MAX}")
    a(f"s_sleep 24")
    a.lab(f"{p}_hpoll")
    for k in range(4):
        a(f"buffer_load_dwordx3 {vr(72+4*k,3)}, v3, {sr(SRD_HDR,4)}, 0 offen offset:{1024*k} sc1")
    a(f"s_waitcnt vmcnt(0)")
    a(f"s_sub_u32 s{sSPIN}, s{sSPIN}, 1")
    a(f"s_cbranch_scc1 {p}_hok")
    for k in range(4):
        a(f"v_xor_b32 v{88+k}, s{sNON}, v{73+4*k}")
        a(f"v_xor_b32 v{92+k}, s{sNOH}, v{72+4*k}")
        a(f"v_and_b32 v{92+k}, 0xf800f800, v{92+k}")
    a(f"v_or3_b32 v88, v88, v89, v90")
    a(f"v_or3_b32 v92, v92, v93, v94")
    a(f"v_or3_b32 v88, v88, v91, v95")
    a(f"v_or_b32 v88, v88, v92")
    a(f"v_cmp_ne_u32 vcc, 0, v88")
    a(f"s_and_b64 exec, exec, vcc")
    a(f"s_cbranch_scc0 {p}_hok")
    a(f"s_sleep 8")
    a(f"s_branch {p}_hpoll")
    a.lab(f"{p}_hok")
    a(f"s_mov_b64 exec, -1")
    spin(a, f"{p}_f_s3c", S3, 14)
    a(f"v_lshlrev_b32 v7, 5, v{vLANE}")
    a(f"v_add_u32 v7, {STG}, v7")
    for k in range(4):
        a(f"ds_write2_b32 v7, v{72+4*k}, v{74+4*k} offset0:{2*k} offset1:{2*k+1}")
    a(f"ds_write_b32 v10, v13 offset:{NONCE}")
    stamp(a, 10)
    a(f"s_setprio 0")
    a.lab(f"{p}_f_done")


def wait_tile(a, p):
    a.c("wait for the weights, this wave's x tile and the end of the record copy-out (staging area reused)")
    a(f"s_lshl_b32 s{sT1}, s{sWV}, 2")
    a(f"v_mov_b32 v6, s{sT1}")
    a.lab(f"{p}_xw")
    a(f"ds_read_b32 v7, v6 offset:{XF}")
    a(f"ds_read2_b32 v[14:15], v{vZ0} offset0:{S3//4} offset1:{WF//4}")
    a(f"s_waitcnt lgkmcnt(0)")
    a(f"v_add3_u32 v7, v7, v14, v15")
    a(f"s_nop 0")
    a(f"v_readfirstlane_b32 s{sT0}, v7")
    a(f"s_cmp_eq_u32 s{sT0}, {1 + 14 + 8}")
    a(f"s_cbranch_scc1 {p}_xok")
    a(f"s_sleep 1")
    a(f"s_branch {p}_xw")
    a.lab(f"{p}_xok")


vZ0 = 2
vXA, vWA, vTMP = 3, 4, 5
def gemm_setup(a):
    a.c("---------------- GEMM addresses")
    a(f"v_and_b32 v6, 31, v{vLANE}")
    a(f"v_lshrrev_b32 v7, 5, v{vLANE}")
    a(f"v_xor_b32 v7, v7, v6")
    a(f"v_and_b32 v7, 15, v7")
    a(f"v_lshl_add_u32 v{vXA}, v6, 8, s{sXM}")
    a(f"v_lshl_add_u32 v{vXA}, v7, 4, v{vXA}")
    a(f"v_lshrrev_b32 v6, 5, v{vLANE}")
    a(f"v_lshlrev_b32 v{vWA}, 9, v6")
    a(f"v_bfe_u32 v6, v{vLANE}, 2, 2")
    a(f"v_lshl_add_u32 v{vWA}, v6, 6, v{vWA}")
    a(f"v_and_b32 v6, 1, v{vLANE}")
    a(f"v_lshl_add_u32 v{vWA}, v6, 5, v{vWA}")
    a(f"v_and_b32 v6, 16, v{vLANE}")
    a(f"v_add_u32 v{vWA}, v6, v{vWA}")
    a(f"v_and_b32 v6, 2, v{vLANE}")
    a(f"v_lshl_add_u32 v{vWA}, v6, 2, v{vWA}")
    a(f"v_add_u32 v{vWA}, {WB}, v{vWA}")


def gemm_pass(a, m1, m2, swap2):
    def load(s):
        r = RING + 12 * (s % 2)
        if s:
            a(f"v_xor_b32 v{vTMP}, {32*s}, v{vXA}")
        a(f"ds_read_b128 {vr(r,4)}, v{vTMP if s else vXA}")
        for k, m in enumerate((m1, m2)):
            for u in range(2):
                a(f"ds_read_b64_tr_b16 {vr(r+4+4*k+2*u,2)}, v{vWA} offset:{m*8192 + s*1024 + u*256}")
    load(0)
    load(1)
    for s in range(8):
        r = RING + 12 * (s % 2)
        a(f"s_waitcnt lgkmcnt({5 if s < 7 else 0})")
        c1 = "0" if s == 0 else vr(T1, 16)
        c2 = "0" if s == 0 else vr(ACC, 16)
        a(f"v_mfma_f32_32x32x16_bf16 {vr(T1,16)}, {vr(r,4)}, {vr(r+4,4)}, {c1}")
        if swap2:
            a(f"v_mfma_f32_32x32x16_bf16 {vr(ACC,16)}, {vr(r+8,4)}, {vr(r,4)}, {c2}")
        else:
            a(f"v_mfma_f32_32x32x16_bf16 {vr(ACC,16)}, {vr(r,4)}, {vr(r+8,4)}, {c2}")
        if s + 2 < 8:
            load(s + 2)


def table_store(a, fused):
    a.c("table rows: hi16 = -log2e * (x B), lo16 = bf16(1 / (x V)); 8 rows at a time through LDS, whole lines out")
    a(f"s_lshl_b32 s{sT1}, s{sWV}, 10")
    a(f"s_add_u32 s{sT1}, s{sT1}, {STG + 2048}")
    a(f"v_lshrrev_b32 v6, 5, v{vLANE}")
    a(f"v_lshl_add_u32 v6, v6, 9, s{sT1}")
    a(f"v_and_b32 v7, 31, v{vLANE}")
    a(f"v_lshl_add_u32 v6, v7, 2, v6")
    a(f"v_lshl_add_u32 v7, v{vLANE}, 4, s{sT1}")
    a(f"s_lshl_b32 s{sT0}, s{sNODE0}, 7")
    a(f"v_lshl_add_u32 v{vTMP}, v{vLANE}, 4, s{sT0}")
    a(f"s_nop 5")
    for j in range(0, 14, 2):
        for k in (j, j + 1):
            a(f"v_rcp_f32 v{ACC+k}, v{ACC+k}")
            a(f"v_mul_f32 v{T1+k}, s{sNL2E}, v{T1+k}")
        for k in (j, j + 1):
            a(f"v_med3_f32 v{ACC+k}, v{ACC+k}, s{sMAXF}, -s{sMAXF}")
        a(f"v_cvt_pk_bf16_f32 v{ACC+j}, v{ACC+j}, v{ACC+j+1}")
        a(f"v_perm_b32 v{T1+j}, v{T1+j}, v{ACC+j}, s{sSELLO}")
        a(f"v_perm_b32 v{T1+j+1}, v{T1+j+1}, v{ACC+j}, s{sSELHI}")
        for k in (j, j + 1):
            a(f"ds_write_b32 v6, v{T1+k} offset:{(k&3)*128}")
        if j % 4 == 2 or j == 12:
            g = j // 4
            a(f"ds_read_b128 {vr(RING+4*g,4)}, v7")
    for g in range(4):
        a(f"s_waitcnt lgkmcnt({(10, 5, 3, 0)[g] if False else 0})") if g == 0 else None
        if g == 3:
            a(f"s_mov_b64 exec, 0xffff")
        a(f"buffer_store_dwordx4 {vr(RING+4*g,4)}, v{vTMP}, {sr(SRD_TS,4)}, 0 offen offset:{1024*g} sc1")
    a(f"s_mov_b64 exec, -1")
    a(f"s_nop 0")


vC0 = 8
def load_C(a):
    a.c("edge-feature weights g_w[256+k][32*slice + pi(n)]")
    a(f"v_bfe_u32 v6, v{vLANE}, 2, 1")
    a(f"v_lshlrev_b32 v6, 5, v6")
    a(f"v_bfe_u32 v7, v{vLANE}, 3, 2")
    a(f"v_lshl_add_u32 v6, v7, 3, v6")
    a(f"v_and_b32 v7, 3, v{vLANE}")
    a(f"v_lshl_add_u32 v6, v7, 1, v6")
    a(f"s_lshl_b32 s{sT0}, s{sSL}, 6")
    a(f"s_add_u32 s{sT0}, s{sT0}, 65536")
    a(f"v_add_u32 v6, s{sT0}, v6")
    for k in range(4):
        a(f"buffer_load_ushort v{vC0+k}, v6, {sr(SRD_G,4)}, 0 offen offset:{256*k}")


def pop_pack(a):
    a.c("P' operand (rows 26.. replaced by the edge-feature weights / zero)")
    for k in range(4):
        a(f"v_lshlrev_b32 v{vC0+k}, 16, v{vC0+k}")
    for k in range(4):
        a(f"v_mul_f32 v{vC0+k}, s{sNL2E}, v{vC0+k}")
    a(f"v_cvt_pk_bf16_f32 v{vC0}, v{vC0}, v{vC0+1}")
    a(f"v_cvt_pk_bf16_f32 v{vC0+1}, v{vC0+2}, v{vC0+3}")
    a(f"s_nop 3")
    for k in range(14):
        a(f"v_mul_f32 v{T1+k}, s{sNL2E}, v{T1+k}")
    for k in range(7):
        a(f"v_cvt_pk_bf16_f32 v{POP+k}, v{T1+2*k}, v{T1+2*k+1}")
    a(f"v_cndmask_b32 v{POP+6}, v{POP+6}, v{vC0}, {sr(sHM,2)}")
    a(f"v_cndmask_b32 v{POP+7}, 0, v{vC0+1}, {sr(sHM,2)}")


vHS, vHL = 12, 13
def hdr_load(a, fused, addr=7):
    a(f"buffer_load_dwordx2 v[14:15], v{addr}, {sr(SRD_HDR,4)}, 0 offen{' sc1' if fused else ''}")

def hdr_addr(a, addr=7):
    a(f"v_lshrrev_b32 v{addr}, 2, v0")
    a(f"s_lshl_b32 s{sT0}, s{sBIN}, 4")
    a(f"v_lshl_add_u32 v{addr}, v{addr}, 10, s{sT0}")


def hdr_decode(a):
    a(f"v_and_b32 v6, 3, v0")
    a(f"v_and_b32 v7, 0x7ff, v14")
    a(f"v_add_u32 v7, v7, v6")
    a(f"v_mul_u32_u24 v7, 12, v7")
    a(f"v_lshrrev_b32 v{vHS}, 2, v0")
    a(f"v_mul_u32_u24 v{vHS}, 19200, v{vHS}")
    a(f"v_add_u32 v{vHS}, v{vHS}, v7")
    a(f"v_bfe_u32 v{vHL}, v14, 16, 11")
    a(f"v_sub_u32 v{vHL}, v{vHL}, v6")
    a(f"s_mov_b32 s{sRB}, 0")
    a(f"s_mov_b32 s{sC}, {CFAST}")


def rec_loads(a, p, tag, fused):
    sc = " sc1" if fused else ""
    a(f"v_subrev_u32 v7, s{sRB}, v{vHL}")
    a(f"v_and_b32 v6, 3, v0")
    a(f"v_sub_u32 v6, s{sC}, v6")
    a(f"v_min_i32 v7, v7, v6")
    a(f"s_mul_i32 s{sT0}, s{sRB}, 12")
    a(f"v_add_u32 v6, s{sT0}, v{vHS}")
    for i in range(NI):
        a(f"v_cmp_lt_i32 {sr(MASKS[i],2)}, {4*i}, v7")
    for i in range(NI):
        a(f"s_mov_b64 exec, {sr(MASKS[i],2)}")
        a(f"s_cbranch_execz {p}_rl_done{tag}")
        a(f"buffer_load_dwordx3 {vr(REC+4*i,3)}, v6, {sr(SRD_REC,4)}, 0 offen offset:{48*i}{sc}")
    a.lab(f"{p}_rl_done{tag}")
    a(f"s_mov_b64 exec, -1")


def append1(a, p, tag):
    a.c("---------------- list slots for the records (16 sub-block lists)")
    a(f"s_add_u32 s{sT0}, s{sRB}, s{sC}")
    a(f"v_and_b32 v6, 3, v0")
    a(f"v_add_u32 v6, v6, v{vHL}")
    a(f"v_cmp_lt_i32 vcc, s{sT0}, v6")
    a(f"v_mov_b32 v6, 4")
    a(f"v_mov_b32 v7, 64")
    a(f"s_mov_b64 exec, vcc")
    a(f"ds_add_u32 v7, v6 offset:{LCNT}")
    a(f"s_mov_b64 exec, -1")
    a(f"v_mov_b32 v7, 0x3c")
    for i in range(NI):
        q = REC + 4 * i
        a(f"s_mov_b64 exec, {sr(MASKS[i],2)}")
        a(f"s_cbranch_execz {p}_ap1{tag}")
        a(f"v_and_b32_sdwa v{q+3}, v{q+2}, v7 dst_sel:DWORD dst_unused:UNUSED_PAD src0_sel:BYTE_3 src1_sel:DWORD")
        a(f"ds_add_rtn_u32 v{q+3}, v{q+3}, v6 offset:{LCNT}")
    a.lab(f"{p}_ap1{tag}")
    a(f"s_mov_b64 exec, -1")


def append2(a, p):
    for i in range(NI):
        q = REC + 4 * i
        a(f"s_mov_b64 exec, {sr(MASKS[i],2)}")
        a(f"s_cbranch_execz {p}_ap2")
        a(f"v_min_u32 v{q+3}, s{sKMAX}, v{q+3}")
        a(f"v_lshlrev_b32 v6, 1, v{q+3}")
        a(f"ds_write_b32 v{q+3}, v{q+2}")
        a(f"ds_write_b64 v6, {vr(q,2)} offset:{EOFF}")
    a.lab(f"{p}_ap2")
    a(f"s_mov_b64 exec, -1")


vKR, vER, vIW, vIE, vIA0, vIA1, vIT0, vIT1, vOLD, vKEY = 4, 5, 120, 121, 122, 123, 124, 125, 126, 127
vEE, vB16, vZERO = 8, 10, 11
AD, BD = 2, 14


def image_setup(a):
    a.c("---------------- selection image addresses; zero the image")
    a(f"s_lshl_b32 s{sT0}, s{sWV}, 11")
    a(f"s_add_u32 s{sT0}, s{sT0}, {IMG}")
    a(f"v_lshl_add_u32 v6, v{vLANE}, 4, s{sT0}")
    for k in range(4):
        a(f"v_mov_b32 v{AEX+k}, 0")
    a(f"ds_write_b128 v6, {vr(AEX,4)}")
    a(f"ds_write_b128 v6, {vr(AEX,4)} offset:1024")
    a(f"v_mov_b32 v{vB16}, 0x3f80")
    a(f"v_mov_b32 v{vZERO}, 0")
    a(f"v_and_b32 v6, 31, v{vLANE}")
    a(f"v_mov_b32 v{AD+1}, 0x3f803f80")
    a(f"v_lshlrev_b32 v7, 2, v6")
    a(f"v_cvt_f32_u32 v7, v7")
    a(f"v_lshrrev_b32 v7, 16, v7")
    a(f"v_or_b32 v7, 0x4b000000, v7")
    a(f"v_mov_b32 v{BD}, 0x47004300")
    a(f"v_cndmask_b32 v{BD}, v{BD}, v{vZERO}, {sr(sHM,2)}")
    a(f"v_cndmask_b32 v{BD+1}, v7, v{vZERO}, {sr(sHM,2)}")
    a(f"v_lshl_add_u32 v6, v6, 6, s{sT0}")
    a(f"v_bfe_u32 v7, v{vLANE}, 2, 2")
    a(f"v_lshl_add_u32 v{vIW}, v7, 4, v6")
    a(f"v_xor_b32 v{vIE}, 56, v{vIW}")
    a(f"v_lshrrev_b32 v6, 5, v{vLANE}")
    a(f"v_lshlrev_b32 v{vIA0}, 4, v6")
    a(f"v_xor_b32 v{vIA0}, v{vIA0}, v{vIW}")
    a(f"v_xor_b32 v{vIA1}, 32, v{vIA0}")
    a(f"v_mov_b32 v{vOLD}, v{vIW}")
    a(f"v_lshl_add_u32 v7, v6, 2, v7")
    a(f"v_lshl_add_u32 v{vIT0}, v7, 6, s{sT0}")
    a(f"v_bfe_u32 v7, v{vLANE}, 4, 1")
    a(f"v_lshlrev_b32 v7, 1, v7")
    a(f"v_and_b32 v{vIT1}, 1, v{vLANE}")
    a(f"v_or_b32 v7, v7, v{vIT1}")
    a(f"v_xor_b32 v7, v7, v6")
    a(f"v_lshl_add_u32 v{vIT0}, v7, 4, v{vIT0}")
    a(f"v_and_b32 v7, 2, v{vLANE}")
    a(f"v_lshl_add_u32 v{vIT0}, v7, 2, v{vIT0}")
    a(f"v_xor_b32 v{vIT1}, 32, v{vIT0}")
    a(f"v_add_u32 v{vIT1}, 512, v{vIT1}")


def gathers(a, R, fused):
    sc = " sc1" if fused and "sc1g" in DIAG else ""
    if "nogather" in DIAG: return
    for k in range(16):
        a(f"buffer_load_dword v{R+k}, v{OFF+k}, {sr(SRD_TG,4)}, 0 offen{sc}")

def rec_reads(a, toff):
    a(f"ds_read_b32 v{vKEY}, v{vKR} offset:{toff*128}")
    a(f"ds_read_b64 {vr(vEE,2)}, v{vER} offset:{EOFF + toff*256}")

def image_build(a):
    a(f"ds_write_b16 v{vOLD}, v{vZERO}")
    a(f"v_xor_b32_sdwa v{vOLD}, v{vKEY}, v{vIW} dst_sel:DWORD dst_unused:UNUSED_PAD src0_sel:BYTE_2 src1_sel:DWORD")
    a(f"ds_write_b64 v{vIE}, {vr(vEE,2)}")
    a(f"ds_write_b16 v{vOLD}, v{vB16}")

def aex_reads(a):
    a(f"ds_read_b128 {vr(AEX,4)}, v{vIA0}")
    a(f"ds_read_b128 {vr(AEX+4,4)}, v{vIA1}")

def sag_reads(a):
    for s in range(2):
        a(f"ds_read_b64_tr_b16 {vr(SAG+4*s,2)}, v{vIT0} offset:{1024*s}")
        a(f"ds_read_b64_tr_b16 {vr(SAG+4*s+2,2)}, v{vIT1} offset:{1024*s}")

def addr_cvt(a):
    a(f"v_cvt_f32_ubyte0 v6, v{vKEY}")
    a(f"v_cvt_f32_ubyte1 v7, v{vKEY}")
def addr_pack(a):
    a(f"v_perm_b32 v{AD}, v7, v6, s{sSELHI}")
def addr_mfma(a):
    a(f"v_mfma_f32_32x32x8_bf16 {vr(OFF,16)}, {vr(AD,2)}, {vr(BD,2)}, 0")


def tile_body(a, R, Rn, fused, lb):
    gathers(a, Rn, fused)
    if PRIO:
        a(f"s_sub_u32 s{sT0}, s{sNT}, s{sIT}")
        for lvl, r in enumerate((1, 3, 6)):
            a(f"s_cmp_lg_u32 s{sT0}, {r}")
            a(f"s_cbranch_scc1 {lb}_p{lvl}")
            a(f"s_setprio {lvl}")
            a.lab(f"{lb}_p{lvl}")
    a(f"s_waitcnt vmcnt(16)")
    a(f"v_mfma_f32_32x32x16_bf16 {vr(Z,16)}, {vr(AEX,4)}, {vr(POP,4)}, {vr(R,16)}")
    a(f"v_mfma_f32_32x32x16_bf16 {vr(Z,16)}, {vr(AEX+4,4)}, {vr(POP+4,4)}, {vr(Z,16)}")
    if "nolds" not in DIAG:
        sag_reads(a)
        image_build(a)
        aex_reads(a)
    else:
        a("s_nop 9")
    rec_reads(a, 2)
    a(f"v_add_u32 v{vKR}, 128, v{vKR}")
    a(f"v_add_u32 v{vER}, 256, v{vER}")
    for j in range(16):
        if "notrans" not in DIAG: a(f"v_exp_f32 v{Z+j}, v{Z+j}")
        a(f"v_lshlrev_b32 v{R+j}, 16, v{R+j}")
    a(f"s_waitcnt lgkmcnt(0)")
    addr_cvt(a)
    for j in range(0, 16, 2):
        if "nopk" in DIAG:
            a(f"v_fma_f32 v{Z+j}, v{Z+j}, v{R+j}, v{R+j}")
            a(f"v_fma_f32 v{Z+j+1}, v{Z+j+1}, v{R+j+1}, v{R+j+1}")
        else:
            a(f"v_pk_fma_f32 {vr(Z+j,2)}, {vr(Z+j,2)}, {vr(R+j,2)}, {vr(R+j,2)}")
        if j == 0:
            addr_pack(a)
    addr_mfma(a)
    for j in range(16):
        if "notrans" not in DIAG: a(f"v_rcp_f32 v{Z+j}, v{Z+j}")
        if j >= 3 and j % 2 == 1:
            k = (j - 3) // 2
            a(f"v_cvt_pk_bf16_f32 v{R+k}, v{Z+2*k}, v{Z+2*k+1}")
    a(f"s_add_u32 s{sIT}, s{sIT}, 1")
    a(f"v_cvt_pk_bf16_f32 v{R+7}, v{Z+14}, v{Z+15}")
    a(f"s_cmp_lt_u32 s{sIT}, s{sNT}")
    a(f"v_mfma_f32_32x32x16_bf16 {vr(ACC,16)}, {vr(R,4)}, {vr(SAG,4)}, {vr(ACC,16)}")
    a(f"v_mfma_f32_32x32x16_bf16 {vr(ACC,16)}, {vr(R+4,4)}, {vr(SAG+4,4)}, {vr(ACC,16)}")


def tflag_wait(a, p):
    a.c("wave 0: wait until all 64 workgroups of this slice have published their table rows")
    a(f"s_cmp_lg_u32 s{sWV}, 0")
    a(f"s_cbranch_scc1 {p}_tf_done")
    a(f"ds_read_b32 v8, v{vZERO} offset:{NON2}")
    a(f"s_lshl_b32 s{sT0}, s{sSL}, 13")
    a(f"s_add_u32 s{sT0}, s{sT0}, {TFL_OFF}")
    a(f"v_lshl_add_u32 v6, v{vLANE}, 7, s{sT0}")
    a(f"s_waitcnt lgkmcnt(0)")
    a(f"v_readfirstlane_b32 s{sNON}, v8")
    a(f"s_not_b32 s{sT1}, s{sNON}")
    a(f"s_mov_b32 s{sSPIN}, {SPIN_MAX}")
    a.lab(f"{p}_tf_loop")
    a(f"buffer_load_dwordx2 v[8:9], v6, {sr(SRD_HDR,4)}, 0 offen sc1")
    a(f"s_waitcnt vmcnt(0)")
    a(f"v_cmp_ne_u32 vcc, s{sNON}, v8")
    a(f"v_cmp_ne_u32 {sr(sEX,2)}, s{sT1}, v9")
    a(f"s_or_b64 vcc, vcc, {sr(sEX,2)}")
    a(f"s_and_b64 exec, exec, vcc")
    a(f"s_cbranch_scc0 {p}_tf_end")
    a(f"s_sleep 4")
    a(f"s_sub_u32 s{sSPIN}, s{sSPIN}, 1")
    a(f"s_cbranch_scc0 {p}_tf_loop")
    a.lab(f"{p}_tf_end")
    a(f"s_mov_b64 exec, -1")
    a.lab(f"{p}_tf_done")


def main_phase(a, p, fused):
    a.lab(f"{p}_round")
    append2(a, p)
    image_setup(a)
    if fused:
        tflag_wait(a, p)
    a(f"s_waitcnt lgkmcnt(0)")
    a(f"s_barrier")
    stamp(a, 6)
    if STAMPS:
        a("s_memtime s[100:101]")
        a("s_waitcnt lgkmcnt(0)")
        a(f"s_mov_b32 s{sXM}, s100")
    a(f"v_and_b32 v6, 31, v{vLANE}")
    a(f"v_lshlrev_b32 v{vKR}, 2, v6")
    a(f"ds_read_b32 v7, v{vKR} offset:{LCNT}")
    a(f"v_mul_u32_u24 v6, {LS}, v{vKR}")
    a(f"v_add_u32 v6, {KEYB + 4*CAP}, v6")
    a(f"s_mul_i32 s{sT0}, s{sWV}, {LS*4}")
    a(f"s_add_u32 s{sT0}, s{sT0}, {KEYB}")
    a(f"v_add_u32 v{vKR}, s{sT0}, v{vKR}")
    a(f"v_lshlrev_b32 v{vER}, 1, v{vKR}")
    a(f"v_mov_b32 v8, 0")
    a(f"v_mov_b32 v9, 0")
    a(f"s_waitcnt lgkmcnt(0)")
    a(f"v_readlane_b32 s{sT1}, v7, s{sWV}")
    a(f"v_readlane_b32 s{sT3}, v7, 16")
    a(f"v_cmp_lt_u32 vcc, v6, v7")
    a(f"s_and_b32 s{sT2}, vcc_lo, 0xffff")
    a(f"s_cbranch_scc1 {p}_overflow")
    a.c("pad the list with 64 dummy edges")
    a(f"v_lshl_add_u32 v6, v{vLANE}, 2, s{sT1}")
    a(f"v_lshlrev_b32 v7, 1, v6")
    a(f"v_mov_b32 v{vKEY}, 0x{N | (46 << 16):x}")
    a(f"ds_write_b32 v6, v{vKEY}")
    a(f"ds_write_b64 v7, v[8:9] offset:{EOFF}")
    a(f"s_sub_u32 s{sNT}, s{sT1}, s{sT0}")
    a(f"s_add_u32 s{sNT}, s{sNT}, 127")
    a(f"s_lshr_b32 s{sNT}, s{sNT}, 7")
    a(f"s_cbranch_scc0 {p}_tiles_done")
    a(f"s_mov_b32 s{sIT}, 0")
    rec_reads(a, 0)
    a(f"s_waitcnt lgkmcnt(0)")
    addr_cvt(a)
    addr_pack(a)
    image_build(a)
    addr_mfma(a)
    aex_reads(a)
    rec_reads(a, 1)
    a(f"s_nop 15")
    a(f"s_waitcnt lgkmcnt(0)")
    addr_cvt(a)
    addr_pack(a)
    gathers(a, RA, fused)
    addr_mfma(a)
    a(f"s_nop 15")
    a(f"s_nop 3")
    if PRIO: a(f"s_setprio 3")
    a.lab(f"{p}_tile")
    for k in range(2):
        tile_body(a, (RA, RBUF)[k & 1], (RBUF, RA)[k & 1], fused, f"{p}_b{k}")
        a(f"s_cbranch_scc0 {p}_tiles_done" if k < 1 else f"s_cbranch_scc1 {p}_tile")
    a.lab(f"{p}_tiles_done")
    a(f"s_cmp_eq_u32 s{sT3}, 0")
    a(f"s_cbranch_scc1 {p}_epi")
    a(f"s_add_u32 s{sRB}, s{sRB}, s{sC}")
    a(f"s_branch {p}_next")
    a.lab(f"{p}_overflow")
    a(f"s_mov_b32 s{sC}, 2")
    a.lab(f"{p}_next")
    a.c("rare path: another round over the runs")
    a(f"s_waitcnt vmcnt(0) lgkmcnt(0)")
    a(f"s_barrier")
    init_counters(a, p, "r", False)
    rec_loads(a, p, "r", fused)
    a(f"s_waitcnt vmcnt(0) lgkmcnt(0)")
    a(f"s_barrier")
    append1(a, p, "r")
    a(f"s_waitcnt lgkmcnt(0)")
    a(f"s_branch {p}_round")
    a.lab(f"{p}_epi")
    stamp(a, 7)
    if STAMPS:
        a("s_memtime s[100:101]")
        a("s_waitcnt lgkmcnt(0)")
        a(f"s_sub_u32 s{sreg(9)}, s100, s{sXM}")
    a.c("---------------- epilogue: silu, pack, store")
    a(f"v_and_b32 v6, 31, v{vLANE}")
    a(f"v_cmp_gt_u32 vcc, s{sNN}, v6")
    a(f"v_add_u32 v6, s{sNODE0}, v6")
    a(f"v_lshlrev_b32 v6, 8, v6")
    a(f"v_lshrrev_b32 v7, 5, v{vLANE}")
    a(f"v_lshl_add_u32 v6, v7, 5, v6")
    a(f"s_lshl_b32 s{sT0}, s{sSL}, 6")
    a(f"v_add_u32 v6, s{sT0}, v6")
    a(f"s_nop 7")
    for j in range(16):
        a(f"v_mul_f32 v{Z+j}, s{sNL2E}, v{ACC+j}")
    for j in range(16):
        a(f"v_exp_f32 v{Z+j}, v{Z+j}")
    for j in range(16):
        a(f"v_add_f32 v{Z+j}, 1.0, v{Z+j}")
    for j in range(16):
        a(f"v_rcp_f32 v{Z+j}, v{Z+j}")
    for j in range(16):
        a(f"v_mul_f32 v{Z+j}, v{Z+j}, v{ACC+j}")
    for k in range(8):
        a(f"v_cvt_pk_bf16_f32 v{AEX+k}, v{Z+2*k}, v{Z+2*k+1}")
    a(f"s_mov_b64 exec, vcc")
    a(f"buffer_store_dwordx4 {vr(AEX,4)}, v6, {sr(SRD_OUT,4)}, 0 offen")
    a(f"buffer_store_dwordx4 {vr(AEX+4,4)}, v6, {sr(SRD_OUT,4)}, 0 offen offset:16")


def kernel_header(name):
    return f""".globl {name}
.p2align 8
.type {name},@function
{name}:
"""

def kernel_desc(name):
    return f""".amdhsa_kernel {name}
  .amdhsa_next_free_vgpr 128
  .amdhsa_next_free_sgpr 102
  .amdhsa_accum_offset 128
  .amdhsa_group_segment_fixed_size 0
  .amdhsa_kernarg_size 80
  .amdhsa_user_sgpr_count 2
  .amdhsa_user_sgpr_kernarg_segment_ptr 1
  .amdhsa_system_sgpr_workgroup_id_x 1
.end_amdhsa_kernel
"""

def file_head():
    return open("cdna_kernels/" + NAME + ".s.ref").read().split("; Override launch geometry")[0]


def finish(a, kidx):
    stamp(a, 8)
    stamp_out(a, kidx, 12)


def hdr_peek(a):
    a(f"v_mov_b32 v7, 0")
    a(f"ds_read_b32 v13, v7 offset:{NONCE}")
    a(f"ds_read_b64 v[14:15], v{vHS}")


def hdr_try(a, p, tag):
    a(f"v_readfirstlane_b32 s{sNT}, v13")
    a(f"s_cmp_eq_u32 s{sNT}, 0")
    a(f"s_cbranch_scc1 {p}_try{tag}")
    a(f"s_call_b64 {sr(sRET,2)}, {p}_sub_first")
    a.lab(f"{p}_try{tag}")


def csum_acc(a, p, tag):
    for i in range(NI):
        q = REC + 4 * i
        a(f"s_mov_b64 exec, {sr(MASKS[i],2)}")
        a(f"s_cbranch_execz {p}_cs{tag}")
        a(f"v_add3_u32 v2, v2, v{q}, v{q+1}")
        a(f"v_add_u32 v2, v2, v{q+2}")
    a.lab(f"{p}_cs{tag}")
    a(f"s_mov_b64 exec, -1")


def csum_check(a):
    a(f"s_nop 1")
    a(f"v_add_u32_dpp v2, v2, v2 quad_perm:[1,0,3,2] row_mask:0xf bank_mask:0xf")
    a(f"s_nop 1")
    a(f"v_add_u32_dpp v2, v2, v2 quad_perm:[2,3,0,1] row_mask:0xf bank_mask:0xf")
    a(f"v_cmp_ne_u32 vcc, v2, v15")
    a(f"s_cmp_lg_u64 vcc, 0")


def gen_1k():
    k = NAME + "_kernel"
    a = A(); p = "K"
    setup(a, p)
    stamp(a, 0)
    front(a, p)
    stamp(a, 2)
    if "frontonly" in DIAG:
        stamp_out(a, 0, 12)
        a("s_endpgm")
    load_C(a)
    gemm_setup(a)
    a(f"v_mov_b32 v{vZ0}, 0")
    a(f"v_lshrrev_b32 v{vHS}, 2, v0")
    a(f"v_lshlrev_b32 v{vHS}, 3, v{vHS}")
    a(f"v_add_u32 v{vHS}, {STG}, v{vHS}")
    wait_tile(a, p)
    stamp(a, 3)
    hdr_peek(a)
    a(f"s_waitcnt lgkmcnt(0)")
    hdr_try(a, p, "a")
    gemm_pass(a, 1, 2, False)
    a(f"s_cmp_lg_u32 s{sNT}, 0")
    a(f"s_cbranch_scc1 {p}_tryb")
    hdr_peek(a)
    a(f"s_waitcnt lgkmcnt(0)")
    hdr_try(a, p, "b")
    table_store(a, True)
    stamp(a, 4)
    gemm_pass(a, 0, 3, True)
    a(f"v_mov_b32 v7, 0")
    a(f"v_mov_b32 v6, 1")
    a("s_waitcnt vmcnt(0)")
    a.c("the last wave whose table rows are out publishes the workgroup's flag")
    a(f"s_mov_b64 exec, 1")
    a(f"ds_add_rtn_u32 v6, v7, v6 offset:{DONE}")
    a(f"s_mov_b64 exec, -1")
    a(f"ds_read_b32 v7, v7 offset:{NON2}")
    pop_pack(a)
    a(f"s_waitcnt lgkmcnt(0)")
    a(f"v_readfirstlane_b32 s{sT0}, v6")
    a(f"v_readfirstlane_b32 s{sNON}, v7")
    a(f"s_cmp_lg_u32 s{sT0}, 15")
    a(f"s_cbranch_scc1 {p}_nopub")
    a(f"s_lshl_b32 s{sT0}, s{sSL}, 6")
    a(f"s_add_u32 s{sT0}, s{sT0}, s{sBIN}")
    a(f"s_lshl_b32 s{sT0}, s{sT0}, 7")
    a(f"s_add_u32 s{sT0}, s{sT0}, {TFL_OFF}")
    a(f"s_not_b32 s{sT1}, s{sNON}")
    a(f"v_mov_b32 v6, s{sT0}")
    a(f"v_mov_b32 v8, s{sNON}")
    a(f"v_mov_b32 v9, s{sT1}")
    a(f"s_mov_b64 exec, 1")
    a(f"buffer_store_dwordx2 v[8:9], v6, {sr(SRD_HDR,4)}, 0 offen sc1")
    a(f"s_mov_b64 exec, -1")
    a.lab(f"{p}_nopub")
    a(f"s_cmp_lg_u32 s{sNT}, 0")
    a(f"s_cbranch_scc1 {p}_recs")
    a.lab(f"{p}_hwait")
    hdr_peek(a)
    a(f"s_waitcnt lgkmcnt(0)")
    a(f"v_readfirstlane_b32 s{sNT}, v13")
    a(f"s_cmp_eq_u32 s{sNT}, 0")
    a(f"s_cbranch_scc1 {p}_hwait")
    a(f"s_call_b64 {sr(sRET,2)}, {p}_sub_first")
    a("s_waitcnt vmcnt(0)")
    a.lab(f"{p}_recs")
    stamp(a, 11)
    a.c("the records must add up to the checksums published with the headers")
    csum_acc(a, p, "a")
    a(f"v_and_b32 v6, 3, v0")
    a(f"v_add_u32 v6, v6, v{vHL}")
    a(f"v_cmp_lt_i32 {sr(sEX,2)}, {CFAST}, v6")
    csum_check(a)
    a(f"s_cbranch_scc1 {p}_vslow")
    a(f"s_cmp_lg_u64 {sr(sEX,2)}, 0")
    a(f"s_cbranch_scc1 {p}_vslow")
    a.lab(f"{p}_valid")
    append1(a, p, "a")
    a("s_waitcnt lgkmcnt(0)")
    a("s_barrier")
    stamp(a, 5)
    if "nopf" not in DIAG:
        a.c("pull this workgroup's own table rows into the L2 (scratch destination in LDS)")
        a(f"s_mul_i32 s{sT0}, s{sBIN}, {16*3125}")
        a(f"s_lshr_b32 s{sT0}, s{sT0}, 7")
        a(f"s_lshl_b32 s{sT0}, s{sT0}, 7")
        a(f"s_mul_i32 s{sT1}, s{sWV}, 3072")
        a(f"s_add_u32 s{sT0}, s{sT0}, s{sT1}")
        a(f"v_lshl_add_u32 v6, v{vLANE}, 4, s{sT0}")
        a(f"s_mov_b32 m0, {STG + 2048}")
        a(f"s_nop 0")
        for kk in range(3):
            a(f"buffer_load_dwordx4 v6, {sr(SRD_TS,4)}, 0 offen offset:{1024*kk} lds")
    main_phase(a, p, True)
    finish(a, 0)
    a.lab(f"{p}_end")
    a("s_endpgm")
    a.c("---------------- subroutines / rare paths")
    a.lab(f"{p}_sub_first")
    hdr_decode(a)
    a.lab(f"{p}_sub_loads")
    rec_loads(a, p, "s", True)
    a(f"s_setpc_b64 {sr(sRET,2)}")
    a.lab(f"{p}_vslow")
    a.c("long runs, or records not yet visible: add up every run completely, again until it fits")
    a(f"s_mov_b32 s{sSPIN}, {SPIN_MAX}")
    a.lab(f"{p}_vs_retry")
    a(f"s_mov_b32 s{sRB}, 0")
    a(f"v_mov_b32 v2, 0")
    a.lab(f"{p}_vs_part")
    a(f"s_call_b64 {sr(sRET,2)}, {p}_sub_loads")
    a(f"s_waitcnt vmcnt(0)")
    csum_acc(a, p, "v")
    a(f"s_add_u32 s{sRB}, s{sRB}, {CFAST}")
    a(f"v_and_b32 v6, 3, v0")
    a(f"v_add_u32 v6, v6, v{vHL}")
    a(f"v_cmp_lt_i32 vcc, s{sRB}, v6")
    a(f"s_cmp_lg_u64 vcc, 0")
    a(f"s_cbranch_scc1 {p}_vs_part")
    csum_check(a)
    a(f"s_cbranch_scc0 {p}_vs_ok")
    a(f"s_sub_u32 s{sSPIN}, s{sSPIN}, 1")
    a(f"s_cbranch_scc0 {p}_vs_retry")
    a.lab(f"{p}_vs_ok")
    a(f"s_mov_b32 s{sRB}, 0")
    a(f"s_call_b64 {sr(sRET,2)}, {p}_sub_loads")
    a(f"s_waitcnt vmcnt(0)")
    a(f"s_branch {p}_valid")
    s = file_head()
    s += f"; @launch grid=(256,1,1) block=(1024,1,1) lds={LDS_BYTES}\n"
    s += '.amdgcn_target "amdgcn-amd-amdhsa--gfx950"\n.text\n'
    s += kernel_header(k) + a.text()
    s += '.section .rodata,"a"\n.p2align 6\n' + kernel_desc(k)
    return s


if __name__ == "__main__":
    if "-stamps" in sys.argv:
        STAMPS = True; sys.argv.remove("-stamps")
    if "-noprio" in sys.argv:
        PRIO = False; sys.argv.remove("-noprio")
    for x in list(sys.argv):
        if x.startswith("-D"):
            DIAG.add(x[2:]); sys.argv.remove(x)
    mode = gen_1k
    if "-1k" in sys.argv:
        mode = gen_1k; sys.argv.remove("-1k")
    out = sys.argv[1] if len(sys.argv) > 1 else "cdna_kernels/" + NAME + ".s"
    open(out, "w").write(mode())
    print("wrote", out, "LDS", LDS_BYTES)
```

```python
import sys

N = 25000
E = 400000
NAME = "gather_scatter__edge_featured_mpnn_egc__graph"

TS = 25024 * 128
REC_OFF = 0x1000000
REC_BYTES = 250 * 19200
HDR_OFF = 0x1800000
HDR_BYTES = 64 * 256 * 16
TFL_OFF = HDR_BYTES
HDR_SRD_BYTES = HDR_BYTES + 4 * 64 * 128
MAGIC_OFF = 0x4B000000

CNT = 0
LCNT = 256
NONCE = 384
DONE = 388
NON2 = 392
S2, S3, WF, XF = 396, 400, 404, 416
CSUM = 512
CAP = 500
LS = 564
KEYB = 768
EB = KEYB + 16 * LS * 4
EOFF = EB - 2 * KEYB
IMG = EB + 16 * LS * 8
WB = IMG
STG = IMG + 32768
LDS_BYTES = 163840
NI = 14
CFAST = 4 * NI

SRD_X, SRD_E, SRD_SRC, SRD_DST, SRD_W, SRD_OUT, SRD_TS, SRD_TG, SRD_REC, SRD_HDR, SRD_G = [4 + 4 * i for i in range(11)]
SRD_DBG = SRD_E
KP = 48
sXM = 3
sNODT = 71
sWV, sBIN, sSL, sNODE0, sNN = 68, 69, 70, 72, 73
sSPIN = 95
sNL2E, sMAXF, sSELLO, sSELHI, sMAGIC, s127, sM1, sM2, sM3, sM4, sSTG, sKMAX = range(74, 86)
sHM = 86
sT0, sT1, sT2, sT3 = 88, 89, 90, 91
sRB, sC, sNT, sIT = 92, 93, 94, 95
sEX = 96
sNON, sNOH = 98, 99
sRET = 64
MASKS = [4 + 2 * i for i in range(10)] + [44, 46, 56, 58]
SPIN_MAX = 40000

vLANE = 1
T1 = 16; ACC = 32; RING = 48; REC = 72
POP, AEX, SAG = 48, 56, 64
OFF = 16
RA, RBUF, Z = 72, 88, 104


class A:
    def __init__(self):
        self.l = []
    def __call__(self, s):
        for x in s.strip("\n").split("\n"):
            self.l.append("    " + x.strip())
    def lab(self, s):
        self.l.append(s + ":")
    def c(self, s):
        self.l.append("    ; " + s)
    def text(self):
        return "\n".join(self.l) + "\n"


def vr(a, n):
    return f"v[{a}:{a+n-1}]"
def sr(a, n):
    return f"s[{a}:{a+n-1}]"


STAMPS = False
PRIO = True
PS1, PS2 = 24, 8
XEARLY = 4
DIAG = set()
STAMP_OFF = 0x2000000
def sreg(i):
    return KP + i if i < 8 else KP + 4 + i
def stamp(a, i):
    if not STAMPS: return
    a(f"s_memrealtime s[100:101]")
    a(f"s_waitcnt lgkmcnt(0)")
    a(f"s_mov_b32 s{sreg(i)}, s100")

def stamp_out(a, kidx, n):
    if not STAMPS: return
    a(f"s_mov_b64 exec, -1")
    if "dbgmax" in DIAG:
        a(f"s_load_dwordx2 {sr(sT2,2)}, s[0:1], 64")
        a(f"s_waitcnt lgkmcnt(0)")
        srd(a, SRD_W, sT2, sT3, 256)
        a(f"v_mov_b32 v6, 0")
        a(f"ds_read_b32 v8, v6 offset:{NON2}")
        a(f"s_waitcnt lgkmcnt(0)")
        a(f"s_mov_b64 exec, 1")
        for i in (0, 2, 3, 4, 11, 5, 6, 7, 8):
            a(f"v_sub_u32 v7, s{sreg(i)}, v8")
            a(f"v_max_i32 v7, 0, v7")
            a(f"buffer_atomic_umax v7, v6, {sr(SRD_W,4)}, 0 offen offset:{4*(i+1)}")
        return
    a(f"s_add_u32 s{sT2}, s{KP+18}, 0x{STAMP_OFF + kidx * 0x100000:x}")
    a(f"s_addc_u32 s{sT3}, s{KP+19}, 0")
    srd(a, SRD_W, sT2, sT3, 0x100000)
    a(f"s_lshl_b32 s{sT0}, s2, 4")
    a(f"s_add_u32 s{sT0}, s{sT0}, s{sWV}")
    a(f"s_lshl_b32 s{sT0}, s{sT0}, 6")
    a(f"v_mov_b32 v6, s{sT0}")
    for i in range(n):
        a(f"v_mov_b32 v7, s{sreg(i)}")
        a(f"buffer_store_dword v7, v6, {sr(SRD_W,4)}, 0 offen offset:{4*i}")


def srd(a, d, lo, hi, nbytes):
    a(f"s_mov_b32 s{d}, s{lo}")
    a(f"s_mov_b32 s{d+1}, s{hi}")
    a(f"s_mov_b32 s{d+2}, {nbytes}")
    a(f"s_mov_b32 s{d+3}, 0x00020000")


def setup(a, p):
    a.c("---------------- setup")
    a(f"s_cmp_ge_u32 s2, 256")
    a(f"s_cbranch_scc1 {p}_end")
    a(f"s_load_dwordx16 {sr(KP,16)}, s[0:1], 0")
    a(f"s_load_dwordx4 {sr(KP+16,4)}, s[0:1], 64")
    a(f"s_memrealtime s[100:101]")
    a(f"v_lshrrev_b32 v2, 6, v0")
    a(f"v_and_b32 v{vLANE}, 63, v0")
    a(f"v_readfirstlane_b32 s{sWV}, v2")
    a(f"s_and_b32 s{sT0}, s2, 7")
    a(f"s_lshr_b32 s{sSL}, s{sT0}, 1")
    a(f"s_lshr_b32 s{sBIN}, s2, 3")
    a(f"s_and_b32 s{sT0}, s2, 1")
    a(f"s_lshl_b32 s{sT0}, s{sT0}, 5")
    a(f"s_or_b32 s{sBIN}, s{sBIN}, s{sT0}")
    a(f"s_mul_i32 s{sT0}, s2, 6400")
    a(f"v_lshl_add_u32 v3, v0, 4, s{sT0}")
    a(f"v_lshlrev_b32 v4, 1, v3")
    a(f"s_mul_i32 s{sT1}, s{sSL}, {TS}")
    a(f"s_waitcnt lgkmcnt(0)")
    x, e, src, dst, u, v, g, out, dbg, ws = [KP + 2 * i for i in range(10)]
    a(f"s_or_b32 s{sT0}, s2, s{sWV}")
    a(f"s_cbranch_scc1 {p}_notag")
    a.c("launch tag: the first wave of workgroup 0 publishes a clock value in d_debug, everyone picks it up")
    srd(a, SRD_DBG, dbg, dbg + 1, 256)
    a(f"s_or_b32 s{sT0}, s100, 1")
    a(f"v_mov_b32 v13, s{sT0}")
    a(f"v_mov_b32 v10, 0")
    a(f"s_mov_b64 exec, 1")
    a(f"buffer_store_dword v13, v10, {sr(SRD_DBG,4)}, 0 offen sc1")
    a(f"s_mov_b64 exec, -1")
    a.lab(f"{p}_notag")
    srd(a, SRD_DST, dst, dst + 1, E * 4)
    srd(a, SRD_SRC, src, src + 1, E * 4)
    srd(a, SRD_E, e, e + 1, E * 8)
    a(f"s_cmp_ge_u32 s{sWV}, 7")
    a(f"s_cbranch_scc1 {p}_noedge")
    a(f"buffer_load_dwordx4 {vr(vD,4)}, v3, {sr(SRD_DST,4)}, 0 offen")
    a(f"buffer_load_dwordx4 {vr(vS,4)}, v3, {sr(SRD_SRC,4)}, 0 offen")
    a(f"buffer_load_dwordx4 {vr(vE,4)}, v4, {sr(SRD_E,4)}, 0 offen")
    a(f"buffer_load_dwordx4 {vr(vE+4,4)}, v4, {sr(SRD_E,4)}, 0 offen offset:16")
    a.lab(f"{p}_noedge")
    a(f"s_lshl_b32 s{sT0}, s{sBIN}, 4")
    a(f"s_add_u32 s{sT0}, s{sT0}, s{sWV}")
    a(f"s_mul_i32 s{sT0}, s{sT0}, 3125")
    a(f"s_lshr_b32 s{sNODE0}, s{sT0}, 7")
    a(f"s_add_u32 s{sT0}, s{sT0}, 3125")
    a(f"s_lshr_b32 s{sNN}, s{sT0}, 7")
    a(f"s_sub_u32 s{sNN}, s{sNN}, s{sNODE0}")
    a(f"s_mov_b32 s{sHM}, 0")
    a(f"s_mov_b32 s{sHM+1}, -1")
    srd(a, SRD_X, x, x + 1, N * 256)
    srd(a, SRD_OUT, out, out + 1, N * 256)
    srd(a, SRD_G, g, g + 1, 260 * 256)
    a(f"s_add_u32 s{sT2}, s{ws}, s{sT1}")
    a(f"s_addc_u32 s{sT3}, s{ws+1}, 0")
    srd(a, SRD_TS, sT2, sT3, (N + 1) * 128)
    a(f"s_sub_u32 s{sT2}, s{sT2}, 0x{MAGIC_OFF:x}")
    a(f"s_subb_u32 s{sT3}, s{sT3}, 0")
    srd(a, SRD_TG, sT2, sT3, MAGIC_OFF + (N + 1) * 128)
    a(f"s_add_u32 s{sT2}, s{ws}, 0x{REC_OFF:x}")
    a(f"s_addc_u32 s{sT3}, s{ws+1}, 0")
    srd(a, SRD_REC, sT2, sT3, REC_BYTES)
    a(f"s_add_u32 s{sT2}, s{ws}, 0x{HDR_OFF:x}")
    a(f"s_addc_u32 s{sT3}, s{ws+1}, 0")
    srd(a, SRD_HDR, sT2, sT3, HDR_SRD_BYTES)
    a(f"s_mov_b32 s{sNL2E}, 0xbfb8aa3b")
    a(f"s_mov_b32 s{sMAXF}, 0x7f7f0000")
    a(f"s_mov_b32 s{sSELLO}, 0x07060100")
    a(f"s_mov_b32 s{sSELHI}, 0x07060302")
    a(f"s_mov_b32 s{sMAGIC}, 10995117")
    a(f"s_mov_b32 s{s127}, 127")
    a(f"s_mov_b32 s{sM1}, 0x260000")
    a(f"s_mov_b32 s{sM2}, 0x100000")
    a(f"s_mov_b32 s{sM3}, 0x080000")
    a(f"s_mov_b32 s{sM4}, 0x3c000000")
    a(f"s_mov_b32 s{sSTG}, {STG}")
    a(f"s_mov_b32 s{sKMAX}, {EB - 4}")
    a(f"v_mov_b32 v{vONE}, 1")
    a(f"v_mov_b32 v10, 0")


def spin(a, lab, off, val):
    a.lab(lab)
    a(f"ds_read_b32 v11, v10 offset:{off}")
    a(f"s_waitcnt lgkmcnt(0)")
    a(f"v_readfirstlane_b32 s{sT0}, v11")
    a(f"s_cmp_lt_u32 s{sT0}, {val}")
    a(f"s_cbranch_scc1 {lab}")


def signal(a, off):
    a(f"s_mov_b64 exec, 1")
    a(f"ds_add_u32 v10, v{vONE} offset:{off}")
    a(f"s_mov_b64 exec, -1")


def init_counters(a, p, tag, with_cnt):
    a.c("wave 0: bin counters = 0, list cursors = list starts")
    a(f"s_cmp_lg_u32 s{sWV}, 0")
    a(f"s_cbranch_scc1 {p}_ic{tag}")
    a(f"v_lshlrev_b32 v7, 2, v{vLANE}")
    a(f"v_mul_u32_u24 v8, {LS}, v7")
    a(f"v_add_u32 v8, {KEYB}, v8")
    a(f"v_cmp_gt_u32 vcc, 16, v{vLANE}")
    a(f"v_mov_b32 v9, 0")
    a(f"s_nop 0")
    a(f"v_cndmask_b32 v8, 0, v8, vcc")
    if with_cnt:
        a(f"ds_write_b32 v7, v9 offset:{CNT}")
        a(f"ds_write_b32 v7, v9 offset:{CSUM}")
        a(f"ds_write_b32 v7, v8 offset:{LCNT}")
    else:
        a(f"s_not_b64 exec, {sr(sHM,2)}")
        a(f"ds_write_b32 v7, v8 offset:{LCNT}")
        a(f"s_mov_b64 exec, -1")
    a.lab(f"{p}_ic{tag}")


def scan64(a, v):
    for sh in (1, 2, 4, 8):
        a(f"s_nop 1")
        a(f"v_add_u32_dpp v{v}, v{v}, v{v} row_shr:{sh} row_mask:0xf bank_mask:0xf bound_ctrl:0")
    a(f"s_nop 1")
    a(f"v_add_u32_dpp v{v}, v{v}, v{v} row_bcast:15 row_mask:0xa bank_mask:0xf")
    a(f"s_nop 1")
    a(f"v_add_u32_dpp v{v}, v{v}, v{v} row_bcast:31 row_mask:0xc bank_mask:0xf")


vD, vS, vE, vK, vB, vR = 72, 76, 80, 88, 92, 96
vTa, vTb, vTc = 100, 101, 102
vONE = 2


def offsets_scan(a):
    a(f"v_lshlrev_b32 v{vTa}, 2, v{vLANE}")
    a(f"ds_read_b32 v{vTb}, v{vTa} offset:{CNT}")
    a(f"s_waitcnt lgkmcnt(0)")
    a(f"v_mov_b32 v{vTc}, v{vTb}")
    scan64(a, vTc)
    a(f"v_sub_u32 v{vTc}, v{vTc}, v{vTb}")


def noh_from_non(a):
    a(f"s_mul_i32 s{sNOH}, s{sNON}, 0x9e3779b1")
    a(f"s_and_b32 s{sNOH}, s{sNOH}, 0xf800f800")


def front(a, p):
    a(f"s_cmp_lg_u32 s{sWV}, 7")
    a(f"s_cbranch_scc1 {p}_f_noinit")
    a.c("wave 7: bin counters, checksums, flags = 0, list cursors = list starts")
    a(f"v_lshlrev_b32 v7, 2, v{vLANE}")
    a(f"v_mul_u32_u24 v8, {LS}, v7")
    a(f"v_add_u32 v8, {KEYB}, v8")
    a(f"v_cmp_gt_u32 vcc, 16, v{vLANE}")
    a(f"ds_write_b32 v7, v10 offset:{CNT}")
    a(f"ds_write_b32 v7, v10 offset:{CSUM}")
    a(f"v_cndmask_b32 v8, 0, v8, vcc")
    a(f"ds_write_b32 v7, v8 offset:{LCNT}")
    a(f"s_waitcnt lgkmcnt(0)")
    a.lab(f"{p}_f_noinit")
    a(f"s_cmp_lg_u32 s{sWV}, 15")
    a(f"s_cbranch_scc1 {p}_tag_done")
    srd(a, SRD_DBG, KP + 16, KP + 17, 256)
    a(f"buffer_load_dword v72, v10, {sr(SRD_DBG,4)}, 0 offen sc1")
    a.lab(f"{p}_tag_done")
    a(f"s_barrier")
    a(f"s_cmp_eq_u32 s{sWV}, 15")
    a(f"s_cbranch_scc1 {p}_f_w15")
    a(f"s_cmp_ge_u32 s{sWV}, 7")
    a(f"s_cbranch_scc1 {p}_f_loader")

    a.c("---------------- waves 0-6: sort this workgroup's 1600 edges by destination bin")
    a(f"s_cmp_lt_u32 s2, 250")
    a(f"s_cselect_b32 s{sT0}, 400, 0")
    a(f"v_cmp_gt_u32 vcc, s{sT0}, v0")
    a(f"s_mov_b64 {sr(sEX,2)}, vcc")
    a(f"s_waitcnt vmcnt(3)")
    stamp(a, 1)
    for e in range(4):
        a(f"v_lshl_or_b32 v{vK+e}, v{vD+e}, 7, s{s127}")
        a(f"v_mul_hi_u32 v{vK+e}, v{vK+e}, s{sMAGIC}")
        a(f"v_lshrrev_b32 v{vB+e}, 5, v{vK+e}")
        a(f"v_and_b32 v{vB+e}, 0xfc, v{vB+e}")
    a(f"s_mov_b64 exec, {sr(sEX,2)}")
    for e in range(4):
        a(f"ds_add_rtn_u32 v{vR+e}, v{vB+e}, v{vONE} offset:{CNT}")
    signal(a, S2)
    for e in range(4):
        d, k = vD + e, vK + e
        a(f"v_lshrrev_b32 v{vTa}, 3, v{k}")
        a(f"v_mul_u32_u24 v{vTb}, 3125, v{vTa}")
        a(f"v_lshrrev_b32 v{vTb}, 7, v{vTb}")
        a(f"v_sub_u32 v{vTb}, v{d}, v{vTb}")
        a(f"v_lshlrev_b32 v{k}, 26, v{vTa}")
        a(f"v_and_b32 v{k}, s{sM4}, v{k}")
        a(f"v_lshlrev_b32 v{vTc}, 17, v{vTb}")
        a(f"v_and_or_b32 v{k}, v{vTc}, s{sM1}, v{k}")
        a(f"v_lshlrev_b32 v{vTc}, 18, v{vTb}")
        a(f"v_and_or_b32 v{k}, v{vTc}, s{sM2}, v{k}")
        a(f"v_lshlrev_b32 v{vTc}, 16, v{vTb}")
        a(f"v_and_or_b32 v{k}, v{vTc}, s{sM3}, v{k}")
    a(f"s_lshl_b32 s{sT1}, s{sWV}, 10")
    a(f"v_lshl_add_u32 v3, v{vLANE}, 4, s{sT1}")
    a(f"v_add_u32 v7, {STG}, v3")
    a(f"s_mul_i32 s{sT1}, s2, 19200")
    a(f"v_add_u32 v3, s{sT1}, v3")
    spin(a, f"{p}_f_s2", S2, 7)
    stamp(a, 10)
    offsets_scan(a)
    for e in range(4):
        a(f"ds_bpermute_b32 v{vD+e}, v{vB+e}, v{vTc}")
    a(f"s_waitcnt vmcnt(0)")
    for e in range(4):
        a(f"v_or_b32 v{vK+e}, v{vK+e}, v{vS+e}")
        a(f"v_add3_u32 v{vS+e}, v{vE+2*e}, v{vE+2*e+1}, v{vK+e}")
    a(f"s_waitcnt lgkmcnt(0)")
    for e in range(4):
        a(f"v_add_u32 v{vR+e}, v{vR+e}, v{vD+e}")
        a(f"v_mad_u32_u24 v{vR+e}, v{vR+e}, 12, s{sSTG}")
    a(f"s_mov_b64 exec, {sr(sEX,2)}")
    for e in range(4):
        a(f"ds_write2_b32 v{vR+e}, v{vE+2*e}, v{vE+2*e+1} offset0:0 offset1:1")
        a(f"ds_write_b32 v{vR+e}, v{vK+e} offset:8")
        a(f"ds_add_u32 v{vB+e}, v{vS+e} offset:{CSUM}")
    signal(a, S3)
    spin(a, f"{p}_f_s3", S3, 7)
    a.c("copy the sorted records out: 1 KiB pieces wv, wv + 7, wv + 14")
    for k in range(3):
        a(f"ds_read_b128 {vr(104 + 4*k, 4)}, v7 offset:{7168*k}")
    signal(a, S3)
    a(f"v_add_u32 v4, 7168, v3")
    a(f"v_add_u32 v5, 14336, v3")
    a(f"s_waitcnt lgkmcnt(3)")
    a(f"buffer_store_dwordx4 {vr(104,4)}, v3, {sr(SRD_REC,4)}, 0 offen sc1")
    a(f"s_waitcnt lgkmcnt(2)")
    a(f"buffer_store_dwordx4 {vr(108,4)}, v4, {sr(SRD_REC,4)}, 0 offen sc1")
    a(f"s_cmp_gt_u32 s{sWV}, 4")
    a(f"s_cbranch_scc1 {p}_f_x")
    a(f"s_cmp_eq_u32 s{sWV}, 4")
    a(f"s_cselect_b32 exec_hi, 0xffff, -1")
    a(f"s_waitcnt lgkmcnt(1)")
    a(f"buffer_store_dwordx4 {vr(112,4)}, v5, {sr(SRD_REC,4)}, 0 offen sc1")
    a(f"s_mov_b64 exec, -1")
    a.lab(f"{p}_f_x")
    x_loads(a)
    load_C(a)
    a(f"s_branch {p}_f_done")

    a.c("---------------- waves 7-10: one weight matrix each into LDS, then own x rows; waves 11-14: own x rows")
    a.lab(f"{p}_f_loader")
    u, v, g = KP + 8, KP + 10, KP + 12
    a(f"s_cmp_ge_u32 s{sWV}, 11")
    a(f"s_cbranch_scc1 {p}_f_x")
    a(f"s_sub_u32 s{sT3}, s{sWV}, 7")
    a(f"s_cmp_eq_u32 s{sT3}, 2")
    a(f"s_cselect_b64 {sr(SRD_W,2)}, {sr(v,2)}, {sr(u,2)}")
    a(f"s_mov_b32 s{SRD_W+2}, 32768")
    a(f"s_cmp_lt_u32 s{sT3}, 2")
    a(f"s_cselect_b64 {sr(SRD_W,2)}, {sr(g,2)}, {sr(SRD_W,2)}")
    a(f"s_cselect_b32 s{SRD_W+2}, 65536, s{SRD_W+2}")
    a(f"s_mov_b32 s{SRD_W+3}, 0x00020000")
    a(f"s_cmp_eq_u32 s{sT3}, 1")
    a(f"s_cselect_b32 s{sT0}, 32768, 0")
    a(f"s_lshl_b32 s{sT1}, s{sSL}, 6")
    a(f"s_add_u32 s{sT0}, s{sT0}, s{sT1}")
    a(f"v_lshrrev_b32 v4, 2, v{vLANE}")
    a(f"v_lshl_add_u32 v4, v4, 8, s{sT0}")
    a(f"v_and_b32 v6, 3, v{vLANE}")
    a(f"v_lshl_add_u32 v4, v6, 4, v4")
    a(f"s_lshl_b32 s{sT0}, s{sT3}, 13")
    for d in range(8):
        a(f"s_add_u32 m0, s{sT0}, {WB + 1024 * d}")
        a(f"s_mov_b32 s{sT1}, {4096 * d}")
        a(f"buffer_load_dwordx4 v4, {sr(SRD_W,4)}, s{sT1} offen lds")
    a(f"s_waitcnt vmcnt(0)")
    signal(a, WF)
    stamp(a, 10)
    a(f"s_branch {p}_f_x")

    a.c("---------------- wave 15 publishes / collects the headers")
    a.lab(f"{p}_f_w15")
    a(f"s_setprio 3")
    a(f"s_lshl_b32 s{sT0}, s2, 10")
    a(f"v_lshl_add_u32 v4, v{vLANE}, 4, s{sT0}")
    a(f"s_mov_b32 s{sSPIN}, {SPIN_MAX}")
    for k in range(1, 4):
        a(f"s_sleep 5")
        a(f"buffer_load_dword v{72+k}, v10, {sr(SRD_DBG,4)}, 0 offen sc1")
    a(f"s_waitcnt vmcnt(0)")
    a(f"v_or3_b32 v13, v72, v73, v74")
    a(f"v_or_b32 v13, v13, v75")
    a(f"s_branch {p}_tag_first")
    a.lab(f"{p}_tag_loop")
    a(f"buffer_load_dword v13, v10, {sr(SRD_DBG,4)}, 0 offen sc1")
    a(f"s_waitcnt vmcnt(0)")
    a.lab(f"{p}_tag_first")
    a(f"s_nop 0")
    a(f"v_readfirstlane_b32 s{sNON}, v13")
    a(f"s_cmp_lg_u32 s{sNON}, 0")
    a(f"s_cbranch_scc1 {p}_tag_ok")
    a(f"s_sub_u32 s{sSPIN}, s{sSPIN}, 1")
    a(f"s_cbranch_scc0 {p}_tag_loop")
    a(f"v_mov_b32 v13, 1")
    a(f"s_mov_b32 s{sNON}, 1")
    a.lab(f"{p}_tag_ok")
    a(f"ds_write_b32 v10, v13 offset:{NON2}")
    noh_from_non(a)
    spin(a, f"{p}_f_s2b", S2, 7)
    offsets_scan(a)
    a(f"v_lshl_or_b32 v12, v{vTb}, 16, v{vTc}")
    a(f"v_or_b32 v12, s{sNOH}, v12")
    spin(a, f"{p}_f_s3b", S3, 7)
    a(f"ds_read_b32 v14, v{vTa} offset:{CSUM}")
    a(f"s_waitcnt lgkmcnt(0)")
    a(f"buffer_store_dwordx4 v[12:15], v4, {sr(SRD_HDR,4)}, 0 offen sc1")
    stamp(a, 1)
    x_loads(a)
    load_C(a)
    a(f"s_setprio 0")
    a.lab(f"{p}_f_done")


def collect(a, p):
    a.c("---------------- wave 15: weights of the node terms, then this bin's 256 headers for the other waves")
    u, g = KP + 8, KP + 12
    a(f"s_cmp_lg_u32 s{sWV}, 15")
    a(f"s_cbranch_scc1 {p}_c_done")
    a(f"s_setprio 3")
    a(f"v_mov_b32 v10, 0")
    spin(a, f"{p}_f_s3c", S3, 14)
    a(f"s_lshl_b32 s{sT0}, s{sBIN}, 4")
    a(f"v_lshl_add_u32 v3, v{vLANE}, 12, s{sT0}")
    if PS1: a(f"s_sleep {PS1}")
    for k in range(4):
        a(f"buffer_load_dwordx3 {vr(72+4*k,3)}, v3, {sr(SRD_HDR,4)}, 0 offen offset:{1024*k} sc1")
    a.lab(f"{p}_c_done")


def collect2(a, p):
    a(f"s_cmp_lg_u32 s{sWV}, 15")
    a(f"s_cbranch_scc1 {p}_c2_done")
    a(f"s_mov_b32 s{sSPIN}, {SPIN_MAX}")
    a(f"s_waitcnt vmcnt(0)")
    a(f"s_branch {p}_hfirst")
    a.lab(f"{p}_hpoll")
    for k in range(4):
        a(f"buffer_load_dwordx3 {vr(72+4*k,3)}, v3, {sr(SRD_HDR,4)}, 0 offen offset:{1024*k} sc1")
    a(f"s_waitcnt vmcnt(0)")
    a.lab(f"{p}_hfirst")
    a(f"s_sub_u32 s{sSPIN}, s{sSPIN}, 1")
    a(f"s_cbranch_scc1 {p}_hok")
    for k in range(4):
        a(f"v_xor_b32 v{88+k}, s{sNON}, v{73+4*k}")
        a(f"v_xor_b32 v{92+k}, s{sNOH}, v{72+4*k}")
        a(f"v_and_b32 v{92+k}, 0xf800f800, v{92+k}")
    a(f"v_or3_b32 v88, v88, v89, v90")
    a(f"v_or3_b32 v92, v92, v93, v94")
    a(f"v_or3_b32 v88, v88, v91, v95")
    a(f"v_or_b32 v88, v88, v92")
    a(f"v_cmp_ne_u32 vcc, 0, v88")
    a(f"s_and_b64 exec, exec, vcc")
    a(f"s_cbranch_scc0 {p}_hok")
    a(f"s_sleep {PS2}")
    a(f"s_branch {p}_hpoll")
    a.lab(f"{p}_hok")
    a(f"s_mov_b64 exec, -1")
    a(f"v_lshlrev_b32 v7, 5, v{vLANE}")
    a(f"v_add_u32 v7, {STG}, v7")
    a(f"v_mov_b32 v13, s{sNON}")
    for k in range(4):
        a(f"ds_write2_b32 v7, v{72+4*k}, v{74+4*k} offset0:{2*k} offset1:{2*k+1}")
    a(f"ds_write_b32 v10, v13 offset:{NONCE}")
    stamp(a, 10)
    a(f"s_setprio 0")
    a.lab(f"{p}_c2_done")


vZ0 = 2
vXA, vWA, vTMP = 3, 4, 5
def w_addr(a, base):
    a(f"v_lshrrev_b32 v6, 5, v{vLANE}")
    a(f"v_lshl_add_u32 v{vWA}, v6, 9, s{base}")
    a(f"v_bfe_u32 v6, v{vLANE}, 2, 2")
    a(f"v_lshl_add_u32 v{vWA}, v6, 6, v{vWA}")
    a(f"v_and_b32 v6, 1, v{vLANE}")
    a(f"v_lshl_add_u32 v{vWA}, v6, 5, v{vWA}")
    a(f"v_and_b32 v6, 16, v{vLANE}")
    a(f"v_add_u32 v{vWA}, v6, v{vWA}")
    a(f"v_and_b32 v6, 2, v{vLANE}")
    a(f"v_lshl_add_u32 v{vWA}, v6, 2, v{vWA}")


def xf(s):
    return 16 + 4 * s if s < 4 else 56 + 4 * (s - 4)

def x_loads(a):
    a.c("this wave's own x rows straight into operand registers")
    a(f"v_and_b32 v6, 31, v{vLANE}")
    a(f"v_cmp_gt_u32 vcc, 26, v6")
    a(f"v_add_u32 v6, s{sNODE0}, v6")
    a(f"v_lshlrev_b32 v6, 8, v6")
    a(f"v_lshrrev_b32 v7, 5, v{vLANE}")
    a(f"v_lshl_add_u32 v6, v7, 4, v6")
    a(f"s_mov_b64 exec, vcc")
    for s in range(8):
        a(f"buffer_load_dwordx4 {vr(xf(s),4)}, v6, {sr(SRD_X,4)}, 0 offen offset:{32*s}")
    a(f"s_mov_b64 exec, -1")


def w_reads(a, m1, m2, s):
    for k, m in enumerate((m1, m2)):
        for u in range(2):
            a(f"ds_read_b64_tr_b16 {vr(RA+8*(s%4)+4*k+2*u,2)}, v{vWA} offset:{m*8192 + s*1024 + u*256}")


def gemm_pass(a, m1, m2, swap2, first_issued=False, nxt=None):
    if not first_issued:
        for s in range(4):
            w_reads(a, m1, m2, s)
    for s in range(8):
        r = RA + 8 * (s % 4)
        a(f"s_waitcnt lgkmcnt({12 if s <= 4 else 4 * (7 - s)})")
        c1 = "0" if s == 0 else vr(Z, 16)
        c2 = "0" if s == 0 else vr(ACC, 16)
        a(f"v_mfma_f32_32x32x16_bf16 {vr(Z,16)}, {vr(xf(s),4)}, {vr(r,4)}, {c1}")
        if swap2:
            a(f"v_mfma_f32_32x32x16_bf16 {vr(ACC,16)}, {vr(r+4,4)}, {vr(xf(s),4)}, {c2}")
        else:
            a(f"v_mfma_f32_32x32x16_bf16 {vr(ACC,16)}, {vr(xf(s),4)}, {vr(r+4,4)}, {c2}")
        if s < 4:
            w_reads(a, m1, m2, s + 4)


def table_store(a, fused):
    a.c("table rows: hi16 = -log2e * (x B), lo16 = bf16(1 / (x V)); 8 rows at a time through LDS, whole lines out")
    a(f"s_lshl_b32 s{sT1}, s{sWV}, 10")
    a(f"s_add_u32 s{sT1}, s{sT1}, {STG + 2048}")
    a(f"v_lshrrev_b32 v6, 5, v{vLANE}")
    a(f"v_lshl_add_u32 v6, v6, 9, s{sT1}")
    a(f"v_and_b32 v7, 31, v{vLANE}")
    a(f"v_lshl_add_u32 v6, v7, 2, v6")
    a(f"v_lshl_add_u32 v7, v{vLANE}, 4, s{sT1}")
    a(f"s_lshl_b32 s{sT0}, s{sNODE0}, 7")
    a(f"v_lshl_add_u32 v{vTMP}, v{vLANE}, 4, s{sT0}")
    a(f"s_nop 5")
    for j in range(0, 14, 2):
        for k in (j, j + 1):
            a(f"v_rcp_f32 v{ACC+k}, v{ACC+k}")
            a(f"v_mul_f32 v{Z+k}, s{sNL2E}, v{Z+k}")
        for k in (j, j + 1):
            a(f"v_med3_f32 v{ACC+k}, v{ACC+k}, s{sMAXF}, -s{sMAXF}")
        a(f"v_cvt_pk_bf16_f32 v{ACC+j}, v{ACC+j}, v{ACC+j+1}")
        a(f"v_perm_b32 v{Z+j}, v{Z+j}, v{ACC+j}, s{sSELLO}")
        a(f"v_perm_b32 v{Z+j+1}, v{Z+j+1}, v{ACC+j}, s{sSELHI}")
        for k in (j, j + 1):
            a(f"ds_write_b32 v6, v{Z+k} offset:{(k&3)*128}")
        if j % 4 == 2 or j == 12:
            g = j // 4
            a(f"ds_read_b128 {vr(RA+4*g,4)}, v7")
    for g in range(4):
        a(f"s_waitcnt lgkmcnt({(10, 5, 3, 0)[g] if False else 0})") if g == 0 else None
        if g == 3:
            a(f"s_mov_b64 exec, 0xffff")
        a(f"buffer_store_dwordx4 {vr(RA+4*g,4)}, v{vTMP}, {sr(SRD_TS,4)}, 0 offen offset:{1024*g} sc1")
    a(f"s_mov_b64 exec, -1")
    a(f"s_nop 0")


vC0 = 48
def load_C(a):
    a.c("edge-feature weights g_w[256+k][32*slice + pi(n)]")
    a(f"v_bfe_u32 v6, v{vLANE}, 2, 1")
    a(f"v_lshlrev_b32 v6, 5, v6")
    a(f"v_bfe_u32 v7, v{vLANE}, 3, 2")
    a(f"v_lshl_add_u32 v6, v7, 3, v6")
    a(f"v_and_b32 v7, 3, v{vLANE}")
    a(f"v_lshl_add_u32 v6, v7, 1, v6")
    a(f"s_lshl_b32 s{sT0}, s{sSL}, 6")
    a(f"s_add_u32 s{sT0}, s{sT0}, 65536")
    a(f"v_add_u32 v6, s{sT0}, v6")
    for k in range(4):
        a(f"buffer_load_ushort v{vC0+k}, v6, {sr(SRD_G,4)}, 0 offen offset:{256*k}")


def pop_pack(a):
    a.c("P' operand (rows 26.. replaced by the edge-feature weights / zero)")
    for k in range(4):
        a(f"v_lshlrev_b32 v{vC0+k}, 16, v{vC0+k}")
    for k in range(4):
        a(f"v_mul_f32 v{vC0+k}, s{sNL2E}, v{vC0+k}")
    a(f"v_cvt_pk_bf16_f32 v6, v{vC0}, v{vC0+1}")
    a(f"v_cvt_pk_bf16_f32 v7, v{vC0+2}, v{vC0+3}")
    a(f"s_nop 3")
    for k in range(14):
        a(f"v_mul_f32 v{Z+k}, s{sNL2E}, v{Z+k}")
    for k in range(7):
        a(f"v_cvt_pk_bf16_f32 v{POP+k}, v{Z+2*k}, v{Z+2*k+1}")
    a(f"v_cndmask_b32 v{POP+6}, v{POP+6}, v6, {sr(sHM,2)}")
    a(f"v_cndmask_b32 v{POP+7}, 0, v7, {sr(sHM,2)}")


vHS, vHL = 12, 13
def hdr_load(a, fused, addr=7):
    a(f"buffer_load_dwordx2 v[14:15], v{addr}, {sr(SRD_HDR,4)}, 0 offen{' sc1' if fused else ''}")

def hdr_addr(a, addr=7):
    a(f"v_lshrrev_b32 v{addr}, 2, v0")
    a(f"s_lshl_b32 s{sT0}, s{sBIN}, 4")
    a(f"v_lshl_add_u32 v{addr}, v{addr}, 10, s{sT0}")


def hdr_decode(a):
    a(f"v_and_b32 v6, 3, v0")
    a(f"v_and_b32 v7, 0x7ff, v14")
    a(f"v_add_u32 v7, v7, v6")
    a(f"v_mul_u32_u24 v7, 12, v7")
    a(f"v_lshrrev_b32 v{vHS}, 2, v0")
    a(f"v_mul_u32_u24 v{vHS}, 19200, v{vHS}")
    a(f"v_add_u32 v{vHS}, v{vHS}, v7")
    a(f"v_bfe_u32 v{vHL}, v14, 16, 11")
    a(f"v_sub_u32 v{vHL}, v{vHL}, v6")
    a(f"s_mov_b32 s{sRB}, 0")
    a(f"s_mov_b32 s{sC}, {CFAST}")


def rec_loads(a, p, tag, fused, fixed=False):
    sc = " sc1" if fused else ""
    a(f"v_subrev_u32 v7, s{sRB}, v{vHL}")
    a(f"v_and_b32 v6, 3, v0")
    a(f"v_sub_u32 v6, s{sC}, v6")
    a(f"v_min_i32 v7, v7, v6")
    a(f"s_mul_i32 s{sT0}, s{sRB}, 12")
    a(f"v_add_u32 v6, s{sT0}, v{vHS}")
    for i in range(NI):
        a(f"v_cmp_lt_i32 {sr(MASKS[i],2)}, {4*i}, v7")
    for i in range(NI):
        a(f"s_mov_b64 exec, {sr(MASKS[i],2)}")
        if not fixed: a(f"s_cbranch_execz {p}_rl_done{tag}")
        a(f"buffer_load_dwordx3 {vr(REC+4*i,3)}, v6, {sr(SRD_REC,4)}, 0 offen offset:{48*i}{sc}")
    a.lab(f"{p}_rl_done{tag}")
    a(f"s_mov_b64 exec, -1")


def append1(a, p, tag):
    a.c("---------------- list slots for the records (16 sub-block lists)")
    a(f"s_add_u32 s{sT0}, s{sRB}, s{sC}")
    a(f"v_and_b32 v6, 3, v0")
    a(f"v_add_u32 v6, v6, v{vHL}")
    a(f"v_cmp_lt_i32 vcc, s{sT0}, v6")
    a(f"v_mov_b32 v6, 4")
    a(f"v_mov_b32 v7, 64")
    a(f"s_mov_b64 exec, vcc")
    a(f"ds_add_u32 v7, v6 offset:{LCNT}")
    a(f"s_mov_b64 exec, -1")
    a(f"v_mov_b32 v7, 0x3c")
    for i in range(NI):
        q = REC + 4 * i
        a(f"s_mov_b64 exec, {sr(MASKS[i],2)}")
        a(f"s_cbranch_execz {p}_ap1{tag}")
        a(f"v_and_b32_sdwa v{q+3}, v{q+2}, v7 dst_sel:DWORD dst_unused:UNUSED_PAD src0_sel:BYTE_3 src1_sel:DWORD")
        a(f"ds_add_rtn_u32 v{q+3}, v{q+3}, v6 offset:{LCNT}")
    a.lab(f"{p}_ap1{tag}")
    a(f"s_mov_b64 exec, -1")


def append2(a, p):
    for i in range(NI):
        q = REC + 4 * i
        a(f"s_mov_b64 exec, {sr(MASKS[i],2)}")
        a(f"s_cbranch_execz {p}_ap2")
        a(f"v_min_u32 v{q+3}, s{sKMAX}, v{q+3}")
        a(f"v_lshlrev_b32 v6, 1, v{q+3}")
        a(f"ds_write_b32 v{q+3}, v{q+2}")
        a(f"ds_write_b64 v6, {vr(q,2)} offset:{EOFF}")
    a.lab(f"{p}_ap2")
    a(f"s_mov_b64 exec, -1")


vKR, vER, vIW, vIE, vIA0, vIA1, vIT0, vIT1, vOLD, vKEY = 4, 5, 120, 121, 122, 123, 124, 125, 126, 127
vEE, vB16, vZERO = 8, 10, 11
AD, BD = 2, 14


def image_setup(a):
    a.c("---------------- selection image addresses; zero the image")
    a(f"s_lshl_b32 s{sT0}, s{sWV}, 11")
    a(f"s_add_u32 s{sT0}, s{sT0}, {IMG}")
    a(f"v_lshl_add_u32 v{vER}, v{vLANE}, 4, s{sT0}")
    for k in range(4):
        a(f"v_mov_b32 v{Z+k}, 0")
    a(f"v_mov_b32 v{vB16}, 0x3f80")
    a(f"v_mov_b32 v{vZERO}, 0")
    a(f"v_and_b32 v6, 31, v{vLANE}")
    a(f"v_mov_b32 v{AD+1}, 0x3f803f80")
    a(f"v_lshlrev_b32 v7, 2, v6")
    a(f"v_cvt_f32_u32 v7, v7")
    a(f"v_lshrrev_b32 v7, 16, v7")
    a(f"v_or_b32 v7, 0x4b000000, v7")
    a(f"v_mov_b32 v{BD}, 0x47004300")
    a(f"v_cndmask_b32 v{BD}, v{BD}, v{vZERO}, {sr(sHM,2)}")
    a(f"v_cndmask_b32 v{BD+1}, v7, v{vZERO}, {sr(sHM,2)}")
    a(f"v_lshl_add_u32 v6, v6, 6, s{sT0}")
    a(f"v_bfe_u32 v7, v{vLANE}, 2, 2")
    a(f"v_lshl_add_u32 v{vIW}, v7, 4, v6")
    a(f"v_xor_b32 v{vIE}, 56, v{vIW}")
    a(f"v_lshrrev_b32 v6, 5, v{vLANE}")
    a(f"v_lshlrev_b32 v{vIA0}, 4, v6")
    a(f"v_xor_b32 v{vIA0}, v{vIA0}, v{vIW}")
    a(f"v_xor_b32 v{vIA1}, 32, v{vIA0}")
    a(f"v_mov_b32 v{vOLD}, v{vIW}")
    a(f"v_lshl_add_u32 v7, v6, 2, v7")
    a(f"v_lshl_add_u32 v{vIT0}, v7, 6, s{sT0}")
    a(f"v_bfe_u32 v7, v{vLANE}, 4, 1")
    a(f"v_lshlrev_b32 v7, 1, v7")
    a(f"v_and_b32 v{vIT1}, 1, v{vLANE}")
    a(f"v_or_b32 v7, v7, v{vIT1}")
    a(f"v_xor_b32 v7, v7, v6")
    a(f"v_lshl_add_u32 v{vIT0}, v7, 4, v{vIT0}")
    a(f"v_and_b32 v7, 2, v{vLANE}")
    a(f"v_lshl_add_u32 v{vIT0}, v7, 2, v{vIT0}")
    a(f"v_xor_b32 v{vIT1}, 32, v{vIT0}")
    a(f"v_add_u32 v{vIT1}, 512, v{vIT1}")


def gathers(a, R, fused):
    sc = " sc1" if fused and "sc1g" in DIAG else ""
    if "nogather" in DIAG: return
    for k in range(16):
        a(f"buffer_load_dword v{R+k}, v{OFF+k}, {sr(SRD_TG,4)}, 0 offen{sc}")

def rec_reads(a, toff):
    a(f"ds_read_b32 v{vKEY}, v{vKR} offset:{toff*128}")
    a(f"ds_read_b64 {vr(vEE,2)}, v{vER} offset:{EOFF + toff*256}")

def image_build(a):
    a(f"ds_write_b16 v{vOLD}, v{vZERO}")
    a(f"v_xor_b32_sdwa v{vOLD}, v{vKEY}, v{vIW} dst_sel:DWORD dst_unused:UNUSED_PAD src0_sel:BYTE_2 src1_sel:DWORD")
    a(f"ds_write_b64 v{vIE}, {vr(vEE,2)}")
    a(f"ds_write_b16 v{vOLD}, v{vB16}")

def aex_reads(a):
    a(f"ds_read_b128 {vr(AEX,4)}, v{vIA0}")
    a(f"ds_read_b128 {vr(AEX+4,4)}, v{vIA1}")

def sag_reads(a):
    for s in range(2):
        a(f"ds_read_b64_tr_b16 {vr(SAG+4*s,2)}, v{vIT0} offset:{1024*s}")
        a(f"ds_read_b64_tr_b16 {vr(SAG+4*s+2,2)}, v{vIT1} offset:{1024*s}")

def addr_cvt(a):
    a(f"v_cvt_f32_ubyte0 v6, v{vKEY}")
    a(f"v_cvt_f32_ubyte1 v7, v{vKEY}")
def addr_pack(a):
    a(f"v_perm_b32 v{AD}, v7, v6, s{sSELHI}")
def addr_mfma(a):
    a(f"v_mfma_f32_32x32x8_bf16 {vr(OFF,16)}, {vr(AD,2)}, {vr(BD,2)}, 0")


def tile_body(a, R, Rn, fused, lb):
    gathers(a, Rn, fused)
    if PRIO:
        a(f"s_sub_u32 s{sT0}, s{sNT}, s{sIT}")
        for lvl, r in enumerate((1, 3, 6)):
            a(f"s_cmp_lg_u32 s{sT0}, {r}")
            a(f"s_cbranch_scc1 {lb}_p{lvl}")
            a(f"s_setprio {lvl}")
            a.lab(f"{lb}_p{lvl}")
    a(f"s_waitcnt vmcnt(16)")
    a(f"v_mfma_f32_32x32x16_bf16 {vr(Z,16)}, {vr(AEX,4)}, {vr(POP,4)}, {vr(R,16)}")
    a(f"v_mfma_f32_32x32x16_bf16 {vr(Z,16)}, {vr(AEX+4,4)}, {vr(POP+4,4)}, {vr(Z,16)}")
    if "nolds" not in DIAG:
        sag_reads(a)
        image_build(a)
        aex_reads(a)
    else:
        a("s_nop 9")
    rec_reads(a, 2)
    a(f"v_add_u32 v{vKR}, 128, v{vKR}")
    a(f"v_add_u32 v{vER}, 256, v{vER}")
    for j in range(16):
        if "notrans" not in DIAG: a(f"v_exp_f32 v{Z+j}, v{Z+j}")
        if "b64" in DIAG:
            if j % 2: a(f"v_lshlrev_b64 {vr(R+j-1,2)}, 16, {vr(R+j-1,2)}")
        else:
            a(f"v_lshlrev_b32 v{R+j}, 16, v{R+j}")
    a(f"s_waitcnt lgkmcnt(0)")
    addr_cvt(a)
    for j in range(0, 16, 2):
        if "nopk" in DIAG:
            a(f"v_fma_f32 v{Z+j}, v{Z+j}, v{R+j}, v{R+j}")
            a(f"v_fma_f32 v{Z+j+1}, v{Z+j+1}, v{R+j+1}, v{R+j+1}")
        else:
            a(f"v_pk_fma_f32 {vr(Z+j,2)}, {vr(Z+j,2)}, {vr(R+j,2)}, {vr(R+j,2)}")
        if j == 0:
            addr_pack(a)
    addr_mfma(a)
    for j in range(16):
        if "notrans" not in DIAG: a(f"v_rcp_f32 v{Z+j}, v{Z+j}")
        if j >= 3 and j % 2 == 1:
            k = (j - 3) // 2
            a(f"v_cvt_pk_bf16_f32 v{R+k}, v{Z+2*k}, v{Z+2*k+1}")
    a(f"s_add_u32 s{sIT}, s{sIT}, 1")
    a(f"v_cvt_pk_bf16_f32 v{R+7}, v{Z+14}, v{Z+15}")
    a(f"s_cmp_lt_u32 s{sIT}, s{sNT}")
    a(f"v_mfma_f32_32x32x16_bf16 {vr(ACC,16)}, {vr(R,4)}, {vr(SAG,4)}, {vr(ACC,16)}")
    a(f"v_mfma_f32_32x32x16_bf16 {vr(ACC,16)}, {vr(R+4,4)}, {vr(SAG+4,4)}, {vr(ACC,16)}")


def tflag_wait(a, p):
    a.c("wave 14: wait until all 64 workgroups of this slice have published their table rows")
    a(f"s_cmp_lg_u32 s{sWV}, 14")
    a(f"s_cbranch_scc1 {p}_tf_done")
    a(f"s_lshl_b32 s{sT0}, s{sSL}, 13")
    a(f"s_add_u32 s{sT0}, s{sT0}, {TFL_OFF}")
    a(f"v_lshl_add_u32 v6, v{vLANE}, 7, s{sT0}")
    a(f"s_not_b32 s{sT1}, s{sNON}")
    a(f"s_mov_b32 s{sSPIN}, {SPIN_MAX}")
    a.lab(f"{p}_tf_loop")
    a(f"buffer_load_dwordx2 v[8:9], v6, {sr(SRD_HDR,4)}, 0 offen sc1")
    a(f"s_waitcnt vmcnt(0)")
    a(f"v_cmp_ne_u32 vcc, s{sNON}, v8")
    a(f"v_cmp_ne_u32 {sr(sEX,2)}, s{sT1}, v9")
    a(f"s_or_b64 vcc, vcc, {sr(sEX,2)}")
    a(f"s_and_b64 exec, exec, vcc")
    a(f"s_cbranch_scc0 {p}_tf_end")
    a(f"s_sleep 4")
    a(f"s_sub_u32 s{sSPIN}, s{sSPIN}, 1")
    a(f"s_cbranch_scc0 {p}_tf_loop")
    a.lab(f"{p}_tf_end")
    a(f"s_mov_b64 exec, -1")
    a.lab(f"{p}_tf_done")


def main_phase(a, p, fused):
    a.lab(f"{p}_round")
    append1(a, p, "a")
    a(f"s_waitcnt lgkmcnt(0)")
    append2(a, p)
    stamp(a, 5)
    image_setup(a)
    if fused and "notf" not in DIAG:
        tflag_wait(a, p)
    a(f"s_waitcnt lgkmcnt(0)")
    a(f"s_barrier")
    stamp(a, 6)
    if STAMPS:
        a("s_memtime s[100:101]")
        a("s_waitcnt lgkmcnt(0)")
        a(f"s_mov_b32 s{sXM}, s100")
    a(f"ds_write_b128 v{vER}, {vr(Z,4)}")
    a(f"ds_write_b128 v{vER}, {vr(Z,4)} offset:1024")
    a(f"v_and_b32 v6, 31, v{vLANE}")
    a(f"v_lshlrev_b32 v{vKR}, 2, v6")
    a(f"ds_read_b32 v7, v{vKR} offset:{LCNT}")
    a(f"v_mul_u32_u24 v6, {LS}, v{vKR}")
    a(f"v_add_u32 v6, {KEYB + 4*CAP}, v6")
    a(f"s_mul_i32 s{sT0}, s{sWV}, {LS*4}")
    a(f"s_add_u32 s{sT0}, s{sT0}, {KEYB}")
    a(f"v_add_u32 v{vKR}, s{sT0}, v{vKR}")
    a(f"v_lshlrev_b32 v{vER}, 1, v{vKR}")
    a(f"v_mov_b32 v8, 0")
    a(f"v_mov_b32 v9, 0")
    a(f"s_waitcnt lgkmcnt(0)")
    a(f"v_readlane_b32 s{sT1}, v7, s{sWV}")
    a(f"v_readlane_b32 s{sT3}, v7, 16")
    a(f"v_cmp_lt_u32 vcc, v6, v7")
    a(f"s_and_b32 s{sT2}, vcc_lo, 0xffff")
    a(f"s_cbranch_scc1 {p}_overflow")
    a.c("pad the list with 64 dummy edges")
    a(f"v_lshl_add_u32 v6, v{vLANE}, 2, s{sT1}")
    a(f"v_lshlrev_b32 v7, 1, v6")
    a(f"v_mov_b32 v{vKEY}, 0x{N | (46 << 16):x}")
    a(f"ds_write_b32 v6, v{vKEY}")
    a(f"ds_write_b64 v7, v[8:9] offset:{EOFF}")
    a(f"s_sub_u32 s{sNT}, s{sT1}, s{sT0}")
    a(f"s_add_u32 s{sNT}, s{sNT}, 127")
    a(f"s_lshr_b32 s{sNT}, s{sNT}, 7")
    a(f"s_cbranch_scc0 {p}_tiles_done")
    a(f"s_mov_b32 s{sIT}, 0")
    rec_reads(a, 0)
    a(f"s_waitcnt lgkmcnt(0)")
    addr_cvt(a)
    addr_pack(a)
    image_build(a)
    addr_mfma(a)
    aex_reads(a)
    rec_reads(a, 1)
    a(f"s_nop 15")
    a(f"s_waitcnt lgkmcnt(0)")
    addr_cvt(a)
    addr_pack(a)
    gathers(a, RA, fused)
    addr_mfma(a)
    a(f"s_nop 15")
    a(f"s_nop 3")
    if PRIO: a(f"s_setprio 3")
    a.lab(f"{p}_tile")
    for k in range(2):
        tile_body(a, (RA, RBUF)[k & 1], (RBUF, RA)[k & 1], fused, f"{p}_b{k}")
        a(f"s_cbranch_scc0 {p}_tiles_done" if k < 1 else f"s_cbranch_scc1 {p}_tile")
    a.lab(f"{p}_tiles_done")
    a(f"s_cmp_eq_u32 s{sT3}, 0")
    a(f"s_cbranch_scc1 {p}_epi")
    a(f"s_add_u32 s{sRB}, s{sRB}, s{sC}")
    a(f"s_branch {p}_next")
    a.lab(f"{p}_overflow")
    a(f"s_mov_b32 s{sC}, 2")
    a.lab(f"{p}_next")
    a.c("rare path: another round over the runs")
    a(f"s_waitcnt vmcnt(0) lgkmcnt(0)")
    a(f"s_barrier")
    init_counters(a, p, "r", False)
    rec_loads(a, p, "r", fused)
    a(f"s_waitcnt vmcnt(0) lgkmcnt(0)")
    a(f"s_barrier")
    a(f"s_branch {p}_round")
    a.lab(f"{p}_epi")
    stamp(a, 7)
    if STAMPS:
        a("s_memtime s[100:101]")
        a("s_waitcnt lgkmcnt(0)")
        a(f"s_sub_u32 s{sreg(9)}, s100, s{sXM}")
    a.c("---------------- epilogue: silu, pack, store")
    a(f"v_and_b32 v6, 31, v{vLANE}")
    a(f"v_cmp_gt_u32 vcc, s{sNN}, v6")
    a(f"v_add_u32 v6, s{sNODE0}, v6")
    a(f"v_lshlrev_b32 v6, 8, v6")
    a(f"v_lshrrev_b32 v7, 5, v{vLANE}")
    a(f"v_lshl_add_u32 v6, v7, 5, v6")
    a(f"s_lshl_b32 s{sT0}, s{sSL}, 6")
    a(f"v_add_u32 v6, s{sT0}, v6")
    a(f"s_nop 7")
    for j in range(16):
        a(f"v_mul_f32 v{Z+j}, s{sNL2E}, v{ACC+j}")
    for j in range(16):
        a(f"v_exp_f32 v{Z+j}, v{Z+j}")
    for j in range(16):
        a(f"v_add_f32 v{Z+j}, 1.0, v{Z+j}")
    for j in range(16):
        a(f"v_rcp_f32 v{Z+j}, v{Z+j}")
    for j in range(16):
        a(f"v_mul_f32 v{Z+j}, v{Z+j}, v{ACC+j}")
    for k in range(8):
        a(f"v_cvt_pk_bf16_f32 v{AEX+k}, v{Z+2*k}, v{Z+2*k+1}")
    a(f"s_mov_b64 exec, vcc")
    a(f"buffer_store_dwordx4 {vr(AEX,4)}, v6, {sr(SRD_OUT,4)}, 0 offen")
    a(f"buffer_store_dwordx4 {vr(AEX+4,4)}, v6, {sr(SRD_OUT,4)}, 0 offen offset:16")


def kernel_header(name):
    return f""".globl {name}
.p2align 8
.type {name},@function
{name}:
"""

def kernel_desc(name):
    return f""".amdhsa_kernel {name}
  .amdhsa_next_free_vgpr 128
  .amdhsa_next_free_sgpr 102
  .amdhsa_accum_offset 128
  .amdhsa_group_segment_fixed_size 0
  .amdhsa_kernarg_size 80
  .amdhsa_user_sgpr_count 2
  .amdhsa_user_sgpr_kernarg_segment_ptr 1
  .amdhsa_system_sgpr_workgroup_id_x 1
.end_amdhsa_kernel
"""

def file_head():
    return open("cdna_kernels/" + NAME + ".s.ref").read().split("; Override launch geometry")[0]


def finish(a, kidx):
    stamp(a, 8)
    stamp_out(a, kidx, 12)


def hdr_peek(a):
    a(f"v_mov_b32 v7, 0")
    a(f"ds_read_b32 v13, v7 offset:{NONCE}")
    a(f"ds_read_b64 v[14:15], v{vHS}")


def csum_acc(a, p, tag):
    for i in range(NI):
        q = REC + 4 * i
        a(f"s_mov_b64 exec, {sr(MASKS[i],2)}")
        a(f"s_cbranch_execz {p}_cs{tag}")
        a(f"v_add3_u32 v2, v2, v{q}, v{q+1}")
        a(f"v_add_u32 v2, v2, v{q+2}")
    a.lab(f"{p}_cs{tag}")
    a(f"s_mov_b64 exec, -1")


def csum_check(a):
    a(f"s_nop 1")
    a(f"v_add_u32_dpp v2, v2, v2 quad_perm:[1,0,3,2] row_mask:0xf bank_mask:0xf")
    a(f"s_nop 1")
    a(f"v_add_u32_dpp v2, v2, v2 quad_perm:[2,3,0,1] row_mask:0xf bank_mask:0xf")
    a(f"v_cmp_ne_u32 vcc, v2, v15")
    a(f"s_cmp_lg_u64 vcc, 0")


def gen_1k():
    k = NAME + "_kernel"
    a = A(); p = "K"
    setup(a, p)
    stamp(a, 0)
    front(a, p)
    stamp(a, 2)
    if "frontonly" in DIAG:
        stamp_out(a, 0, 12)
        a("s_endpgm")
    collect(a, p)
    collect2(a, p)
    a(f"s_mov_b32 s{sT1}, {WB}")
    w_addr(a, sT1)
    a.c("wait for the weights, the end of the record copy-out (staging area reused) and the x rows")
    a.lab(f"{p}_xw")
    a(f"ds_read2_b32 v[14:15], v10 offset0:{S3//4} offset1:{WF//4}")
    a(f"s_waitcnt lgkmcnt(0)")
    a(f"v_add_u32 v7, v14, v15")
    a(f"s_nop 0")
    a(f"v_readfirstlane_b32 s{sT0}, v7")
    a(f"s_cmp_eq_u32 s{sT0}, {14 + 4}")
    a(f"s_cbranch_scc1 {p}_xok")
    a(f"s_sleep 1")
    a(f"s_branch {p}_xw")
    a.lab(f"{p}_xok")
    for st in range(4):
        w_reads(a, 1, 2, st)
    a(f"s_waitcnt vmcnt(0)")
    stamp(a, 3)
    gemm_pass(a, 1, 2, False, True)
    table_store(a, True)
    stamp(a, 4)
    gemm_pass(a, 0, 3, True)
    pop_pack(a)
    a(f"v_mov_b32 v{vZ0}, 0")
    a(f"v_lshrrev_b32 v{vHS}, 2, v0")
    a(f"v_lshlrev_b32 v{vHS}, 3, v{vHS}")
    a(f"v_add_u32 v{vHS}, {STG}, v{vHS}")
    a(f"s_mov_b32 s{sNT}, 0")
    a.lab(f"{p}_hwait")
    hdr_peek(a)
    a(f"s_waitcnt lgkmcnt(0)")
    a(f"v_readfirstlane_b32 s{sNON}, v13")
    a(f"s_cmp_lg_u32 s{sNON}, 0")
    a(f"s_cbranch_scc1 {p}_hgo")
    a(f"s_cmp_lg_u32 s{sNT}, 0")
    a(f"s_cbranch_scc1 {p}_hsleep")
    a(f"s_waitcnt vmcnt(0)")
    a(f"s_call_b64 {sr(sRET,2)}, {p}_sub_pub")
    a(f"s_mov_b32 s{sNT}, 1")
    a.lab(f"{p}_hsleep")
    a(f"s_sleep 1")
    a(f"s_branch {p}_hwait")
    a.lab(f"{p}_hgo")
    hdr_decode(a)
    rec_loads(a, p, "f", False, True)
    stamp(a, 1)
    a(f"s_cmp_lg_u32 s{sNT}, 0")
    a(f"s_cbranch_scc1 {p}_pubdone")
    a(f"s_waitcnt vmcnt({NI})")
    a(f"s_call_b64 {sr(sRET,2)}, {p}_sub_pub")
    a.lab(f"{p}_pubdone")
    a("s_waitcnt vmcnt(0)")
    stamp(a, 11)
    if "nopf" not in DIAG:
        a.c("pull this wave's own table rows into the L2 (scratch destination in LDS)")
        a(f"s_lshl_b32 s{sT0}, s{sNODE0}, 7")
        a(f"v_lshl_add_u32 v6, v{vLANE}, 4, s{sT0}")
        a(f"s_lshl_b32 s{sT1}, s{sWV}, 10")
        a(f"s_add_u32 s{sT1}, s{sT1}, {STG + 2048}")
        for kk in range(3):
            a(f"s_sub_u32 m0, s{sT1}, {1024*kk}")
            a(f"s_nop 0")
            a(f"buffer_load_dwordx4 v6, {sr(SRD_TS,4)}, 0 offen offset:{1024*kk} lds")
    a.c("the records must add up to the checksums published with the headers")
    csum_acc(a, p, "a")
    a(f"v_and_b32 v6, 3, v0")
    a(f"v_add_u32 v6, v6, v{vHL}")
    a(f"v_cmp_lt_i32 {sr(sEX,2)}, {CFAST}, v6")
    csum_check(a)
    a(f"s_cbranch_scc1 {p}_vslow")
    a(f"s_cmp_lg_u64 {sr(sEX,2)}, 0")
    a(f"s_cbranch_scc1 {p}_vslow")
    a.lab(f"{p}_valid")
    main_phase(a, p, True)
    finish(a, 0)
    a.lab(f"{p}_end")
    a("s_endpgm")
    a.c("---------------- subroutines / rare paths")
    a.lab(f"{p}_sub_pub")
    a.c("the last wave whose table rows are out publishes the workgroup's flag")
    a(f"v_mov_b32 v6, 1")
    a(f"s_mov_b64 exec, 1")
    a(f"ds_add_rtn_u32 v6, v{vZ0}, v6 offset:{DONE}")
    a(f"ds_read_b32 v7, v{vZ0} offset:{NON2}")
    a(f"s_waitcnt lgkmcnt(0)")
    a(f"v_readfirstlane_b32 s{sT0}, v6")
    a(f"v_readfirstlane_b32 s{sT2}, v7")
    a(f"s_cmp_lg_u32 s{sT0}, 15")
    a(f"s_cbranch_scc1 {p}_nopub")
    a(f"s_lshl_b32 s{sT0}, s{sSL}, 6")
    a(f"s_add_u32 s{sT0}, s{sT0}, s{sBIN}")
    a(f"s_lshl_b32 s{sT0}, s{sT0}, 7")
    a(f"s_add_u32 s{sT0}, s{sT0}, {TFL_OFF}")
    a(f"s_not_b32 s{sT1}, s{sT2}")
    a(f"v_mov_b32 v6, s{sT0}")
    a(f"v_mov_b32 v8, s{sT2}")
    a(f"v_mov_b32 v9, s{sT1}")
    a(f"buffer_store_dwordx2 v[8:9], v6, {sr(SRD_HDR,4)}, 0 offen sc1")
    a.lab(f"{p}_nopub")
    a(f"s_mov_b64 exec, -1")
    a(f"s_setpc_b64 {sr(sRET,2)}")
    a.lab(f"{p}_sub_loads")
    rec_loads(a, p, "s", True)
    a(f"s_setpc_b64 {sr(sRET,2)}")
    a.lab(f"{p}_vslow")
    a.c("long runs, or records not yet visible: add up every run completely, again until it fits")
    a(f"s_mov_b32 s{sSPIN}, {SPIN_MAX}")
    a.lab(f"{p}_vs_retry")
    a(f"s_mov_b32 s{sRB}, 0")
    a(f"v_mov_b32 v2, 0")
    a.lab(f"{p}_vs_part")
    a(f"s_call_b64 {sr(sRET,2)}, {p}_sub_loads")
    a(f"s_waitcnt vmcnt(0)")
    csum_acc(a, p, "v")
    a(f"s_add_u32 s{sRB}, s{sRB}, {CFAST}")
    a(f"v_and_b32 v6, 3, v0")
    a(f"v_add_u32 v6, v6, v{vHL}")
    a(f"v_cmp_lt_i32 vcc, s{sRB}, v6")
    a(f"s_cmp_lg_u64 vcc, 0")
    a(f"s_cbranch_scc1 {p}_vs_part")
    csum_check(a)
    a(f"s_cbranch_scc0 {p}_vs_ok")
    a(f"s_sub_u32 s{sSPIN}, s{sSPIN}, 1")
    a(f"s_cbranch_scc0 {p}_vs_retry")
    a.lab(f"{p}_vs_ok")
    a(f"s_mov_b32 s{sRB}, 0")
    a(f"s_call_b64 {sr(sRET,2)}, {p}_sub_loads")
    a(f"s_waitcnt vmcnt(0)")
    a(f"s_branch {p}_valid")
    s = file_head()
    s += f"; @launch grid=(256,1,1) block=(1024,1,1) lds={LDS_BYTES}\n"
    s += '.amdgcn_target "amdgcn-amd-amdhsa--gfx950"\n.text\n'
    s += kernel_header(k) + a.text()
    s += '.section .rodata,"a"\n.p2align 6\n' + kernel_desc(k)
    return s


if __name__ == "__main__":
    if "-stamps" in sys.argv:
        STAMPS = True; sys.argv.remove("-stamps")
    if "-noprio" in sys.argv:
        PRIO = False; sys.argv.remove("-noprio")
    for x in list(sys.argv):
        if x.startswith("-XE"):
            XEARLY = int(x[3:]); sys.argv.remove(x)
        if x.startswith("-PS"):
            PS1, PS2 = map(int, x[3:].split(",")); sys.argv.remove(x)
        if x.startswith("-D"):
            DIAG.add(x[2:]); sys.argv.remove(x)
    mode = gen_1k
    if "-1k" in sys.argv:
        mode = gen_1k; sys.argv.remove("-1k")
    out = sys.argv[1] if len(sys.argv) > 1 else "cdna_kernels/" + NAME + ".s"
    open(out, "w").write(mode())
    print("wrote", out, "LDS", LDS_BYTES)
```

```python
import sys

N = 25000
E = 400000
NAME = "gather_scatter__edge_featured_mpnn_egc__graph"

TS = 25024 * 128
REC_OFF = 0x1000000
REC_BYTES = 250 * 19200
HDR_OFF = 0x1800000
HDR_BYTES = 64 * 256 * 16
TFL_OFF = HDR_BYTES
HDR_SRD_BYTES = HDR_BYTES + 4 * 64 * 128
MAGIC_OFF = 0x4B000000

CNT = 0
LCNT = 256
NONCE = 384
DONE = 388
NON2 = 392
S2, S3, WF, XF = 396, 400, 404, 416
CSUM = 512
CAP = 500
LS = 564
KEYB = 768
EB = KEYB + 16 * LS * 4
EOFF = EB - 2 * KEYB
IMG = EB + 16 * LS * 8
WB = IMG
STG = IMG + 32768
LDS_BYTES = 163840
NI = 14
CFAST = 4 * NI

SRD_X, SRD_E, SRD_SRC, SRD_DST, SRD_W, SRD_OUT, SRD_TS, SRD_TG, SRD_REC, SRD_HDR, SRD_G = [4 + 4 * i for i in range(11)]
SRD_DBG = SRD_E
KP = 48
sXM = 3
sNODT = 71
sWV, sBIN, sSL, sNODE0, sNN = 68, 69, 70, 72, 73
sSPIN = 95
sNL2E, sMAXF, sSELLO, sSELHI, sMAGIC, s127, sM1, sM2, sM3, sM4, sSTG, sKMAX = range(74, 86)
sHM = 86
sT0, sT1, sT2, sT3 = 88, 89, 90, 91
sRB, sC, sNT, sIT = 92, 93, 94, 95
sEX = 96
sNON, sNOH = 98, 99
sRET = 64
MASKS = [4 + 2 * i for i in range(10)] + [44, 46, 56, 58]
SPIN_MAX = 40000

vLANE = 1
T1 = 16; ACC = 32; RING = 48; REC = 72
POP, AEX, SAG = 48, 56, 64
OFF = 16
RA, RBUF, Z = 72, 88, 104


class A:
    def __init__(self):
        self.l = []
    def __call__(self, s):
        for x in s.strip("\n").split("\n"):
            self.l.append("    " + x.strip())
    def lab(self, s):
        self.l.append(s + ":")
    def c(self, s):
        self.l.append("    ; " + s)
    def text(self):
        return "\n".join(self.l) + "\n"


def vr(a, n):
    return f"v[{a}:{a+n-1}]"
def sr(a, n):
    return f"s[{a}:{a+n-1}]"


STAMPS = False
PRIO = True
PS1, PS2 = 24, 8
XEARLY = 4
XP = [0, 0, 0, 0, 0, 0]
PUBW = 16
DIAG = set()
STAMP_OFF = 0x2000000
def sreg(i):
    return KP + i if i < 8 else KP + 4 + i
def stamp(a, i):
    if not STAMPS: return
    a(f"s_memrealtime s[100:101]")
    a(f"s_waitcnt lgkmcnt(0)")
    a(f"s_mov_b32 s{sreg(i)}, s100")

def stamp_out(a, kidx, n):
    if not STAMPS: return
    a(f"s_mov_b64 exec, -1")
    if "dbgmax" in DIAG:
        a(f"s_load_dwordx2 {sr(sT2,2)}, s[0:1], 64")
        a(f"s_waitcnt lgkmcnt(0)")
        srd(a, SRD_W, sT2, sT3, 256)
        a(f"v_mov_b32 v6, 0")
        a(f"ds_read_b32 v8, v6 offset:{NON2}")
        a(f"s_waitcnt lgkmcnt(0)")
        a(f"s_mov_b64 exec, 1")
        for i in (0, 2, 3, 4, 11, 5, 6, 7, 8):
            a(f"v_sub_u32 v7, s{sreg(i)}, v8")
            a(f"v_max_i32 v7, 0, v7")
            a(f"buffer_atomic_umax v7, v6, {sr(SRD_W,4)}, 0 offen offset:{4*(i+1)}")
        return
    a(f"s_add_u32 s{sT2}, s{KP+18}, 0x{STAMP_OFF + kidx * 0x100000:x}")
    a(f"s_addc_u32 s{sT3}, s{KP+19}, 0")
    srd(a, SRD_W, sT2, sT3, 0x100000)
    a(f"s_lshl_b32 s{sT0}, s2, 4")
    a(f"s_add_u32 s{sT0}, s{sT0}, s{sWV}")
    a(f"s_lshl_b32 s{sT0}, s{sT0}, 6")
    a(f"v_mov_b32 v6, s{sT0}")
    for i in range(n):
        a(f"v_mov_b32 v7, s{sreg(i)}")
        a(f"buffer_store_dword v7, v6, {sr(SRD_W,4)}, 0 offen offset:{4*i}")


def srd(a, d, lo, hi, nbytes):
    a(f"s_mov_b32 s{d}, s{lo}")
    a(f"s_mov_b32 s{d+1}, s{hi}")
    a(f"s_mov_b32 s{d+2}, {nbytes}")
    a(f"s_mov_b32 s{d+3}, 0x00020000")


def setup(a, p):
    a.c("---------------- setup")
    a(f"s_cmp_ge_u32 s2, 256")
    a(f"s_cbranch_scc1 {p}_end")
    a(f"s_load_dwordx16 {sr(KP,16)}, s[0:1], 0")
    a(f"s_load_dwordx4 {sr(KP+16,4)}, s[0:1], 64")
    a(f"s_memrealtime s[100:101]")
    a(f"v_lshrrev_b32 v2, 6, v0")
    a(f"v_and_b32 v{vLANE}, 63, v0")
    a(f"v_readfirstlane_b32 s{sWV}, v2")
    a(f"s_and_b32 s{sT0}, s2, 7")
    a(f"s_lshr_b32 s{sSL}, s{sT0}, 1")
    a(f"s_lshr_b32 s{sBIN}, s2, 3")
    a(f"s_and_b32 s{sT0}, s2, 1")
    a(f"s_lshl_b32 s{sT0}, s{sT0}, 5")
    a(f"s_or_b32 s{sBIN}, s{sBIN}, s{sT0}")
    a(f"s_mul_i32 s{sT0}, s2, 6400")
    a(f"v_lshl_add_u32 v3, v0, 4, s{sT0}")
    a(f"v_lshlrev_b32 v4, 1, v3")
    a(f"s_mul_i32 s{sT1}, s{sSL}, {TS}")
    a(f"s_waitcnt lgkmcnt(0)")
    x, e, src, dst, u, v, g, out, dbg, ws = [KP + 2 * i for i in range(10)]
    a(f"s_or_b32 s{sT0}, s2, s{sWV}")
    a(f"s_cbranch_scc1 {p}_notag")
    a.c("launch tag: the first wave of workgroup 0 publishes a clock value in d_debug, everyone picks it up")
    srd(a, SRD_DBG, dbg, dbg + 1, 256)
    a(f"s_or_b32 s{sT0}, s100, 1")
    a(f"v_mov_b32 v13, s{sT0}")
    a(f"v_mov_b32 v10, 0")
    a(f"s_mov_b64 exec, 1")
    a(f"buffer_store_dword v13, v10, {sr(SRD_DBG,4)}, 0 offen sc1")
    a(f"s_mov_b64 exec, -1")
    a.lab(f"{p}_notag")
    srd(a, SRD_DST, dst, dst + 1, E * 4)
    srd(a, SRD_SRC, src, src + 1, E * 4)
    srd(a, SRD_E, e, e + 1, E * 8)
    a(f"s_cmp_ge_u32 s{sWV}, 7")
    a(f"s_cbranch_scc1 {p}_noedge")
    a(f"buffer_load_dwordx4 {vr(vD,4)}, v3, {sr(SRD_DST,4)}, 0 offen")
    a(f"buffer_load_dwordx4 {vr(vS,4)}, v3, {sr(SRD_SRC,4)}, 0 offen")
    a(f"buffer_load_dwordx4 {vr(vE,4)}, v4, {sr(SRD_E,4)}, 0 offen")
    a(f"buffer_load_dwordx4 {vr(vE+4,4)}, v4, {sr(SRD_E,4)}, 0 offen offset:16")
    a.lab(f"{p}_noedge")
    a(f"s_lshl_b32 s{sT0}, s{sBIN}, 4")
    a(f"s_add_u32 s{sT0}, s{sT0}, s{sWV}")
    a(f"s_mul_i32 s{sT0}, s{sT0}, 3125")
    a(f"s_lshr_b32 s{sNODE0}, s{sT0}, 7")
    a(f"s_add_u32 s{sT0}, s{sT0}, 3125")
    a(f"s_lshr_b32 s{sNN}, s{sT0}, 7")
    a(f"s_sub_u32 s{sNN}, s{sNN}, s{sNODE0}")
    a(f"s_mov_b32 s{sHM}, 0")
    a(f"s_mov_b32 s{sHM+1}, -1")
    srd(a, SRD_X, x, x + 1, N * 256)
    srd(a, SRD_OUT, out, out + 1, N * 256)
    srd(a, SRD_G, g, g + 1, 260 * 256)
    a(f"s_add_u32 s{sT2}, s{ws}, s{sT1}")
    a(f"s_addc_u32 s{sT3}, s{ws+1}, 0")
    srd(a, SRD_TS, sT2, sT3, (N + 1) * 128)
    a(f"s_sub_u32 s{sT2}, s{sT2}, 0x{MAGIC_OFF:x}")
    a(f"s_subb_u32 s{sT3}, s{sT3}, 0")
    srd(a, SRD_TG, sT2, sT3, MAGIC_OFF + (N + 1) * 128)
    a(f"s_add_u32 s{sT2}, s{ws}, 0x{REC_OFF:x}")
    a(f"s_addc_u32 s{sT3}, s{ws+1}, 0")
    srd(a, SRD_REC, sT2, sT3, REC_BYTES)
    a(f"s_add_u32 s{sT2}, s{ws}, 0x{HDR_OFF:x}")
    a(f"s_addc_u32 s{sT3}, s{ws+1}, 0")
    srd(a, SRD_HDR, sT2, sT3, HDR_SRD_BYTES)
    a(f"s_mov_b32 s{sNL2E}, 0xbfb8aa3b")
    a(f"s_mov_b32 s{sMAXF}, 0x7f7f0000")
    a(f"s_mov_b32 s{sSELLO}, 0x07060100")
    a(f"s_mov_b32 s{sSELHI}, 0x07060302")
    a(f"s_mov_b32 s{sMAGIC}, 10995117")
    a(f"s_mov_b32 s{s127}, 127")
    a(f"s_mov_b32 s{sM1}, 0x260000")
    a(f"s_mov_b32 s{sM2}, 0x100000")
    a(f"s_mov_b32 s{sM3}, 0x080000")
    a(f"s_mov_b32 s{sM4}, 0x3c000000")
    a(f"s_mov_b32 s{sSTG}, {STG}")
    a(f"s_mov_b32 s{sKMAX}, {EB - 4}")
    a(f"v_mov_b32 v{vONE}, 1")
    a(f"v_mov_b32 v10, 0")


def spin(a, lab, off, val):
    a.lab(lab)
    a(f"ds_read_b32 v11, v10 offset:{off}")
    a(f"s_waitcnt lgkmcnt(0)")
    a(f"v_readfirstlane_b32 s{sT0}, v11")
    a(f"s_cmp_lt_u32 s{sT0}, {val}")
    a(f"s_cbranch_scc1 {lab}")


def signal(a, off):
    a(f"s_mov_b64 exec, 1")
    a(f"ds_add_u32 v10, v{vONE} offset:{off}")
    a(f"s_mov_b64 exec, -1")


def init_counters(a, p, tag, with_cnt):
    a.c("wave 0: bin counters = 0, list cursors = list starts")
    a(f"s_cmp_lg_u32 s{sWV}, 0")
    a(f"s_cbranch_scc1 {p}_ic{tag}")
    a(f"v_lshlrev_b32 v7, 2, v{vLANE}")
    a(f"v_mul_u32_u24 v8, {LS}, v7")
    a(f"v_add_u32 v8, {KEYB}, v8")
    a(f"v_cmp_gt_u32 vcc, 16, v{vLANE}")
    a(f"v_mov_b32 v9, 0")
    a(f"s_nop 0")
    a(f"v_cndmask_b32 v8, 0, v8, vcc")
    if with_cnt:
        a(f"ds_write_b32 v7, v9 offset:{CNT}")
        a(f"ds_write_b32 v7, v9 offset:{CSUM}")
        a(f"ds_write_b32 v7, v8 offset:{LCNT}")
    else:
        a(f"s_not_b64 exec, {sr(sHM,2)}")
        a(f"ds_write_b32 v7, v8 offset:{LCNT}")
        a(f"s_mov_b64 exec, -1")
    a.lab(f"{p}_ic{tag}")


def scan64(a, v):
    for sh in (1, 2, 4, 8):
        a(f"s_nop 1")
        a(f"v_add_u32_dpp v{v}, v{v}, v{v} row_shr:{sh} row_mask:0xf bank_mask:0xf bound_ctrl:0")
    a(f"s_nop 1")
    a(f"v_add_u32_dpp v{v}, v{v}, v{v} row_bcast:15 row_mask:0xa bank_mask:0xf")
    a(f"s_nop 1")
    a(f"v_add_u32_dpp v{v}, v{v}, v{v} row_bcast:31 row_mask:0xc bank_mask:0xf")


vD, vS, vE, vK, vB, vR = 72, 76, 80, 88, 92, 96
vTa, vTb, vTc = 100, 101, 102
vONE = 2


def offsets_scan(a):
    a(f"v_lshlrev_b32 v{vTa}, 2, v{vLANE}")
    a(f"ds_read_b32 v{vTb}, v{vTa} offset:{CNT}")
    a(f"s_waitcnt lgkmcnt(0)")
    a(f"v_mov_b32 v{vTc}, v{vTb}")
    scan64(a, vTc)
    a(f"v_sub_u32 v{vTc}, v{vTc}, v{vTb}")


def noh_from_non(a):
    a(f"s_mul_i32 s{sNOH}, s{sNON}, 0x9e3779b1")
    a(f"s_and_b32 s{sNOH}, s{sNOH}, 0xf800f800")


def front(a, p):
    a(f"s_cmp_lg_u32 s{sWV}, 7")
    a(f"s_cbranch_scc1 {p}_f_noinit")
    a.c("wave 7: bin counters, checksums, flags = 0, list cursors = list starts")
    a(f"v_lshlrev_b32 v7, 2, v{vLANE}")
    a(f"v_mul_u32_u24 v8, {LS}, v7")
    a(f"v_add_u32 v8, {KEYB}, v8")
    a(f"v_cmp_gt_u32 vcc, 16, v{vLANE}")
    a(f"ds_write_b32 v7, v10 offset:{CNT}")
    a(f"ds_write_b32 v7, v10 offset:{CSUM}")
    a(f"v_cndmask_b32 v8, 0, v8, vcc")
    a(f"ds_write_b32 v7, v8 offset:{LCNT}")
    if "icpf" in DIAG:
        a.c("read the kernel's own code once so that later instruction fetches find it in the L2")
        a(f"s_getpc_b64 {sr(sT2,2)}")
        a.lab(f"{p}_pc")
        a(f"v_lshlrev_b32 v9, 7, v{vLANE}")
        a(f"global_load_dword v104, v9, {sr(sT2,2)}")
        a(f"v_add_u32 v9, 8192, v9")
        a(f"v_cmp_gt_u32 vcc, {p}_code_end - {p}_pc - 4, v9")
        a(f"s_mov_b64 exec, vcc")
        a(f"global_load_dword v105, v9, {sr(sT2,2)}")
        a(f"s_mov_b64 exec, -1")
    a(f"s_waitcnt lgkmcnt(0)")
    a.lab(f"{p}_f_noinit")
    a(f"s_cmp_lg_u32 s{sWV}, 15")
    a(f"s_cbranch_scc1 {p}_tag_done")
    srd(a, SRD_DBG, KP + 16, KP + 17, 256)
    a(f"buffer_load_dword v72, v10, {sr(SRD_DBG,4)}, 0 offen sc1")
    a.lab(f"{p}_tag_done")
    a(f"s_barrier")
    a(f"s_cmp_eq_u32 s{sWV}, 15")
    a(f"s_cbranch_scc1 {p}_f_w15")
    a(f"s_cmp_ge_u32 s{sWV}, 7")
    a(f"s_cbranch_scc1 {p}_f_loader")

    a.c("---------------- waves 0-6: sort this workgroup's 1600 edges by destination bin")
    a(f"s_setprio {XP[3]}")
    a(f"s_cmp_lt_u32 s2, 250")
    a(f"s_cselect_b32 s{sT0}, 400, 0")
    a(f"v_cmp_gt_u32 vcc, s{sT0}, v0")
    a(f"s_mov_b64 {sr(sEX,2)}, vcc")
    a(f"s_waitcnt vmcnt(3)")
    stamp(a, 1)
    for e in range(4):
        a(f"v_lshl_or_b32 v{vK+e}, v{vD+e}, 7, s{s127}")
        a(f"v_mul_hi_u32 v{vK+e}, v{vK+e}, s{sMAGIC}")
        a(f"v_lshrrev_b32 v{vB+e}, 5, v{vK+e}")
        a(f"v_and_b32 v{vB+e}, 0xfc, v{vB+e}")
    a(f"s_mov_b64 exec, {sr(sEX,2)}")
    for e in range(4):
        a(f"ds_add_rtn_u32 v{vR+e}, v{vB+e}, v{vONE} offset:{CNT}")
    signal(a, S2)
    for e in range(4):
        d, k = vD + e, vK + e
        a(f"v_lshrrev_b32 v{vTa}, 3, v{k}")
        a(f"v_mul_u32_u24 v{vTb}, 3125, v{vTa}")
        a(f"v_lshrrev_b32 v{vTb}, 7, v{vTb}")
        a(f"v_sub_u32 v{vTb}, v{d}, v{vTb}")
        a(f"v_lshlrev_b32 v{k}, 26, v{vTa}")
        a(f"v_and_b32 v{k}, s{sM4}, v{k}")
        a(f"v_lshlrev_b32 v{vTc}, 17, v{vTb}")
        a(f"v_and_or_b32 v{k}, v{vTc}, s{sM1}, v{k}")
        a(f"v_lshlrev_b32 v{vTc}, 18, v{vTb}")
        a(f"v_and_or_b32 v{k}, v{vTc}, s{sM2}, v{k}")
        a(f"v_lshlrev_b32 v{vTc}, 16, v{vTb}")
        a(f"v_and_or_b32 v{k}, v{vTc}, s{sM3}, v{k}")
    a(f"s_lshl_b32 s{sT1}, s{sWV}, 10")
    a(f"v_lshl_add_u32 v3, v{vLANE}, 4, s{sT1}")
    a(f"v_add_u32 v7, {STG}, v3")
    a(f"s_mul_i32 s{sT1}, s2, 19200")
    a(f"v_add_u32 v3, s{sT1}, v3")
    spin(a, f"{p}_f_s2", S2, 7)
    stamp(a, 10)
    offsets_scan(a)
    for e in range(4):
        a(f"ds_bpermute_b32 v{vD+e}, v{vB+e}, v{vTc}")
    a(f"s_waitcnt vmcnt(0)")
    for e in range(4):
        a(f"v_or_b32 v{vK+e}, v{vK+e}, v{vS+e}")
        a(f"v_add3_u32 v{vS+e}, v{vE+2*e}, v{vE+2*e+1}, v{vK+e}")
    a(f"s_waitcnt lgkmcnt(0)")
    for e in range(4):
        a(f"v_add_u32 v{vR+e}, v{vR+e}, v{vD+e}")
        a(f"v_mad_u32_u24 v{vR+e}, v{vR+e}, 12, s{sSTG}")
    a(f"s_mov_b64 exec, {sr(sEX,2)}")
    for e in range(4):
        a(f"ds_write2_b32 v{vR+e}, v{vE+2*e}, v{vE+2*e+1} offset0:0 offset1:1")
        a(f"ds_write_b32 v{vR+e}, v{vK+e} offset:8")
        a(f"ds_add_u32 v{vB+e}, v{vS+e} offset:{CSUM}")
    signal(a, S3)
    spin(a, f"{p}_f_s3", S3, 7)
    a.c("copy the sorted records out: 1 KiB pieces wv, wv + 7, wv + 14")
    for k in range(3):
        a(f"ds_read_b128 {vr(104 + 4*k, 4)}, v7 offset:{7168*k}")
    signal(a, S3)
    a(f"v_add_u32 v4, 7168, v3")
    a(f"v_add_u32 v5, 14336, v3")
    a(f"s_waitcnt lgkmcnt(3)")
    a(f"buffer_store_dwordx4 {vr(104,4)}, v3, {sr(SRD_REC,4)}, 0 offen sc1")
    a(f"s_waitcnt lgkmcnt(2)")
    a(f"buffer_store_dwordx4 {vr(108,4)}, v4, {sr(SRD_REC,4)}, 0 offen sc1")
    a(f"s_cmp_gt_u32 s{sWV}, 4")
    a(f"s_cbranch_scc1 {p}_f_x0")
    a(f"s_cmp_eq_u32 s{sWV}, 4")
    a(f"s_cselect_b32 exec_hi, 0xffff, -1")
    a(f"s_waitcnt lgkmcnt(1)")
    a(f"buffer_store_dwordx4 {vr(112,4)}, v5, {sr(SRD_REC,4)}, 0 offen sc1")
    a(f"s_mov_b64 exec, -1")
    a.lab(f"{p}_f_x0")
    a(f"s_setprio 0")
    a.lab(f"{p}_f_x")
    x_loads(a)
    load_C(a)
    a(f"s_setprio 0")
    a(f"s_branch {p}_f_done")

    a.c("---------------- waves 7-10: one weight matrix each into LDS, then own x rows; waves 11-14: own x rows")
    a.lab(f"{p}_f_loader")
    u, v, g = KP + 8, KP + 10, KP + 12
    a(f"s_setprio {XP[0]}")
    a(f"s_cmp_ge_u32 s{sWV}, 11")
    a(f"s_cbranch_scc1 {p}_f_x")
    a(f"s_setprio {XP[3]}")
    a(f"s_sub_u32 s{sT3}, s{sWV}, 7")
    a(f"s_cmp_eq_u32 s{sT3}, 2")
    a(f"s_cselect_b64 {sr(SRD_W,2)}, {sr(v,2)}, {sr(u,2)}")
    a(f"s_mov_b32 s{SRD_W+2}, 32768")
    a(f"s_cmp_lt_u32 s{sT3}, 2")
    a(f"s_cselect_b64 {sr(SRD_W,2)}, {sr(g,2)}, {sr(SRD_W,2)}")
    a(f"s_cselect_b32 s{SRD_W+2}, 65536, s{SRD_W+2}")
    a(f"s_mov_b32 s{SRD_W+3}, 0x00020000")
    a(f"s_cmp_eq_u32 s{sT3}, 1")
    a(f"s_cselect_b32 s{sT0}, 32768, 0")
    a(f"s_lshl_b32 s{sT1}, s{sSL}, 6")
    a(f"s_add_u32 s{sT0}, s{sT0}, s{sT1}")
    a(f"v_lshrrev_b32 v4, 2, v{vLANE}")
    a(f"v_lshl_add_u32 v4, v4, 8, s{sT0}")
    a(f"v_and_b32 v6, 3, v{vLANE}")
    a(f"v_lshl_add_u32 v4, v6, 4, v4")
    a(f"s_lshl_b32 s{sT0}, s{sT3}, 13")
    for d in range(8):
        a(f"s_add_u32 m0, s{sT0}, {WB + 1024 * d}")
        a(f"s_mov_b32 s{sT1}, {4096 * d}")
        a(f"buffer_load_dwordx4 v4, {sr(SRD_W,4)}, s{sT1} offen lds")
    a(f"s_waitcnt vmcnt(0)")
    signal(a, WF)
    stamp(a, 10)
    a(f"s_setprio {XP[1]}")
    a(f"s_branch {p}_f_x")

    a.c("---------------- wave 15 publishes / collects the headers")
    a.lab(f"{p}_f_w15")
    a(f"s_setprio 3")
    a(f"s_lshl_b32 s{sT0}, s2, 10")
    a(f"v_lshl_add_u32 v4, v{vLANE}, 4, s{sT0}")
    a(f"s_mov_b32 s{sSPIN}, {SPIN_MAX}")
    for k in range(1, 4):
        a(f"s_sleep 5")
        a(f"buffer_load_dword v{72+k}, v10, {sr(SRD_DBG,4)}, 0 offen sc1")
    a(f"s_waitcnt vmcnt(0)")
    a(f"v_or3_b32 v13, v72, v73, v74")
    a(f"v_or_b32 v13, v13, v75")
    a(f"s_branch {p}_tag_first")
    a.lab(f"{p}_tag_loop")
    a(f"buffer_load_dword v13, v10, {sr(SRD_DBG,4)}, 0 offen sc1")
    a(f"s_waitcnt vmcnt(0)")
    a.lab(f"{p}_tag_first")
    a(f"s_nop 0")
    a(f"v_readfirstlane_b32 s{sNON}, v13")
    a(f"s_cmp_lg_u32 s{sNON}, 0")
    a(f"s_cbranch_scc1 {p}_tag_ok")
    a(f"s_sub_u32 s{sSPIN}, s{sSPIN}, 1")
    a(f"s_cbranch_scc0 {p}_tag_loop")
    a(f"v_mov_b32 v13, 1")
    a(f"s_mov_b32 s{sNON}, 1")
    a.lab(f"{p}_tag_ok")
    a(f"ds_write_b32 v10, v13 offset:{NON2}")
    noh_from_non(a)
    spin(a, f"{p}_f_s2b", S2, 7)
    offsets_scan(a)
    a(f"v_lshl_or_b32 v12, v{vTb}, 16, v{vTc}")
    a(f"v_or_b32 v12, s{sNOH}, v12")
    spin(a, f"{p}_f_s3b", S3, 7)
    a(f"ds_read_b32 v14, v{vTa} offset:{CSUM}")
    a(f"s_waitcnt lgkmcnt(0)")
    a(f"buffer_store_dwordx4 v[12:15], v4, {sr(SRD_HDR,4)}, 0 offen sc1")
    stamp(a, 1)
    a(f"s_setprio 0")
    a.lab(f"{p}_f_done")


def collect(a, p):
    a.c("---------------- wave 15: weights of the node terms, then this bin's 256 headers for the other waves")
    u, g = KP + 8, KP + 12
    a(f"s_cmp_lg_u32 s{sWV}, 15")
    a(f"s_cbranch_scc1 {p}_c_done")
    a(f"s_setprio 3")
    a(f"v_mov_b32 v10, 0")
    spin(a, f"{p}_f_s3c", S3, 14)
    a(f"s_lshl_b32 s{sT0}, s{sBIN}, 4")
    a(f"v_lshl_add_u32 v3, v{vLANE}, 12, s{sT0}")
    if PS1: a(f"s_sleep {PS1}")
    for k in range(4):
        a(f"buffer_load_dwordx3 {vr(72+4*k,3)}, v3, {sr(SRD_HDR,4)}, 0 offen offset:{1024*k} sc1")
    a.lab(f"{p}_c_done")


def collect2(a, p):
    a(f"s_cmp_lg_u32 s{sWV}, 15")
    a(f"s_cbranch_scc1 {p}_c2_done")
    a(f"s_mov_b32 s{sSPIN}, {SPIN_MAX}")
    a(f"s_waitcnt vmcnt(0)")
    a(f"s_branch {p}_hfirst")
    a.lab(f"{p}_hpoll")
    for k in range(4):
        a(f"buffer_load_dwordx3 {vr(72+4*k,3)}, v3, {sr(SRD_HDR,4)}, 0 offen offset:{1024*k} sc1")
    a(f"s_waitcnt vmcnt(0)")
    a.lab(f"{p}_hfirst")
    a(f"s_sub_u32 s{sSPIN}, s{sSPIN}, 1")
    a(f"s_cbranch_scc1 {p}_hok")
    for k in range(4):
        a(f"v_xor_b32 v{88+k}, s{sNON}, v{73+4*k}")
        a(f"v_xor_b32 v{92+k}, s{sNOH}, v{72+4*k}")
        a(f"v_and_b32 v{92+k}, 0xf800f800, v{92+k}")
    a(f"v_or3_b32 v88, v88, v89, v90")
    a(f"v_or3_b32 v92, v92, v93, v94")
    a(f"v_or3_b32 v88, v88, v91, v95")
    a(f"v_or_b32 v88, v88, v92")
    a(f"v_cmp_ne_u32 vcc, 0, v88")
    a(f"s_and_b64 exec, exec, vcc")
    a(f"s_cbranch_scc0 {p}_hok")
    a(f"s_sleep {PS2}")
    a(f"s_branch {p}_hpoll")
    a.lab(f"{p}_hok")
    a(f"s_mov_b64 exec, -1")
    a(f"v_lshlrev_b32 v7, 5, v{vLANE}")
    a(f"v_add_u32 v7, {STG}, v7")
    a(f"v_mov_b32 v13, s{sNON}")
    for k in range(4):
        a(f"ds_write2_b32 v7, v{72+4*k}, v{74+4*k} offset0:{2*k} offset1:{2*k+1}")
    a(f"ds_write_b32 v10, v13 offset:{NONCE}")
    stamp(a, 10)
    x_loads(a)
    load_C(a)
    a.lab(f"{p}_c2_done")


vZ0 = 2
vXA, vWA, vTMP = 3, 4, 5
def w_addr(a, base):
    a(f"v_lshrrev_b32 v6, 5, v{vLANE}")
    a(f"v_lshl_add_u32 v{vWA}, v6, 9, s{base}")
    a(f"v_bfe_u32 v6, v{vLANE}, 2, 2")
    a(f"v_lshl_add_u32 v{vWA}, v6, 6, v{vWA}")
    a(f"v_and_b32 v6, 1, v{vLANE}")
    a(f"v_lshl_add_u32 v{vWA}, v6, 5, v{vWA}")
    a(f"v_and_b32 v6, 16, v{vLANE}")
    a(f"v_add_u32 v{vWA}, v6, v{vWA}")
    a(f"v_and_b32 v6, 2, v{vLANE}")
    a(f"v_lshl_add_u32 v{vWA}, v6, 2, v{vWA}")


def xf(s):
    return 16 + 4 * s if s < 4 else 56 + 4 * (s - 4)

def x_loads(a):
    a.c("this wave's own x rows straight into operand registers")
    a(f"v_and_b32 v6, 31, v{vLANE}")
    a(f"v_cmp_gt_u32 vcc, 26, v6")
    a(f"v_add_u32 v6, s{sNODE0}, v6")
    a(f"v_lshlrev_b32 v6, 8, v6")
    a(f"v_lshrrev_b32 v7, 5, v{vLANE}")
    a(f"v_lshl_add_u32 v6, v7, 4, v6")
    a(f"s_mov_b64 exec, vcc")
    for s in range(8):
        a(f"buffer_load_dwordx4 {vr(xf(s),4)}, v6, {sr(SRD_X,4)}, 0 offen offset:{32*s}")
    a(f"s_mov_b64 exec, -1")


def w_reads(a, m1, m2, s):
    for k, m in enumerate((m1, m2)):
        for u in range(2):
            a(f"ds_read_b64_tr_b16 {vr(RA+8*(s%4)+4*k+2*u,2)}, v{vWA} offset:{m*8192 + s*1024 + u*256}")


def gemm_pass(a, m1, m2, swap2, first_issued=False, nxt=None):
    if not first_issued:
        for s in range(4):
            w_reads(a, m1, m2, s)
    for s in range(8):
        r = RA + 8 * (s % 4)
        a(f"s_waitcnt lgkmcnt({12 if s <= 4 else 4 * (7 - s)})")
        c1 = "0" if s == 0 else vr(Z, 16)
        c2 = "0" if s == 0 else vr(ACC, 16)
        a(f"v_mfma_f32_32x32x16_bf16 {vr(Z,16)}, {vr(xf(s),4)}, {vr(r,4)}, {c1}")
        if swap2:
            a(f"v_mfma_f32_32x32x16_bf16 {vr(ACC,16)}, {vr(r+4,4)}, {vr(xf(s),4)}, {c2}")
        else:
            a(f"v_mfma_f32_32x32x16_bf16 {vr(ACC,16)}, {vr(xf(s),4)}, {vr(r+4,4)}, {c2}")
        if s < 4:
            w_reads(a, m1, m2, s + 4)


def table_store(a, fused):
    a.c("table rows: hi16 = -log2e * (x B), lo16 = bf16(1 / (x V)); 8 rows at a time through LDS, whole lines out")
    a(f"s_lshl_b32 s{sT1}, s{sWV}, 10")
    a(f"s_add_u32 s{sT1}, s{sT1}, {STG + 2048}")
    a(f"v_lshrrev_b32 v6, 5, v{vLANE}")
    a(f"v_lshl_add_u32 v6, v6, 9, s{sT1}")
    a(f"v_and_b32 v7, 31, v{vLANE}")
    a(f"v_lshl_add_u32 v6, v7, 2, v6")
    a(f"v_lshl_add_u32 v7, v{vLANE}, 4, s{sT1}")
    a(f"s_lshl_b32 s{sT0}, s{sNODE0}, 7")
    a(f"v_lshl_add_u32 v{vTMP}, v{vLANE}, 4, s{sT0}")
    a(f"s_nop 5")
    for j in range(0, 14, 2):
        for k in (j, j + 1):
            a(f"v_rcp_f32 v{ACC+k}, v{ACC+k}")
            a(f"v_mul_f32 v{Z+k}, s{sNL2E}, v{Z+k}")
        for k in (j, j + 1):
            a(f"v_med3_f32 v{ACC+k}, v{ACC+k}, s{sMAXF}, -s{sMAXF}")
        a(f"v_cvt_pk_bf16_f32 v{ACC+j}, v{ACC+j}, v{ACC+j+1}")
        a(f"v_perm_b32 v{Z+j}, v{Z+j}, v{ACC+j}, s{sSELLO}")
        a(f"v_perm_b32 v{Z+j+1}, v{Z+j+1}, v{ACC+j}, s{sSELHI}")
        for k in (j, j + 1):
            a(f"ds_write_b32 v6, v{Z+k} offset:{(k&3)*128}")
        if j % 4 == 2 or j == 12:
            g = j // 4
            a(f"ds_read_b128 {vr(RA+4*g,4)}, v7")
    for g in range(4):
        a(f"s_waitcnt lgkmcnt({(10, 5, 3, 0)[g] if False else 0})") if g == 0 else None
        if g == 3:
            a(f"s_mov_b64 exec, 0xffff")
        a(f"buffer_store_dwordx4 {vr(RA+4*g,4)}, v{vTMP}, {sr(SRD_TS,4)}, 0 offen offset:{1024*g} sc1")
    a(f"s_mov_b64 exec, -1")
    a(f"s_nop 0")


vC0 = 48
def load_C(a):
    a.c("edge-feature weights g_w[256+k][32*slice + pi(n)]")
    a(f"v_bfe_u32 v6, v{vLANE}, 2, 1")
    a(f"v_lshlrev_b32 v6, 5, v6")
    a(f"v_bfe_u32 v7, v{vLANE}, 3, 2")
    a(f"v_lshl_add_u32 v6, v7, 3, v6")
    a(f"v_and_b32 v7, 3, v{vLANE}")
    a(f"v_lshl_add_u32 v6, v7, 1, v6")
    a(f"s_lshl_b32 s{sT0}, s{sSL}, 6")
    a(f"s_add_u32 s{sT0}, s{sT0}, 65536")
    a(f"v_add_u32 v6, s{sT0}, v6")
    for k in range(4):
        a(f"buffer_load_ushort v{vC0+k}, v6, {sr(SRD_G,4)}, 0 offen offset:{256*k}")


def pop_pack(a):
    a.c("P' operand (rows 26.. replaced by the edge-feature weights / zero)")
    for k in range(4):
        a(f"v_lshlrev_b32 v{vC0+k}, 16, v{vC0+k}")
    for k in range(4):
        a(f"v_mul_f32 v{vC0+k}, s{sNL2E}, v{vC0+k}")
    a(f"v_cvt_pk_bf16_f32 v6, v{vC0}, v{vC0+1}")
    a(f"v_cvt_pk_bf16_f32 v7, v{vC0+2}, v{vC0+3}")
    a(f"s_nop 3")
    for k in range(14):
        a(f"v_mul_f32 v{Z+k}, s{sNL2E}, v{Z+k}")
    for k in range(7):
        a(f"v_cvt_pk_bf16_f32 v{POP+k}, v{Z+2*k}, v{Z+2*k+1}")
    a(f"v_cndmask_b32 v{POP+6}, v{POP+6}, v6, {sr(sHM,2)}")
    a(f"v_cndmask_b32 v{POP+7}, 0, v7, {sr(sHM,2)}")


vHS, vHL = 12, 13
def hdr_load(a, fused, addr=7):
    a(f"buffer_load_dwordx2 v[14:15], v{addr}, {sr(SRD_HDR,4)}, 0 offen{' sc1' if fused else ''}")

def hdr_addr(a, addr=7):
    a(f"v_lshrrev_b32 v{addr}, 2, v0")
    a(f"s_lshl_b32 s{sT0}, s{sBIN}, 4")
    a(f"v_lshl_add_u32 v{addr}, v{addr}, 10, s{sT0}")


def hdr_decode(a):
    a(f"v_and_b32 v6, 3, v0")
    a(f"v_and_b32 v7, 0x7ff, v14")
    a(f"v_add_u32 v7, v7, v6")
    a(f"v_mul_u32_u24 v7, 12, v7")
    a(f"v_lshrrev_b32 v{vHS}, 2, v0")
    a(f"v_mul_u32_u24 v{vHS}, 19200, v{vHS}")
    a(f"v_add_u32 v{vHS}, v{vHS}, v7")
    a(f"v_bfe_u32 v{vHL}, v14, 16, 11")
    a(f"v_sub_u32 v{vHL}, v{vHL}, v6")
    a(f"s_mov_b32 s{sRB}, 0")
    a(f"s_mov_b32 s{sC}, {CFAST}")


def rec_loads(a, p, tag, fused, fixed=False):
    sc = " sc1" if fused else ""
    a(f"v_subrev_u32 v7, s{sRB}, v{vHL}")
    a(f"v_and_b32 v6, 3, v0")
    a(f"v_sub_u32 v6, s{sC}, v6")
    a(f"v_min_i32 v7, v7, v6")
    a(f"s_mul_i32 s{sT0}, s{sRB}, 12")
    a(f"v_add_u32 v6, s{sT0}, v{vHS}")
    for i in range(NI):
        a(f"v_cmp_lt_i32 {sr(MASKS[i],2)}, {4*i}, v7")
    for i in range(NI):
        a(f"s_mov_b64 exec, {sr(MASKS[i],2)}")
        if not fixed: a(f"s_cbranch_execz {p}_rl_done{tag}")
        a(f"buffer_load_dwordx3 {vr(REC+4*i,3)}, v6, {sr(SRD_REC,4)}, 0 offen offset:{48*i}{sc}")
    a.lab(f"{p}_rl_done{tag}")
    a(f"s_mov_b64 exec, -1")


def append1(a, p, tag):
    a.c("---------------- list slots for the records (16 sub-block lists)")
    a(f"s_add_u32 s{sT0}, s{sRB}, s{sC}")
    a(f"v_and_b32 v6, 3, v0")
    a(f"v_add_u32 v6, v6, v{vHL}")
    a(f"v_cmp_lt_i32 vcc, s{sT0}, v6")
    a(f"v_mov_b32 v6, 4")
    a(f"v_mov_b32 v7, 64")
    a(f"s_mov_b64 exec, vcc")
    a(f"ds_add_u32 v7, v6 offset:{LCNT}")
    a(f"s_mov_b64 exec, -1")
    a(f"v_mov_b32 v7, 0x3c")
    for i in range(NI):
        q = REC + 4 * i
        a(f"s_mov_b64 exec, {sr(MASKS[i],2)}")
        a(f"s_cbranch_execz {p}_ap1{tag}")
        a(f"v_and_b32_sdwa v{q+3}, v{q+2}, v7 dst_sel:DWORD dst_unused:UNUSED_PAD src0_sel:BYTE_3 src1_sel:DWORD")
        a(f"ds_add_rtn_u32 v{q+3}, v{q+3}, v6 offset:{LCNT}")
    a.lab(f"{p}_ap1{tag}")
    a(f"s_mov_b64 exec, -1")


def append2(a, p):
    for i in range(NI):
        q = REC + 4 * i
        a(f"s_mov_b64 exec, {sr(MASKS[i],2)}")
        a(f"s_cbranch_execz {p}_ap2")
        a(f"v_min_u32 v{q+3}, s{sKMAX}, v{q+3}")
        a(f"v_lshlrev_b32 v6, 1, v{q+3}")
        a(f"ds_write_b32 v{q+3}, v{q+2}")
        a(f"ds_write_b64 v6, {vr(q,2)} offset:{EOFF}")
    a.lab(f"{p}_ap2")
    a(f"s_mov_b64 exec, -1")


vKR, vER, vIW, vIE, vIA0, vIA1, vIT0, vIT1, vOLD, vKEY = 4, 5, 120, 121, 122, 123, 124, 125, 126, 127
vEE, vB16, vZERO = 8, 10, 11
AD, BD = 2, 14


def image_setup(a):
    a.c("---------------- selection image addresses; zero the image")
    a(f"s_lshl_b32 s{sT0}, s{sWV}, 11")
    a(f"s_add_u32 s{sT0}, s{sT0}, {IMG}")
    a(f"v_lshl_add_u32 v{vER}, v{vLANE}, 4, s{sT0}")
    for k in range(4):
        a(f"v_mov_b32 v{Z+k}, 0")
    a(f"v_mov_b32 v{vB16}, 0x3f80")
    a(f"v_mov_b32 v{vZERO}, 0")
    a(f"v_and_b32 v6, 31, v{vLANE}")
    a(f"v_mov_b32 v{AD+1}, 0x3f803f80")
    a(f"v_lshlrev_b32 v7, 2, v6")
    a(f"v_cvt_f32_u32 v7, v7")
    a(f"v_lshrrev_b32 v7, 16, v7")
    a(f"v_or_b32 v7, 0x4b000000, v7")
    a(f"v_mov_b32 v{BD}, 0x47004300")
    a(f"v_cndmask_b32 v{BD}, v{BD}, v{vZERO}, {sr(sHM,2)}")
    a(f"v_cndmask_b32 v{BD+1}, v7, v{vZERO}, {sr(sHM,2)}")
    a(f"v_lshl_add_u32 v6, v6, 6, s{sT0}")
    a(f"v_bfe_u32 v7, v{vLANE}, 2, 2")
    a(f"v_lshl_add_u32 v{vIW}, v7, 4, v6")
    a(f"v_xor_b32 v{vIE}, 56, v{vIW}")
    a(f"v_lshrrev_b32 v6, 5, v{vLANE}")
    a(f"v_lshlrev_b32 v{vIA0}, 4, v6")
    a(f"v_xor_b32 v{vIA0}, v{vIA0}, v{vIW}")
    a(f"v_xor_b32 v{vIA1}, 32, v{vIA0}")
    a(f"v_mov_b32 v{vOLD}, v{vIW}")
    a(f"v_lshl_add_u32 v7, v6, 2, v7")
    a(f"v_lshl_add_u32 v{vIT0}, v7, 6, s{sT0}")
    a(f"v_bfe_u32 v7, v{vLANE}, 4, 1")
    a(f"v_lshlrev_b32 v7, 1, v7")
    a(f"v_and_b32 v{vIT1}, 1, v{vLANE}")
    a(f"v_or_b32 v7, v7, v{vIT1}")
    a(f"v_xor_b32 v7, v7, v6")
    a(f"v_lshl_add_u32 v{vIT0}, v7, 4, v{vIT0}")
    a(f"v_and_b32 v7, 2, v{vLANE}")
    a(f"v_lshl_add_u32 v{vIT0}, v7, 2, v{vIT0}")
    a(f"v_xor_b32 v{vIT1}, 32, v{vIT0}")
    a(f"v_add_u32 v{vIT1}, 512, v{vIT1}")


def gathers(a, R, fused):
    sc = " sc1" if fused and "sc1g" in DIAG else ""
    if "nogather" in DIAG: return
    for k in range(16):
        a(f"buffer_load_dword v{R+k}, v{OFF+k}, {sr(SRD_TG,4)}, 0 offen{sc}")

def rec_reads(a, toff):
    a(f"ds_read_b32 v{vKEY}, v{vKR} offset:{toff*128}")
    a(f"ds_read_b64 {vr(vEE,2)}, v{vER} offset:{EOFF + toff*256}")

def image_build(a):
    a(f"ds_write_b16 v{vOLD}, v{vZERO}")
    a(f"v_xor_b32_sdwa v{vOLD}, v{vKEY}, v{vIW} dst_sel:DWORD dst_unused:UNUSED_PAD src0_sel:BYTE_2 src1_sel:DWORD")
    a(f"ds_write_b64 v{vIE}, {vr(vEE,2)}")
    a(f"ds_write_b16 v{vOLD}, v{vB16}")

def aex_reads(a):
    a(f"ds_read_b128 {vr(AEX,4)}, v{vIA0}")
    a(f"ds_read_b128 {vr(AEX+4,4)}, v{vIA1}")

def sag_reads(a):
    for s in range(2):
        a(f"ds_read_b64_tr_b16 {vr(SAG+4*s,2)}, v{vIT0} offset:{1024*s}")
        a(f"ds_read_b64_tr_b16 {vr(SAG+4*s+2,2)}, v{vIT1} offset:{1024*s}")

def addr_cvt(a):
    a(f"v_cvt_f32_ubyte0 v6, v{vKEY}")
    a(f"v_cvt_f32_ubyte1 v7, v{vKEY}")
def addr_pack(a):
    a(f"v_perm_b32 v{AD}, v7, v6, s{sSELHI}")
def addr_mfma(a):
    a(f"v_mfma_f32_32x32x8_bf16 {vr(OFF,16)}, {vr(AD,2)}, {vr(BD,2)}, 0")


def tile_body(a, R, Rn, fused, lb):
    gathers(a, Rn, fused)
    if PRIO:
        a(f"s_sub_u32 s{sT0}, s{sNT}, s{sIT}")
        for lvl, r in enumerate((1, 3, 6)):
            a(f"s_cmp_lg_u32 s{sT0}, {r}")
            a(f"s_cbranch_scc1 {lb}_p{lvl}")
            a(f"s_setprio {lvl}")
            a.lab(f"{lb}_p{lvl}")
    a(f"s_waitcnt vmcnt(16)")
    a(f"v_mfma_f32_32x32x16_bf16 {vr(Z,16)}, {vr(AEX,4)}, {vr(POP,4)}, {vr(R,16)}")
    a(f"v_mfma_f32_32x32x16_bf16 {vr(Z,16)}, {vr(AEX+4,4)}, {vr(POP+4,4)}, {vr(Z,16)}")
    if "nolds" not in DIAG:
        sag_reads(a)
        image_build(a)
        aex_reads(a)
    else:
        a("s_nop 9")
    rec_reads(a, 2)
    a(f"v_add_u32 v{vKR}, 128, v{vKR}")
    a(f"v_add_u32 v{vER}, 256, v{vER}")
    for j in range(16):
        if "notrans" not in DIAG: a(f"v_exp_f32 v{Z+j}, v{Z+j}")
        if "b64" in DIAG:
            if j % 2: a(f"v_lshlrev_b64 {vr(R+j-1,2)}, 16, {vr(R+j-1,2)}")
        else:
            a(f"v_lshlrev_b32 v{R+j}, 16, v{R+j}")
    a(f"s_waitcnt lgkmcnt(0)")
    addr_cvt(a)
    for j in range(0, 16, 2):
        if "nopk" in DIAG:
            a(f"v_fma_f32 v{Z+j}, v{Z+j}, v{R+j}, v{R+j}")
            a(f"v_fma_f32 v{Z+j+1}, v{Z+j+1}, v{R+j+1}, v{R+j+1}")
        else:
            a(f"v_pk_fma_f32 {vr(Z+j,2)}, {vr(Z+j,2)}, {vr(R+j,2)}, {vr(R+j,2)}")
        if j == 0:
            addr_pack(a)
    addr_mfma(a)
    for j in range(16):
        if "notrans" not in DIAG: a(f"v_rcp_f32 v{Z+j}, v{Z+j}")
        if j >= 3 and j % 2 == 1:
            k = (j - 3) // 2
            a(f"v_cvt_pk_bf16_f32 v{R+k}, v{Z+2*k}, v{Z+2*k+1}")
    a(f"s_add_u32 s{sIT}, s{sIT}, 1")
    a(f"v_cvt_pk_bf16_f32 v{R+7}, v{Z+14}, v{Z+15}")
    a(f"s_cmp_lt_u32 s{sIT}, s{sNT}")
    a(f"v_mfma_f32_32x32x16_bf16 {vr(ACC,16)}, {vr(R,4)}, {vr(SAG,4)}, {vr(ACC,16)}")
    a(f"v_mfma_f32_32x32x16_bf16 {vr(ACC,16)}, {vr(R+4,4)}, {vr(SAG+4,4)}, {vr(ACC,16)}")


def tflag_wait(a, p):
    a.c("wave 14: wait until all 64 workgroups of this slice have published their table rows")
    a(f"s_cmp_lg_u32 s{sWV}, 14")
    a(f"s_cbranch_scc1 {p}_tf_done")
    a(f"s_lshl_b32 s{sT0}, s{sSL}, 13")
    a(f"s_add_u32 s{sT0}, s{sT0}, {TFL_OFF}")
    a(f"v_lshl_add_u32 v6, v{vLANE}, 7, s{sT0}")
    a(f"s_not_b32 s{sT1}, s{sNON}")
    a(f"s_mov_b32 s{sSPIN}, {SPIN_MAX}")
    a.lab(f"{p}_tf_loop")
    a(f"buffer_load_dwordx2 v[8:9], v6, {sr(SRD_HDR,4)}, 0 offen sc1")
    a(f"s_waitcnt vmcnt(0)")
    a(f"v_cmp_ne_u32 vcc, s{sNON}, v8")
    a(f"v_cmp_ne_u32 {sr(sEX,2)}, s{sT1}, v9")
    a(f"s_or_b64 vcc, vcc, {sr(sEX,2)}")
    a(f"s_and_b64 exec, exec, vcc")
    a(f"s_cbranch_scc0 {p}_tf_end")
    a(f"s_sleep 4")
    a(f"s_sub_u32 s{sSPIN}, s{sSPIN}, 1")
    a(f"s_cbranch_scc0 {p}_tf_loop")
    a.lab(f"{p}_tf_end")
    a(f"s_mov_b64 exec, -1")
    a.lab(f"{p}_tf_done")


def main_phase(a, p, fused):
    a.lab(f"{p}_round")
    append1(a, p, "a")
    a(f"s_waitcnt lgkmcnt(0)")
    append2(a, p)
    stamp(a, 5)
    image_setup(a)
    if fused and "notf" not in DIAG:
        tflag_wait(a, p)
    a(f"s_waitcnt lgkmcnt(0)")
    a(f"s_barrier")
    stamp(a, 6)
    if STAMPS:
        a("s_memtime s[100:101]")
        a("s_waitcnt lgkmcnt(0)")
        a(f"s_mov_b32 s{sXM}, s100")
    a(f"ds_write_b128 v{vER}, {vr(Z,4)}")
    a(f"ds_write_b128 v{vER}, {vr(Z,4)} offset:1024")
    a(f"v_and_b32 v6, 31, v{vLANE}")
    a(f"v_lshlrev_b32 v{vKR}, 2, v6")
    a(f"ds_read_b32 v7, v{vKR} offset:{LCNT}")
    a(f"v_mul_u32_u24 v6, {LS}, v{vKR}")
    a(f"v_add_u32 v6, {KEYB + 4*CAP}, v6")
    a(f"s_mul_i32 s{sT0}, s{sWV}, {LS*4}")
    a(f"s_add_u32 s{sT0}, s{sT0}, {KEYB}")
    a(f"v_add_u32 v{vKR}, s{sT0}, v{vKR}")
    a(f"v_lshlrev_b32 v{vER}, 1, v{vKR}")
    a(f"v_mov_b32 v8, 0")
    a(f"v_mov_b32 v9, 0")
    a(f"s_waitcnt lgkmcnt(0)")
    a(f"v_readlane_b32 s{sT1}, v7, s{sWV}")
    a(f"v_readlane_b32 s{sT3}, v7, 16")
    a(f"v_cmp_lt_u32 vcc, v6, v7")
    a(f"s_and_b32 s{sT2}, vcc_lo, 0xffff")
    a(f"s_cbranch_scc1 {p}_overflow")
    a.c("pad the list with 64 dummy edges")
    a(f"v_lshl_add_u32 v6, v{vLANE}, 2, s{sT1}")
    a(f"v_lshlrev_b32 v7, 1, v6")
    a(f"v_mov_b32 v{vKEY}, 0x{N | (46 << 16):x}")
    a(f"ds_write_b32 v6, v{vKEY}")
    a(f"ds_write_b64 v7, v[8:9] offset:{EOFF}")
    a(f"s_sub_u32 s{sNT}, s{sT1}, s{sT0}")
    a(f"s_add_u32 s{sNT}, s{sNT}, 127")
    a(f"s_lshr_b32 s{sNT}, s{sNT}, 7")
    a(f"s_cbranch_scc0 {p}_tiles_done")
    a(f"s_mov_b32 s{sIT}, 0")
    rec_reads(a, 0)
    a(f"s_waitcnt lgkmcnt(0)")
    addr_cvt(a)
    addr_pack(a)
    image_build(a)
    addr_mfma(a)
    aex_reads(a)
    rec_reads(a, 1)
    a(f"s_nop 15")
    a(f"s_waitcnt lgkmcnt(0)")
    addr_cvt(a)
    addr_pack(a)
    gathers(a, RA, fused)
    addr_mfma(a)
    a(f"s_nop 15")
    a(f"s_nop 3")
    if PRIO: a(f"s_setprio 3")
    a.lab(f"{p}_tile")
    for k in range(2):
        tile_body(a, (RA, RBUF)[k & 1], (RBUF, RA)[k & 1], fused, f"{p}_b{k}")
        a(f"s_cbranch_scc0 {p}_tiles_done" if k < 1 else f"s_cbranch_scc1 {p}_tile")
    a.lab(f"{p}_tiles_done")
    a(f"s_cmp_eq_u32 s{sT3}, 0")
    a(f"s_cbranch_scc1 {p}_epi")
    a(f"s_add_u32 s{sRB}, s{sRB}, s{sC}")
    a(f"s_branch {p}_next")
    a.lab(f"{p}_overflow")
    a(f"s_mov_b32 s{sC}, 2")
    a.lab(f"{p}_next")
    a.c("rare path: another round over the runs")
    a(f"s_waitcnt vmcnt(0) lgkmcnt(0)")
    a(f"s_barrier")
    init_counters(a, p, "r", False)
    rec_loads(a, p, "r", fused)
    a(f"s_waitcnt vmcnt(0) lgkmcnt(0)")
    a(f"s_barrier")
    a(f"s_branch {p}_round")
    a.lab(f"{p}_epi")
    stamp(a, 7)
    if STAMPS:
        a("s_memtime s[100:101]")
        a("s_waitcnt lgkmcnt(0)")
        a(f"s_sub_u32 s{sreg(9)}, s100, s{sXM}")
    a.c("---------------- epilogue: silu, pack, store")
    a(f"v_and_b32 v6, 31, v{vLANE}")
    a(f"v_cmp_gt_u32 vcc, s{sNN}, v6")
    a(f"v_add_u32 v6, s{sNODE0}, v6")
    a(f"v_lshlrev_b32 v6, 8, v6")
    a(f"v_lshrrev_b32 v7, 5, v{vLANE}")
    a(f"v_lshl_add_u32 v6, v7, 5, v6")
    a(f"s_lshl_b32 s{sT0}, s{sSL}, 6")
    a(f"v_add_u32 v6, s{sT0}, v6")
    a(f"s_nop 7")
    for j in range(16):
        a(f"v_mul_f32 v{Z+j}, s{sNL2E}, v{ACC+j}")
    for j in range(16):
        a(f"v_exp_f32 v{Z+j}, v{Z+j}")
    for j in range(16):
        a(f"v_add_f32 v{Z+j}, 1.0, v{Z+j}")
    for j in range(16):
        a(f"v_rcp_f32 v{Z+j}, v{Z+j}")
    for j in range(16):
        a(f"v_mul_f32 v{Z+j}, v{Z+j}, v{ACC+j}")
    for k in range(8):
        a(f"v_cvt_pk_bf16_f32 v{AEX+k}, v{Z+2*k}, v{Z+2*k+1}")
    a(f"s_mov_b64 exec, vcc")
    osc = " sc1" if "osc1" in DIAG else "" if "oplain" in DIAG else " nt"
    a(f"buffer_store_dwordx4 {vr(AEX,4)}, v6, {sr(SRD_OUT,4)}, 0 offen{osc}")
    a(f"buffer_store_dwordx4 {vr(AEX+4,4)}, v6, {sr(SRD_OUT,4)}, 0 offen offset:16{osc}")


def kernel_header(name):
    return f""".globl {name}
.p2align 8
.type {name},@function
{name}:
"""

def kernel_desc(name):
    return f""".amdhsa_kernel {name}
  .amdhsa_next_free_vgpr 128
  .amdhsa_next_free_sgpr 102
  .amdhsa_accum_offset 128
  .amdhsa_group_segment_fixed_size 0
  .amdhsa_kernarg_size 80
  .amdhsa_user_sgpr_count 2
  .amdhsa_user_sgpr_kernarg_segment_ptr 1
  .amdhsa_system_sgpr_workgroup_id_x 1
.end_amdhsa_kernel
"""

def file_head():
    return open("cdna_kernels/" + NAME + ".s.ref").read().split("; Override launch geometry")[0]


def finish(a, kidx):
    stamp(a, 8)
    stamp_out(a, kidx, 12)


def hdr_peek(a):
    a(f"v_mov_b32 v7, 0")
    a(f"ds_read_b32 v13, v7 offset:{NONCE}")
    a(f"ds_read_b64 v[14:15], v{vHS}")


def csum_acc(a, p, tag):
    for i in range(NI):
        q = REC + 4 * i
        a(f"s_mov_b64 exec, {sr(MASKS[i],2)}")
        a(f"s_cbranch_execz {p}_cs{tag}")
        a(f"v_add3_u32 v2, v2, v{q}, v{q+1}")
        a(f"v_add_u32 v2, v2, v{q+2}")
    a.lab(f"{p}_cs{tag}")
    a(f"s_mov_b64 exec, -1")


def csum_check(a):
    a(f"s_nop 1")
    a(f"v_add_u32_dpp v2, v2, v2 quad_perm:[1,0,3,2] row_mask:0xf bank_mask:0xf")
    a(f"s_nop 1")
    a(f"v_add_u32_dpp v2, v2, v2 quad_perm:[2,3,0,1] row_mask:0xf bank_mask:0xf")
    a(f"v_cmp_ne_u32 vcc, v2, v15")
    a(f"s_cmp_lg_u64 vcc, 0")


def gen_1k():
    k = NAME + "_kernel"
    a = A(); p = "K"
    setup(a, p)
    stamp(a, 0)
    front(a, p)
    stamp(a, 2)
    if "frontonly" in DIAG:
        stamp_out(a, 0, 12)
        a("s_endpgm")
    collect(a, p)
    collect2(a, p)
    a(f"s_mov_b32 s{sT1}, {WB}")
    w_addr(a, sT1)
    a.c("wait for the weights, the end of the record copy-out (staging area reused) and the x rows")
    a.lab(f"{p}_xw")
    a(f"ds_read2_b32 v[14:15], v10 offset0:{S3//4} offset1:{WF//4}")
    a(f"s_waitcnt lgkmcnt(0)")
    a(f"v_add_u32 v7, v14, v15")
    a(f"s_nop 0")
    a(f"v_readfirstlane_b32 s{sT0}, v7")
    a(f"s_cmp_eq_u32 s{sT0}, {14 + 4}")
    a(f"s_cbranch_scc1 {p}_xok")
    a(f"s_sleep 1")
    a(f"s_branch {p}_xw")
    a.lab(f"{p}_xok")
    a(f"s_setprio {XP[4]}")
    for st in range(4):
        w_reads(a, 1, 2, st)
    a(f"s_waitcnt vmcnt(0)")
    stamp(a, 3)
    gemm_pass(a, 1, 2, False, True)
    table_store(a, True)
    stamp(a, 4)
    a(f"s_setprio {XP[5]}")
    a(f"v_mov_b32 v{vZ0}, 0")
    a(f"s_mov_b32 s{sNT}, 0")
    a(f"s_cmp_lt_u32 s{sWV}, {PUBW}")
    a(f"s_cbranch_scc1 {p}_pass2")
    a(f"s_waitcnt vmcnt(0)")
    a(f"s_call_b64 {sr(sRET,2)}, {p}_sub_pub")
    a(f"s_mov_b32 s{sNT}, 1")
    a.lab(f"{p}_pass2")
    gemm_pass(a, 0, 3, True)
    pop_pack(a)
    a(f"v_lshrrev_b32 v{vHS}, 2, v0")
    a(f"v_lshlrev_b32 v{vHS}, 3, v{vHS}")
    a(f"v_add_u32 v{vHS}, {STG}, v{vHS}")
    a.lab(f"{p}_hwait")
    hdr_peek(a)
    a(f"s_waitcnt lgkmcnt(0)")
    a(f"v_readfirstlane_b32 s{sNON}, v13")
    a(f"s_cmp_lg_u32 s{sNON}, 0")
    a(f"s_cbranch_scc1 {p}_hgo")
    a(f"s_cmp_lg_u32 s{sNT}, 0")
    a(f"s_cbranch_scc1 {p}_hsleep")
    a(f"s_waitcnt vmcnt(0)")
    a(f"s_call_b64 {sr(sRET,2)}, {p}_sub_pub")
    a(f"s_mov_b32 s{sNT}, 1")
    a.lab(f"{p}_hsleep")
    a(f"s_sleep 1")
    a(f"s_branch {p}_hwait")
    a.lab(f"{p}_hgo")
    hdr_decode(a)
    rec_loads(a, p, "f", False, True)
    stamp(a, 1)
    a(f"s_cmp_lg_u32 s{sNT}, 0")
    a(f"s_cbranch_scc1 {p}_pubdone")
    a(f"s_waitcnt vmcnt({NI})")
    a(f"s_call_b64 {sr(sRET,2)}, {p}_sub_pub")
    a.lab(f"{p}_pubdone")
    a("s_waitcnt vmcnt(0)")
    stamp(a, 11)
    if "nopf" not in DIAG:
        a.c("pull this wave's own table rows into the L2 (scratch destination in LDS)")
        a(f"s_lshl_b32 s{sT0}, s{sNODE0}, 7")
        a(f"v_lshl_add_u32 v6, v{vLANE}, 4, s{sT0}")
        a(f"s_lshl_b32 s{sT1}, s{sWV}, 10")
        a(f"s_add_u32 s{sT1}, s{sT1}, {STG + 2048}")
        for kk in range(3):
            a(f"s_sub_u32 m0, s{sT1}, {1024*kk}")
            a(f"s_nop 0")
            a(f"buffer_load_dwordx4 v6, {sr(SRD_TS,4)}, 0 offen offset:{1024*kk} lds")
    a.c("the records must add up to the checksums published with the headers")
    csum_acc(a, p, "a")
    a(f"v_and_b32 v6, 3, v0")
    a(f"v_add_u32 v6, v6, v{vHL}")
    a(f"v_cmp_lt_i32 {sr(sEX,2)}, {CFAST}, v6")
    csum_check(a)
    a(f"s_cbranch_scc1 {p}_vslow")
    a(f"s_cmp_lg_u64 {sr(sEX,2)}, 0")
    a(f"s_cbranch_scc1 {p}_vslow")
    a.lab(f"{p}_valid")
    main_phase(a, p, True)
    finish(a, 0)
    a.lab(f"{p}_end")
    a("s_endpgm")
    a.c("---------------- subroutines / rare paths")
    a.lab(f"{p}_sub_pub")
    a.c("the last wave whose table rows are out publishes the workgroup's flag")
    a(f"v_mov_b32 v6, 1")
    a(f"s_mov_b64 exec, 1")
    a(f"ds_add_rtn_u32 v6, v{vZ0}, v6 offset:{DONE}")
    a(f"ds_read_b32 v7, v{vZ0} offset:{NON2}")
    a(f"s_waitcnt lgkmcnt(0)")
    a(f"v_readfirstlane_b32 s{sT0}, v6")
    a(f"v_readfirstlane_b32 s{sT2}, v7")
    a(f"s_cmp_lg_u32 s{sT0}, 15")
    a(f"s_cbranch_scc1 {p}_nopub")
    a(f"s_lshl_b32 s{sT0}, s{sSL}, 6")
    a(f"s_add_u32 s{sT0}, s{sT0}, s{sBIN}")
    a(f"s_lshl_b32 s{sT0}, s{sT0}, 7")
    a(f"s_add_u32 s{sT0}, s{sT0}, {TFL_OFF}")
    a(f"s_not_b32 s{sT1}, s{sT2}")
    a(f"v_mov_b32 v6, s{sT0}")
    a(f"v_mov_b32 v8, s{sT2}")
    a(f"v_mov_b32 v9, s{sT1}")
    a(f"buffer_store_dwordx2 v[8:9], v6, {sr(SRD_HDR,4)}, 0 offen sc1")
    a.lab(f"{p}_nopub")
    a(f"s_mov_b64 exec, -1")
    a(f"s_setpc_b64 {sr(sRET,2)}")
    a.lab(f"{p}_sub_loads")
    rec_loads(a, p, "s", True)
    a(f"s_setpc_b64 {sr(sRET,2)}")
    a.lab(f"{p}_vslow")
    a.c("long runs, or records not yet visible: add up every run completely, again until it fits")
    a(f"s_mov_b32 s{sSPIN}, {SPIN_MAX}")
    a.lab(f"{p}_vs_retry")
    a(f"s_mov_b32 s{sRB}, 0")
    a(f"v_mov_b32 v2, 0")
    a.lab(f"{p}_vs_part")
    a(f"s_call_b64 {sr(sRET,2)}, {p}_sub_loads")
    a(f"s_waitcnt vmcnt(0)")
    csum_acc(a, p, "v")
    a(f"s_add_u32 s{sRB}, s{sRB}, {CFAST}")
    a(f"v_and_b32 v6, 3, v0")
    a(f"v_add_u32 v6, v6, v{vHL}")
    a(f"v_cmp_lt_i32 vcc, s{sRB}, v6")
    a(f"s_cmp_lg_u64 vcc, 0")
    a(f"s_cbranch_scc1 {p}_vs_part")
    csum_check(a)
    a(f"s_cbranch_scc0 {p}_vs_ok")
    a(f"s_sub_u32 s{sSPIN}, s{sSPIN}, 1")
    a(f"s_cbranch_scc0 {p}_vs_retry")
    a.lab(f"{p}_vs_ok")
    a(f"s_mov_b32 s{sRB}, 0")
    a(f"s_call_b64 {sr(sRET,2)}, {p}_sub_loads")
    a(f"s_waitcnt vmcnt(0)")
    a(f"s_branch {p}_valid")
    a.lab(f"{p}_code_end")
    s = file_head()
    s += f"; @launch grid=(256,1,1) block=(1024,1,1) lds={LDS_BYTES}\n"
    s += '.amdgcn_target "amdgcn-amd-amdhsa--gfx950"\n.text\n'
    s += kernel_header(k) + a.text()
    s += '.section .rodata,"a"\n.p2align 6\n' + kernel_desc(k)
    return s


if __name__ == "__main__":
    if "-stamps" in sys.argv:
        STAMPS = True; sys.argv.remove("-stamps")
    if "-noprio" in sys.argv:
        PRIO = False; sys.argv.remove("-noprio")
    for x in list(sys.argv):
        if x.startswith("-PW"):
            PUBW = int(x[3:]); sys.argv.remove(x)
        if x.startswith("-XP"):
            XP = [int(c) for c in x[3:]]; sys.argv.remove(x)
        if x.startswith("-XE"):
            XEARLY = int(x[3:]); sys.argv.remove(x)
        if x.startswith("-PS"):
            PS1, PS2 = map(int, x[3:].split(",")); sys.argv.remove(x)
        if x.startswith("-D"):
            DIAG.add(x[2:]); sys.argv.remove(x)
    mode = gen_1k
    if "-1k" in sys.argv:
        mode = gen_1k; sys.argv.remove("-1k")
    out = sys.argv[1] if len(sys.argv) > 1 else "cdna_kernels/" + NAME + ".s"
    open(out, "w").write(mode())
    print("wrote", out, "LDS", LDS_BYTES)
```

```python
import sys

N = 25000
E = 400000
NAME = "gather_scatter__edge_featured_mpnn_egc__graph"

TS = 25024 * 128
REC_OFF = 0x1000000
REC_BYTES = 250 * 19200
HDR_OFF = 0x1800000
HDR_BYTES = 64 * 256 * 16
TFL_OFF = HDR_BYTES
HDR_SRD_BYTES = HDR_BYTES + 4 * 64 * 128
MAGIC_OFF = 0x4B000000

CNT = 0
LCNT = 256
NONCE = 384
DONE = 388
NON2 = 392
S2, S3, WF, XF = 396, 400, 404, 416
CSUM = 512
CAP = 500
LS = 564
KEYB = 768
EB = KEYB + 16 * LS * 4
EOFF = EB - 2 * KEYB
IMG = EB + 16 * LS * 8
WB = IMG
STG = IMG + 32768
LDS_BYTES = 163840
NI = 14
CFAST = 4 * NI

SRD_X, SRD_E, SRD_SRC, SRD_DST, SRD_W, SRD_OUT, SRD_TS, SRD_TG, SRD_REC, SRD_HDR, SRD_G = [4 + 4 * i for i in range(11)]
SRD_DBG = SRD_E
KP = 48
sXM = 3
sNR = 71
sWV, sBIN, sSL, sNODE0, sNN = 68, 69, 70, 72, 73
sSPIN = 95
sNL2E, sMAXF, sSELLO, sSELHI, sMAGIC, s127, sM1, sM2, sM3, sM4, sSTG, sKMAX = range(74, 86)
sHM = 86
sT0, sT1, sT2, sT3 = 88, 89, 90, 91
sRB, sC, sNT, sIT = 92, 93, 94, 95
sEX = 96
sNON, sNOH = 98, 99
sRET = 64
MASKS = [4 + 2 * i for i in range(10)] + [44, 46, 56, 58]
SPIN_MAX = 40000

vLANE = 1
T1 = 16; ACC = 32; RING = 48; REC = 72
POP, AEX, SAG = 48, 56, 64
OFF = 16
RA, RBUF, Z = 72, 88, 104


class A:
    def __init__(self):
        self.l = []
    def __call__(self, s):
        for x in s.strip("\n").split("\n"):
            self.l.append("    " + x.strip())
    def lab(self, s):
        self.l.append(s + ":")
    def c(self, s):
        self.l.append("    ; " + s)
    def text(self):
        return "\n".join(self.l) + "\n"


def vr(a, n):
    return f"v[{a}:{a+n-1}]"
def sr(a, n):
    return f"s[{a}:{a+n-1}]"


STAMPS = False
PRIO = True
PS1, PS2 = 24, 8
XEARLY = 4
XP = [0, 0, 0, 0, 0, 0]
PUBW = 16
DIAG = set()
STAMP_OFF = 0x2000000
def sreg(i):
    return KP + i if i < 8 else KP + 4 + i
def stamp(a, i):
    if not STAMPS: return
    a(f"s_memrealtime s[100:101]")
    a(f"s_waitcnt lgkmcnt(0)")
    a(f"s_mov_b32 s{sreg(i)}, s100")

def stamp_out(a, kidx, n):
    if not STAMPS: return
    a(f"s_mov_b64 exec, -1")
    if "dbgmax" in DIAG:
        a(f"s_load_dwordx2 {sr(sT2,2)}, s[0:1], 64")
        a(f"s_waitcnt lgkmcnt(0)")
        srd(a, SRD_W, sT2, sT3, 256)
        a(f"v_mov_b32 v6, 0")
        a(f"ds_read_b32 v8, v6 offset:{NON2}")
        a(f"s_waitcnt lgkmcnt(0)")
        a(f"s_mov_b64 exec, 1")
        for i in (0, 2, 3, 4, 11, 5, 6, 7, 8):
            a(f"v_sub_u32 v7, s{sreg(i)}, v8")
            a(f"v_max_i32 v7, 0, v7")
            a(f"buffer_atomic_umax v7, v6, {sr(SRD_W,4)}, 0 offen offset:{4*(i+1)}")
        return
    a(f"s_add_u32 s{sT2}, s{KP+18}, 0x{STAMP_OFF + kidx * 0x100000:x}")
    a(f"s_addc_u32 s{sT3}, s{KP+19}, 0")
    srd(a, SRD_W, sT2, sT3, 0x100000)
    a(f"s_lshl_b32 s{sT0}, s2, 4")
    a(f"s_add_u32 s{sT0}, s{sT0}, s{sWV}")
    a(f"s_lshl_b32 s{sT0}, s{sT0}, 6")
    a(f"v_mov_b32 v6, s{sT0}")
    for i in range(n):
        a(f"v_mov_b32 v7, s{sreg(i)}")
        a(f"buffer_store_dword v7, v6, {sr(SRD_W,4)}, 0 offen offset:{4*i}")


def srd(a, d, lo, hi, nbytes):
    a(f"s_mov_b32 s{d}, s{lo}")
    a(f"s_mov_b32 s{d+1}, s{hi}")
    a(f"s_mov_b32 s{d+2}, {nbytes}")
    a(f"s_mov_b32 s{d+3}, 0x00020000")


def setup(a, p):
    a.c("---------------- setup")
    a(f"s_cmp_ge_u32 s2, 256")
    a(f"s_cbranch_scc1 {p}_end")
    a(f"s_load_dwordx16 {sr(KP,16)}, s[0:1], 0")
    a(f"s_load_dwordx4 {sr(KP+16,4)}, s[0:1], 64")
    a(f"s_memrealtime s[100:101]")
    a(f"v_lshrrev_b32 v2, 6, v0")
    a(f"v_and_b32 v{vLANE}, 63, v0")
    a(f"v_readfirstlane_b32 s{sWV}, v2")
    a(f"s_and_b32 s{sT0}, s2, 7")
    a(f"s_lshr_b32 s{sSL}, s{sT0}, 1")
    a(f"s_lshr_b32 s{sBIN}, s2, 3")
    a(f"s_and_b32 s{sT0}, s2, 1")
    a(f"s_lshl_b32 s{sT0}, s{sT0}, 5")
    a(f"s_or_b32 s{sBIN}, s{sBIN}, s{sT0}")
    a(f"s_mul_i32 s{sT0}, s2, 6400")
    a(f"v_lshl_add_u32 v3, v0, 4, s{sT0}")
    a(f"v_lshlrev_b32 v4, 1, v3")
    a(f"s_mul_i32 s{sT1}, s{sSL}, {TS}")
    a(f"s_waitcnt lgkmcnt(0)")
    x, e, src, dst, u, v, g, out, dbg, ws = [KP + 2 * i for i in range(10)]
    a(f"s_or_b32 s{sT0}, s2, s{sWV}")
    a(f"s_cbranch_scc1 {p}_notag")
    a.c("launch tag: the first wave of workgroup 0 publishes a clock value in d_debug, everyone picks it up")
    srd(a, SRD_DBG, dbg, dbg + 1, 256)
    a(f"s_or_b32 s{sT0}, s100, 1")
    a(f"v_mov_b32 v13, s{sT0}")
    a(f"v_mov_b32 v10, 0")
    a(f"s_mov_b64 exec, 1")
    a(f"buffer_store_dword v13, v10, {sr(SRD_DBG,4)}, 0 offen sc1")
    a(f"s_mov_b64 exec, -1")
    a.lab(f"{p}_notag")
    srd(a, SRD_DST, dst, dst + 1, E * 4)
    srd(a, SRD_SRC, src, src + 1, E * 4)
    srd(a, SRD_E, e, e + 1, E * 8)
    a(f"s_cmp_ge_u32 s{sWV}, 7")
    a(f"s_cbranch_scc1 {p}_noedge")
    a(f"buffer_load_dwordx4 {vr(vD,4)}, v3, {sr(SRD_DST,4)}, 0 offen")
    a(f"buffer_load_dwordx4 {vr(vS,4)}, v3, {sr(SRD_SRC,4)}, 0 offen")
    a(f"buffer_load_dwordx4 {vr(vE,4)}, v4, {sr(SRD_E,4)}, 0 offen")
    a(f"buffer_load_dwordx4 {vr(vE+4,4)}, v4, {sr(SRD_E,4)}, 0 offen offset:16")
    a.lab(f"{p}_noedge")
    a(f"s_lshl_b32 s{sT0}, s{sBIN}, 4")
    a(f"s_add_u32 s{sT0}, s{sT0}, s{sWV}")
    a(f"s_mul_i32 s{sT0}, s{sT0}, 3125")
    a(f"s_lshr_b32 s{sNODE0}, s{sT0}, 7")
    a(f"s_add_u32 s{sT0}, s{sT0}, 3125")
    a(f"s_lshr_b32 s{sNN}, s{sT0}, 7")
    a(f"s_cmp_eq_u32 s{sNN}, {N}")
    a(f"s_sub_u32 s{sNN}, s{sNN}, s{sNODE0}") if False else None
    a(f"s_cselect_b32 s{sNR}, 1, 0")
    a(f"s_sub_u32 s{sNN}, s{sNN}, s{sNODE0}")
    a(f"s_add_u32 s{sNR}, s{sNR}, s{sNN}")
    a(f"s_mov_b32 s{sHM}, 0")
    a(f"s_mov_b32 s{sHM+1}, -1")
    srd(a, SRD_X, x, x + 1, N * 256)
    srd(a, SRD_OUT, out, out + 1, N * 256)
    srd(a, SRD_G, g, g + 1, 260 * 256)
    a(f"s_add_u32 s{sT2}, s{ws}, s{sT1}")
    a(f"s_addc_u32 s{sT3}, s{ws+1}, 0")
    srd(a, SRD_TS, sT2, sT3, (N + 1) * 128)
    a(f"s_sub_u32 s{sT2}, s{sT2}, 0x{MAGIC_OFF:x}")
    a(f"s_subb_u32 s{sT3}, s{sT3}, 0")
    srd(a, SRD_TG, sT2, sT3, MAGIC_OFF + (N + 1) * 128)
    a(f"s_add_u32 s{sT2}, s{ws}, 0x{REC_OFF:x}")
    a(f"s_addc_u32 s{sT3}, s{ws+1}, 0")
    srd(a, SRD_REC, sT2, sT3, REC_BYTES)
    a(f"s_add_u32 s{sT2}, s{ws}, 0x{HDR_OFF:x}")
    a(f"s_addc_u32 s{sT3}, s{ws+1}, 0")
    srd(a, SRD_HDR, sT2, sT3, HDR_SRD_BYTES)
    a(f"s_mov_b32 s{sNL2E}, 0xbfb8aa3b")
    a(f"s_mov_b32 s{sMAXF}, 0x7f7f0000")
    a(f"s_mov_b32 s{sSELLO}, 0x07060100")
    a(f"s_mov_b32 s{sSELHI}, 0x07060302")
    a(f"s_mov_b32 s{sMAGIC}, 10995117")
    a(f"s_mov_b32 s{s127}, 127")
    a(f"s_mov_b32 s{sM1}, 0x260000")
    a(f"s_mov_b32 s{sM2}, 0x100000")
    a(f"s_mov_b32 s{sM3}, 0x080000")
    a(f"s_mov_b32 s{sM4}, 0x3c000000")
    a(f"s_mov_b32 s{sSTG}, {STG}")
    a(f"s_mov_b32 s{sKMAX}, {EB - 4}")
    a(f"v_mov_b32 v{vONE}, 1")
    a(f"v_mov_b32 v10, 0")


def spin(a, lab, off, val):
    a.lab(lab)
    a(f"ds_read_b32 v11, v10 offset:{off}")
    a(f"s_waitcnt lgkmcnt(0)")
    a(f"v_readfirstlane_b32 s{sT0}, v11")
    a(f"s_cmp_lt_u32 s{sT0}, {val}")
    a(f"s_cbranch_scc1 {lab}")


def signal(a, off):
    a(f"s_mov_b64 exec, 1")
    a(f"ds_add_u32 v10, v{vONE} offset:{off}")
    a(f"s_mov_b64 exec, -1")


def init_counters(a, p, tag, with_cnt):
    a.c("wave 0: bin counters = 0, list cursors = list starts")
    a(f"s_cmp_lg_u32 s{sWV}, 0")
    a(f"s_cbranch_scc1 {p}_ic{tag}")
    a(f"v_lshlrev_b32 v7, 2, v{vLANE}")
    a(f"v_mul_u32_u24 v8, {LS}, v7")
    a(f"v_add_u32 v8, {KEYB}, v8")
    a(f"v_cmp_gt_u32 vcc, 16, v{vLANE}")
    a(f"v_mov_b32 v9, 0")
    a(f"s_nop 0")
    a(f"v_cndmask_b32 v8, 0, v8, vcc")
    if with_cnt:
        a(f"ds_write_b32 v7, v9 offset:{CNT}")
        a(f"ds_write_b32 v7, v9 offset:{CSUM}")
        a(f"ds_write_b32 v7, v8 offset:{LCNT}")
    else:
        a(f"s_not_b64 exec, {sr(sHM,2)}")
        a(f"ds_write_b32 v7, v8 offset:{LCNT}")
        a(f"s_mov_b64 exec, -1")
    a.lab(f"{p}_ic{tag}")


def scan64(a, v):
    for sh in (1, 2, 4, 8):
        a(f"s_nop 1")
        a(f"v_add_u32_dpp v{v}, v{v}, v{v} row_shr:{sh} row_mask:0xf bank_mask:0xf bound_ctrl:0")
    a(f"s_nop 1")
    a(f"v_add_u32_dpp v{v}, v{v}, v{v} row_bcast:15 row_mask:0xa bank_mask:0xf")
    a(f"s_nop 1")
    a(f"v_add_u32_dpp v{v}, v{v}, v{v} row_bcast:31 row_mask:0xc bank_mask:0xf")


vD, vS, vE, vK, vB, vR = 72, 76, 80, 88, 92, 96
vTa, vTb, vTc = 100, 101, 102
vONE = 2


def offsets_scan(a):
    a(f"v_lshlrev_b32 v{vTa}, 2, v{vLANE}")
    a(f"ds_read_b32 v{vTb}, v{vTa} offset:{CNT}")
    a(f"s_waitcnt lgkmcnt(0)")
    a(f"v_mov_b32 v{vTc}, v{vTb}")
    scan64(a, vTc)
    a(f"v_sub_u32 v{vTc}, v{vTc}, v{vTb}")


def noh_from_non(a):
    a(f"s_mul_i32 s{sNOH}, s{sNON}, 0x9e3779b1")
    a(f"s_and_b32 s{sNOH}, s{sNOH}, 0xf800f800")


def front(a, p):
    a(f"s_cmp_lg_u32 s{sWV}, 7")
    a(f"s_cbranch_scc1 {p}_f_noinit")
    a.c("wave 7: bin counters, checksums, flags = 0, list cursors = list starts")
    a(f"v_lshlrev_b32 v7, 2, v{vLANE}")
    a(f"v_mul_u32_u24 v8, {LS}, v7")
    a(f"v_add_u32 v8, {KEYB}, v8")
    a(f"v_cmp_gt_u32 vcc, 16, v{vLANE}")
    a(f"ds_write_b32 v7, v10 offset:{CNT}")
    a(f"ds_write_b32 v7, v10 offset:{CSUM}")
    a(f"v_cndmask_b32 v8, 0, v8, vcc")
    a(f"ds_write_b32 v7, v8 offset:{LCNT}")
    if "noicpf" not in DIAG:
        a.c("read the kernel's own code once so that later instruction fetches find it in the L2")
        a(f"s_getpc_b64 {sr(sT2,2)}")
        a.lab(f"{p}_pc")
        a(f"v_lshlrev_b32 v9, 7, v{vLANE}")
        a(f"global_load_dword v104, v9, {sr(sT2,2)}")
        a(f"v_add_u32 v9, 8192, v9")
        a(f"v_cmp_gt_u32 vcc, {p}_code_end - {p}_pc - 4, v9")
        a(f"s_mov_b64 exec, vcc")
        a(f"global_load_dword v105, v9, {sr(sT2,2)}")
        a(f"s_mov_b64 exec, -1")
    a(f"s_waitcnt lgkmcnt(0)")
    a.lab(f"{p}_f_noinit")
    a(f"s_cmp_lg_u32 s{sWV}, 15")
    a(f"s_cbranch_scc1 {p}_tag_done")
    srd(a, SRD_DBG, KP + 16, KP + 17, 256)
    a(f"buffer_load_dword v72, v10, {sr(SRD_DBG,4)}, 0 offen sc1")
    a.lab(f"{p}_tag_done")
    a(f"s_barrier")
    a(f"s_cmp_eq_u32 s{sWV}, 15")
    a(f"s_cbranch_scc1 {p}_f_w15")
    a(f"s_cmp_ge_u32 s{sWV}, 7")
    a(f"s_cbranch_scc1 {p}_f_loader")

    a.c("---------------- waves 0-6: sort this workgroup's 1600 edges by destination bin")
    a(f"s_setprio {XP[3]}")
    a(f"s_cmp_lt_u32 s2, 250")
    a(f"s_cselect_b32 s{sT0}, 400, 0")
    a(f"v_cmp_gt_u32 vcc, s{sT0}, v0")
    a(f"s_mov_b64 {sr(sEX,2)}, vcc")
    a(f"s_waitcnt vmcnt(3)")
    stamp(a, 1)
    for e in range(4):
        a(f"v_lshl_or_b32 v{vK+e}, v{vD+e}, 7, s{s127}")
        a(f"v_mul_hi_u32 v{vK+e}, v{vK+e}, s{sMAGIC}")
        a(f"v_lshrrev_b32 v{vB+e}, 5, v{vK+e}")
        a(f"v_and_b32 v{vB+e}, 0xfc, v{vB+e}")
    a(f"s_mov_b64 exec, {sr(sEX,2)}")
    for e in range(4):
        a(f"ds_add_rtn_u32 v{vR+e}, v{vB+e}, v{vONE} offset:{CNT}")
    signal(a, S2)
    for e in range(4):
        d, k = vD + e, vK + e
        a(f"v_lshrrev_b32 v{vTa}, 3, v{k}")
        a(f"v_mul_u32_u24 v{vTb}, 3125, v{vTa}")
        a(f"v_lshrrev_b32 v{vTb}, 7, v{vTb}")
        a(f"v_sub_u32 v{vTb}, v{d}, v{vTb}")
        a(f"v_lshlrev_b32 v{k}, 26, v{vTa}")
        a(f"v_and_b32 v{k}, s{sM4}, v{k}")
        a(f"v_lshlrev_b32 v{vTc}, 17, v{vTb}")
        a(f"v_and_or_b32 v{k}, v{vTc}, s{sM1}, v{k}")
        a(f"v_lshlrev_b32 v{vTc}, 18, v{vTb}")
        a(f"v_and_or_b32 v{k}, v{vTc}, s{sM2}, v{k}")
        a(f"v_lshlrev_b32 v{vTc}, 16, v{vTb}")
        a(f"v_and_or_b32 v{k}, v{vTc}, s{sM3}, v{k}")
    a(f"s_lshl_b32 s{sT1}, s{sWV}, 10")
    a(f"v_lshl_add_u32 v3, v{vLANE}, 4, s{sT1}")
    a(f"v_add_u32 v7, {STG}, v3")
    a(f"s_mul_i32 s{sT1}, s2, 19200")
    a(f"v_add_u32 v3, s{sT1}, v3")
    spin(a, f"{p}_f_s2", S2, 7)
    stamp(a, 10)
    offsets_scan(a)
    for e in range(4):
        a(f"ds_bpermute_b32 v{vD+e}, v{vB+e}, v{vTc}")
    a(f"s_waitcnt vmcnt(0)")
    for e in range(4):
        a(f"v_or_b32 v{vK+e}, v{vK+e}, v{vS+e}")
        a(f"v_add3_u32 v{vS+e}, v{vE+2*e}, v{vE+2*e+1}, v{vK+e}")
    a(f"s_waitcnt lgkmcnt(0)")
    for e in range(4):
        a(f"v_add_u32 v{vR+e}, v{vR+e}, v{vD+e}")
        a(f"v_mad_u32_u24 v{vR+e}, v{vR+e}, 12, s{sSTG}")
    a(f"s_mov_b64 exec, {sr(sEX,2)}")
    for e in range(4):
        a(f"ds_write2_b32 v{vR+e}, v{vE+2*e}, v{vE+2*e+1} offset0:0 offset1:1")
        a(f"ds_write_b32 v{vR+e}, v{vK+e} offset:8")
        a(f"ds_add_u32 v{vB+e}, v{vS+e} offset:{CSUM}")
    signal(a, S3)
    spin(a, f"{p}_f_s3", S3, 7)
    a.c("copy the sorted records out: 1 KiB pieces wv, wv + 7, wv + 14")
    for k in range(3):
        a(f"ds_read_b128 {vr(104 + 4*k, 4)}, v7 offset:{7168*k}")
    signal(a, S3)
    a(f"v_add_u32 v4, 7168, v3")
    a(f"v_add_u32 v5, 14336, v3")
    a(f"s_waitcnt lgkmcnt(3)")
    a(f"buffer_store_dwordx4 {vr(104,4)}, v3, {sr(SRD_REC,4)}, 0 offen sc1")
    a(f"s_waitcnt lgkmcnt(2)")
    a(f"buffer_store_dwordx4 {vr(108,4)}, v4, {sr(SRD_REC,4)}, 0 offen sc1")
    a(f"s_cmp_gt_u32 s{sWV}, 4")
    a(f"s_cbranch_scc1 {p}_f_x0")
    a(f"s_cmp_eq_u32 s{sWV}, 4")
    a(f"s_cselect_b32 exec_hi, 0xffff, -1")
    a(f"s_waitcnt lgkmcnt(1)")
    a(f"buffer_store_dwordx4 {vr(112,4)}, v5, {sr(SRD_REC,4)}, 0 offen sc1")
    a(f"s_mov_b64 exec, -1")
    a.lab(f"{p}_f_x0")
    a(f"s_setprio 0")
    a.lab(f"{p}_f_x")
    x_loads(a)
    load_C(a)
    a(f"s_setprio 0")
    a(f"s_branch {p}_f_done")

    a.c("---------------- waves 7-10: one weight matrix each into LDS, then own x rows; waves 11-14: own x rows")
    a.lab(f"{p}_f_loader")
    u, v, g = KP + 8, KP + 10, KP + 12
    a(f"s_setprio {XP[0]}")
    a(f"s_cmp_ge_u32 s{sWV}, 11")
    a(f"s_cbranch_scc1 {p}_f_x")
    a(f"s_setprio {XP[3]}")
    a(f"s_sub_u32 s{sT3}, s{sWV}, 7")
    a(f"s_cmp_eq_u32 s{sT3}, 2")
    a(f"s_cselect_b64 {sr(SRD_W,2)}, {sr(v,2)}, {sr(u,2)}")
    a(f"s_mov_b32 s{SRD_W+2}, 32768")
    a(f"s_cmp_lt_u32 s{sT3}, 2")
    a(f"s_cselect_b64 {sr(SRD_W,2)}, {sr(g,2)}, {sr(SRD_W,2)}")
    a(f"s_cselect_b32 s{SRD_W+2}, 65536, s{SRD_W+2}")
    a(f"s_mov_b32 s{SRD_W+3}, 0x00020000")
    a(f"s_cmp_eq_u32 s{sT3}, 1")
    a(f"s_cselect_b32 s{sT0}, 32768, 0")
    a(f"s_lshl_b32 s{sT1}, s{sSL}, 6")
    a(f"s_add_u32 s{sT0}, s{sT0}, s{sT1}")
    a(f"v_lshrrev_b32 v4, 2, v{vLANE}")
    a(f"v_lshl_add_u32 v4, v4, 8, s{sT0}")
    a(f"v_and_b32 v6, 3, v{vLANE}")
    a(f"v_lshl_add_u32 v4, v6, 4, v4")
    a(f"s_lshl_b32 s{sT0}, s{sT3}, 13")
    for d in range(8):
        a(f"s_add_u32 m0, s{sT0}, {WB + 1024 * d}")
        a(f"s_mov_b32 s{sT1}, {4096 * d}")
        a(f"buffer_load_dwordx4 v4, {sr(SRD_W,4)}, s{sT1} offen lds")
    a(f"s_waitcnt vmcnt(0)")
    signal(a, WF)
    stamp(a, 10)
    a(f"s_setprio {XP[1]}")
    a(f"s_branch {p}_f_x")

    a.c("---------------- wave 15 publishes / collects the headers")
    a.lab(f"{p}_f_w15")
    a(f"s_setprio 3")
    a(f"s_lshl_b32 s{sT0}, s2, 10")
    a(f"v_lshl_add_u32 v4, v{vLANE}, 4, s{sT0}")
    a(f"s_mov_b32 s{sSPIN}, {SPIN_MAX}")
    for k in range(1, 4):
        a(f"s_sleep 5")
        a(f"buffer_load_dword v{72+k}, v10, {sr(SRD_DBG,4)}, 0 offen sc1")
    a(f"s_waitcnt vmcnt(0)")
    a(f"v_or3_b32 v13, v72, v73, v74")
    a(f"v_or_b32 v13, v13, v75")
    a(f"s_branch {p}_tag_first")
    a.lab(f"{p}_tag_loop")
    a(f"buffer_load_dword v13, v10, {sr(SRD_DBG,4)}, 0 offen sc1")
    a(f"s_waitcnt vmcnt(0)")
    a.lab(f"{p}_tag_first")
    a(f"s_nop 0")
    a(f"v_readfirstlane_b32 s{sNON}, v13")
    a(f"s_cmp_lg_u32 s{sNON}, 0")
    a(f"s_cbranch_scc1 {p}_tag_ok")
    a(f"s_sub_u32 s{sSPIN}, s{sSPIN}, 1")
    a(f"s_cbranch_scc0 {p}_tag_loop")
    a(f"v_mov_b32 v13, 1")
    a(f"s_mov_b32 s{sNON}, 1")
    a.lab(f"{p}_tag_ok")
    a(f"ds_write_b32 v10, v13 offset:{NON2}")
    noh_from_non(a)
    spin(a, f"{p}_f_s2b", S2, 7)
    offsets_scan(a)
    a(f"v_lshl_or_b32 v12, v{vTb}, 16, v{vTc}")
    a(f"v_or_b32 v12, s{sNOH}, v12")
    spin(a, f"{p}_f_s3b", S3, 7)
    a(f"ds_read_b32 v14, v{vTa} offset:{CSUM}")
    a(f"s_waitcnt lgkmcnt(0)")
    a(f"buffer_store_dwordx4 v[12:15], v4, {sr(SRD_HDR,4)}, 0 offen sc1")
    stamp(a, 1)
    a(f"s_setprio 0")
    a.lab(f"{p}_f_done")


def collect(a, p):
    a.c("---------------- wave 15: weights of the node terms, then this bin's 256 headers for the other waves")
    u, g = KP + 8, KP + 12
    a(f"s_cmp_lg_u32 s{sWV}, 15")
    a(f"s_cbranch_scc1 {p}_c_done")
    a(f"s_setprio 3")
    a(f"v_mov_b32 v10, 0")
    spin(a, f"{p}_f_s3c", S3, 14)
    a(f"s_lshl_b32 s{sT0}, s{sBIN}, 4")
    a(f"v_lshl_add_u32 v3, v{vLANE}, 12, s{sT0}")
    if PS1: a(f"s_sleep {PS1}")
    for k in range(4):
        a(f"buffer_load_dwordx3 {vr(72+4*k,3)}, v3, {sr(SRD_HDR,4)}, 0 offen offset:{1024*k} sc1")
    a.lab(f"{p}_c_done")


def collect2(a, p):
    a(f"s_cmp_lg_u32 s{sWV}, 15")
    a(f"s_cbranch_scc1 {p}_c2_done")
    a(f"s_mov_b32 s{sSPIN}, {SPIN_MAX}")
    a(f"s_waitcnt vmcnt(0)")
    a(f"s_branch {p}_hfirst")
    a.lab(f"{p}_hpoll")
    for k in range(4):
        a(f"buffer_load_dwordx3 {vr(72+4*k,3)}, v3, {sr(SRD_HDR,4)}, 0 offen offset:{1024*k} sc1")
    a(f"s_waitcnt vmcnt(0)")
    a.lab(f"{p}_hfirst")
    a(f"s_sub_u32 s{sSPIN}, s{sSPIN}, 1")
    a(f"s_cbranch_scc1 {p}_hok")
    for k in range(4):
        a(f"v_xor_b32 v{88+k}, s{sNON}, v{73+4*k}")
        a(f"v_xor_b32 v{92+k}, s{sNOH}, v{72+4*k}")
        a(f"v_and_b32 v{92+k}, 0xf800f800, v{92+k}")
    a(f"v_or3_b32 v88, v88, v89, v90")
    a(f"v_or3_b32 v92, v92, v93, v94")
    a(f"v_or3_b32 v88, v88, v91, v95")
    a(f"v_or_b32 v88, v88, v92")
    a(f"v_cmp_ne_u32 vcc, 0, v88")
    a(f"s_and_b64 exec, exec, vcc")
    a(f"s_cbranch_scc0 {p}_hok")
    a(f"s_sleep {PS2}")
    a(f"s_branch {p}_hpoll")
    a.lab(f"{p}_hok")
    a(f"s_mov_b64 exec, -1")
    a(f"v_lshlrev_b32 v7, 5, v{vLANE}")
    a(f"v_add_u32 v7, {STG}, v7")
    a(f"v_mov_b32 v13, s{sNON}")
    for k in range(4):
        a(f"ds_write2_b32 v7, v{72+4*k}, v{74+4*k} offset0:{2*k} offset1:{2*k+1}")
    a(f"ds_write_b32 v10, v13 offset:{NONCE}")
    stamp(a, 10)
    x_loads(a)
    load_C(a)
    a.lab(f"{p}_c2_done")


vZ0 = 2
vXA, vWA, vTMP = 3, 4, 5
def w_addr(a, base):
    a(f"v_lshrrev_b32 v6, 5, v{vLANE}")
    a(f"v_lshl_add_u32 v{vWA}, v6, 9, s{base}")
    a(f"v_bfe_u32 v6, v{vLANE}, 2, 2")
    a(f"v_lshl_add_u32 v{vWA}, v6, 6, v{vWA}")
    a(f"v_and_b32 v6, 1, v{vLANE}")
    a(f"v_lshl_add_u32 v{vWA}, v6, 5, v{vWA}")
    a(f"v_and_b32 v6, 16, v{vLANE}")
    a(f"v_add_u32 v{vWA}, v6, v{vWA}")
    a(f"v_and_b32 v6, 2, v{vLANE}")
    a(f"v_lshl_add_u32 v{vWA}, v6, 2, v{vWA}")


def xf(s):
    return 16 + 4 * s if s < 4 else 56 + 4 * (s - 4)

def x_loads(a):
    a.c("this wave's own x rows straight into operand registers")
    a(f"v_and_b32 v6, 31, v{vLANE}")
    a(f"v_cmp_gt_u32 vcc, s{sNR}, v6")
    a(f"v_add_u32 v6, s{sNODE0}, v6")
    a(f"v_lshlrev_b32 v6, 8, v6")
    a(f"v_lshrrev_b32 v7, 5, v{vLANE}")
    a(f"v_lshl_add_u32 v6, v7, 4, v6")
    a(f"s_mov_b64 exec, vcc")
    for s in range(8):
        a(f"buffer_load_dwordx4 {vr(xf(s),4)}, v6, {sr(SRD_X,4)}, 0 offen offset:{32*s}")
    a(f"s_mov_b64 exec, -1")


def w_reads(a, m1, m2, s):
    for k, m in enumerate((m1, m2)):
        for u in range(2):
            a(f"ds_read_b64_tr_b16 {vr(RA+8*(s%4)+4*k+2*u,2)}, v{vWA} offset:{m*8192 + s*1024 + u*256}")


def gemm_pass(a, m1, m2, swap2, first_issued=False, nxt=None):
    if not first_issued:
        for s in range(4):
            w_reads(a, m1, m2, s)
    for s in range(8):
        r = RA + 8 * (s % 4)
        a(f"s_waitcnt lgkmcnt({12 if s <= 4 else 4 * (7 - s)})")
        c1 = "0" if s == 0 else vr(Z, 16)
        c2 = "0" if s == 0 else vr(ACC, 16)
        a(f"v_mfma_f32_32x32x16_bf16 {vr(Z,16)}, {vr(xf(s),4)}, {vr(r,4)}, {c1}")
        if swap2:
            a(f"v_mfma_f32_32x32x16_bf16 {vr(ACC,16)}, {vr(r+4,4)}, {vr(xf(s),4)}, {c2}")
        else:
            a(f"v_mfma_f32_32x32x16_bf16 {vr(ACC,16)}, {vr(xf(s),4)}, {vr(r+4,4)}, {c2}")
        if s < 4:
            w_reads(a, m1, m2, s + 4)


def table_store(a, fused):
    a.c("table rows: hi16 = -log2e * (x B), lo16 = bf16(1 / (x V)); 8 rows at a time through LDS, whole lines out")
    a(f"s_lshl_b32 s{sT1}, s{sWV}, 10")
    a(f"s_add_u32 s{sT1}, s{sT1}, {STG + 2048}")
    a(f"v_lshrrev_b32 v6, 5, v{vLANE}")
    a(f"v_lshl_add_u32 v6, v6, 9, s{sT1}")
    a(f"v_and_b32 v7, 31, v{vLANE}")
    a(f"v_lshl_add_u32 v6, v7, 2, v6")
    a(f"v_lshl_add_u32 v7, v{vLANE}, 4, s{sT1}")
    a(f"s_lshl_b32 s{sT0}, s{sNODE0}, 7")
    a(f"v_lshl_add_u32 v{vTMP}, v{vLANE}, 4, s{sT0}")
    a(f"s_nop 5")
    for j in range(0, 14, 2):
        for k in (j, j + 1):
            a(f"v_rcp_f32 v{ACC+k}, v{ACC+k}")
            a(f"v_mul_f32 v{Z+k}, s{sNL2E}, v{Z+k}")
        for k in (j, j + 1):
            a(f"v_med3_f32 v{ACC+k}, v{ACC+k}, s{sMAXF}, -s{sMAXF}")
        a(f"v_cvt_pk_bf16_f32 v{ACC+j}, v{ACC+j}, v{ACC+j+1}")
        a(f"v_perm_b32 v{Z+j}, v{Z+j}, v{ACC+j}, s{sSELLO}")
        a(f"v_perm_b32 v{Z+j+1}, v{Z+j+1}, v{ACC+j}, s{sSELHI}")
        for k in (j, j + 1):
            a(f"ds_write_b32 v6, v{Z+k} offset:{(k&3)*128}")
        if j % 4 == 2 or j == 12:
            g = j // 4
            a(f"ds_read_b128 {vr(RA+4*g,4)}, v7")
    for g in range(4):
        a(f"s_waitcnt lgkmcnt({(10, 5, 3, 0)[g] if False else 0})") if g == 0 else None
        if g == 3:
            a(f"s_sub_u32 s{sT0}, s{sNR}, 24")
            a(f"s_lshl_b32 s{sT0}, s{sT0}, 3")
            a(f"s_bfm_b64 exec, s{sT0}, 0")
        a(f"buffer_store_dwordx4 {vr(RA+4*g,4)}, v{vTMP}, {sr(SRD_TS,4)}, 0 offen offset:{1024*g} sc1")
    a(f"s_mov_b64 exec, -1")
    a(f"s_nop 0")


vC0 = 48
def load_C(a):
    a.c("edge-feature weights g_w[256+k][32*slice + pi(n)]")
    a(f"v_bfe_u32 v6, v{vLANE}, 2, 1")
    a(f"v_lshlrev_b32 v6, 5, v6")
    a(f"v_bfe_u32 v7, v{vLANE}, 3, 2")
    a(f"v_lshl_add_u32 v6, v7, 3, v6")
    a(f"v_and_b32 v7, 3, v{vLANE}")
    a(f"v_lshl_add_u32 v6, v7, 1, v6")
    a(f"s_lshl_b32 s{sT0}, s{sSL}, 6")
    a(f"s_add_u32 s{sT0}, s{sT0}, 65536")
    a(f"v_add_u32 v6, s{sT0}, v6")
    for k in range(4):
        a(f"buffer_load_ushort v{vC0+k}, v6, {sr(SRD_G,4)}, 0 offen offset:{256*k}")


def pop_pack(a):
    a.c("P' operand (rows 26.. replaced by the edge-feature weights / zero)")
    for k in range(4):
        a(f"v_lshlrev_b32 v{vC0+k}, 16, v{vC0+k}")
    for k in range(4):
        a(f"v_mul_f32 v{vC0+k}, s{sNL2E}, v{vC0+k}")
    a(f"v_cvt_pk_bf16_f32 v6, v{vC0}, v{vC0+1}")
    a(f"v_cvt_pk_bf16_f32 v7, v{vC0+2}, v{vC0+3}")
    a(f"s_nop 3")
    for k in range(14):
        a(f"v_mul_f32 v{Z+k}, s{sNL2E}, v{Z+k}")
    for k in range(7):
        a(f"v_cvt_pk_bf16_f32 v{POP+k}, v{Z+2*k}, v{Z+2*k+1}")
    a(f"s_cmp_eq_u32 s{sNN}, 25")
    a(f"s_cselect_b32 s{sT0}, 0xffff, 0")
    a(f"v_and_b32 v{POP+6}, s{sT0}, v{POP+6}")
    a(f"v_cndmask_b32 v{POP+6}, v{POP+6}, v6, {sr(sHM,2)}")
    a(f"v_cndmask_b32 v{POP+7}, 0, v7, {sr(sHM,2)}")


vHS, vHL = 12, 13
def hdr_load(a, fused, addr=7):
    a(f"buffer_load_dwordx2 v[14:15], v{addr}, {sr(SRD_HDR,4)}, 0 offen{' sc1' if fused else ''}")

def hdr_addr(a, addr=7):
    a(f"v_lshrrev_b32 v{addr}, 2, v0")
    a(f"s_lshl_b32 s{sT0}, s{sBIN}, 4")
    a(f"v_lshl_add_u32 v{addr}, v{addr}, 10, s{sT0}")


def hdr_decode(a):
    a(f"v_and_b32 v6, 3, v0")
    a(f"v_and_b32 v7, 0x7ff, v14")
    a(f"v_add_u32 v7, v7, v6")
    a(f"v_mul_u32_u24 v7, 12, v7")
    a(f"v_lshrrev_b32 v{vHS}, 2, v0")
    a(f"v_mul_u32_u24 v{vHS}, 19200, v{vHS}")
    a(f"v_add_u32 v{vHS}, v{vHS}, v7")
    a(f"v_bfe_u32 v{vHL}, v14, 16, 11")
    a(f"v_sub_u32 v{vHL}, v{vHL}, v6")
    a(f"s_mov_b32 s{sRB}, 0")
    a(f"s_mov_b32 s{sC}, {CFAST}")


def rec_loads(a, p, tag, fused, fixed=False):
    sc = " sc1" if fused else ""
    a(f"v_subrev_u32 v7, s{sRB}, v{vHL}")
    a(f"v_and_b32 v6, 3, v0")
    a(f"v_sub_u32 v6, s{sC}, v6")
    a(f"v_min_i32 v7, v7, v6")
    a(f"s_mul_i32 s{sT0}, s{sRB}, 12")
    a(f"v_add_u32 v6, s{sT0}, v{vHS}")
    for i in range(NI):
        a(f"v_cmp_lt_i32 {sr(MASKS[i],2)}, {4*i}, v7")
    for i in range(NI):
        a(f"s_mov_b64 exec, {sr(MASKS[i],2)}")
        if not fixed: a(f"s_cbranch_execz {p}_rl_done{tag}")
        a(f"buffer_load_dwordx3 {vr(REC+4*i,3)}, v6, {sr(SRD_REC,4)}, 0 offen offset:{48*i}{sc}")
    a.lab(f"{p}_rl_done{tag}")
    a(f"s_mov_b64 exec, -1")


def append1(a, p, tag):
    a.c("---------------- list slots for the records (16 sub-block lists)")
    a(f"s_add_u32 s{sT0}, s{sRB}, s{sC}")
    a(f"v_and_b32 v6, 3, v0")
    a(f"v_add_u32 v6, v6, v{vHL}")
    a(f"v_cmp_lt_i32 vcc, s{sT0}, v6")
    a(f"v_mov_b32 v6, 4")
    a(f"v_mov_b32 v7, 64")
    a(f"s_mov_b64 exec, vcc")
    a(f"ds_add_u32 v7, v6 offset:{LCNT}")
    a(f"s_mov_b64 exec, -1")
    a(f"v_mov_b32 v7, 0x3c")
    for i in range(NI):
        q = REC + 4 * i
        a(f"s_mov_b64 exec, {sr(MASKS[i],2)}")
        a(f"s_cbranch_execz {p}_ap1{tag}")
        a(f"v_and_b32_sdwa v{q+3}, v{q+2}, v7 dst_sel:DWORD dst_unused:UNUSED_PAD src0_sel:BYTE_3 src1_sel:DWORD")
        a(f"ds_add_rtn_u32 v{q+3}, v{q+3}, v6 offset:{LCNT}")
    a.lab(f"{p}_ap1{tag}")
    a(f"s_mov_b64 exec, -1")


def append2(a, p):
    for i in range(NI):
        q = REC + 4 * i
        a(f"s_mov_b64 exec, {sr(MASKS[i],2)}")
        a(f"s_cbranch_execz {p}_ap2")
        a(f"v_min_u32 v{q+3}, s{sKMAX}, v{q+3}")
        a(f"v_lshlrev_b32 v6, 1, v{q+3}")
        a(f"ds_write_b32 v{q+3}, v{q+2}")
        a(f"ds_write_b64 v6, {vr(q,2)} offset:{EOFF}")
    a.lab(f"{p}_ap2")
    a(f"s_mov_b64 exec, -1")


vKR, vER, vIW, vIE, vIA0, vIA1, vIT0, vIT1, vOLD, vKEY = 4, 5, 120, 121, 122, 123, 124, 125, 126, 127
vEE, vB16, vZERO = 8, 10, 11
AD, BD = 2, 14


def image_setup(a):
    a.c("---------------- selection image addresses; zero the image")
    a(f"s_lshl_b32 s{sT0}, s{sWV}, 11")
    a(f"s_add_u32 s{sT0}, s{sT0}, {IMG}")
    a(f"v_lshl_add_u32 v{vER}, v{vLANE}, 4, s{sT0}")
    for k in range(4):
        a(f"v_mov_b32 v{Z+k}, 0")
    a(f"v_mov_b32 v{vB16}, 0x3f80")
    a(f"v_mov_b32 v{vZERO}, 0")
    a(f"v_and_b32 v6, 31, v{vLANE}")
    a(f"v_mov_b32 v{AD+1}, 0x3f803f80")
    a(f"v_lshlrev_b32 v7, 2, v6")
    a(f"v_cvt_f32_u32 v7, v7")
    a(f"v_lshrrev_b32 v7, 16, v7")
    a(f"v_or_b32 v7, 0x4b000000, v7")
    a(f"v_mov_b32 v{BD}, 0x47004300")
    a(f"v_cndmask_b32 v{BD}, v{BD}, v{vZERO}, {sr(sHM,2)}")
    a(f"v_cndmask_b32 v{BD+1}, v7, v{vZERO}, {sr(sHM,2)}")
    a(f"v_lshl_add_u32 v6, v6, 6, s{sT0}")
    a(f"v_bfe_u32 v7, v{vLANE}, 2, 2")
    a(f"v_lshl_add_u32 v{vIW}, v7, 4, v6")
    a(f"v_xor_b32 v{vIE}, 56, v{vIW}")
    a(f"v_lshrrev_b32 v6, 5, v{vLANE}")
    a(f"v_lshlrev_b32 v{vIA0}, 4, v6")
    a(f"v_xor_b32 v{vIA0}, v{vIA0}, v{vIW}")
    a(f"v_xor_b32 v{vIA1}, 32, v{vIA0}")
    a(f"v_mov_b32 v{vOLD}, v{vIW}")
    a(f"v_lshl_add_u32 v7, v6, 2, v7")
    a(f"v_lshl_add_u32 v{vIT0}, v7, 6, s{sT0}")
    a(f"v_bfe_u32 v7, v{vLANE}, 4, 1")
    a(f"v_lshlrev_b32 v7, 1, v7")
    a(f"v_and_b32 v{vIT1}, 1, v{vLANE}")
    a(f"v_or_b32 v7, v7, v{vIT1}")
    a(f"v_xor_b32 v7, v7, v6")
    a(f"v_lshl_add_u32 v{vIT0}, v7, 4, v{vIT0}")
    a(f"v_and_b32 v7, 2, v{vLANE}")
    a(f"v_lshl_add_u32 v{vIT0}, v7, 2, v{vIT0}")
    a(f"v_xor_b32 v{vIT1}, 32, v{vIT0}")
    a(f"v_add_u32 v{vIT1}, 512, v{vIT1}")


def gathers(a, R, fused):
    sc = " sc1" if fused and "sc1g" in DIAG else ""
    if "nogather" in DIAG: return
    for k in range(16):
        a(f"buffer_load_dword v{R+k}, v{OFF+k}, {sr(SRD_TG,4)}, 0 offen{sc}")

def rec_reads(a, toff):
    a(f"ds_read_b32 v{vKEY}, v{vKR} offset:{toff*128}")
    a(f"ds_read_b64 {vr(vEE,2)}, v{vER} offset:{EOFF + toff*256}")

def image_build(a):
    a(f"ds_write_b16 v{vOLD}, v{vZERO}")
    a(f"v_xor_b32_sdwa v{vOLD}, v{vKEY}, v{vIW} dst_sel:DWORD dst_unused:UNUSED_PAD src0_sel:BYTE_2 src1_sel:DWORD")
    a(f"ds_write_b64 v{vIE}, {vr(vEE,2)}")
    a(f"ds_write_b16 v{vOLD}, v{vB16}")

def aex_reads(a):
    a(f"ds_read_b128 {vr(AEX,4)}, v{vIA0}")
    a(f"ds_read_b128 {vr(AEX+4,4)}, v{vIA1}")

def sag_reads(a):
    for s in range(2):
        a(f"ds_read_b64_tr_b16 {vr(SAG+4*s,2)}, v{vIT0} offset:{1024*s}")
        a(f"ds_read_b64_tr_b16 {vr(SAG+4*s+2,2)}, v{vIT1} offset:{1024*s}")

def addr_cvt(a):
    a(f"v_cvt_f32_ubyte0 v6, v{vKEY}")
    a(f"v_cvt_f32_ubyte1 v7, v{vKEY}")
def addr_pack(a):
    a(f"v_perm_b32 v{AD}, v7, v6, s{sSELHI}")
def addr_mfma(a):
    a(f"v_mfma_f32_32x32x8_bf16 {vr(OFF,16)}, {vr(AD,2)}, {vr(BD,2)}, 0")


def tile_body(a, R, Rn, fused, lb):
    gathers(a, Rn, fused)
    if PRIO:
        a(f"s_sub_u32 s{sT0}, s{sNT}, s{sIT}")
        for lvl, r in enumerate((1, 3, 6)):
            a(f"s_cmp_lg_u32 s{sT0}, {r}")
            a(f"s_cbranch_scc1 {lb}_p{lvl}")
            a(f"s_setprio {lvl}")
            a.lab(f"{lb}_p{lvl}")
    a(f"s_waitcnt vmcnt(16)")
    a(f"v_mfma_f32_32x32x16_bf16 {vr(Z,16)}, {vr(AEX,4)}, {vr(POP,4)}, {vr(R,16)}")
    a(f"v_mfma_f32_32x32x16_bf16 {vr(Z,16)}, {vr(AEX+4,4)}, {vr(POP+4,4)}, {vr(Z,16)}")
    if "nolds" not in DIAG:
        sag_reads(a)
        image_build(a)
        aex_reads(a)
    else:
        a("s_nop 9")
    rec_reads(a, 2)
    a(f"v_add_u32 v{vKR}, 128, v{vKR}")
    a(f"v_add_u32 v{vER}, 256, v{vER}")
    for j in range(16):
        if "notrans" not in DIAG: a(f"v_exp_f32 v{Z+j}, v{Z+j}")
        if "b64" in DIAG:
            if j % 2: a(f"v_lshlrev_b64 {vr(R+j-1,2)}, 16, {vr(R+j-1,2)}")
        else:
            a(f"v_lshlrev_b32 v{R+j}, 16, v{R+j}")
    a(f"s_waitcnt lgkmcnt(0)")
    addr_cvt(a)
    for j in range(0, 16, 2):
        if "nopk" in DIAG:
            a(f"v_fma_f32 v{Z+j}, v{Z+j}, v{R+j}, v{R+j}")
            a(f"v_fma_f32 v{Z+j+1}, v{Z+j+1}, v{R+j+1}, v{R+j+1}")
        else:
            a(f"v_pk_fma_f32 {vr(Z+j,2)}, {vr(Z+j,2)}, {vr(R+j,2)}, {vr(R+j,2)}")
        if j == 0:
            addr_pack(a)
    addr_mfma(a)
    for j in range(16):
        if "notrans" not in DIAG: a(f"v_rcp_f32 v{Z+j}, v{Z+j}")
        if j >= 3 and j % 2 == 1:
            k = (j - 3) // 2
            a(f"v_cvt_pk_bf16_f32 v{R+k}, v{Z+2*k}, v{Z+2*k+1}")
    a(f"s_add_u32 s{sIT}, s{sIT}, 1")
    a(f"v_cvt_pk_bf16_f32 v{R+7}, v{Z+14}, v{Z+15}")
    a(f"s_cmp_lt_u32 s{sIT}, s{sNT}")
    a(f"v_mfma_f32_32x32x16_bf16 {vr(ACC,16)}, {vr(R,4)}, {vr(SAG,4)}, {vr(ACC,16)}")
    a(f"v_mfma_f32_32x32x16_bf16 {vr(ACC,16)}, {vr(R+4,4)}, {vr(SAG+4,4)}, {vr(ACC,16)}")


def tflag_wait(a, p):
    a.c("wave 14: wait until all 64 workgroups of this slice have published their table rows")
    a(f"s_cmp_lg_u32 s{sWV}, 14")
    a(f"s_cbranch_scc1 {p}_tf_done")
    a(f"s_lshl_b32 s{sT0}, s{sSL}, 13")
    a(f"s_add_u32 s{sT0}, s{sT0}, {TFL_OFF}")
    a(f"v_lshl_add_u32 v6, v{vLANE}, 7, s{sT0}")
    a(f"s_not_b32 s{sT1}, s{sNON}")
    a(f"s_mov_b32 s{sSPIN}, {SPIN_MAX}")
    a.lab(f"{p}_tf_loop")
    a(f"buffer_load_dwordx2 v[8:9], v6, {sr(SRD_HDR,4)}, 0 offen sc1")
    a(f"s_waitcnt vmcnt(0)")
    a(f"v_cmp_ne_u32 vcc, s{sNON}, v8")
    a(f"v_cmp_ne_u32 {sr(sEX,2)}, s{sT1}, v9")
    a(f"s_or_b64 vcc, vcc, {sr(sEX,2)}")
    a(f"s_and_b64 exec, exec, vcc")
    a(f"s_cbranch_scc0 {p}_tf_end")
    a(f"s_sleep 4")
    a(f"s_sub_u32 s{sSPIN}, s{sSPIN}, 1")
    a(f"s_cbranch_scc0 {p}_tf_loop")
    a.lab(f"{p}_tf_end")
    a(f"s_mov_b64 exec, -1")
    a.lab(f"{p}_tf_done")


def main_phase(a, p, fused):
    a.lab(f"{p}_round")
    append1(a, p, "a")
    a(f"s_waitcnt lgkmcnt(0)")
    append2(a, p)
    stamp(a, 5)
    image_setup(a)
    if fused and "notf" not in DIAG:
        tflag_wait(a, p)
    a(f"s_waitcnt lgkmcnt(0)")
    a(f"s_barrier")
    stamp(a, 6)
    if STAMPS:
        a("s_memtime s[100:101]")
        a("s_waitcnt lgkmcnt(0)")
        a(f"s_mov_b32 s{sXM}, s100")
    a(f"ds_write_b128 v{vER}, {vr(Z,4)}")
    a(f"ds_write_b128 v{vER}, {vr(Z,4)} offset:1024")
    a(f"v_and_b32 v6, 31, v{vLANE}")
    a(f"v_lshlrev_b32 v{vKR}, 2, v6")
    a(f"ds_read_b32 v7, v{vKR} offset:{LCNT}")
    a(f"v_mul_u32_u24 v6, {LS}, v{vKR}")
    a(f"v_add_u32 v6, {KEYB + 4*CAP}, v6")
    a(f"s_mul_i32 s{sT0}, s{sWV}, {LS*4}")
    a(f"s_add_u32 s{sT0}, s{sT0}, {KEYB}")
    a(f"v_add_u32 v{vKR}, s{sT0}, v{vKR}")
    a(f"v_lshlrev_b32 v{vER}, 1, v{vKR}")
    a(f"v_mov_b32 v8, 0")
    a(f"v_mov_b32 v9, 0")
    a(f"s_waitcnt lgkmcnt(0)")
    a(f"v_readlane_b32 s{sT1}, v7, s{sWV}")
    a(f"v_readlane_b32 s{sT3}, v7, 16")
    a(f"v_cmp_lt_u32 vcc, v6, v7")
    a(f"s_and_b32 s{sT2}, vcc_lo, 0xffff")
    a(f"s_cbranch_scc1 {p}_overflow")
    a.c("pad the list with 64 dummy edges")
    a(f"v_lshl_add_u32 v6, v{vLANE}, 2, s{sT1}")
    a(f"v_lshlrev_b32 v7, 1, v6")
    a(f"v_mov_b32 v{vKEY}, 0x{N | (46 << 16):x}")
    a(f"ds_write_b32 v6, v{vKEY}")
    a(f"ds_write_b64 v7, v[8:9] offset:{EOFF}")
    a(f"s_sub_u32 s{sNT}, s{sT1}, s{sT0}")
    a(f"s_add_u32 s{sNT}, s{sNT}, 127")
    a(f"s_lshr_b32 s{sNT}, s{sNT}, 7")
    a(f"s_cbranch_scc0 {p}_tiles_done")
    a(f"s_mov_b32 s{sIT}, 0")
    a(f"s_waitcnt vmcnt(0)")
    rec_reads(a, 0)
    a(f"s_waitcnt lgkmcnt(0)")
    addr_cvt(a)
    addr_pack(a)
    image_build(a)
    addr_mfma(a)
    aex_reads(a)
    rec_reads(a, 1)
    a(f"s_nop 15")
    a(f"s_waitcnt lgkmcnt(0)")
    addr_cvt(a)
    addr_pack(a)
    gathers(a, RA, fused)
    addr_mfma(a)
    a(f"s_nop 15")
    a(f"s_nop 3")
    if PRIO: a(f"s_setprio 3")
    a.lab(f"{p}_tile")
    for k in range(2):
        tile_body(a, (RA, RBUF)[k & 1], (RBUF, RA)[k & 1], fused, f"{p}_b{k}")
        a(f"s_cbranch_scc0 {p}_tiles_done" if k < 1 else f"s_cbranch_scc1 {p}_tile")
    a.lab(f"{p}_tiles_done")
    a(f"s_cmp_eq_u32 s{sT3}, 0")
    a(f"s_cbranch_scc1 {p}_epi")
    a(f"s_add_u32 s{sRB}, s{sRB}, s{sC}")
    a(f"s_branch {p}_next")
    a.lab(f"{p}_overflow")
    a(f"s_mov_b32 s{sC}, 2")
    a.lab(f"{p}_next")
    a.c("rare path: another round over the runs")
    a(f"s_waitcnt vmcnt(0) lgkmcnt(0)")
    a(f"s_barrier")
    init_counters(a, p, "r", False)
    rec_loads(a, p, "r", fused)
    a(f"s_waitcnt vmcnt(0) lgkmcnt(0)")
    a(f"s_barrier")
    a(f"s_branch {p}_round")
    a.lab(f"{p}_epi")
    stamp(a, 7)
    if STAMPS:
        a("s_memtime s[100:101]")
        a("s_waitcnt lgkmcnt(0)")
        a(f"s_sub_u32 s{sreg(9)}, s100, s{sXM}")
    a.c("---------------- epilogue: silu, pack, store")
    a(f"v_and_b32 v6, 31, v{vLANE}")
    a(f"v_cmp_gt_u32 vcc, s{sNN}, v6")
    a(f"v_add_u32 v6, s{sNODE0}, v6")
    a(f"v_lshlrev_b32 v6, 8, v6")
    a(f"v_lshrrev_b32 v7, 5, v{vLANE}")
    a(f"v_lshl_add_u32 v6, v7, 5, v6")
    a(f"s_lshl_b32 s{sT0}, s{sSL}, 6")
    a(f"v_add_u32 v6, s{sT0}, v6")
    a(f"s_nop 7")
    for j in range(16):
        a(f"v_mul_f32 v{Z+j}, s{sNL2E}, v{ACC+j}")
    for j in range(16):
        a(f"v_exp_f32 v{Z+j}, v{Z+j}")
    for j in range(16):
        a(f"v_add_f32 v{Z+j}, 1.0, v{Z+j}")
    for j in range(16):
        a(f"v_rcp_f32 v{Z+j}, v{Z+j}")
    for j in range(16):
        a(f"v_mul_f32 v{Z+j}, v{Z+j}, v{ACC+j}")
    for k in range(8):
        a(f"v_cvt_pk_bf16_f32 v{AEX+k}, v{Z+2*k}, v{Z+2*k+1}")
    a(f"s_mov_b64 exec, vcc")
    osc = " sc1" if "osc1" in DIAG else "" if "oplain" in DIAG else " nt"
    a(f"buffer_store_dwordx4 {vr(AEX,4)}, v6, {sr(SRD_OUT,4)}, 0 offen{osc}")
    a(f"buffer_store_dwordx4 {vr(AEX+4,4)}, v6, {sr(SRD_OUT,4)}, 0 offen offset:16{osc}")


def kernel_header(name):
    return f""".globl {name}
.p2align 8
.type {name},@function
{name}:
"""

def kernel_desc(name):
    return f""".amdhsa_kernel {name}
  .amdhsa_next_free_vgpr 128
  .amdhsa_next_free_sgpr 102
  .amdhsa_accum_offset 128
  .amdhsa_group_segment_fixed_size 0
  .amdhsa_kernarg_size 80
  .amdhsa_user_sgpr_count 2
  .amdhsa_user_sgpr_kernarg_segment_ptr 1
  .amdhsa_system_sgpr_workgroup_id_x 1
.end_amdhsa_kernel
"""

def file_head():
    return open("cdna_kernels/" + NAME + ".s.ref").read().split("; Override launch geometry")[0]


def finish(a, kidx):
    stamp(a, 8)
    stamp_out(a, kidx, 12)


def hdr_peek(a):
    a(f"v_mov_b32 v7, 0")
    a(f"ds_read_b32 v13, v7 offset:{NONCE}")
    a(f"ds_read_b64 v[14:15], v{vHS}")


def csum_acc(a, p, tag):
    for i in range(NI):
        q = REC + 4 * i
        a(f"s_mov_b64 exec, {sr(MASKS[i],2)}")
        a(f"s_cbranch_execz {p}_cs{tag}")
        a(f"v_add3_u32 v2, v2, v{q}, v{q+1}")
        a(f"v_add_u32 v2, v2, v{q+2}")
    a.lab(f"{p}_cs{tag}")
    a(f"s_mov_b64 exec, -1")


def csum_check(a):
    a(f"s_nop 1")
    a(f"v_add_u32_dpp v2, v2, v2 quad_perm:[1,0,3,2] row_mask:0xf bank_mask:0xf")
    a(f"s_nop 1")
    a(f"v_add_u32_dpp v2, v2, v2 quad_perm:[2,3,0,1] row_mask:0xf bank_mask:0xf")
    a(f"v_cmp_ne_u32 vcc, v2, v15")
    a(f"s_cmp_lg_u64 vcc, 0")


def gen_1k():
    k = NAME + "_kernel"
    a = A(); p = "K"
    setup(a, p)
    stamp(a, 0)
    front(a, p)
    stamp(a, 2)
    if "frontonly" in DIAG:
        stamp_out(a, 0, 12)
        a("s_endpgm")
    collect(a, p)
    collect2(a, p)
    a(f"s_mov_b32 s{sT1}, {WB}")
    w_addr(a, sT1)
    a.c("wait for the weights, the end of the record copy-out (staging area reused) and the x rows")
    a.lab(f"{p}_xw")
    a(f"ds_read2_b32 v[14:15], v10 offset0:{S3//4} offset1:{WF//4}")
    a(f"s_waitcnt lgkmcnt(0)")
    a(f"v_add_u32 v7, v14, v15")
    a(f"s_nop 0")
    a(f"v_readfirstlane_b32 s{sT0}, v7")
    a(f"s_cmp_eq_u32 s{sT0}, {14 + 4}")
    a(f"s_cbranch_scc1 {p}_xok")
    a(f"s_sleep 1")
    a(f"s_branch {p}_xw")
    a.lab(f"{p}_xok")
    a(f"s_setprio {XP[4]}")
    for st in range(4):
        w_reads(a, 1, 2, st)
    a(f"s_waitcnt vmcnt(0)")
    stamp(a, 3)
    gemm_pass(a, 1, 2, False, True)
    table_store(a, True)
    stamp(a, 4)
    a(f"s_setprio {XP[5]}")
    a(f"v_mov_b32 v{vZ0}, 0")
    a(f"s_mov_b32 s{sNT}, 0")
    a(f"s_cmp_lt_u32 s{sWV}, {PUBW}")
    a(f"s_cbranch_scc1 {p}_pass2")
    a(f"s_waitcnt vmcnt(0)")
    a(f"s_call_b64 {sr(sRET,2)}, {p}_sub_pub")
    a(f"s_mov_b32 s{sNT}, 1")
    a.lab(f"{p}_pass2")
    gemm_pass(a, 0, 3, True)
    pop_pack(a)
    a(f"v_lshrrev_b32 v{vHS}, 2, v0")
    a(f"v_lshlrev_b32 v{vHS}, 3, v{vHS}")
    a(f"v_add_u32 v{vHS}, {STG}, v{vHS}")
    a.lab(f"{p}_hwait")
    hdr_peek(a)
    a(f"s_waitcnt lgkmcnt(0)")
    a(f"v_readfirstlane_b32 s{sNON}, v13")
    a(f"s_cmp_lg_u32 s{sNON}, 0")
    a(f"s_cbranch_scc1 {p}_hgo")
    a(f"s_cmp_lg_u32 s{sNT}, 0")
    a(f"s_cbranch_scc1 {p}_hsleep")
    a(f"s_waitcnt vmcnt(0)")
    a(f"s_call_b64 {sr(sRET,2)}, {p}_sub_pub")
    a(f"s_mov_b32 s{sNT}, 1")
    a.lab(f"{p}_hsleep")
    a(f"s_sleep 1")
    a(f"s_branch {p}_hwait")
    a.lab(f"{p}_hgo")
    hdr_decode(a)
    rec_loads(a, p, "f", False, True)
    stamp(a, 1)
    a(f"s_cmp_lg_u32 s{sNT}, 0")
    a(f"s_cbranch_scc1 {p}_pubdone")
    a(f"s_waitcnt vmcnt({NI})")
    a(f"s_call_b64 {sr(sRET,2)}, {p}_sub_pub")
    a.lab(f"{p}_pubdone")
    a("s_waitcnt vmcnt(0)")
    stamp(a, 11)
    if "nopf" not in DIAG:
        a.c("pull this wave's own table rows into the L2 (scratch destination in LDS)")
        a(f"s_lshl_b32 s{sT0}, s{sNODE0}, 7")
        a(f"v_lshl_add_u32 v6, v{vLANE}, 4, s{sT0}")
        if "pfdma" in DIAG:
            a(f"s_lshl_b32 s{sT1}, s{sWV}, 10")
            a(f"s_add_u32 s{sT1}, s{sT1}, {STG + 2048}")
            for kk in range(3):
                a(f"s_sub_u32 m0, s{sT1}, {1024*kk}")
                a(f"s_nop 0")
                a(f"buffer_load_dwordx4 v6, {sr(SRD_TS,4)}, 0 offen offset:{1024*kk} lds")
        else:
            for kk in range(3):
                a(f"buffer_load_dwordx4 {vr(56+4*kk,4)}, v6, {sr(SRD_TS,4)}, 0 offen offset:{1024*kk}")
    a.c("the records must add up to the checksums published with the headers")
    csum_acc(a, p, "a")
    a(f"v_and_b32 v6, 3, v0")
    a(f"v_add_u32 v6, v6, v{vHL}")
    a(f"v_cmp_lt_i32 {sr(sEX,2)}, {CFAST}, v6")
    csum_check(a)
    a(f"s_cbranch_scc1 {p}_vslow")
    a(f"s_cmp_lg_u64 {sr(sEX,2)}, 0")
    a(f"s_cbranch_scc1 {p}_vslow")
    a.lab(f"{p}_valid")
    main_phase(a, p, True)
    finish(a, 0)
    a.lab(f"{p}_end")
    a("s_endpgm")
    a.c("---------------- subroutines / rare paths")
    a.lab(f"{p}_sub_pub")
    a.c("the last wave whose table rows are out publishes the workgroup's flag")
    a(f"v_mov_b32 v6, 1")
    a(f"s_mov_b64 exec, 1")
    a(f"ds_add_rtn_u32 v6, v{vZ0}, v6 offset:{DONE}")
    a(f"ds_read_b32 v7, v{vZ0} offset:{NON2}")
    a(f"s_waitcnt lgkmcnt(0)")
    a(f"v_readfirstlane_b32 s{sT0}, v6")
    a(f"v_readfirstlane_b32 s{sT2}, v7")
    a(f"s_cmp_lg_u32 s{sT0}, 15")
    a(f"s_cbranch_scc1 {p}_nopub")
    a(f"s_lshl_b32 s{sT0}, s{sSL}, 6")
    a(f"s_add_u32 s{sT0}, s{sT0}, s{sBIN}")
    a(f"s_lshl_b32 s{sT0}, s{sT0}, 7")
    a(f"s_add_u32 s{sT0}, s{sT0}, {TFL_OFF}")
    a(f"s_not_b32 s{sT1}, s{sT2}")
    a(f"v_mov_b32 v6, s{sT0}")
    a(f"v_mov_b32 v8, s{sT2}")
    a(f"v_mov_b32 v9, s{sT1}")
    a(f"buffer_store_dwordx2 v[8:9], v6, {sr(SRD_HDR,4)}, 0 offen sc1")
    a.lab(f"{p}_nopub")
    a(f"s_mov_b64 exec, -1")
    a(f"s_setpc_b64 {sr(sRET,2)}")
    a.lab(f"{p}_sub_loads")
    rec_loads(a, p, "s", True)
    a(f"s_setpc_b64 {sr(sRET,2)}")
    a.lab(f"{p}_vslow")
    a.c("long runs, or records not yet visible: add up every run completely, again until it fits")
    a(f"s_mov_b32 s{sSPIN}, {SPIN_MAX}")
    a.lab(f"{p}_vs_retry")
    a(f"s_mov_b32 s{sRB}, 0")
    a(f"v_mov_b32 v2, 0")
    a.lab(f"{p}_vs_part")
    a(f"s_call_b64 {sr(sRET,2)}, {p}_sub_loads")
    a(f"s_waitcnt vmcnt(0)")
    csum_acc(a, p, "v")
    a(f"s_add_u32 s{sRB}, s{sRB}, {CFAST}")
    a(f"v_and_b32 v6, 3, v0")
    a(f"v_add_u32 v6, v6, v{vHL}")
    a(f"v_cmp_lt_i32 vcc, s{sRB}, v6")
    a(f"s_cmp_lg_u64 vcc, 0")
    a(f"s_cbranch_scc1 {p}_vs_part")
    csum_check(a)
    a(f"s_cbranch_scc0 {p}_vs_ok")
    a(f"s_sub_u32 s{sSPIN}, s{sSPIN}, 1")
    a(f"s_cbranch_scc0 {p}_vs_retry")
    a.lab(f"{p}_vs_ok")
    a(f"s_mov_b32 s{sRB}, 0")
    a(f"s_call_b64 {sr(sRET,2)}, {p}_sub_loads")
    a(f"s_waitcnt vmcnt(0)")
    a(f"s_branch {p}_valid")
    a.lab(f"{p}_code_end")
    s = file_head()
    s += f"; @launch grid=(256,1,1) block=(1024,1,1) lds={LDS_BYTES}\n"
    s += '.amdgcn_target "amdgcn-amd-amdhsa--gfx950"\n.text\n'
    s += kernel_header(k) + a.text()
    s += '.section .rodata,"a"\n.p2align 6\n' + kernel_desc(k)
    return s


if __name__ == "__main__":
    if "-stamps" in sys.argv:
        STAMPS = True; sys.argv.remove("-stamps")
    if "-noprio" in sys.argv:
        PRIO = False; sys.argv.remove("-noprio")
    for x in list(sys.argv):
        if x.startswith("-PW"):
            PUBW = int(x[3:]); sys.argv.remove(x)
        if x.startswith("-XP"):
            XP = [int(c) for c in x[3:]]; sys.argv.remove(x)
        if x.startswith("-XE"):
            XEARLY = int(x[3:]); sys.argv.remove(x)
        if x.startswith("-PS"):
            PS1, PS2 = map(int, x[3:].split(",")); sys.argv.remove(x)
        if x.startswith("-D"):
            DIAG.add(x[2:]); sys.argv.remove(x)
    mode = gen_1k
    if "-1k" in sys.argv:
        mode = gen_1k; sys.argv.remove("-1k")
    out = sys.argv[1] if len(sys.argv) > 1 else "cdna_kernels/" + NAME + ".s"
    open(out, "w").write(mode())
    print("wrote", out, "LDS", LDS_BYTES)
```

```python
import sys

N = 25000
E = 400000
NAME = "gather_scatter__edge_featured_mpnn_egc__graph"

TS = 25024 * 128
REC_OFF = 0x1000000
REC_BYTES = 250 * 19200
HDR_OFF = 0x1800000
HDR_BYTES = 128 * 256 * 16
TFL_OFF = HDR_BYTES
HDR_SRD_BYTES = HDR_BYTES + 256 * 128
MAGIC_OFF = 0x4B000000

CNT = 0
CSUM = 512
OFFS = 1024
LCNT = 1536
NONCE, DONE, NON2, S2, S3, WF, WF2, XR = [LCNT + 128 + 4 * i for i in range(8)]
XFL = LCNT + 192
assert S3 % 8 == 0
CAP = 500
LS = 564
KEYB = 1792
EB = KEYB + 8 * LS * 4
EOFF = EB - 2 * KEYB
IMG = EB + 8 * LS * 8
XB = KEYB
XT = 26 * 256
assert XB % 256 == 0 and XB + 8 * XT + 6 * 256 <= IMG + 2048
STG = IMG
WB = IMG + 32768
PFS = WB + 65536
CB = PFS + 3072
LDS_BYTES = CB + 512
NI = 8
CFAST = 4 * NI

SRD_X, SRD_E, SRD_SRC, SRD_DST, SRD_W, SRD_OUT, SRD_TS, SRD_TG, SRD_REC, SRD_HDR, SRD_G = [4 + 4 * i for i in range(11)]
SRD_DBG = SRD_E
KP = 48
sLJ = 3
sNR = 71
sWV, sBIN, sSL, sNODE0, sNN = 68, 69, 70, 72, 73
sSPIN = 95
sNL2E, sMAXF, sSELLO, sSELHI, sMAGIC, s127, sM1, sM2, sM3, sM4, sSTG, sKMAX = range(74, 86)
sHM = 86
sT0, sT1, sT2, sT3 = 88, 89, 90, 91
sRB, sC, sNT, sIT = 92, 93, 94, 95
sEX = 96
sNON, sNOH = 98, 99
sRET = 64
MASKS = [4 + 2 * i for i in range(8)]
SPIN_MAX = 40000

vLANE = 1
T1 = 16; ACC = 32; RING = 48; REC = 72
POP, AEX, SAG = 48, 56, 64
OFF = 16
RA, RBUF, Z = 72, 88, 104


class A:
    def __init__(self):
        self.l = []
    def __call__(self, s):
        for x in s.strip("\n").split("\n"):
            self.l.append("    " + x.strip())
    def lab(self, s):
        self.l.append(s + ":")
    def c(self, s):
        self.l.append("    ; " + s)
    def text(self):
        return "\n".join(self.l) + "\n"


def vr(a, n):
    return f"v[{a}:{a+n-1}]"
def sr(a, n):
    return f"s[{a}:{a+n-1}]"


STAMPS = False
PRIO = True
PS1, PS2 = 8, 8
XEARLY = 4
XP = [0, 0, 0, 0, 2, 1]
PUBW = 8
NS_SL = 3
PREW = 0
TFW = 14
DIAG = set()
STAMP_OFF = 0x2000000
def sreg(i):
    return KP + i if i < 8 else KP + 4 + i
def stamp(a, i):
    if not STAMPS: return
    a(f"s_memrealtime s[100:101]")
    a(f"s_waitcnt lgkmcnt(0)")
    a(f"s_mov_b32 s{sreg(i)}, s100")

def stamp_out(a, kidx, n):
    if not STAMPS: return
    a(f"s_mov_b64 exec, -1")
    if "dbgmax" in DIAG:
        a(f"s_load_dwordx2 {sr(sT2,2)}, s[0:1], 64")
        a(f"s_waitcnt lgkmcnt(0)")
        srd(a, SRD_W, sT2, sT3, 256)
        a(f"v_mov_b32 v6, 0")
        a(f"ds_read_b32 v8, v6 offset:{NON2}")
        a(f"s_waitcnt lgkmcnt(0)")
        a(f"s_mov_b64 exec, 1")
        for i in (0, 2, 3, 4, 11, 5, 6, 7, 8):
            a(f"v_sub_u32 v7, s{sreg(i)}, v8")
            a(f"v_max_i32 v7, 0, v7")
            a(f"buffer_atomic_umax v7, v6, {sr(SRD_W,4)}, 0 offen offset:{4*(i+1)}")
        return
    a(f"s_add_u32 s{sT2}, s{KP+18}, 0x{STAMP_OFF + kidx * 0x100000:x}")
    a(f"s_addc_u32 s{sT3}, s{KP+19}, 0")
    srd(a, SRD_W, sT2, sT3, 0x100000)
    a(f"s_lshl_b32 s{sT0}, s2, 4")
    a(f"s_add_u32 s{sT0}, s{sT0}, s{sWV}")
    a(f"s_lshl_b32 s{sT0}, s{sT0}, 6")
    a(f"v_mov_b32 v6, s{sT0}")
    for i in range(n):
        a(f"v_mov_b32 v7, s{sreg(i)}")
        a(f"buffer_store_dword v7, v6, {sr(SRD_W,4)}, 0 offen offset:{4*i}")


def srd(a, d, lo, hi, nbytes):
    a(f"s_mov_b32 s{d}, s{lo}")
    a(f"s_mov_b32 s{d+1}, s{hi}")
    a(f"s_mov_b32 s{d+2}, {nbytes}")
    a(f"s_mov_b32 s{d+3}, 0x00020000")


def setup(a, p):
    a.c("---------------- setup")
    a(f"s_cmp_ge_u32 s2, 256")
    a(f"s_cbranch_scc1 {p}_end")
    a(f"s_load_dwordx16 {sr(KP,16)}, s[0:1], 0")
    a(f"s_load_dwordx4 {sr(KP+16,4)}, s[0:1], 64")
    a(f"s_memrealtime s[100:101]")
    a(f"v_lshrrev_b32 v2, 6, v0")
    a(f"v_and_b32 v{vLANE}, 63, v0")
    a(f"v_readfirstlane_b32 s{sWV}, v2")
    a(f"s_lshr_b32 s{sBIN}, s2, 3")
    a(f"s_and_b32 s{sT0}, s2, 3")
    a(f"s_lshl_b32 s{sT0}, s{sT0}, 5")
    a(f"s_or_b32 s{sBIN}, s{sBIN}, s{sT0}")
    a(f"s_lshr_b32 s{sSL}, s2, 1")
    a(f"s_and_b32 s{sSL}, s{sSL}, 2")
    a(f"s_and_b32 s{sT0}, s{sWV}, 1")
    a(f"s_or_b32 s{sSL}, s{sSL}, s{sT0}")
    a(f"s_lshr_b32 s{sLJ}, s{sWV}, 1")
    a(f"s_mul_i32 s{sT0}, s2, 6400")
    a(f"v_lshl_add_u32 v3, v0, 4, s{sT0}")
    a(f"v_lshlrev_b32 v4, 1, v3")
    a(f"s_mul_i32 s{sT1}, s{sSL}, {TS}")
    a(f"s_waitcnt lgkmcnt(0)")
    x, e, src, dst, u, v, g, out, dbg, ws = [KP + 2 * i for i in range(10)]
    a(f"s_or_b32 s{sT0}, s2, s{sWV}")
    a(f"s_cbranch_scc1 {p}_notag")
    a.c("launch tag: the first wave of workgroup 0 publishes a clock value in d_debug, everyone picks it up")
    srd(a, SRD_DBG, dbg, dbg + 1, 256)
    a(f"s_or_b32 s{sT0}, s100, 1")
    a(f"v_mov_b32 v13, s{sT0}")
    a(f"v_mov_b32 v10, 0")
    a(f"s_mov_b64 exec, 1")
    a(f"buffer_store_dword v13, v10, {sr(SRD_DBG,4)}, 0 offen sc1")
    if "xcc" in DIAG:
        a(f"s_getreg_b32 s{sT0}, hwreg(HW_REG_XCC_ID)")
        a(f"v_mov_b32 v12, s{sT0}")
        a(f"buffer_store_dword v12, v10, {sr(SRD_DBG,4)}, 0 offen offset:128")
    a(f"s_mov_b64 exec, -1")
    a.lab(f"{p}_notag")
    srd(a, SRD_DST, dst, dst + 1, E * 4)
    srd(a, SRD_SRC, src, src + 1, E * 4)
    srd(a, SRD_E, e, e + 1, E * 8)
    a(f"s_cmp_ge_u32 s{sWV}, 7")
    a(f"s_cbranch_scc1 {p}_noedge")
    a(f"buffer_load_dwordx4 {vr(vD,4)}, v3, {sr(SRD_DST,4)}, 0 offen")
    a(f"buffer_load_dwordx4 {vr(vS,4)}, v3, {sr(SRD_SRC,4)}, 0 offen")
    a(f"buffer_load_dwordx4 {vr(vE,4)}, v4, {sr(SRD_E,4)}, 0 offen")
    a(f"buffer_load_dwordx4 {vr(vE+4,4)}, v4, {sr(SRD_E,4)}, 0 offen offset:16")
    a.lab(f"{p}_noedge")
    a(f"s_lshl_b32 s{sT0}, s{sBIN}, 3")
    a(f"s_add_u32 s{sT0}, s{sT0}, s{sLJ}")
    a(f"s_mul_i32 s{sT0}, s{sT0}, 3125")
    a(f"s_lshr_b32 s{sNODE0}, s{sT0}, 7")
    a(f"s_add_u32 s{sT0}, s{sT0}, 3125")
    a(f"s_lshr_b32 s{sNN}, s{sT0}, 7")
    a(f"s_cmp_eq_u32 s{sNN}, {N}")
    a(f"s_cselect_b32 s{sNR}, 1, 0")
    a(f"s_sub_u32 s{sNN}, s{sNN}, s{sNODE0}")
    a(f"s_add_u32 s{sNR}, s{sNR}, s{sNN}")
    a(f"s_mov_b32 s{sHM}, 0")
    a(f"s_mov_b32 s{sHM+1}, -1")
    srd(a, SRD_X, x, x + 1, N * 256)
    srd(a, SRD_OUT, out, out + 1, N * 256)
    srd(a, SRD_G, g, g + 1, 260 * 256)
    a(f"s_add_u32 s{sT2}, s{ws}, s{sT1}")
    a(f"s_addc_u32 s{sT3}, s{ws+1}, 0")
    srd(a, SRD_TS, sT2, sT3, (N + 1) * 128)
    a(f"s_sub_u32 s{sT2}, s{sT2}, 0x{MAGIC_OFF:x}")
    a(f"s_subb_u32 s{sT3}, s{sT3}, 0")
    srd(a, SRD_TG, sT2, sT3, MAGIC_OFF + (N + 1) * 128)
    a(f"s_add_u32 s{sT2}, s{ws}, 0x{REC_OFF:x}")
    a(f"s_addc_u32 s{sT3}, s{ws+1}, 0")
    srd(a, SRD_REC, sT2, sT3, REC_BYTES)
    a(f"s_add_u32 s{sT2}, s{ws}, 0x{HDR_OFF:x}")
    a(f"s_addc_u32 s{sT3}, s{ws+1}, 0")
    srd(a, SRD_HDR, sT2, sT3, HDR_SRD_BYTES)
    a(f"s_mov_b32 s{sNL2E}, 0xbfb8aa3b")
    a(f"s_mov_b32 s{sMAXF}, 0x7f7f0000")
    a(f"s_mov_b32 s{sSELLO}, 0x07060100")
    a(f"s_mov_b32 s{sSELHI}, 0x07060302")
    a(f"s_mov_b32 s{sMAGIC}, 10995117")
    a(f"s_mov_b32 s{s127}, 127")
    a(f"s_mov_b32 s{sM1}, 0x260000")
    a(f"s_mov_b32 s{sM2}, 0x100000")
    a(f"s_mov_b32 s{sM3}, 0x080000")
    a(f"s_mov_b32 s{sM4}, 0x1c000000")
    a(f"s_mov_b32 s{sSTG}, {STG}")
    a(f"s_mov_b32 s{sKMAX}, {EB - 4}")
    a(f"v_mov_b32 v{vONE}, 1")
    a(f"v_mov_b32 v10, 0")


def spin(a, lab, off, val):
    a.lab(lab)
    a(f"ds_read_b32 v11, v10 offset:{off}")
    a(f"s_waitcnt lgkmcnt(0)")
    a(f"v_readfirstlane_b32 s{sT0}, v11")
    a(f"s_cmp_lt_u32 s{sT0}, {val}")
    a(f"s_cbranch_scc1 {lab}")


def signal(a, off):
    a(f"s_mov_b64 exec, 1")
    a(f"ds_add_u32 v10, v{vONE} offset:{off}")
    a(f"s_mov_b64 exec, -1")


def init_counters(a, p, tag):
    a.c("wave 0: list cursors = list starts")
    a(f"s_cmp_lg_u32 s{sWV}, 0")
    a(f"s_cbranch_scc1 {p}_ic{tag}")
    a(f"v_lshlrev_b32 v7, 2, v{vLANE}")
    a(f"v_mul_u32_u24 v8, {LS}, v7")
    a(f"v_add_u32 v8, {KEYB}, v8")
    a(f"v_cmp_gt_u32 vcc, 8, v{vLANE}")
    a(f"s_nop 1")
    a(f"v_cndmask_b32 v8, 0, v8, vcc")
    a(f"s_not_b64 exec, {sr(sHM,2)}")
    a(f"ds_write_b32 v7, v8 offset:{LCNT}")
    a(f"s_mov_b64 exec, -1")
    a.lab(f"{p}_ic{tag}")


def scan64(a, v):
    for sh in (1, 2, 4, 8):
        a(f"s_nop 1")
        a(f"v_add_u32_dpp v{v}, v{v}, v{v} row_shr:{sh} row_mask:0xf bank_mask:0xf bound_ctrl:0")
    a(f"s_nop 1")
    a(f"v_add_u32_dpp v{v}, v{v}, v{v} row_bcast:15 row_mask:0xa bank_mask:0xf")
    a(f"s_nop 1")
    a(f"v_add_u32_dpp v{v}, v{v}, v{v} row_bcast:31 row_mask:0xc bank_mask:0xf")


vD, vS, vE, vK, vB, vR = 72, 76, 80, 88, 92, 96
vTa, vTb, vTc = 100, 101, 102
vONE = 2


vC2, vO2 = 104, 106
def offsets_scan(a):
    a(f"v_lshlrev_b32 v{vTa}, 3, v{vLANE}")
    a(f"ds_read_b64 {vr(vC2,2)}, v{vTa} offset:{CNT}")
    a(f"s_waitcnt lgkmcnt(0)")
    a(f"v_add_u32 v{vTb}, v{vC2}, v{vC2+1}")
    a(f"v_mov_b32 v{vTc}, v{vTb}")
    scan64(a, vTc)
    a(f"v_sub_u32 v{vO2}, v{vTc}, v{vTb}")
    a(f"v_add_u32 v{vO2+1}, v{vO2}, v{vC2}")


def noh_from_non(a):
    a(f"s_mul_i32 s{sNOH}, s{sNON}, 0x9e3779b1")
    a(f"s_and_b32 s{sNOH}, s{sNOH}, 0xf800f800")


def w_dma(a):
    u, v, g = KP + 8, KP + 10, KP + 12
    a(f"s_sub_u32 s{sT2}, s{sWV}, 7")
    a(f"s_and_b32 s{sT3}, s{sT2}, 6")
    a(f"s_lshr_b32 s{sT3}, 0xc9, s{sT3}")
    a(f"s_and_b32 s{sT3}, s{sT3}, 3")
    a(f"s_cmp_eq_u32 s{sT3}, 2")
    a(f"s_cselect_b64 {sr(SRD_W,2)}, {sr(v,2)}, {sr(u,2)}")
    a(f"s_mov_b32 s{SRD_W+2}, 32768")
    a(f"s_cmp_lt_u32 s{sT3}, 2")
    a(f"s_cselect_b64 {sr(SRD_W,2)}, {sr(g,2)}, {sr(SRD_W,2)}")
    a(f"s_cselect_b32 s{SRD_W+2}, 65536, s{SRD_W+2}")
    a(f"s_mov_b32 s{SRD_W+3}, 0x00020000")
    a(f"s_cmp_eq_u32 s{sT3}, 1")
    a(f"s_cselect_b32 s{sT0}, 32768, 0")
    a(f"s_and_b32 s{sT2}, s{sT2}, 1")
    a(f"s_lshl_b32 s{sT1}, s{sT2}, 14")
    a(f"s_add_u32 s{sT0}, s{sT0}, s{sT1}")
    a(f"s_lshr_b32 s{sT1}, s{sSL}, 1")
    a(f"s_lshl_b32 s{sT1}, s{sT1}, 7")
    a(f"s_add_u32 s{sT0}, s{sT0}, s{sT1}")
    a.c("row lane>>3, 16-byte piece lane&7; the 64-byte halves of rows 2,3 (mod 4) are swapped")
    a(f"v_lshrrev_b32 v4, 3, v{vLANE}")
    a(f"v_lshl_add_u32 v4, v4, 8, s{sT0}")
    a(f"v_bfe_u32 v6, v{vLANE}, 4, 1")
    a(f"v_lshlrev_b32 v6, 2, v6")
    a(f"v_xor_b32 v6, v6, v{vLANE}")
    a(f"v_and_b32 v6, 7, v6")
    a(f"v_lshl_add_u32 v4, v6, 4, v4")
    a(f"s_lshl_b32 s{sT0}, s{sT3}, 14")
    a(f"s_lshl_b32 s{sT2}, s{sT2}, 13")
    a(f"s_add_u32 s{sT0}, s{sT0}, s{sT2}")
    for d in range(8):
        a(f"s_add_u32 m0, s{sT0}, {WB + 1024 * d}")
        a(f"s_mov_b32 s{sT1}, {2048 * d}")
        a(f"buffer_load_dwordx4 v4, {sr(SRD_W,4)}, s{sT1} offen lds")


def front(a, p):
    a(f"s_sub_u32 s{sT0}, s{sWV}, 7")
    a(f"s_cmp_ge_u32 s{sT0}, {PREW}")
    a(f"s_cbranch_scc1 {p}_f_nobv")
    w_dma(a)
    a.lab(f"{p}_f_nobv")
    a(f"s_cmp_lg_u32 s{sWV}, 7")
    a(f"s_cbranch_scc1 {p}_f_noinit")
    a.c("wave 7: bin counters, checksums, flags = 0, list cursors = list starts")
    a(f"v_lshlrev_b32 v7, 2, v{vLANE}")
    a(f"v_mul_u32_u24 v8, {LS}, v7")
    a(f"v_add_u32 v8, {KEYB}, v8")
    a(f"v_cmp_gt_u32 vcc, 8, v{vLANE}")
    for k in range(4):
        a(f"ds_write_b32 v7, v10 offset:{CNT + 256 * k}")
    a(f"v_cndmask_b32 v8, 0, v8, vcc")
    a(f"ds_write_b32 v7, v8 offset:{LCNT}")
    a(f"v_and_b32 v6, 7, v{vLANE}")
    a(f"v_lshrrev_b32 v4, 3, v{vLANE}")
    a(f"v_lshlrev_b32 v4, 8, v4")
    a(f"v_lshl_add_u32 v4, v6, 4, v4")
    a(f"s_lshr_b32 s{sT1}, s{sSL}, 1")
    a(f"s_lshl_b32 s{sT1}, s{sT1}, 7")
    a(f"s_add_u32 s{sT1}, s{sT1}, 65536")
    a(f"s_mov_b32 m0, {CB}")
    a(f"s_not_b64 exec, {sr(sHM,2)}")
    a(f"buffer_load_dwordx4 v4, {sr(SRD_G,4)}, s{sT1} offen lds")
    a(f"s_mov_b64 exec, -1")
    if "noicpf" not in DIAG:
        a.c("read the kernel's own code once so that later instruction fetches find it in the L2")
        a(f"s_getpc_b64 {sr(sT2,2)}")
        a.lab(f"{p}_pc")
        a(f"v_lshlrev_b32 v9, 7, v{vLANE}")
        a(f"global_load_dword v104, v9, {sr(sT2,2)}")
        a(f"v_add_u32 v9, 8192, v9")
        a(f"v_cmp_gt_u32 vcc, {p}_code_end - {p}_pc - 4, v9")
        a(f"s_mov_b64 exec, vcc")
        a(f"global_load_dword v105, v9, {sr(sT2,2)}")
        a(f"s_mov_b64 exec, -1")
    a(f"s_waitcnt lgkmcnt(0)")
    a.lab(f"{p}_f_noinit")
    a(f"s_cmp_lg_u32 s{sWV}, 15")
    a(f"s_cbranch_scc1 {p}_tag_done")
    srd(a, SRD_DBG, KP + 16, KP + 17, 256)
    a(f"buffer_load_dword v72, v10, {sr(SRD_DBG,4)}, 0 offen sc1")
    a.lab(f"{p}_tag_done")
    a(f"s_barrier")
    a(f"s_cmp_eq_u32 s{sWV}, 15")
    a(f"s_cbranch_scc1 {p}_f_w15")
    a(f"s_cmp_ge_u32 s{sWV}, 7")
    a(f"s_cbranch_scc1 {p}_f_loader")

    a.c("---------------- waves 0-6: sort this workgroup's 1600 edges by destination bin")
    a(f"s_setprio {XP[3]}")
    a(f"s_cmp_lt_u32 s2, 250")
    a(f"s_cselect_b32 s{sT0}, 400, 0")
    a(f"v_cmp_gt_u32 vcc, s{sT0}, v0")
    a(f"s_mov_b64 {sr(sEX,2)}, vcc")
    a(f"s_waitcnt vmcnt(3)")
    stamp(a, 1)
    for e in range(4):
        a(f"v_lshl_or_b32 v{vK+e}, v{vD+e}, 7, s{s127}")
        a(f"v_mul_hi_u32 v{vK+e}, v{vK+e}, s{sMAGIC}")
        a(f"v_lshrrev_b32 v{vB+e}, 4, v{vK+e}")
        a(f"v_and_b32 v{vB+e}, 0x1fc, v{vB+e}")
    a(f"s_mov_b64 exec, {sr(sEX,2)}")
    for e in range(4):
        a(f"ds_add_rtn_u32 v{vR+e}, v{vB+e}, v{vONE} offset:{CNT}")
    signal(a, S2)
    for e in range(4):
        d, k = vD + e, vK + e
        a(f"v_lshrrev_b32 v{vTa}, 3, v{k}")
        a(f"v_mul_u32_u24 v{vTb}, 3125, v{vTa}")
        a(f"v_lshrrev_b32 v{vTb}, 7, v{vTb}")
        a(f"v_sub_u32 v{vTb}, v{d}, v{vTb}")
        a(f"v_lshlrev_b32 v{k}, 26, v{vTa}")
        a(f"v_and_b32 v{k}, s{sM4}, v{k}")
        a(f"v_lshlrev_b32 v{vTc}, 17, v{vTb}")
        a(f"v_and_or_b32 v{k}, v{vTc}, s{sM1}, v{k}")
        a(f"v_lshlrev_b32 v{vTc}, 18, v{vTb}")
        a(f"v_and_or_b32 v{k}, v{vTc}, s{sM2}, v{k}")
        a(f"v_lshlrev_b32 v{vTc}, 16, v{vTb}")
        a(f"v_and_or_b32 v{k}, v{vTc}, s{sM3}, v{k}")
    a(f"s_lshl_b32 s{sT1}, s{sWV}, 10")
    a(f"v_lshl_add_u32 v3, v{vLANE}, 4, s{sT1}")
    a(f"v_add_u32 v7, {STG}, v3")
    a(f"s_mul_i32 s{sT1}, s2, 19200")
    a(f"v_add_u32 v3, s{sT1}, v3")
    spin(a, f"{p}_f_s2", S2, 7)
    stamp(a, 10)
    offsets_scan(a)
    a(f"ds_write_b64 v{vTa}, {vr(vO2,2)} offset:{OFFS}")
    for e in range(4):
        a(f"ds_read_b32 v{vD+e}, v{vB+e} offset:{OFFS}")
    a(f"s_waitcnt vmcnt(0)")
    for e in range(4):
        a(f"v_or_b32 v{vK+e}, v{vK+e}, v{vS+e}")
        a(f"v_add3_u32 v{vS+e}, v{vE+2*e}, v{vE+2*e+1}, v{vK+e}")
    a(f"s_waitcnt lgkmcnt(0)")
    for e in range(4):
        a(f"v_add_u32 v{vR+e}, v{vR+e}, v{vD+e}")
        a(f"v_mad_u32_u24 v{vR+e}, v{vR+e}, 12, s{sSTG}")
    a(f"s_mov_b64 exec, {sr(sEX,2)}")
    for e in range(4):
        a(f"ds_write2_b32 v{vR+e}, v{vE+2*e}, v{vE+2*e+1} offset0:0 offset1:1")
        a(f"ds_write_b32 v{vR+e}, v{vK+e} offset:8")
        a(f"ds_add_u32 v{vB+e}, v{vS+e} offset:{CSUM}")
    signal(a, S3)
    spin(a, f"{p}_f_s3", S3, 7)
    a.c("copy the sorted records out: 1 KiB pieces wv, wv + 7, wv + 14")
    for k in range(3):
        a(f"ds_read_b128 {vr(104 + 4*k, 4)}, v7 offset:{7168*k}")
    signal(a, S3)
    a(f"v_add_u32 v4, 7168, v3")
    a(f"v_add_u32 v5, 14336, v3")
    a(f"s_waitcnt lgkmcnt(3)")
    a(f"buffer_store_dwordx4 {vr(104,4)}, v3, {sr(SRD_REC,4)}, 0 offen sc1")
    a(f"s_waitcnt lgkmcnt(2)")
    a(f"buffer_store_dwordx4 {vr(108,4)}, v4, {sr(SRD_REC,4)}, 0 offen sc1")
    a(f"s_cmp_gt_u32 s{sWV}, 4")
    a(f"s_cbranch_scc1 {p}_f_x0")
    a(f"s_cmp_eq_u32 s{sWV}, 4")
    a(f"s_cselect_b32 exec_hi, 0xffff, -1")
    a(f"s_waitcnt lgkmcnt(1)")
    a(f"buffer_store_dwordx4 {vr(112,4)}, v5, {sr(SRD_REC,4)}, 0 offen sc1")
    a(f"s_mov_b64 exec, -1")
    a.lab(f"{p}_f_x0")
    a(f"s_setprio 0")
    a(f"s_branch {p}_f_done")

    a.c("---------------- waves 7-14: one x tile each into LDS; waves 11-14 then half of A / U")
    a.lab(f"{p}_f_loader")
    a(f"s_setprio 3")
    a(f"s_sub_u32 s{sT3}, s{sWV}, 7")
    a(f"s_lshl_b32 s{sT0}, s{sT3}, 2")
    a(f"v_mov_b32 v12, s{sT0}")
    a.c("x tile: row (lane>>4) + 4i, slot lane&15 holds chunk slot ^ (row & 15)")
    a(f"v_lshrrev_b32 v6, 4, v{vLANE}")
    a(f"v_xor_b32 v7, v6, v{vLANE}")
    a(f"v_and_b32 v7, 15, v7")
    a(f"v_lshlrev_b32 v72, 8, v6")
    a(f"v_lshl_add_u32 v72, v7, 4, v72")
    for k in range(1, 4):
        a(f"v_xor_b32 v{72+k}, {64*k}, v72")
    a(f"s_mul_i32 s{sT2}, s{sT3}, {XT}")
    a(f"s_lshl_b32 s{sT1}, s{sBIN}, 3")
    a(f"s_add_u32 s{sT1}, s{sT1}, s{sT3}")
    a(f"s_mul_i32 s{sT1}, s{sT1}, 3125")
    a(f"s_lshr_b32 s{sT1}, s{sT1}, 7")
    a(f"s_lshl_b32 s{sT1}, s{sT1}, 8")
    for i in range(7):
        a(f"s_add_u32 m0, s{sT2}, {XB + 1024 * i}")
        a(f"v_add_u32 v6, s{sT1}, v{72 + (i & 3)}")
        if i < 6:
            a(f"s_add_u32 s{sT1}, s{sT1}, 1024")
        else:
            a(f"s_not_b64 exec, {sr(sHM,2)}")
        a(f"buffer_load_dwordx4 v6, {sr(SRD_X,4)}, 0 offen lds")
    a(f"s_mov_b64 exec, -1")
    a(f"s_cmp_lt_u32 s{sWV}, 11")
    a(f"s_cselect_b32 s{sT0}, 0, 4")
    a(f"v_mov_b32 v11, s{sT0}")
    a(f"s_cmp_lt_u32 s{sWV}, {7 + PREW}")
    a(f"s_cbranch_scc0 {p}_f_wlate")
    a(f"s_setprio 0")
    a(f"s_waitcnt vmcnt(7)")
    a(f"s_mov_b64 exec, 1")
    a(f"ds_add_u32 v11, v{vONE} offset:{WF}")
    a(f"s_mov_b64 exec, -1")
    stamp(a, 10)
    a(f"s_waitcnt vmcnt(0)")
    a(f"ds_write_b32 v12, v{vONE} offset:{XFL}")
    a(f"s_branch {p}_f_done")
    a.lab(f"{p}_f_wlate")
    a(f"s_setprio 2")
    a(f"s_cmp_lt_u32 s{sWV}, 11")
    a(f"s_cbranch_scc1 {p}_f_wnow")
    a(f"s_setprio 0")
    a(f"s_waitcnt vmcnt(0)")
    a(f"ds_write_b32 v12, v{vONE} offset:{XFL}")
    a.lab(f"{p}_f_wnow")
    w_dma(a)
    a(f"s_setprio 0")
    a(f"s_waitcnt vmcnt(8)")
    a(f"ds_write_b32 v12, v{vONE} offset:{XFL}")
    a(f"s_waitcnt vmcnt(0)")
    a(f"s_mov_b64 exec, 1")
    a(f"ds_add_u32 v11, v{vONE} offset:{WF}")
    a(f"s_mov_b64 exec, -1")
    stamp(a, 10)
    a(f"s_branch {p}_f_done")

    a.c("---------------- wave 15 publishes / collects the headers")
    a.lab(f"{p}_f_w15")
    a(f"s_setprio 3")
    a(f"s_lshl_b32 s{sT0}, s2, 11")
    a(f"v_lshl_add_u32 v4, v{vLANE}, 5, s{sT0}")
    a(f"s_mov_b32 s{sSPIN}, {SPIN_MAX}")
    for k in range(1, 4):
        a(f"s_sleep {NS_SL}")
        a(f"buffer_load_dword v{72+k}, v10, {sr(SRD_DBG,4)}, 0 offen sc1")
    for k in range(4):
        a(f"s_waitcnt vmcnt({3-k})")
        a(f"v_readfirstlane_b32 s{sNON}, v{72+k}")
        a(f"s_cmp_lg_u32 s{sNON}, 0")
        a(f"s_cbranch_scc1 {p}_tag_ok")
    a.lab(f"{p}_tag_loop")
    a(f"buffer_load_dword v13, v10, {sr(SRD_DBG,4)}, 0 offen sc1")
    a(f"s_waitcnt vmcnt(0)")
    a(f"v_readfirstlane_b32 s{sNON}, v13")
    a(f"s_cmp_lg_u32 s{sNON}, 0")
    a(f"s_cbranch_scc1 {p}_tag_ok")
    a(f"s_sub_u32 s{sSPIN}, s{sSPIN}, 1")
    a(f"s_cbranch_scc0 {p}_tag_loop")
    a(f"s_mov_b32 s{sNON}, 1")
    a.lab(f"{p}_tag_ok")
    stamp(a, 11)
    a(f"v_mov_b32 v13, s{sNON}")
    a(f"ds_write_b32 v10, v13 offset:{NON2}")
    noh_from_non(a)
    spin(a, f"{p}_f_s2b", S2, 7)
    offsets_scan(a)
    for k in range(2):
        a(f"v_lshl_or_b32 v{108+4*k}, v{vC2+k}, 16, v{vO2+k}")
        a(f"v_or_b32 v{108+4*k}, s{sNOH}, v{108+4*k}")
        a(f"v_mov_b32 v{109+4*k}, v13")
    spin(a, f"{p}_f_s3b", S3, 7)
    a(f"ds_read_b32 v110, v{vTa} offset:{CSUM}")
    a(f"ds_read_b32 v114, v{vTa} offset:{CSUM+4}")
    a(f"s_waitcnt lgkmcnt(0)")
    a(f"buffer_store_dwordx4 v[108:111], v4, {sr(SRD_HDR,4)}, 0 offen sc1")
    a(f"buffer_store_dwordx4 v[112:115], v4, {sr(SRD_HDR,4)}, 0 offen offset:16 sc1")
    stamp(a, 1)
    a(f"s_setprio 0")
    a.lab(f"{p}_f_done")


HP = (48, 52, 120, 124)
sPM = 44
def poll(a, p, tag, first=False, last=False):
    if first:
        a(f"s_lshl_b32 s{sT0}, s{sBIN}, 4")
        a(f"v_lshl_add_u32 v8, v{vLANE}, 13, s{sT0}")
        a(f"v_add_u32 v9, 4096, v8")
    a(f"s_cmp_lg_u32 s{sWV}, 15")
    a(f"s_cbranch_scc1 {p}_po{tag}")
    if first:
        a(f"s_mov_b64 {sr(sPM,2)}, -1")
        a(f"s_mov_b32 s{sSPIN}, {SPIN_MAX}")
    else:
        a(f"s_cmp_eq_u64 {sr(sPM,2)}, 0")
        a(f"s_cbranch_scc1 {p}_po{tag}")
        a.lab(f"{p}_pl{tag}")
        a(f"s_waitcnt vmcnt(0)")
        for k, h in enumerate(HP):
            a(f"v_xor_b32 v{h+3}, s{sNOH}, v{h}")
            a(f"v_and_b32 v{h+3}, 0xf800f800, v{h+3}")
            a(f"v_xor_b32 v7, s{sNON}, v{h+1}")
            a(f"v_or3_b32 v6, v{h+3}, v7, {'0' if k == 0 else 'v6'}")
        a(f"v_cmp_ne_u32 {sr(sPM,2)}, 0, v6")
        a(f"s_sub_u32 s{sSPIN}, s{sSPIN}, 1")
        a(f"s_cselect_b64 {sr(sPM,2)}, 0, {sr(sPM,2)}")
        a(f"s_cmp_lg_u64 {sr(sPM,2)}, 0")
        a(f"s_cbranch_scc1 {p}_pa{tag}")
        a(f"v_lshlrev_b32 v7, 5, v{vLANE}")
        a(f"v_add_u32 v7, {STG}, v7")
        a(f"v_mov_b32 v6, s{sNON}")
        for k, h in enumerate(HP):
            a(f"ds_write2_b32 v7, v{h}, v{h+2} offset0:{2*k} offset1:{2*k+1}")
        a(f"ds_write_b32 v10, v6 offset:{NONCE}")
        stamp(a, 10)
        a(f"s_branch {p}_po{tag}")
        a.lab(f"{p}_pa{tag}")
        if last:
            a(f"s_sleep {PS2}")
    a(f"s_mov_b64 exec, {sr(sPM,2)}")
    for k, h in enumerate(HP):
        a(f"buffer_load_dwordx3 {vr(h,3)}, v{8 + (k>>1)}, {sr(SRD_HDR,4)}, 0 offen offset:{2048*(k&1)} sc1")
    a(f"s_mov_b64 exec, -1")
    if last:
        a(f"s_branch {p}_pl{tag}")
    a.lab(f"{p}_po{tag}")


vZ0 = 2
vXA, vWA, vTMP = 3, 4, 5
def w_addr(a):
    a(f"s_and_b32 s{sT1}, s{sWV}, 1")
    a(f"v_lshrrev_b32 v6, 5, v{vLANE}")
    a(f"v_lshlrev_b32 v{vWA}, 10, v6")
    a(f"v_bfe_u32 v6, v{vLANE}, 2, 2")
    a(f"v_lshl_add_u32 v{vWA}, v6, 7, v{vWA}")
    a(f"v_bfe_u32 v6, v{vLANE}, 3, 1")
    a(f"v_xor_b32 v6, s{sT1}, v6")
    a(f"v_lshl_add_u32 v{vWA}, v6, 6, v{vWA}")
    a(f"v_and_b32 v6, 1, v{vLANE}")
    a(f"v_lshl_add_u32 v{vWA}, v6, 5, v{vWA}")
    a(f"v_and_b32 v6, 16, v{vLANE}")
    a(f"v_add_u32 v{vWA}, v6, v{vWA}")
    a(f"v_and_b32 v6, 2, v{vLANE}")
    a(f"v_lshl_add_u32 v{vWA}, v6, 2, v{vWA}")
    a(f"v_add_u32 v{vWA}, {WB}, v{vWA}")


def xf(s):
    return 16 + 4 * s if s < 4 else 56 + 4 * (s - 4)

def x_reads(a):
    a.c("x fragments of this wave's sub-block")
    a(f"s_mul_i32 s{sT1}, s{sLJ}, {XT}")
    a(f"s_add_u32 s{sT1}, s{sT1}, {XB}")
    a(f"v_and_b32 v6, 31, v{vLANE}")
    a(f"v_lshrrev_b32 v7, 5, v{vLANE}")
    a(f"v_xor_b32 v7, v7, v6")
    a(f"v_and_b32 v7, 15, v7")
    a(f"v_lshl_add_u32 v6, v6, 8, s{sT1}")
    a(f"v_lshl_add_u32 v6, v7, 4, v6")
    for s in range(8):
        if s:
            a(f"v_xor_b32 v7, {32*s}, v6")
        a(f"ds_read_b128 {vr(xf(s),4)}, v{7 if s else 6}")
    signal(a, XR)


def w_reads(a, m1, m2, s):
    for k, m in enumerate((m1, m2)):
        for u in range(2):
            a(f"ds_read_b64_tr_b16 {vr(RA+8*(s%4)+4*k+2*u,2)}, v{vWA} offset:{m*16384 + s*2048 + u*512}")


def gemm_pass(a, m1, m2, swap2, first_issued=False, nxt=None):
    if not first_issued:
        for s in range(4):
            w_reads(a, m1, m2, s)
    for s in range(8):
        r = RA + 8 * (s % 4)
        a(f"s_waitcnt lgkmcnt({12 if s <= 4 else 4 * (7 - s)})")
        c1 = "0" if s == 0 else vr(Z, 16)
        c2 = "0" if s == 0 else vr(ACC, 16)
        a(f"v_mfma_f32_32x32x16_bf16 {vr(Z,16)}, {vr(xf(s),4)}, {vr(r,4)}, {c1}")
        if swap2:
            a(f"v_mfma_f32_32x32x16_bf16 {vr(ACC,16)}, {vr(r+4,4)}, {vr(xf(s),4)}, {c2}")
        else:
            a(f"v_mfma_f32_32x32x16_bf16 {vr(ACC,16)}, {vr(xf(s),4)}, {vr(r+4,4)}, {c2}")
        if s < 4:
            w_reads(a, m1, m2, s + 4)


def table_store(a, fused):
    a.c("table rows: hi16 = -log2e * (x B), lo16 = bf16(1 / (x V)); 8 rows at a time through LDS, whole lines out")
    a(f"s_lshl_b32 s{sT1}, s{sWV}, 10")
    a(f"s_add_u32 s{sT1}, s{sT1}, {STG + 2048}")
    a(f"v_lshrrev_b32 v6, 5, v{vLANE}")
    a(f"v_lshl_add_u32 v6, v6, 9, s{sT1}")
    a(f"v_and_b32 v7, 31, v{vLANE}")
    a(f"v_lshl_add_u32 v6, v7, 2, v6")
    a(f"v_lshl_add_u32 v7, v{vLANE}, 4, s{sT1}")
    a(f"s_lshl_b32 s{sT0}, s{sNODE0}, 7")
    a(f"v_lshl_add_u32 v{vTMP}, v{vLANE}, 4, s{sT0}")
    a(f"s_nop 5")
    for j in range(0, 14, 2):
        for k in (j, j + 1):
            a(f"v_rcp_f32 v{ACC+k}, v{ACC+k}")
            a(f"v_mul_f32 v{Z+k}, s{sNL2E}, v{Z+k}")
        for k in (j, j + 1):
            a(f"v_med3_f32 v{ACC+k}, v{ACC+k}, s{sMAXF}, -s{sMAXF}")
        a(f"v_cvt_pk_bf16_f32 v{ACC+j}, v{ACC+j}, v{ACC+j+1}")
        a(f"v_perm_b32 v{Z+j}, v{Z+j}, v{ACC+j}, s{sSELLO}")
        a(f"v_perm_b32 v{Z+j+1}, v{Z+j+1}, v{ACC+j}, s{sSELHI}")
        for k in (j, j + 1):
            a(f"ds_write_b32 v6, v{Z+k} offset:{(k&3)*128}")
        if j % 4 == 2 or j == 12:
            g = j // 4
            a(f"ds_read_b128 {vr(RA+4*g,4)}, v7")
    for g in range(4):
        a(f"s_waitcnt lgkmcnt({(10, 5, 3, 0)[g] if False else 0})") if g == 0 else None
        if g == 3:
            a(f"s_sub_u32 s{sT0}, s{sNR}, 24")
            a(f"s_lshl_b32 s{sT0}, s{sT0}, 3")
            a(f"s_bfm_b64 exec, s{sT0}, 0")
        a(f"buffer_store_dwordx4 {vr(RA+4*g,4)}, v{vTMP}, {sr(SRD_TS,4)}, 0 offen offset:{1024*g} sc1")
    a(f"s_mov_b64 exec, -1")
    a(f"s_nop 0")


vC0 = 48
def load_C(a):
    a.c("edge-feature weights g_w[256+k][32*slice + pi(n)]")
    a(f"v_bfe_u32 v6, v{vLANE}, 2, 1")
    a(f"v_lshlrev_b32 v6, 5, v6")
    a(f"v_bfe_u32 v7, v{vLANE}, 3, 2")
    a(f"v_lshl_add_u32 v6, v7, 3, v6")
    a(f"v_and_b32 v7, 3, v{vLANE}")
    a(f"v_lshl_add_u32 v6, v7, 1, v6")
    a(f"s_and_b32 s{sT0}, s{sWV}, 1")
    a(f"s_lshl_b32 s{sT0}, s{sT0}, 6")
    a(f"s_add_u32 s{sT0}, s{sT0}, {CB}")
    a(f"v_add_u32 v6, s{sT0}, v6")
    for k in range(4):
        a(f"ds_read_u16 v{vC0+k}, v6 offset:{128*k}")


def pop_pack(a):
    a.c("P' operand (rows 26.. replaced by the edge-feature weights / zero)")
    for k in range(4):
        a(f"v_lshlrev_b32 v{vC0+k}, 16, v{vC0+k}")
    for k in range(4):
        a(f"v_mul_f32 v{vC0+k}, s{sNL2E}, v{vC0+k}")
    a(f"v_cvt_pk_bf16_f32 v6, v{vC0}, v{vC0+1}")
    a(f"v_cvt_pk_bf16_f32 v7, v{vC0+2}, v{vC0+3}")
    a(f"s_nop 3")
    for k in range(14):
        a(f"v_mul_f32 v{Z+k}, s{sNL2E}, v{Z+k}")
    for k in range(7):
        a(f"v_cvt_pk_bf16_f32 v{POP+k}, v{Z+2*k}, v{Z+2*k+1}")
    a(f"s_cmp_eq_u32 s{sNN}, 25")
    a(f"s_cselect_b32 s{sT0}, 0xffff, 0")
    a(f"v_and_b32 v{POP+6}, s{sT0}, v{POP+6}")
    a(f"v_cndmask_b32 v{POP+6}, v{POP+6}, v6, {sr(sHM,2)}")
    a(f"v_cndmask_b32 v{POP+7}, 0, v7, {sr(sHM,2)}")


vHS, vHL = 12, 13
def hdr_load(a, fused, addr=7):
    a(f"buffer_load_dwordx2 v[14:15], v{addr}, {sr(SRD_HDR,4)}, 0 offen{' sc1' if fused else ''}")

def hdr_addr(a, addr=7):
    a(f"v_lshrrev_b32 v{addr}, 2, v0")
    a(f"s_lshl_b32 s{sT0}, s{sBIN}, 4")
    a(f"v_lshl_add_u32 v{addr}, v{addr}, 10, s{sT0}")


def hdr_decode(a):
    a(f"v_and_b32 v6, 3, v0")
    a(f"v_and_b32 v7, 0x7ff, v14")
    a(f"v_add_u32 v7, v7, v6")
    a(f"v_mul_u32_u24 v7, 12, v7")
    a(f"v_lshrrev_b32 v{vHS}, 2, v0")
    a(f"v_mul_u32_u24 v{vHS}, 19200, v{vHS}")
    a(f"v_add_u32 v{vHS}, v{vHS}, v7")
    a(f"v_bfe_u32 v{vHL}, v14, 16, 11")
    a(f"v_sub_u32 v{vHL}, v{vHL}, v6")
    a(f"s_mov_b32 s{sRB}, 0")
    a(f"s_mov_b32 s{sC}, {CFAST}")


def rec_loads(a, p, tag, fused, fixed=False):
    sc = " sc1" if fused else ""
    a(f"v_subrev_u32 v7, s{sRB}, v{vHL}")
    a(f"v_and_b32 v6, 3, v0")
    a(f"v_sub_u32 v6, s{sC}, v6")
    a(f"v_min_i32 v7, v7, v6")
    a(f"s_mul_i32 s{sT0}, s{sRB}, 12")
    a(f"v_add_u32 v6, s{sT0}, v{vHS}")
    for i in range(NI):
        a(f"v_cmp_lt_i32 {sr(MASKS[i],2)}, {4*i}, v7")
    for i in range(NI):
        a(f"s_mov_b64 exec, {sr(MASKS[i],2)}")
        if not fixed: a(f"s_cbranch_execz {p}_rl_done{tag}")
        a(f"buffer_load_dwordx3 {vr(REC+4*i,3)}, v6, {sr(SRD_REC,4)}, 0 offen offset:{48*i}{sc}")
    a.lab(f"{p}_rl_done{tag}")
    a(f"s_mov_b64 exec, -1")


def append1(a, p, tag):
    a.c("---------------- list slots for the records (16 sub-block lists)")
    a(f"s_add_u32 s{sT0}, s{sRB}, s{sC}")
    a(f"v_and_b32 v6, 3, v0")
    a(f"v_add_u32 v6, v6, v{vHL}")
    a(f"v_cmp_lt_i32 vcc, s{sT0}, v6")
    a(f"v_mov_b32 v6, 4")
    a(f"v_mov_b32 v7, 64")
    a(f"s_mov_b64 exec, vcc")
    a(f"ds_add_u32 v7, v6 offset:{LCNT}")
    a(f"s_mov_b64 exec, -1")
    a(f"v_mov_b32 v7, 0x1c")
    for i in range(NI):
        q = REC + 4 * i
        a(f"s_mov_b64 exec, {sr(MASKS[i],2)}")
        a(f"s_cbranch_execz {p}_ap1{tag}")
        a(f"v_and_b32_sdwa v{q+3}, v{q+2}, v7 dst_sel:DWORD dst_unused:UNUSED_PAD src0_sel:BYTE_3 src1_sel:DWORD")
        a(f"ds_add_rtn_u32 v{q+3}, v{q+3}, v6 offset:{LCNT}")
    a.lab(f"{p}_ap1{tag}")
    a(f"s_mov_b64 exec, -1")


def append2(a, p):
    for i in range(NI):
        q = REC + 4 * i
        a(f"s_mov_b64 exec, {sr(MASKS[i],2)}")
        a(f"s_cbranch_execz {p}_ap2")
        a(f"v_min_u32 v{q+3}, s{sKMAX}, v{q+3}")
        a(f"v_lshlrev_b32 v6, 1, v{q+3}")
        a(f"ds_write_b32 v{q+3}, v{q+2}")
        a(f"ds_write_b64 v6, {vr(q,2)} offset:{EOFF}")
    a.lab(f"{p}_ap2")
    a(f"s_mov_b64 exec, -1")


vKR, vER, vIW, vIE, vIA0, vIA1, vIT0, vIT1, vOLD, vKEY = 4, 5, 120, 121, 122, 123, 124, 125, 126, 127
vEE, vB16, vZERO = 8, 10, 11
AD, BD = 2, 14


def image_setup(a):
    a.c("---------------- selection image addresses; zero the image")
    a(f"s_lshl_b32 s{sT0}, s{sWV}, 11")
    a(f"s_add_u32 s{sT0}, s{sT0}, {IMG}")
    a(f"v_lshl_add_u32 v{vER}, v{vLANE}, 4, s{sT0}")
    for k in range(4):
        a(f"v_mov_b32 v{Z+k}, 0")
    a(f"v_mov_b32 v{vB16}, 0x3f80")
    a(f"v_mov_b32 v{vZERO}, 0")
    a(f"v_and_b32 v6, 31, v{vLANE}")
    a(f"v_mov_b32 v{AD+1}, 0x3f803f80")
    a(f"v_lshlrev_b32 v7, 2, v6")
    a(f"v_cvt_f32_u32 v7, v7")
    a(f"v_lshrrev_b32 v7, 16, v7")
    a(f"v_or_b32 v7, 0x4b000000, v7")
    a(f"v_mov_b32 v{BD}, 0x47004300")
    a(f"v_cndmask_b32 v{BD}, v{BD}, v{vZERO}, {sr(sHM,2)}")
    a(f"v_cndmask_b32 v{BD+1}, v7, v{vZERO}, {sr(sHM,2)}")
    a(f"v_lshl_add_u32 v6, v6, 6, s{sT0}")
    a(f"v_bfe_u32 v7, v{vLANE}, 2, 2")
    a(f"v_lshl_add_u32 v{vIW}, v7, 4, v6")
    a(f"v_xor_b32 v{vIE}, 56, v{vIW}")
    a(f"v_lshrrev_b32 v6, 5, v{vLANE}")
    a(f"v_lshlrev_b32 v{vIA0}, 4, v6")
    a(f"v_xor_b32 v{vIA0}, v{vIA0}, v{vIW}")
    a(f"v_xor_b32 v{vIA1}, 32, v{vIA0}")
    a(f"v_mov_b32 v{vOLD}, v{vIW}")
    a(f"v_lshl_add_u32 v7, v6, 2, v7")
    a(f"v_lshl_add_u32 v{vIT0}, v7, 6, s{sT0}")
    a(f"v_bfe_u32 v7, v{vLANE}, 4, 1")
    a(f"v_lshlrev_b32 v7, 1, v7")
    a(f"v_and_b32 v{vIT1}, 1, v{vLANE}")
    a(f"v_or_b32 v7, v7, v{vIT1}")
    a(f"v_xor_b32 v7, v7, v6")
    a(f"v_lshl_add_u32 v{vIT0}, v7, 4, v{vIT0}")
    a(f"v_and_b32 v7, 2, v{vLANE}")
    a(f"v_lshl_add_u32 v{vIT0}, v7, 2, v{vIT0}")
    a(f"v_xor_b32 v{vIT1}, 32, v{vIT0}")
    a(f"v_add_u32 v{vIT1}, 512, v{vIT1}")


def gathers(a, R, fused):
    sc = " sc1" if fused and "sc1g" in DIAG else ""
    if "nogather" in DIAG: return
    for k in range(16):
        a(f"buffer_load_dword v{R+k}, v{OFF+k}, {sr(SRD_TG,4)}, 0 offen{sc}")

def rec_reads(a, toff):
    a(f"ds_read_b32 v{vKEY}, v{vKR} offset:{toff*128}")
    a(f"ds_read_b64 {vr(vEE,2)}, v{vER} offset:{EOFF + toff*256}")

def image_build(a):
    a(f"ds_write_b16 v{vOLD}, v{vZERO}")
    a(f"v_xor_b32_sdwa v{vOLD}, v{vKEY}, v{vIW} dst_sel:DWORD dst_unused:UNUSED_PAD src0_sel:BYTE_2 src1_sel:DWORD")
    a(f"ds_write_b64 v{vIE}, {vr(vEE,2)}")
    a(f"ds_write_b16 v{vOLD}, v{vB16}")

def aex_reads(a):
    a(f"ds_read_b128 {vr(AEX,4)}, v{vIA0}")
    a(f"ds_read_b128 {vr(AEX+4,4)}, v{vIA1}")

def sag_reads(a):
    for s in range(2):
        a(f"ds_read_b64_tr_b16 {vr(SAG+4*s,2)}, v{vIT0} offset:{1024*s}")
        a(f"ds_read_b64_tr_b16 {vr(SAG+4*s+2,2)}, v{vIT1} offset:{1024*s}")

def addr_cvt(a):
    a(f"v_cvt_f32_ubyte0 v6, v{vKEY}")
    a(f"v_cvt_f32_ubyte1 v7, v{vKEY}")
def addr_pack(a):
    a(f"v_perm_b32 v{AD}, v7, v6, s{sSELHI}")
def addr_mfma(a):
    a(f"v_mfma_f32_32x32x8_bf16 {vr(OFF,16)}, {vr(AD,2)}, {vr(BD,2)}, 0")


def tile_body(a, R, Rn, fused, lb):
    gathers(a, Rn, fused)
    if PRIO:
        a(f"s_sub_u32 s{sT0}, s{sNT}, s{sIT}")
        for lvl, r in enumerate((1, 3, 6)):
            a(f"s_cmp_lg_u32 s{sT0}, {r}")
            a(f"s_cbranch_scc1 {lb}_p{lvl}")
            a(f"s_setprio {lvl}")
            a.lab(f"{lb}_p{lvl}")
    a(f"s_waitcnt vmcnt(16)")
    a(f"v_mfma_f32_32x32x16_bf16 {vr(Z,16)}, {vr(AEX,4)}, {vr(POP,4)}, {vr(R,16)}")
    a(f"v_mfma_f32_32x32x16_bf16 {vr(Z,16)}, {vr(AEX+4,4)}, {vr(POP+4,4)}, {vr(Z,16)}")
    if "nolds" not in DIAG:
        sag_reads(a)
        image_build(a)
        aex_reads(a)
    else:
        a("s_nop 9")
    rec_reads(a, 2)
    a(f"v_add_u32 v{vKR}, 128, v{vKR}")
    a(f"v_add_u32 v{vER}, 256, v{vER}")
    for j in range(16):
        if "notrans" not in DIAG: a(f"v_exp_f32 v{Z+j}, v{Z+j}")
        if "b64" in DIAG:
            if j % 2: a(f"v_lshlrev_b64 {vr(R+j-1,2)}, 16, {vr(R+j-1,2)}")
        else:
            a(f"v_lshlrev_b32 v{R+j}, 16, v{R+j}")
    a(f"s_waitcnt lgkmcnt(0)")
    addr_cvt(a)
    for j in range(0, 16, 2):
        if "nopk" in DIAG:
            a(f"v_fma_f32 v{Z+j}, v{Z+j}, v{R+j}, v{R+j}")
            a(f"v_fma_f32 v{Z+j+1}, v{Z+j+1}, v{R+j+1}, v{R+j+1}")
        else:
            a(f"v_pk_fma_f32 {vr(Z+j,2)}, {vr(Z+j,2)}, {vr(R+j,2)}, {vr(R+j,2)}")
        if j == 0:
            addr_pack(a)
    addr_mfma(a)
    for j in range(16):
        if "notrans" not in DIAG: a(f"v_rcp_f32 v{Z+j}, v{Z+j}")
        if j >= 3 and j % 2 == 1:
            k = (j - 3) // 2
            a(f"v_cvt_pk_bf16_f32 v{R+k}, v{Z+2*k}, v{Z+2*k+1}")
    a(f"s_add_u32 s{sIT}, s{sIT}, 1")
    a(f"v_cvt_pk_bf16_f32 v{R+7}, v{Z+14}, v{Z+15}")
    a(f"s_cmp_lt_u32 s{sIT}, s{sNT}")
    a(f"v_mfma_f32_32x32x16_bf16 {vr(ACC,16)}, {vr(R,4)}, {vr(SAG,4)}, {vr(ACC,16)}")
    a(f"v_mfma_f32_32x32x16_bf16 {vr(ACC,16)}, {vr(R+4,4)}, {vr(SAG+4,4)}, {vr(ACC,16)}")


def t_prefetch(a):
    a.c("read this wave's own table rows back once (streams them into the outer caches ahead of the random reads)")
    a(f"s_lshl_b32 s{sT0}, s{sNODE0}, 7")
    a(f"v_lshl_add_u32 v6, v{vLANE}, 4, s{sT0}")
    a(f"s_mov_b32 m0, {PFS}")
    a(f"s_nop 0")
    for kk in range(3):
        a(f"buffer_load_dwordx4 v6, {sr(SRD_TS,4)}, 0 offen offset:{1024*kk} lds")


def tflag_addr(a, v):
    a(f"s_lshr_b32 s{sT0}, s{sSL}, 1")
    a(f"s_lshl_b32 s{sT0}, s{sT0}, 14")
    a(f"s_add_u32 s{sT0}, s{sT0}, {TFL_OFF}")
    a(f"v_lshl_add_u32 v{v}, v{vLANE}, 8, s{sT0}")


def tflag_loads(a, v):
    a(f"buffer_load_dwordx2 v[16:17], v{v}, {sr(SRD_HDR,4)}, 0 offen sc1")
    a(f"buffer_load_dwordx2 v[18:19], v{v}, {sr(SRD_HDR,4)}, 0 offen offset:128 sc1")


def tflag_issue(a, p):
    a(f"s_cmp_lg_u32 s{sWV}, {TFW}")
    a(f"s_cbranch_scc1 {p}_tf_noissue")
    tflag_addr(a, 3)
    tflag_loads(a, 3)
    a.lab(f"{p}_tf_noissue")


def tflag_wait(a, p):
    a.c("one wave waits until all 128 workgroups of this feature half have published their table rows")
    a(f"s_cmp_lg_u32 s{sWV}, {TFW}")
    a(f"s_cbranch_scc1 {p}_tf_done")
    a(f"s_cmp_lg_u32 s{sNOH}, 0")
    a(f"s_cbranch_scc1 {p}_tf_done")
    tflag_addr(a, 6)
    a(f"s_not_b32 s{sT1}, s{sNON}")
    a(f"s_mov_b32 s{sSPIN}, {SPIN_MAX}")
    a(f"s_branch {p}_tf_first")
    a.lab(f"{p}_tf_loop")
    tflag_loads(a, 6)
    a.lab(f"{p}_tf_first")
    a(f"s_waitcnt vmcnt(0)")
    a(f"v_xor_b32 v20, s{sNON}, v16")
    a(f"v_xor_b32 v21, s{sT1}, v17")
    a(f"v_xor_b32 v22, s{sNON}, v18")
    a(f"v_xor_b32 v23, s{sT1}, v19")
    a(f"v_or3_b32 v20, v20, v21, v22")
    a(f"v_or_b32 v20, v20, v23")
    a(f"v_cmp_ne_u32 vcc, 0, v20")
    a(f"s_and_b64 exec, exec, vcc")
    a(f"s_cbranch_scc0 {p}_tf_end")
    a(f"s_sleep 2")
    a(f"s_sub_u32 s{sSPIN}, s{sSPIN}, 1")
    a(f"s_cbranch_scc0 {p}_tf_loop")
    a.lab(f"{p}_tf_end")
    a(f"s_mov_b64 exec, -1")
    a(f"s_mov_b32 s{sNOH}, 1")
    a.lab(f"{p}_tf_done")


def main_phase(a, p, fused):
    a.lab(f"{p}_round")
    append1(a, p, "a")
    a(f"s_waitcnt lgkmcnt(0)")
    append2(a, p)
    stamp(a, 5)
    image_setup(a)
    tflag_wait(a, p)
    if "nopf" not in DIAG: t_prefetch(a)
    a(f"s_waitcnt lgkmcnt(0)")
    a(f"s_barrier")
    stamp(a, 6)
    if STAMPS:
        a("s_memtime s[100:101]")
        a("s_waitcnt lgkmcnt(0)")
        a(f"s_mov_b32 s{sM1}, s100")
    a(f"ds_write_b128 v{vER}, {vr(Z,4)}")
    a(f"ds_write_b128 v{vER}, {vr(Z,4)} offset:1024")
    a(f"v_and_b32 v6, 31, v{vLANE}")
    a(f"v_lshlrev_b32 v{vKR}, 2, v6")
    a(f"ds_read_b32 v7, v{vKR} offset:{LCNT}")
    a(f"v_mul_u32_u24 v6, {LS}, v{vKR}")
    a(f"v_add_u32 v6, {KEYB + 4*CAP}, v6")
    a(f"s_mul_i32 s{sT0}, s{sLJ}, {LS*4}")
    a(f"s_add_u32 s{sT0}, s{sT0}, {KEYB}")
    a(f"v_add_u32 v{vKR}, s{sT0}, v{vKR}")
    a(f"v_lshlrev_b32 v{vER}, 1, v{vKR}")
    a(f"v_mov_b32 v8, 0")
    a(f"v_mov_b32 v9, 0")
    a(f"s_waitcnt lgkmcnt(0)")
    a(f"v_readlane_b32 s{sT1}, v7, s{sLJ}")
    a(f"v_readlane_b32 s{sT3}, v7, 16")
    a(f"v_cmp_lt_u32 vcc, v6, v7")
    a(f"s_and_b32 s{sT2}, vcc_lo, 0xff")
    a(f"s_cbranch_scc1 {p}_overflow")
    a.c("pad the list with 64 dummy edges")
    a(f"v_lshl_add_u32 v6, v{vLANE}, 2, s{sT1}")
    a(f"v_lshlrev_b32 v7, 1, v6")
    a(f"v_mov_b32 v{vKEY}, 0x{N | (46 << 16):x}")
    a(f"ds_write_b32 v6, v{vKEY}")
    a(f"ds_write_b64 v7, v[8:9] offset:{EOFF}")
    a(f"s_sub_u32 s{sNT}, s{sT1}, s{sT0}")
    a(f"s_add_u32 s{sNT}, s{sNT}, 127")
    a(f"s_lshr_b32 s{sNT}, s{sNT}, 7")
    a(f"s_cbranch_scc0 {p}_tiles_done")
    a(f"s_mov_b32 s{sIT}, 0")
    rec_reads(a, 0)
    a(f"s_waitcnt lgkmcnt(0)")
    addr_cvt(a)
    addr_pack(a)
    image_build(a)
    addr_mfma(a)
    aex_reads(a)
    rec_reads(a, 1)
    a(f"s_nop 15")
    a(f"s_waitcnt lgkmcnt(0)")
    addr_cvt(a)
    addr_pack(a)
    gathers(a, RA, fused)
    addr_mfma(a)
    a(f"s_nop 15")
    a(f"s_nop 3")
    if PRIO: a(f"s_setprio 3")
    a.lab(f"{p}_tile")
    for k in range(2):
        tile_body(a, (RA, RBUF)[k & 1], (RBUF, RA)[k & 1], fused, f"{p}_b{k}")
        a(f"s_cbranch_scc0 {p}_tiles_done" if k < 1 else f"s_cbranch_scc1 {p}_tile")
    a.lab(f"{p}_tiles_done")
    a(f"s_cmp_eq_u32 s{sT3}, 0")
    a(f"s_cbranch_scc1 {p}_epi")
    a(f"s_add_u32 s{sRB}, s{sRB}, s{sC}")
    a(f"s_branch {p}_next")
    a.lab(f"{p}_overflow")
    a(f"s_mov_b32 s{sC}, 2")
    a.lab(f"{p}_next")
    a.c("rare path: another round over the runs")
    a(f"s_waitcnt vmcnt(0) lgkmcnt(0)")
    a(f"s_barrier")
    init_counters(a, p, "r")
    rec_loads(a, p, "r", fused)
    a(f"s_waitcnt vmcnt(0) lgkmcnt(0)")
    a(f"s_barrier")
    a(f"s_branch {p}_round")
    a.lab(f"{p}_epi")
    stamp(a, 7)
    if STAMPS:
        a("s_memtime s[100:101]")
        a("s_waitcnt lgkmcnt(0)")
        a(f"s_sub_u32 s{sreg(9)}, s100, s{sM1}")
    a.c("---------------- epilogue: silu, pack, store")
    a(f"v_and_b32 v6, 31, v{vLANE}")
    a(f"v_cmp_gt_u32 vcc, s{sNN}, v6")
    a(f"v_add_u32 v6, s{sNODE0}, v6")
    a(f"v_lshlrev_b32 v6, 8, v6")
    a(f"v_lshrrev_b32 v7, 5, v{vLANE}")
    a(f"v_lshl_add_u32 v6, v7, 5, v6")
    a(f"s_lshl_b32 s{sT0}, s{sSL}, 6")
    a(f"v_add_u32 v6, s{sT0}, v6")
    a(f"s_nop 7")
    for j in range(16):
        a(f"v_mul_f32 v{Z+j}, s{sNL2E}, v{ACC+j}")
    for j in range(16):
        a(f"v_exp_f32 v{Z+j}, v{Z+j}")
    for j in range(16):
        a(f"v_add_f32 v{Z+j}, 1.0, v{Z+j}")
    for j in range(16):
        a(f"v_rcp_f32 v{Z+j}, v{Z+j}")
    for j in range(16):
        a(f"v_mul_f32 v{Z+j}, v{Z+j}, v{ACC+j}")
    for k in range(8):
        a(f"v_cvt_pk_bf16_f32 v{AEX+k}, v{Z+2*k}, v{Z+2*k+1}")
    a(f"s_mov_b64 exec, vcc")
    osc = " sc1" if "osc1" in DIAG else "" if "oplain" in DIAG else " nt"
    a(f"buffer_store_dwordx4 {vr(AEX,4)}, v6, {sr(SRD_OUT,4)}, 0 offen{osc}")
    a(f"buffer_store_dwordx4 {vr(AEX+4,4)}, v6, {sr(SRD_OUT,4)}, 0 offen offset:16{osc}")


def kernel_header(name):
    return f""".globl {name}
.p2align 8
.type {name},@function
{name}:
"""

def kernel_desc(name):
    return f""".amdhsa_kernel {name}
  .amdhsa_next_free_vgpr 128
  .amdhsa_next_free_sgpr 102
  .amdhsa_accum_offset 128
  .amdhsa_group_segment_fixed_size 0
  .amdhsa_kernarg_size 80
  .amdhsa_user_sgpr_count 2
  .amdhsa_user_sgpr_kernarg_segment_ptr 1
  .amdhsa_system_sgpr_workgroup_id_x 1
.end_amdhsa_kernel
"""

def file_head():
    return open("cdna_kernels/" + NAME + ".s.ref").read().split("; Override launch geometry")[0]


def finish(a, kidx):
    stamp(a, 8)
    stamp_out(a, kidx, 12)


def hdr_peek(a):
    a(f"v_mov_b32 v7, 0")
    a(f"ds_read_b32 v13, v7 offset:{NONCE}")
    a(f"ds_read_b64 v[14:15], v{vHS}")


def csum_acc(a, p, tag):
    for i in range(NI):
        q = REC + 4 * i
        a(f"s_mov_b64 exec, {sr(MASKS[i],2)}")
        a(f"s_cbranch_execz {p}_cs{tag}")
        a(f"v_add3_u32 v2, v2, v{q}, v{q+1}")
        a(f"v_add_u32 v2, v2, v{q+2}")
    a.lab(f"{p}_cs{tag}")
    a(f"s_mov_b64 exec, -1")


def csum_check(a):
    a(f"s_nop 1")
    a(f"v_add_u32_dpp v2, v2, v2 quad_perm:[1,0,3,2] row_mask:0xf bank_mask:0xf")
    a(f"s_nop 1")
    a(f"v_add_u32_dpp v2, v2, v2 quad_perm:[2,3,0,1] row_mask:0xf bank_mask:0xf")
    a(f"v_cmp_ne_u32 vcc, v2, v15")
    a(f"s_cmp_lg_u64 vcc, 0")


def gen_1k():
    k = NAME + "_kernel"
    a = A(); p = "K"
    setup(a, p)
    stamp(a, 0)
    front(a, p)
    stamp(a, 2)
    if "frontonly" in DIAG:
        stamp_out(a, 0, 12)
        a("s_endpgm")
    w_addr(a)
    a.c("wait for the weights, the end of the record copy-out (staging area reused) and the x rows")
    a(f"s_lshl_b32 s{sT0}, s{sLJ}, 2")
    a(f"v_mov_b32 v12, s{sT0}")
    a.lab(f"{p}_xw")
    a(f"ds_read_b64 v[14:15], v10 offset:{S3}")
    a(f"ds_read_b32 v13, v12 offset:{XFL}")
    a(f"s_waitcnt lgkmcnt(0)")
    a(f"v_add3_u32 v7, v14, v15, v13")
    a(f"s_nop 0")
    a(f"v_readfirstlane_b32 s{sT0}, v7")
    a(f"s_cmp_eq_u32 s{sT0}, {14 + 1 + 4}")
    a(f"s_cbranch_scc1 {p}_xok")
    a(f"s_sleep 1")
    a(f"s_branch {p}_xw")
    a.lab(f"{p}_xok")
    a(f"s_setprio {XP[4]}")
    a(f"s_cmp_lg_u32 s{sWV}, 15")
    a(f"s_cbranch_scc1 {p}_xp")
    a(f"s_setprio 3")
    a.lab(f"{p}_xp")
    stamp(a, 3)
    poll(a, p, "a", first=True)
    x_reads(a)
    for st in range(4):
        w_reads(a, 1, 2, st)
    gemm_pass(a, 1, 2, False, True)
    poll(a, p, "b")
    table_store(a, True)
    stamp(a, 4)
    a(f"s_setprio {XP[5]}")
    a(f"v_mov_b32 v{vZ0}, 0")
    a(f"s_mov_b32 s{sNT}, 0")
    a(f"s_cmp_lt_u32 s{sWV}, {PUBW}")
    a(f"s_cbranch_scc1 {p}_pass2")
    a(f"s_waitcnt vmcnt(0)")
    a(f"s_call_b64 {sr(sRET,2)}, {p}_sub_pub")
    a(f"s_mov_b32 s{sNT}, 1")
    a.lab(f"{p}_pass2")
    poll(a, p, "c", last=True)
    spin(a, f"{p}_wf2", WF2, 4)
    load_C(a)
    gemm_pass(a, 0, 3, True)
    pop_pack(a)
    spin(a, f"{p}_xr", XR, 16)
    a(f"v_lshrrev_b32 v{vHS}, 2, v0")
    a(f"v_lshlrev_b32 v{vHS}, 3, v{vHS}")
    a(f"v_add_u32 v{vHS}, {STG}, v{vHS}")
    a.lab(f"{p}_hwait")
    hdr_peek(a)
    a(f"s_waitcnt lgkmcnt(0)")
    a(f"v_readfirstlane_b32 s{sNON}, v13")
    a(f"s_cmp_lg_u32 s{sNON}, 0")
    a(f"s_cbranch_scc1 {p}_hgo")
    a(f"s_cmp_lg_u32 s{sNT}, 0")
    a(f"s_cbranch_scc1 {p}_hsleep")
    a(f"s_waitcnt vmcnt(0)")
    a(f"s_call_b64 {sr(sRET,2)}, {p}_sub_pub")
    a(f"s_mov_b32 s{sNT}, 1")
    a.lab(f"{p}_hsleep")
    a(f"s_sleep 1")
    a(f"s_branch {p}_hwait")
    a.lab(f"{p}_hgo")
    hdr_decode(a)
    rec_loads(a, p, "f", False, True)
    stamp(a, 1)
    a(f"s_cmp_lg_u32 s{sNT}, 0")
    a(f"s_cbranch_scc1 {p}_pubdone")
    a(f"s_waitcnt vmcnt({NI})")
    a(f"s_call_b64 {sr(sRET,2)}, {p}_sub_pub")
    a.lab(f"{p}_pubdone")
    a("s_waitcnt vmcnt(0)")
    stamp(a, 11)
    a(f"s_mov_b32 s{sNOH}, 0")
    tflag_issue(a, p)
    a.c("the records must add up to the checksums published with the headers")
    csum_acc(a, p, "a")
    a(f"v_and_b32 v6, 3, v0")
    a(f"v_add_u32 v6, v6, v{vHL}")
    a(f"v_cmp_lt_i32 {sr(sEX,2)}, {CFAST}, v6")
    csum_check(a)
    a(f"s_cbranch_scc1 {p}_vslow")
    a(f"s_cmp_lg_u64 {sr(sEX,2)}, 0")
    a(f"s_cbranch_scc1 {p}_vslow")
    a.lab(f"{p}_valid")
    main_phase(a, p, True)
    finish(a, 0)
    a.lab(f"{p}_end")
    a("s_endpgm")
    a.c("---------------- subroutines / rare paths")
    a.lab(f"{p}_sub_pub")
    a.c("the last wave whose table rows are out publishes the workgroup's flag")
    a(f"v_mov_b32 v6, 1")
    a(f"s_mov_b64 exec, 1")
    a(f"ds_add_rtn_u32 v6, v{vZ0}, v6 offset:{DONE}")
    a(f"ds_read_b32 v7, v{vZ0} offset:{NON2}")
    a(f"s_waitcnt lgkmcnt(0)")
    a(f"v_readfirstlane_b32 s{sT0}, v6")
    a(f"v_readfirstlane_b32 s{sT2}, v7")
    a(f"s_cmp_lg_u32 s{sT0}, 15")
    a(f"s_cbranch_scc1 {p}_nopub")
    a(f"s_lshr_b32 s{sT0}, s{sSL}, 1")
    a(f"s_lshl_b32 s{sT0}, s{sT0}, 7")
    a(f"s_add_u32 s{sT0}, s{sT0}, s{sBIN}")
    a(f"s_lshl_b32 s{sT0}, s{sT0}, 7")
    a(f"s_add_u32 s{sT0}, s{sT0}, {TFL_OFF}")
    a(f"s_not_b32 s{sT1}, s{sT2}")
    a(f"v_mov_b32 v6, s{sT0}")
    a(f"v_mov_b32 v104, s{sT2}")
    a(f"v_mov_b32 v105, s{sT1}")
    a(f"buffer_store_dwordx2 v[104:105], v6, {sr(SRD_HDR,4)}, 0 offen sc1")
    a.lab(f"{p}_nopub")
    a(f"s_mov_b64 exec, -1")
    a(f"s_setpc_b64 {sr(sRET,2)}")
    a.lab(f"{p}_sub_loads")
    rec_loads(a, p, "s", True)
    a(f"s_setpc_b64 {sr(sRET,2)}")
    a.lab(f"{p}_vslow")
    a.c("long runs, or records not yet visible: add up every run completely, again until it fits")
    a(f"s_mov_b32 s{sSPIN}, {SPIN_MAX}")
    a.lab(f"{p}_vs_retry")
    a(f"s_mov_b32 s{sRB}, 0")
    a(f"v_mov_b32 v2, 0")
    a.lab(f"{p}_vs_part")
    a(f"s_call_b64 {sr(sRET,2)}, {p}_sub_loads")
    a(f"s_waitcnt vmcnt(0)")
    csum_acc(a, p, "v")
    a(f"s_add_u32 s{sRB}, s{sRB}, {CFAST}")
    a(f"v_and_b32 v6, 3, v0")
    a(f"v_add_u32 v6, v6, v{vHL}")
    a(f"v_cmp_lt_i32 vcc, s{sRB}, v6")
    a(f"s_cmp_lg_u64 vcc, 0")
    a(f"s_cbranch_scc1 {p}_vs_part")
    csum_check(a)
    a(f"s_cbranch_scc0 {p}_vs_ok")
    a(f"s_sub_u32 s{sSPIN}, s{sSPIN}, 1")
    a(f"s_cbranch_scc0 {p}_vs_retry")
    a.lab(f"{p}_vs_ok")
    a(f"s_mov_b32 s{sRB}, 0")
    a(f"s_call_b64 {sr(sRET,2)}, {p}_sub_loads")
    a(f"s_waitcnt vmcnt(0)")
    a(f"s_branch {p}_valid")
    a.lab(f"{p}_code_end")
    s = file_head()
    s += f"; @launch grid=(256,1,1) block=(1024,1,1) lds={LDS_BYTES}\n"
    s += '.amdgcn_target "amdgcn-amd-amdhsa--gfx950"\n.text\n'
    s += kernel_header(k) + a.text()
    s += '.section .rodata,"a"\n.p2align 6\n' + kernel_desc(k)
    return s


if __name__ == "__main__":
    if "-stamps" in sys.argv:
        STAMPS = True; sys.argv.remove("-stamps")
    if "-noprio" in sys.argv:
        PRIO = False; sys.argv.remove("-noprio")
    for x in list(sys.argv):
        if x.startswith("-TF"):
            TFW = int(x[3:]); sys.argv.remove(x)
        if x.startswith("-PR"):
            PREW = int(x[3:]); sys.argv.remove(x)
        if x.startswith("-PW"):
            PUBW = int(x[3:]); sys.argv.remove(x)
        if x.startswith("-XP"):
            XP = [int(c) for c in x[3:]]; sys.argv.remove(x)
        if x.startswith("-XE"):
            XEARLY = int(x[3:]); sys.argv.remove(x)
        if x.startswith("-PS"):
            PS1, PS2 = map(int, x[3:].split(",")); sys.argv.remove(x)
        if x.startswith("-D"):
            DIAG.add(x[2:]); sys.argv.remove(x)
    mode = gen_1k
    if "-1k" in sys.argv:
        mode = gen_1k; sys.argv.remove("-1k")
    out = sys.argv[1] if len(sys.argv) > 1 else "cdna_kernels/" + NAME + ".s"
    open(out, "w").write(mode())
    print("wrote", out, "LDS", LDS_BYTES)
```

```python
import sys

N = 25000
E = 400000
NAME = "gather_scatter__edge_featured_mpnn_egc__graph"

TS = 25024 * 128
REC_OFF = 0x1000000
REC_BYTES = 250 * 19200
HDR_OFF = 0x1800000
HDR_BYTES = 128 * 256 * 16
TFL_OFF = HDR_BYTES
HDR_SRD_BYTES = HDR_BYTES + 256 * 128
MAGIC_OFF = 0x4B000000

CNT = 0
CSUM = 512
OFFS = 1024
LCNT = 1536
NONCE, DONE, NON2, S2, S3, WF, WF2, XR = [LCNT + 128 + 4 * i for i in range(8)]
XFL = LCNT + 192
assert S3 % 8 == 0
CAP = 270
LS = 2 * CAP + 96
KEYB = 1792
EB = KEYB + 8 * LS * 4
EOFF = EB - 2 * KEYB
IMG = EB + 8 * LS * 8
XB = KEYB
XT = 26 * 256
assert XB % 256 == 0 and XB + 8 * XT + 6 * 256 <= IMG + 2048
STG = IMG
WB = IMG + 32768
PFS = WB + 65536
CB = PFS + 1024
LDS_BYTES = CB + 512
NI = 8
CFAST = 4 * NI

SRD_X, SRD_E, SRD_SRC, SRD_DST, SRD_W, SRD_OUT, SRD_TS, SRD_TG, SRD_REC, SRD_HDR, SRD_G = [4 + 4 * i for i in range(11)]
SRD_DBG = SRD_E
KP = 48
sLJ = 3
sNR = 71
sWV, sBIN, sSL, sNODE0, sNN = 68, 69, 70, 72, 73
sSPIN = 95
sNL2E, sMAXF, sSELLO, sSELHI, sMAGIC, s127, sM1, sM2, sM3, sM4, sSTG, sKMAX = range(74, 86)
sHM = 86
sT0, sT1, sT2, sT3 = 88, 89, 90, 91
sRB, sC, sNT, sIT = 92, 93, 94, 95
sEX = 96
sNON, sNOH = 98, 99
sRET = 64
MASKS = [4 + 2 * i for i in range(8)]
SPIN_MAX = 40000

vLANE = 1
ACC = 32; REC = 96
POP, AEX, SAG = 48, 56, 64
OFF = 16
RA, RBUF, Z = 72, 88, 104


class A:
    def __init__(self):
        self.l = []
    def __call__(self, s):
        for x in s.strip("\n").split("\n"):
            self.l.append("    " + x.strip())
    def lab(self, s):
        self.l.append(s + ":")
    def c(self, s):
        self.l.append("    ; " + s)
    def text(self):
        return "\n".join(self.l) + "\n"


def vr(a, n):
    return f"v[{a}:{a+n-1}]"
def sr(a, n):
    return f"s[{a}:{a+n-1}]"


STAMPS = False
PRIO = True
PS1, PS2 = 8, 8
XEARLY = 4
XP = [0, 0, 0, 0, 2, 1]
PUBW = 8
NS_SL = 3
PREW = 0
TFW = 14
DIAG = set()
STAMP_OFF = 0x2000000
def sreg(i):
    return KP + i if i < 8 else KP + 4 + i
def stamp(a, i):
    if not STAMPS: return
    a(f"s_memrealtime s[100:101]")
    a(f"s_waitcnt lgkmcnt(0)")
    a(f"s_mov_b32 s{sreg(i)}, s100")

def stamp_out(a, kidx, n):
    if not STAMPS: return
    a(f"s_mov_b64 exec, -1")
    if "dbgmax" in DIAG:
        a(f"s_load_dwordx2 {sr(sT2,2)}, s[0:1], 64")
        a(f"s_waitcnt lgkmcnt(0)")
        srd(a, SRD_W, sT2, sT3, 256)
        a(f"v_mov_b32 v6, 0")
        a(f"ds_read_b32 v8, v6 offset:{NON2}")
        a(f"s_waitcnt lgkmcnt(0)")
        a(f"s_mov_b64 exec, 1")
        for i in (0, 2, 3, 4, 11, 5, 6, 7, 8):
            a(f"v_sub_u32 v7, s{sreg(i)}, v8")
            a(f"v_max_i32 v7, 0, v7")
            a(f"buffer_atomic_umax v7, v6, {sr(SRD_W,4)}, 0 offen offset:{4*(i+1)}")
        return
    a(f"s_add_u32 s{sT2}, s{KP+18}, 0x{STAMP_OFF + kidx * 0x100000:x}")
    a(f"s_addc_u32 s{sT3}, s{KP+19}, 0")
    srd(a, SRD_W, sT2, sT3, 0x100000)
    a(f"s_lshl_b32 s{sT0}, s2, 4")
    a(f"s_add_u32 s{sT0}, s{sT0}, s{sWV}")
    a(f"s_lshl_b32 s{sT0}, s{sT0}, 6")
    a(f"v_mov_b32 v6, s{sT0}")
    for i in range(n):
        a(f"v_mov_b32 v7, s{sreg(i)}")
        a(f"buffer_store_dword v7, v6, {sr(SRD_W,4)}, 0 offen offset:{4*i}")


def srd(a, d, lo, hi, nbytes):
    a(f"s_mov_b32 s{d}, s{lo}")
    a(f"s_mov_b32 s{d+1}, s{hi}")
    a(f"s_mov_b32 s{d+2}, {nbytes}")
    a(f"s_mov_b32 s{d+3}, 0x00020000")


def setup(a, p):
    a.c("---------------- setup")
    a(f"s_cmp_ge_u32 s2, 256")
    a(f"s_cbranch_scc1 {p}_end")
    a(f"s_load_dwordx16 {sr(KP,16)}, s[0:1], 0")
    a(f"s_load_dwordx4 {sr(KP+16,4)}, s[0:1], 64")
    a(f"s_memrealtime s[100:101]")
    a(f"v_lshrrev_b32 v2, 6, v0")
    a(f"v_and_b32 v{vLANE}, 63, v0")
    a(f"v_readfirstlane_b32 s{sWV}, v2")
    a(f"s_lshr_b32 s{sBIN}, s2, 3")
    a(f"s_and_b32 s{sT0}, s2, 3")
    a(f"s_lshl_b32 s{sT0}, s{sT0}, 5")
    a(f"s_or_b32 s{sBIN}, s{sBIN}, s{sT0}")
    a(f"s_lshr_b32 s{sSL}, s2, 1")
    a(f"s_and_b32 s{sSL}, s{sSL}, 2")
    a(f"s_and_b32 s{sT0}, s{sWV}, 1")
    a(f"s_or_b32 s{sSL}, s{sSL}, s{sT0}")
    a(f"s_lshr_b32 s{sLJ}, s{sWV}, 1")
    a(f"s_mul_i32 s{sT0}, s2, 6400")
    a(f"v_lshl_add_u32 v3, v0, 4, s{sT0}")
    a(f"v_lshlrev_b32 v4, 1, v3")
    a(f"s_mul_i32 s{sT1}, s{sSL}, {TS}")
    a(f"s_waitcnt lgkmcnt(0)")
    x, e, src, dst, u, v, g, out, dbg, ws = [KP + 2 * i for i in range(10)]
    a(f"s_or_b32 s{sT0}, s2, s{sWV}")
    a(f"s_cbranch_scc1 {p}_notag")
    a.c("launch tag: the first wave of workgroup 0 publishes a clock value in d_debug, everyone picks it up")
    srd(a, SRD_DBG, dbg, dbg + 1, 256)
    a(f"s_or_b32 s{sT0}, s100, 1")
    a(f"v_mov_b32 v13, s{sT0}")
    a(f"v_mov_b32 v10, 0")
    a(f"s_mov_b64 exec, 1")
    a(f"buffer_store_dword v13, v10, {sr(SRD_DBG,4)}, 0 offen sc1")
    if "xcc" in DIAG:
        a(f"s_getreg_b32 s{sT0}, hwreg(HW_REG_XCC_ID)")
        a(f"v_mov_b32 v12, s{sT0}")
        a(f"buffer_store_dword v12, v10, {sr(SRD_DBG,4)}, 0 offen offset:128")
    a(f"s_mov_b64 exec, -1")
    a.lab(f"{p}_notag")
    srd(a, SRD_DST, dst, dst + 1, E * 4)
    srd(a, SRD_SRC, src, src + 1, E * 4)
    srd(a, SRD_E, e, e + 1, E * 8)
    a(f"s_cmp_ge_u32 s{sWV}, 7")
    a(f"s_cbranch_scc1 {p}_noedge")
    a(f"buffer_load_dwordx4 {vr(vD,4)}, v3, {sr(SRD_DST,4)}, 0 offen")
    a(f"buffer_load_dwordx4 {vr(vS,4)}, v3, {sr(SRD_SRC,4)}, 0 offen")
    a(f"buffer_load_dwordx4 {vr(vE,4)}, v4, {sr(SRD_E,4)}, 0 offen")
    a(f"buffer_load_dwordx4 {vr(vE+4,4)}, v4, {sr(SRD_E,4)}, 0 offen offset:16")
    a.lab(f"{p}_noedge")
    a(f"s_lshl_b32 s{sT0}, s{sBIN}, 3")
    a(f"s_add_u32 s{sT0}, s{sT0}, s{sLJ}")
    a(f"s_mul_i32 s{sT0}, s{sT0}, 3125")
    a(f"s_lshr_b32 s{sNODE0}, s{sT0}, 7")
    a(f"s_add_u32 s{sT0}, s{sT0}, 3125")
    a(f"s_lshr_b32 s{sNN}, s{sT0}, 7")
    a(f"s_cmp_eq_u32 s{sNN}, {N}")
    a(f"s_cselect_b32 s{sNR}, 1, 0")
    a(f"s_sub_u32 s{sNN}, s{sNN}, s{sNODE0}")
    a(f"s_add_u32 s{sNR}, s{sNR}, s{sNN}")
    a(f"s_mov_b32 s{sHM}, 0")
    a(f"s_mov_b32 s{sHM+1}, -1")
    srd(a, SRD_X, x, x + 1, N * 256)
    srd(a, SRD_OUT, out, out + 1, N * 256)
    srd(a, SRD_G, g, g + 1, 260 * 256)
    a(f"s_add_u32 s{sT2}, s{ws}, s{sT1}")
    a(f"s_addc_u32 s{sT3}, s{ws+1}, 0")
    srd(a, SRD_TS, sT2, sT3, (N + 1) * 128)
    a(f"s_sub_u32 s{sT2}, s{sT2}, 0x{MAGIC_OFF:x}")
    a(f"s_subb_u32 s{sT3}, s{sT3}, 0")
    srd(a, SRD_TG, sT2, sT3, MAGIC_OFF + (N + 1) * 128)
    a(f"s_add_u32 s{sT2}, s{ws}, 0x{REC_OFF:x}")
    a(f"s_addc_u32 s{sT3}, s{ws+1}, 0")
    srd(a, SRD_REC, sT2, sT3, REC_BYTES)
    a(f"s_add_u32 s{sT2}, s{ws}, 0x{HDR_OFF:x}")
    a(f"s_addc_u32 s{sT3}, s{ws+1}, 0")
    srd(a, SRD_HDR, sT2, sT3, HDR_SRD_BYTES)
    a(f"s_mov_b32 s{sNL2E}, 0xbfb8aa3b")
    a(f"s_mov_b32 s{sMAXF}, 0x7f7f0000")
    a(f"s_mov_b32 s{sSELLO}, 0x07060100")
    a(f"s_mov_b32 s{sSELHI}, 0x07060302")
    a(f"s_mov_b32 s{sMAGIC}, 10995117")
    a(f"s_mov_b32 s{s127}, 127")
    a(f"s_mov_b32 s{sM1}, 0x260000")
    a(f"s_mov_b32 s{sM2}, 0x100000")
    a(f"s_mov_b32 s{sM3}, 0x080000")
    a(f"s_mov_b32 s{sM4}, 0x38000000")
    a(f"s_mov_b32 s{sSTG}, {STG}")
    a(f"s_mov_b32 s{sKMAX}, {EB - 4}")
    a(f"v_mov_b32 v{vONE}, 1")
    a(f"v_mov_b32 v10, 0")


def spin(a, lab, off, val):
    a.lab(lab)
    a(f"ds_read_b32 v11, v10 offset:{off}")
    a(f"s_waitcnt lgkmcnt(0)")
    a(f"v_readfirstlane_b32 s{sT0}, v11")
    a(f"s_cmp_lt_u32 s{sT0}, {val}")
    a(f"s_cbranch_scc1 {lab}")


def signal(a, off):
    a(f"s_mov_b64 exec, 1")
    a(f"ds_add_u32 v10, v{vONE} offset:{off}")
    a(f"s_mov_b64 exec, -1")


def cursor_starts(a, d, t):
    a(f"v_lshrrev_b32 v{d}, 1, v{vLANE}")
    a(f"v_mul_u32_u24 v{d}, {LS*4}, v{d}")
    a(f"v_and_b32 v{t}, 1, v{vLANE}")
    a(f"v_mul_u32_u24 v{t}, {CAP*4}, v{t}")
    a(f"v_add_u32 v{d}, v{d}, v{t}")
    a(f"v_add_u32 v{d}, {KEYB}, v{d}")


def init_counters(a, p, tag):
    a.c("wave 0: list cursors = list starts")
    a(f"s_cmp_lg_u32 s{sWV}, 0")
    a(f"s_cbranch_scc1 {p}_ic{tag}")
    a(f"v_lshlrev_b32 v7, 2, v{vLANE}")
    cursor_starts(a, 8, 9)
    a(f"v_cmp_gt_u32 vcc, 16, v{vLANE}")
    a(f"s_nop 1")
    a(f"v_cndmask_b32 v8, 0, v8, vcc")
    a(f"s_not_b64 exec, {sr(sHM,2)}")
    a(f"ds_write_b32 v7, v8 offset:{LCNT}")
    a(f"s_mov_b64 exec, -1")
    a.lab(f"{p}_ic{tag}")


def scan64(a, v):
    for sh in (1, 2, 4, 8):
        a(f"s_nop 1")
        a(f"v_add_u32_dpp v{v}, v{v}, v{v} row_shr:{sh} row_mask:0xf bank_mask:0xf bound_ctrl:0")
    a(f"s_nop 1")
    a(f"v_add_u32_dpp v{v}, v{v}, v{v} row_bcast:15 row_mask:0xa bank_mask:0xf")
    a(f"s_nop 1")
    a(f"v_add_u32_dpp v{v}, v{v}, v{v} row_bcast:31 row_mask:0xc bank_mask:0xf")


vD, vS, vE, vK, vB, vR = 72, 76, 80, 88, 92, 96
vTa, vTb, vTc = 100, 101, 102
vONE = 2


vC2, vO2 = 104, 106
def offsets_scan(a):
    a(f"v_lshlrev_b32 v{vTa}, 3, v{vLANE}")
    a(f"ds_read_b64 {vr(vC2,2)}, v{vTa} offset:{CNT}")
    a(f"s_waitcnt lgkmcnt(0)")
    a(f"v_add_u32 v{vTb}, v{vC2}, v{vC2+1}")
    a(f"v_mov_b32 v{vTc}, v{vTb}")
    scan64(a, vTc)
    a(f"v_sub_u32 v{vO2}, v{vTc}, v{vTb}")
    a(f"v_add_u32 v{vO2+1}, v{vO2}, v{vC2}")


def noh_from_non(a):
    a(f"s_mul_i32 s{sNOH}, s{sNON}, 0x9e3779b1")
    a(f"s_and_b32 s{sNOH}, s{sNOH}, 0xf800f800")


def w_dma(a):
    u, v, g = KP + 8, KP + 10, KP + 12
    a(f"s_sub_u32 s{sT2}, s{sWV}, 7")
    a(f"s_and_b32 s{sT3}, s{sT2}, 6")
    a(f"s_lshr_b32 s{sT3}, 0xc9, s{sT3}")
    a(f"s_and_b32 s{sT3}, s{sT3}, 3")
    a(f"s_cmp_eq_u32 s{sT3}, 2")
    a(f"s_cselect_b64 {sr(SRD_W,2)}, {sr(v,2)}, {sr(u,2)}")
    a(f"s_mov_b32 s{SRD_W+2}, 32768")
    a(f"s_cmp_lt_u32 s{sT3}, 2")
    a(f"s_cselect_b64 {sr(SRD_W,2)}, {sr(g,2)}, {sr(SRD_W,2)}")
    a(f"s_cselect_b32 s{SRD_W+2}, 65536, s{SRD_W+2}")
    a(f"s_mov_b32 s{SRD_W+3}, 0x00020000")
    a(f"s_cmp_eq_u32 s{sT3}, 1")
    a(f"s_cselect_b32 s{sT0}, 32768, 0")
    a(f"s_and_b32 s{sT2}, s{sT2}, 1")
    a(f"s_lshl_b32 s{sT1}, s{sT2}, 14")
    a(f"s_add_u32 s{sT0}, s{sT0}, s{sT1}")
    a(f"s_lshr_b32 s{sT1}, s{sSL}, 1")
    a(f"s_lshl_b32 s{sT1}, s{sT1}, 7")
    a(f"s_add_u32 s{sT0}, s{sT0}, s{sT1}")
    a.c("row lane>>3, 16-byte piece lane&7; the 64-byte halves of rows 2,3 (mod 4) are swapped")
    a(f"v_lshrrev_b32 v4, 3, v{vLANE}")
    a(f"v_lshl_add_u32 v4, v4, 8, s{sT0}")
    a(f"v_bfe_u32 v6, v{vLANE}, 4, 1")
    a(f"v_lshlrev_b32 v6, 2, v6")
    a(f"v_xor_b32 v6, v6, v{vLANE}")
    a(f"v_and_b32 v6, 7, v6")
    a(f"v_lshl_add_u32 v4, v6, 4, v4")
    a(f"s_lshl_b32 s{sT0}, s{sT3}, 14")
    a(f"s_lshl_b32 s{sT2}, s{sT2}, 13")
    a(f"s_add_u32 s{sT0}, s{sT0}, s{sT2}")
    for d in range(8):
        a(f"s_add_u32 m0, s{sT0}, {WB + 1024 * d}")
        a(f"s_mov_b32 s{sT1}, {2048 * d}")
        a(f"buffer_load_dwordx4 v4, {sr(SRD_W,4)}, s{sT1} offen lds")


def front(a, p):
    a(f"s_sub_u32 s{sT0}, s{sWV}, 7")
    a(f"s_cmp_ge_u32 s{sT0}, {PREW}")
    a(f"s_cbranch_scc1 {p}_f_nobv")
    w_dma(a)
    a.lab(f"{p}_f_nobv")
    a(f"s_cmp_lg_u32 s{sWV}, 7")
    a(f"s_cbranch_scc1 {p}_f_noinit")
    a.c("wave 7: bin counters, checksums, flags = 0, list cursors = list starts")
    a(f"v_lshlrev_b32 v7, 2, v{vLANE}")
    cursor_starts(a, 8, 9)
    a(f"v_cmp_gt_u32 vcc, 16, v{vLANE}")
    for k in range(4):
        a(f"ds_write_b32 v7, v10 offset:{CNT + 256 * k}")
    a(f"v_cndmask_b32 v8, 0, v8, vcc")
    a(f"ds_write_b32 v7, v8 offset:{LCNT}")
    a(f"v_and_b32 v6, 7, v{vLANE}")
    a(f"v_lshrrev_b32 v4, 3, v{vLANE}")
    a(f"v_lshlrev_b32 v4, 8, v4")
    a(f"v_lshl_add_u32 v4, v6, 4, v4")
    a(f"s_lshr_b32 s{sT1}, s{sSL}, 1")
    a(f"s_lshl_b32 s{sT1}, s{sT1}, 7")
    a(f"s_add_u32 s{sT1}, s{sT1}, 65536")
    a(f"s_mov_b32 m0, {CB}")
    a(f"s_not_b64 exec, {sr(sHM,2)}")
    a(f"buffer_load_dwordx4 v4, {sr(SRD_G,4)}, s{sT1} offen lds")
    a(f"s_mov_b64 exec, -1")
    if "noicpf" not in DIAG:
        a.c("read the kernel's own code once so that later instruction fetches find it in the L2")
        a(f"s_getpc_b64 {sr(sT2,2)}")
        a.lab(f"{p}_pc")
        a(f"v_lshlrev_b32 v9, 7, v{vLANE}")
        a(f"global_load_dword v104, v9, {sr(sT2,2)}")
        a(f"v_add_u32 v9, 8192, v9")
        a(f"v_cmp_gt_u32 vcc, {p}_code_end - {p}_pc - 4, v9")
        a(f"s_mov_b64 exec, vcc")
        a(f"global_load_dword v105, v9, {sr(sT2,2)}")
        a(f"s_mov_b64 exec, -1")
    a(f"s_waitcnt lgkmcnt(0)")
    a.lab(f"{p}_f_noinit")
    a(f"s_cmp_lg_u32 s{sWV}, 15")
    a(f"s_cbranch_scc1 {p}_tag_done")
    srd(a, SRD_DBG, KP + 16, KP + 17, 256)
    a(f"buffer_load_dword v72, v10, {sr(SRD_DBG,4)}, 0 offen sc1")
    a.lab(f"{p}_tag_done")
    a(f"s_barrier")
    a(f"s_cmp_eq_u32 s{sWV}, 15")
    a(f"s_cbranch_scc1 {p}_f_w15")
    a(f"s_cmp_ge_u32 s{sWV}, 7")
    a(f"s_cbranch_scc1 {p}_f_loader")

    a.c("---------------- waves 0-6: sort this workgroup's 1600 edges by destination bin")
    a(f"s_setprio {XP[3]}")
    a(f"s_cmp_lt_u32 s2, 250")
    a(f"s_cselect_b32 s{sT0}, 400, 0")
    a(f"v_cmp_gt_u32 vcc, s{sT0}, v0")
    a(f"s_mov_b64 {sr(sEX,2)}, vcc")
    a(f"s_waitcnt vmcnt(3)")
    stamp(a, 1)
    for e in range(4):
        a(f"v_lshl_or_b32 v{vK+e}, v{vD+e}, 7, s{s127}")
        a(f"v_mul_hi_u32 v{vK+e}, v{vK+e}, s{sMAGIC}")
        a(f"v_lshrrev_b32 v{vB+e}, 4, v{vK+e}")
        a(f"v_and_b32 v{vB+e}, 0x1fc, v{vB+e}")
    a(f"s_mov_b64 exec, {sr(sEX,2)}")
    for e in range(4):
        a(f"ds_add_rtn_u32 v{vR+e}, v{vB+e}, v{vONE} offset:{CNT}")
    signal(a, S2)
    for e in range(4):
        d, k = vD + e, vK + e
        a(f"v_lshrrev_b32 v{vTa}, 3, v{k}")
        a(f"v_mul_u32_u24 v{vTb}, 3125, v{vTa}")
        a(f"v_lshrrev_b32 v{vTb}, 7, v{vTb}")
        a(f"v_sub_u32 v{vTb}, v{d}, v{vTb}")
        a(f"v_lshlrev_b32 v{k}, 27, v{vTa}")
        a(f"v_and_b32 v{k}, s{sM4}, v{k}")
        a(f"v_lshlrev_b32 v{vTc}, 17, v{vTb}")
        a(f"v_and_or_b32 v{k}, v{vTc}, s{sM1}, v{k}")
        a(f"v_lshlrev_b32 v{vTc}, 18, v{vTb}")
        a(f"v_and_or_b32 v{k}, v{vTc}, s{sM2}, v{k}")
        a(f"v_lshlrev_b32 v{vTc}, 16, v{vTb}")
        a(f"v_and_or_b32 v{k}, v{vTc}, s{sM3}, v{k}")
    a(f"s_lshl_b32 s{sT1}, s{sWV}, 10")
    a(f"v_lshl_add_u32 v3, v{vLANE}, 4, s{sT1}")
    a(f"v_add_u32 v7, {STG}, v3")
    a(f"s_mul_i32 s{sT1}, s2, 19200")
    a(f"v_add_u32 v3, s{sT1}, v3")
    spin(a, f"{p}_f_s2", S2, 7)
    stamp(a, 10)
    offsets_scan(a)
    a(f"ds_write_b64 v{vTa}, {vr(vO2,2)} offset:{OFFS}")
    for e in range(4):
        a(f"ds_read_b32 v{vD+e}, v{vB+e} offset:{OFFS}")
    a(f"s_mov_b32 s{sT2}, {32768 - N // 2}")
    a(f"s_mov_b32 s{sT3}, 0x04000000")
    a(f"s_waitcnt vmcnt(0)")
    for e in range(4):
        a(f"v_add_lshl_u32 v{vTb}, v{vS+e}, s{sT2}, 11")
        a(f"v_or_b32 v{vK+e}, v{vK+e}, v{vS+e}")
        a(f"v_and_or_b32 v{vK+e}, v{vTb}, s{sT3}, v{vK+e}")
        a(f"v_add3_u32 v{vS+e}, v{vE+2*e}, v{vE+2*e+1}, v{vK+e}")
    a(f"s_waitcnt lgkmcnt(0)")
    for e in range(4):
        a(f"v_add_u32 v{vR+e}, v{vR+e}, v{vD+e}")
        a(f"v_mad_u32_u24 v{vR+e}, v{vR+e}, 12, s{sSTG}")
    a(f"s_mov_b64 exec, {sr(sEX,2)}")
    for e in range(4):
        a(f"ds_write2_b32 v{vR+e}, v{vE+2*e}, v{vE+2*e+1} offset0:0 offset1:1")
        a(f"ds_write_b32 v{vR+e}, v{vK+e} offset:8")
        a(f"ds_add_u32 v{vB+e}, v{vS+e} offset:{CSUM}")
    signal(a, S3)
    spin(a, f"{p}_f_s3", S3, 7)
    a.c("copy the sorted records out: 1 KiB pieces wv, wv + 7, wv + 14")
    for k in range(3):
        a(f"ds_read_b128 {vr(104 + 4*k, 4)}, v7 offset:{7168*k}")
    signal(a, S3)
    a(f"v_add_u32 v4, 7168, v3")
    a(f"v_add_u32 v5, 14336, v3")
    a(f"s_waitcnt lgkmcnt(3)")
    a(f"buffer_store_dwordx4 {vr(104,4)}, v3, {sr(SRD_REC,4)}, 0 offen sc1")
    a(f"s_waitcnt lgkmcnt(2)")
    a(f"buffer_store_dwordx4 {vr(108,4)}, v4, {sr(SRD_REC,4)}, 0 offen sc1")
    a(f"s_cmp_gt_u32 s{sWV}, 4")
    a(f"s_cbranch_scc1 {p}_f_x0")
    a(f"s_cmp_eq_u32 s{sWV}, 4")
    a(f"s_cselect_b32 exec_hi, 0xffff, -1")
    a(f"s_waitcnt lgkmcnt(1)")
    a(f"buffer_store_dwordx4 {vr(112,4)}, v5, {sr(SRD_REC,4)}, 0 offen sc1")
    a(f"s_mov_b64 exec, -1")
    a.lab(f"{p}_f_x0")
    a(f"s_setprio 0")
    a(f"s_branch {p}_f_done")

    a.c("---------------- waves 7-14: one x tile each into LDS; waves 11-14 then half of A / U")
    a.lab(f"{p}_f_loader")
    a(f"s_setprio 3")
    a(f"s_sub_u32 s{sT3}, s{sWV}, 7")
    a(f"s_lshl_b32 s{sT0}, s{sT3}, 2")
    a(f"v_mov_b32 v12, s{sT0}")
    a.c("x tile: row (lane>>4) + 4i, slot lane&15 holds chunk slot ^ (row & 15)")
    a(f"v_lshrrev_b32 v6, 4, v{vLANE}")
    a(f"v_xor_b32 v7, v6, v{vLANE}")
    a(f"v_and_b32 v7, 15, v7")
    a(f"v_lshlrev_b32 v72, 8, v6")
    a(f"v_lshl_add_u32 v72, v7, 4, v72")
    for k in range(1, 4):
        a(f"v_xor_b32 v{72+k}, {64*k}, v72")
    a(f"s_mul_i32 s{sT2}, s{sT3}, {XT}")
    a(f"s_lshl_b32 s{sT1}, s{sBIN}, 3")
    a(f"s_add_u32 s{sT1}, s{sT1}, s{sT3}")
    a(f"s_mul_i32 s{sT1}, s{sT1}, 3125")
    a(f"s_lshr_b32 s{sT1}, s{sT1}, 7")
    a(f"s_lshl_b32 s{sT1}, s{sT1}, 8")
    for i in range(7):
        a(f"s_add_u32 m0, s{sT2}, {XB + 1024 * i}")
        a(f"v_add_u32 v6, s{sT1}, v{72 + (i & 3)}")
        if i < 6:
            a(f"s_add_u32 s{sT1}, s{sT1}, 1024")
        else:
            a(f"s_not_b64 exec, {sr(sHM,2)}")
        a(f"buffer_load_dwordx4 v6, {sr(SRD_X,4)}, 0 offen lds")
    a(f"s_mov_b64 exec, -1")
    a(f"s_cmp_lt_u32 s{sWV}, 11")
    a(f"s_cselect_b32 s{sT0}, 0, 4")
    a(f"v_mov_b32 v11, s{sT0}")
    a(f"s_cmp_lt_u32 s{sWV}, {7 + PREW}")
    a(f"s_cbranch_scc0 {p}_f_wlate")
    a(f"s_setprio 0")
    a(f"s_waitcnt vmcnt(7)")
    a(f"s_mov_b64 exec, 1")
    a(f"ds_add_u32 v11, v{vONE} offset:{WF}")
    a(f"s_mov_b64 exec, -1")
    stamp(a, 10)
    a(f"s_waitcnt vmcnt(0)")
    a(f"ds_write_b32 v12, v{vONE} offset:{XFL}")
    a(f"s_branch {p}_f_done")
    a.lab(f"{p}_f_wlate")
    a(f"s_setprio 2")
    a(f"s_cmp_lt_u32 s{sWV}, 11")
    a(f"s_cbranch_scc1 {p}_f_wnow")
    a(f"s_setprio 0")
    a(f"s_waitcnt vmcnt(0)")
    a(f"ds_write_b32 v12, v{vONE} offset:{XFL}")
    a.lab(f"{p}_f_wnow")
    w_dma(a)
    a(f"s_setprio 0")
    a(f"s_waitcnt vmcnt(8)")
    a(f"ds_write_b32 v12, v{vONE} offset:{XFL}")
    a(f"s_waitcnt vmcnt(0)")
    a(f"s_mov_b64 exec, 1")
    a(f"ds_add_u32 v11, v{vONE} offset:{WF}")
    a(f"s_mov_b64 exec, -1")
    stamp(a, 10)
    a(f"s_branch {p}_f_done")

    a.c("---------------- wave 15 publishes / collects the headers")
    a.lab(f"{p}_f_w15")
    a(f"s_setprio 3")
    a(f"s_lshl_b32 s{sT0}, s2, 11")
    a(f"v_lshl_add_u32 v4, v{vLANE}, 5, s{sT0}")
    a(f"s_mov_b32 s{sSPIN}, {SPIN_MAX}")
    for k in range(1, 4):
        a(f"s_sleep {NS_SL}")
        a(f"buffer_load_dword v{72+k}, v10, {sr(SRD_DBG,4)}, 0 offen sc1")
    for k in range(4):
        a(f"s_waitcnt vmcnt({3-k})")
        a(f"v_readfirstlane_b32 s{sNON}, v{72+k}")
        a(f"s_cmp_lg_u32 s{sNON}, 0")
        a(f"s_cbranch_scc1 {p}_tag_ok")
    a.lab(f"{p}_tag_loop")
    a(f"buffer_load_dword v13, v10, {sr(SRD_DBG,4)}, 0 offen sc1")
    a(f"s_waitcnt vmcnt(0)")
    a(f"v_readfirstlane_b32 s{sNON}, v13")
    a(f"s_cmp_lg_u32 s{sNON}, 0")
    a(f"s_cbranch_scc1 {p}_tag_ok")
    a(f"s_sub_u32 s{sSPIN}, s{sSPIN}, 1")
    a(f"s_cbranch_scc0 {p}_tag_loop")
    a(f"s_mov_b32 s{sNON}, 1")
    a.lab(f"{p}_tag_ok")
    stamp(a, 11)
    a(f"v_mov_b32 v13, s{sNON}")
    a(f"ds_write_b32 v10, v13 offset:{NON2}")
    noh_from_non(a)
    spin(a, f"{p}_f_s2b", S2, 7)
    offsets_scan(a)
    for k in range(2):
        a(f"v_lshl_or_b32 v{108+4*k}, v{vC2+k}, 16, v{vO2+k}")
        a(f"v_or_b32 v{108+4*k}, s{sNOH}, v{108+4*k}")
        a(f"v_mov_b32 v{109+4*k}, v13")
    spin(a, f"{p}_f_s3b", S3, 7)
    a(f"ds_read_b32 v110, v{vTa} offset:{CSUM}")
    a(f"ds_read_b32 v114, v{vTa} offset:{CSUM+4}")
    a(f"s_waitcnt lgkmcnt(0)")
    a(f"buffer_store_dwordx4 v[108:111], v4, {sr(SRD_HDR,4)}, 0 offen sc1")
    a(f"buffer_store_dwordx4 v[112:115], v4, {sr(SRD_HDR,4)}, 0 offen offset:16 sc1")
    stamp(a, 1)
    a(f"s_setprio 0")
    a.lab(f"{p}_f_done")


HP = (48, 52, 120, 124)
sPM = 44
def poll(a, p, tag, first=False, last=False):
    if first:
        a(f"s_lshl_b32 s{sT0}, s{sBIN}, 4")
        a(f"v_lshl_add_u32 v8, v{vLANE}, 13, s{sT0}")
        a(f"v_add_u32 v9, 4096, v8")
    a(f"s_cmp_lg_u32 s{sWV}, 15")
    a(f"s_cbranch_scc1 {p}_po{tag}")
    if first:
        a(f"s_mov_b64 {sr(sPM,2)}, -1")
        a(f"s_mov_b32 s{sSPIN}, {SPIN_MAX}")
    else:
        a(f"s_cmp_eq_u64 {sr(sPM,2)}, 0")
        a(f"s_cbranch_scc1 {p}_po{tag}")
        a.lab(f"{p}_pl{tag}")
        a(f"s_waitcnt vmcnt(0)")
        for k, h in enumerate(HP):
            a(f"v_xor_b32 v{h+3}, s{sNOH}, v{h}")
            a(f"v_and_b32 v{h+3}, 0xf800f800, v{h+3}")
            a(f"v_xor_b32 v7, s{sNON}, v{h+1}")
            a(f"v_or3_b32 v6, v{h+3}, v7, {'0' if k == 0 else 'v6'}")
        a(f"v_cmp_ne_u32 {sr(sPM,2)}, 0, v6")
        a(f"s_sub_u32 s{sSPIN}, s{sSPIN}, 1")
        a(f"s_cselect_b64 {sr(sPM,2)}, 0, {sr(sPM,2)}")
        a(f"s_cmp_lg_u64 {sr(sPM,2)}, 0")
        a(f"s_cbranch_scc1 {p}_pa{tag}")
        a(f"v_lshlrev_b32 v7, 5, v{vLANE}")
        a(f"v_add_u32 v7, {STG}, v7")
        a(f"v_mov_b32 v6, s{sNON}")
        for k, h in enumerate(HP):
            a(f"ds_write2_b32 v7, v{h}, v{h+2} offset0:{2*k} offset1:{2*k+1}")
        a(f"ds_write_b32 v10, v6 offset:{NONCE}")
        stamp(a, 10)
        a(f"s_branch {p}_po{tag}")
        a.lab(f"{p}_pa{tag}")
        if last:
            a(f"s_sleep {PS2}")
    a(f"s_mov_b64 exec, {sr(sPM,2)}")
    for k, h in enumerate(HP):
        a(f"buffer_load_dwordx3 {vr(h,3)}, v{8 + (k>>1)}, {sr(SRD_HDR,4)}, 0 offen offset:{2048*(k&1)} sc1")
    a(f"s_mov_b64 exec, -1")
    if last:
        a(f"s_branch {p}_pl{tag}")
    a.lab(f"{p}_po{tag}")


vZ0 = 2
vXA, vWA, vTMP = 3, 4, 5
def w_addr(a):
    a(f"s_and_b32 s{sT1}, s{sWV}, 1")
    a(f"v_lshrrev_b32 v6, 5, v{vLANE}")
    a(f"v_lshlrev_b32 v{vWA}, 10, v6")
    a(f"v_bfe_u32 v6, v{vLANE}, 2, 2")
    a(f"v_lshl_add_u32 v{vWA}, v6, 7, v{vWA}")
    a(f"v_bfe_u32 v6, v{vLANE}, 3, 1")
    a(f"v_xor_b32 v6, s{sT1}, v6")
    a(f"v_lshl_add_u32 v{vWA}, v6, 6, v{vWA}")
    a(f"v_and_b32 v6, 1, v{vLANE}")
    a(f"v_lshl_add_u32 v{vWA}, v6, 5, v{vWA}")
    a(f"v_and_b32 v6, 16, v{vLANE}")
    a(f"v_add_u32 v{vWA}, v6, v{vWA}")
    a(f"v_and_b32 v6, 2, v{vLANE}")
    a(f"v_lshl_add_u32 v{vWA}, v6, 2, v{vWA}")
    a(f"v_add_u32 v{vWA}, {WB}, v{vWA}")


def xf(s):
    return 16 + 4 * s if s < 4 else 56 + 4 * (s - 4)

def x_reads(a):
    a.c("x fragments of this wave's sub-block")
    a(f"s_mul_i32 s{sT1}, s{sLJ}, {XT}")
    a(f"s_add_u32 s{sT1}, s{sT1}, {XB}")
    a(f"v_and_b32 v6, 31, v{vLANE}")
    a(f"v_lshrrev_b32 v7, 5, v{vLANE}")
    a(f"v_xor_b32 v7, v7, v6")
    a(f"v_and_b32 v7, 15, v7")
    a(f"v_lshl_add_u32 v6, v6, 8, s{sT1}")
    a(f"v_lshl_add_u32 v6, v7, 4, v6")
    for s in range(8):
        if s:
            a(f"v_xor_b32 v7, {32*s}, v6")
        a(f"ds_read_b128 {vr(xf(s),4)}, v{7 if s else 6}")
    signal(a, XR)


def w_reads(a, m1, m2, s):
    for k, m in enumerate((m1, m2)):
        for u in range(2):
            a(f"ds_read_b64_tr_b16 {vr(RA+8*(s%4)+4*k+2*u,2)}, v{vWA} offset:{m*16384 + s*2048 + u*512}")


def gemm_pass(a, m1, m2, swap2, first_issued=False, nxt=None):
    if not first_issued:
        for s in range(4):
            w_reads(a, m1, m2, s)
    for s in range(8):
        r = RA + 8 * (s % 4)
        a(f"s_waitcnt lgkmcnt({12 if s <= 4 else 4 * (7 - s)})")
        c1 = "0" if s == 0 else vr(Z, 16)
        c2 = "0" if s == 0 else vr(ACC, 16)
        a(f"v_mfma_f32_32x32x16_bf16 {vr(Z,16)}, {vr(xf(s),4)}, {vr(r,4)}, {c1}")
        if swap2:
            a(f"v_mfma_f32_32x32x16_bf16 {vr(ACC,16)}, {vr(r+4,4)}, {vr(xf(s),4)}, {c2}")
        else:
            a(f"v_mfma_f32_32x32x16_bf16 {vr(ACC,16)}, {vr(xf(s),4)}, {vr(r+4,4)}, {c2}")
        if s < 4:
            w_reads(a, m1, m2, s + 4)


G2 = 72
def pu_pass(a):
    slot = (88, 48)
    def rd(st):
        for k, m in enumerate((0, 3)):
            for u in range(2):
                a(f"ds_read_b64_tr_b16 {vr(slot[st%2]+4*k+2*u,2)}, v{vWA} offset:{m*16384 + st*2048 + u*512}")
    rd(0)
    rd(1)
    for st in range(8):
        r = slot[st % 2]
        a(f"s_waitcnt lgkmcnt({4 if st < 7 else 0})")
        c1 = "0" if st == 0 else vr(G2, 16)
        c2 = "0" if st == 0 else vr(ACC, 16)
        a(f"v_mfma_f32_32x32x16_bf16 {vr(G2,16)}, {vr(xf(st),4)}, {vr(r,4)}, {c1}")
        a(f"v_mfma_f32_32x32x16_bf16 {vr(ACC,16)}, {vr(r+4,4)}, {vr(xf(st),4)}, {c2}")
        if st + 2 < 8:
            rd(st + 2)


def table_store(a, fused):
    a.c("table rows: hi16 = -log2e * (x B), lo16 = bf16(1 / (x V)); 8 rows at a time through LDS, whole lines out")
    a(f"s_lshl_b32 s{sT1}, s{sWV}, 10")
    a(f"s_add_u32 s{sT1}, s{sT1}, {STG + 2048}")
    a(f"v_lshrrev_b32 v6, 5, v{vLANE}")
    a(f"v_lshl_add_u32 v6, v6, 9, s{sT1}")
    a(f"v_and_b32 v7, 31, v{vLANE}")
    a(f"v_lshl_add_u32 v6, v7, 2, v6")
    a(f"v_lshl_add_u32 v7, v{vLANE}, 4, s{sT1}")
    a(f"s_lshl_b32 s{sT0}, s{sNODE0}, 7")
    a(f"v_lshl_add_u32 v{vTMP}, v{vLANE}, 4, s{sT0}")
    a(f"s_nop 5")
    for j in range(0, 14, 2):
        for k in (j, j + 1):
            a(f"v_rcp_f32 v{ACC+k}, v{ACC+k}")
            a(f"v_mul_f32 v{Z+k}, s{sNL2E}, v{Z+k}")
        for k in (j, j + 1):
            a(f"v_med3_f32 v{ACC+k}, v{ACC+k}, s{sMAXF}, -s{sMAXF}")
        a(f"v_cvt_pk_bf16_f32 v{ACC+j}, v{ACC+j}, v{ACC+j+1}")
        a(f"v_perm_b32 v{Z+j}, v{Z+j}, v{ACC+j}, s{sSELLO}")
        a(f"v_perm_b32 v{Z+j+1}, v{Z+j+1}, v{ACC+j}, s{sSELHI}")
        for k in (j, j + 1):
            a(f"ds_write_b32 v6, v{Z+k} offset:{(k&3)*128}")
        if j % 4 == 2 or j == 12:
            g = j // 4
            a(f"ds_read_b128 {vr(RA+4*g,4)}, v7")
    for g in range(4):
        a(f"s_waitcnt lgkmcnt({(10, 5, 3, 0)[g] if False else 0})") if g == 0 else None
        if g == 3:
            a(f"s_sub_u32 s{sT0}, s{sNR}, 24")
            a(f"s_lshl_b32 s{sT0}, s{sT0}, 3")
            a(f"s_bfm_b64 exec, s{sT0}, 0")
        a(f"buffer_store_dwordx4 {vr(RA+4*g,4)}, v{vTMP}, {sr(SRD_TS,4)}, 0 offen offset:{1024*g} sc1")
    a(f"s_mov_b64 exec, -1")
    a(f"s_nop 0")


vC0 = 88
def load_C(a):
    a.c("edge-feature weights g_w[256+k][32*slice + pi(n)]")
    a(f"v_bfe_u32 v6, v{vLANE}, 2, 1")
    a(f"v_lshlrev_b32 v6, 5, v6")
    a(f"v_bfe_u32 v7, v{vLANE}, 3, 2")
    a(f"v_lshl_add_u32 v6, v7, 3, v6")
    a(f"v_and_b32 v7, 3, v{vLANE}")
    a(f"v_lshl_add_u32 v6, v7, 1, v6")
    a(f"s_and_b32 s{sT0}, s{sWV}, 1")
    a(f"s_lshl_b32 s{sT0}, s{sT0}, 6")
    a(f"s_add_u32 s{sT0}, s{sT0}, {CB}")
    a(f"v_add_u32 v6, s{sT0}, v6")
    for k in range(4):
        a(f"ds_read_u16 v{vC0+k}, v6 offset:{128*k}")


def pop_pack(a):
    a.c("P' operand (rows 26.. replaced by the edge-feature weights / zero)")
    a(f"s_waitcnt lgkmcnt(0)")
    for k in range(4):
        a(f"v_lshlrev_b32 v{vC0+k}, 16, v{vC0+k}")
    for k in range(4):
        a(f"v_mul_f32 v{vC0+k}, s{sNL2E}, v{vC0+k}")
    a(f"v_cvt_pk_bf16_f32 v6, v{vC0}, v{vC0+1}")
    a(f"v_cvt_pk_bf16_f32 v7, v{vC0+2}, v{vC0+3}")
    a(f"s_nop 3")
    for k in range(14):
        a(f"v_mul_f32 v{G2+k}, s{sNL2E}, v{G2+k}")
    for k in range(7):
        a(f"v_cvt_pk_bf16_f32 v{POP+k}, v{G2+2*k}, v{G2+2*k+1}")
    a(f"s_cmp_eq_u32 s{sNN}, 25")
    a(f"s_cselect_b32 s{sT0}, 0xffff, 0")
    a(f"v_and_b32 v{POP+6}, s{sT0}, v{POP+6}")
    a(f"v_cndmask_b32 v{POP+6}, v{POP+6}, v6, {sr(sHM,2)}")
    a(f"v_cndmask_b32 v{POP+7}, 0, v7, {sr(sHM,2)}")


vHS, vHL = 12, 13
def hdr_load(a, fused, addr=7):
    a(f"buffer_load_dwordx2 v[14:15], v{addr}, {sr(SRD_HDR,4)}, 0 offen{' sc1' if fused else ''}")

def hdr_addr(a, addr=7):
    a(f"v_lshrrev_b32 v{addr}, 2, v0")
    a(f"s_lshl_b32 s{sT0}, s{sBIN}, 4")
    a(f"v_lshl_add_u32 v{addr}, v{addr}, 10, s{sT0}")


def hdr_decode(a):
    a(f"v_and_b32 v6, 3, v0")
    a(f"v_and_b32 v7, 0x7ff, v14")
    a(f"v_add_u32 v7, v7, v6")
    a(f"v_mul_u32_u24 v7, 12, v7")
    a(f"v_lshrrev_b32 v{vHS}, 2, v0")
    a(f"v_mul_u32_u24 v{vHS}, 19200, v{vHS}")
    a(f"v_add_u32 v{vHS}, v{vHS}, v7")
    a(f"v_bfe_u32 v{vHL}, v14, 16, 11")
    a(f"v_sub_u32 v{vHL}, v{vHL}, v6")
    a(f"s_mov_b32 s{sRB}, 0")
    a(f"s_mov_b32 s{sC}, {CFAST}")


def rec_loads(a, p, tag, fused, fixed=False):
    sc = " sc1" if fused else ""
    a(f"v_subrev_u32 v7, s{sRB}, v{vHL}")
    a(f"v_and_b32 v6, 3, v0")
    a(f"v_sub_u32 v6, s{sC}, v6")
    a(f"v_min_i32 v7, v7, v6")
    a(f"s_mul_i32 s{sT0}, s{sRB}, 12")
    a(f"v_add_u32 v6, s{sT0}, v{vHS}")
    for i in range(NI):
        a(f"v_cmp_lt_i32 {sr(MASKS[i],2)}, {4*i}, v7")
    for i in range(NI):
        a(f"s_mov_b64 exec, {sr(MASKS[i],2)}")
        if not fixed: a(f"s_cbranch_execz {p}_rl_done{tag}")
        a(f"buffer_load_dwordx3 {vr(REC+4*i,3)}, v6, {sr(SRD_REC,4)}, 0 offen offset:{48*i}{sc}")
    a.lab(f"{p}_rl_done{tag}")
    a(f"s_mov_b64 exec, -1")


def append1(a, p, tag):
    a.c("---------------- list slots for the records (16 sub-block lists)")
    a(f"s_add_u32 s{sT0}, s{sRB}, s{sC}")
    a(f"v_and_b32 v6, 3, v0")
    a(f"v_add_u32 v6, v6, v{vHL}")
    a(f"v_cmp_lt_i32 vcc, s{sT0}, v6")
    a(f"v_mov_b32 v6, 4")
    a(f"v_mov_b32 v7, 64")
    a(f"s_mov_b64 exec, vcc")
    a(f"ds_add_u32 v7, v6 offset:{LCNT}")
    a(f"s_mov_b64 exec, -1")
    a(f"v_mov_b32 v7, 0x3c")
    for i in range(NI):
        q = REC + 4 * i
        a(f"s_mov_b64 exec, {sr(MASKS[i],2)}")
        a(f"s_cbranch_execz {p}_ap1{tag}")
        a(f"v_and_b32_sdwa v{q+3}, v{q+2}, v7 dst_sel:DWORD dst_unused:UNUSED_PAD src0_sel:BYTE_3 src1_sel:DWORD")
        a(f"ds_add_rtn_u32 v{q+3}, v{q+3}, v6 offset:{LCNT}")
    a.lab(f"{p}_ap1{tag}")
    a(f"s_mov_b64 exec, -1")


def append2(a, p):
    for i in range(NI):
        q = REC + 4 * i
        a(f"s_mov_b64 exec, {sr(MASKS[i],2)}")
        a(f"s_cbranch_execz {p}_ap2")
        a(f"v_min_u32 v{q+3}, s{sKMAX}, v{q+3}")
        a(f"v_lshlrev_b32 v6, 1, v{q+3}")
        a(f"ds_write_b32 v{q+3}, v{q+2}")
        a(f"ds_write_b64 v6, {vr(q,2)} offset:{EOFF}")
    a.lab(f"{p}_ap2")
    a(f"s_mov_b64 exec, -1")


vKR, vER, vIW, vIE, vIA0, vIA1, vIT0, vIT1, vOLD, vKEY = 4, 5, 120, 121, 122, 123, 124, 125, 126, 127
vEE, vB16, vZERO = 8, 10, 11
AD, BD = 2, 14


def image_setup(a):
    a.c("---------------- selection image addresses; zero the image")
    a(f"s_lshl_b32 s{sT0}, s{sWV}, 11")
    a(f"s_add_u32 s{sT0}, s{sT0}, {IMG}")
    a(f"v_lshl_add_u32 v{vER}, v{vLANE}, 4, s{sT0}")
    for k in range(4):
        a(f"v_mov_b32 v{Z+k}, 0")
    a(f"v_mov_b32 v{vB16}, 0x3f80")
    a(f"v_mov_b32 v{vZERO}, 0")
    a(f"v_and_b32 v6, 31, v{vLANE}")
    a(f"v_mov_b32 v{AD+1}, 0x3f803f80")
    a(f"v_lshlrev_b32 v7, 2, v6")
    a(f"v_cvt_f32_u32 v7, v7")
    a(f"v_lshrrev_b32 v7, 16, v7")
    a(f"v_or_b32 v7, 0x4b000000, v7")
    a(f"v_mov_b32 v{BD}, 0x47004300")
    a(f"v_cndmask_b32 v{BD}, v{BD}, v{vZERO}, {sr(sHM,2)}")
    a(f"v_cndmask_b32 v{BD+1}, v7, v{vZERO}, {sr(sHM,2)}")
    a(f"v_lshl_add_u32 v6, v6, 6, s{sT0}")
    a(f"v_bfe_u32 v7, v{vLANE}, 2, 2")
    a(f"v_lshl_add_u32 v{vIW}, v7, 4, v6")
    a(f"v_xor_b32 v{vIE}, 56, v{vIW}")
    a(f"v_lshrrev_b32 v6, 5, v{vLANE}")
    a(f"v_lshlrev_b32 v{vIA0}, 4, v6")
    a(f"v_xor_b32 v{vIA0}, v{vIA0}, v{vIW}")
    a(f"v_xor_b32 v{vIA1}, 32, v{vIA0}")
    a(f"v_mov_b32 v{vOLD}, v{vIW}")
    a(f"v_lshl_add_u32 v7, v6, 2, v7")
    a(f"v_lshl_add_u32 v{vIT0}, v7, 6, s{sT0}")
    a(f"v_bfe_u32 v7, v{vLANE}, 4, 1")
    a(f"v_lshlrev_b32 v7, 1, v7")
    a(f"v_and_b32 v{vIT1}, 1, v{vLANE}")
    a(f"v_or_b32 v7, v7, v{vIT1}")
    a(f"v_xor_b32 v7, v7, v6")
    a(f"v_lshl_add_u32 v{vIT0}, v7, 4, v{vIT0}")
    a(f"v_and_b32 v7, 2, v{vLANE}")
    a(f"v_lshl_add_u32 v{vIT0}, v7, 2, v{vIT0}")
    a(f"v_xor_b32 v{vIT1}, 32, v{vIT0}")
    a(f"v_add_u32 v{vIT1}, 512, v{vIT1}")


def gathers(a, R, fused):
    sc = " sc1" if fused and "sc1g" in DIAG else ""
    if "nogather" in DIAG: return
    for k in range(16):
        a(f"buffer_load_dword v{R+k}, v{OFF+k}, {sr(SRD_TG,4)}, 0 offen{sc}")

sN0, sJMP = sM2, sM3
def rec_reads(a):
    a(f"ds_read_b32 v{vKEY}, v{vKR}")
    a(f"ds_read_b64 {vr(vEE,2)}, v{vER} offset:{EOFF}")

def step_calc(a, cur):
    a(f"s_cmp_eq_u32 s{sN0}, {cur}")
    a(f"s_cselect_b32 s{sT1}, s{sJMP}, 128")
    a(f"s_lshl_b32 s{sT2}, s{sT1}, 1")

def step(a):
    a(f"v_add_u32 v{vKR}, s{sT1}, v{vKR}")
    a(f"v_add_u32 v{vER}, s{sT2}, v{vER}")

def image_build(a):
    a(f"ds_write_b16 v{vOLD}, v{vZERO}")
    a(f"v_xor_b32_sdwa v{vOLD}, v{vKEY}, v{vIW} dst_sel:DWORD dst_unused:UNUSED_PAD src0_sel:BYTE_2 src1_sel:DWORD")
    a(f"ds_write_b64 v{vIE}, {vr(vEE,2)}")
    a(f"ds_write_b16 v{vOLD}, v{vB16}")

def aex_reads(a):
    a(f"ds_read_b128 {vr(AEX,4)}, v{vIA0}")
    a(f"ds_read_b128 {vr(AEX+4,4)}, v{vIA1}")

def sag_reads(a):
    for s in range(2):
        a(f"ds_read_b64_tr_b16 {vr(SAG+4*s,2)}, v{vIT0} offset:{1024*s}")
        a(f"ds_read_b64_tr_b16 {vr(SAG+4*s+2,2)}, v{vIT1} offset:{1024*s}")

def addr_cvt(a):
    a(f"v_cvt_f32_ubyte0 v6, v{vKEY}")
    a(f"v_cvt_f32_ubyte1 v7, v{vKEY}")
def addr_pack(a):
    a(f"v_perm_b32 v{AD}, v7, v6, s{sSELHI}")
def addr_mfma(a):
    a(f"v_mfma_f32_32x32x8_bf16 {vr(OFF,16)}, {vr(AD,2)}, {vr(BD,2)}, 0")


def tile_body(a, R, Rn, fused, lb):
    gathers(a, Rn, fused)
    step_calc(a, f"s{sIT}")
    if PRIO:
        a(f"s_sub_u32 s{sT0}, s{sNT}, s{sIT}")
        for lvl, r in enumerate((1, 3, 6)):
            a(f"s_cmp_lg_u32 s{sT0}, {r}")
            a(f"s_cbranch_scc1 {lb}_p{lvl}")
            a(f"s_setprio {lvl}")
            a.lab(f"{lb}_p{lvl}")
    a(f"s_waitcnt vmcnt(16)")
    a(f"v_mfma_f32_32x32x16_bf16 {vr(Z,16)}, {vr(AEX,4)}, {vr(POP,4)}, {vr(R,16)}")
    a(f"v_mfma_f32_32x32x16_bf16 {vr(Z,16)}, {vr(AEX+4,4)}, {vr(POP+4,4)}, {vr(Z,16)}")
    if "nolds" not in DIAG:
        sag_reads(a)
        image_build(a)
        aex_reads(a)
    else:
        a("s_nop 9")
    rec_reads(a)
    step(a)
    for j in range(16):
        if "notrans" not in DIAG: a(f"v_exp_f32 v{Z+j}, v{Z+j}")
        if "b64" in DIAG:
            if j % 2: a(f"v_lshlrev_b64 {vr(R+j-1,2)}, 16, {vr(R+j-1,2)}")
        else:
            a(f"v_lshlrev_b32 v{R+j}, 16, v{R+j}")
    a(f"s_waitcnt lgkmcnt(0)")
    addr_cvt(a)
    for j in range(0, 16, 2):
        if "nopk" in DIAG:
            a(f"v_fma_f32 v{Z+j}, v{Z+j}, v{R+j}, v{R+j}")
            a(f"v_fma_f32 v{Z+j+1}, v{Z+j+1}, v{R+j+1}, v{R+j+1}")
        else:
            a(f"v_pk_fma_f32 {vr(Z+j,2)}, {vr(Z+j,2)}, {vr(R+j,2)}, {vr(R+j,2)}")
        if j == 0:
            addr_pack(a)
    addr_mfma(a)
    for j in range(16):
        if "notrans" not in DIAG: a(f"v_rcp_f32 v{Z+j}, v{Z+j}")
        if j >= 3 and j % 2 == 1:
            k = (j - 3) // 2
            a(f"v_cvt_pk_bf16_f32 v{R+k}, v{Z+2*k}, v{Z+2*k+1}")
    a(f"s_add_u32 s{sIT}, s{sIT}, 1")
    a(f"v_cvt_pk_bf16_f32 v{R+7}, v{Z+14}, v{Z+15}")
    a(f"s_cmp_lt_u32 s{sIT}, s{sNT}")
    a(f"v_mfma_f32_32x32x16_bf16 {vr(ACC,16)}, {vr(R,4)}, {vr(SAG,4)}, {vr(ACC,16)}")
    a(f"v_mfma_f32_32x32x16_bf16 {vr(ACC,16)}, {vr(R+4,4)}, {vr(SAG+4,4)}, {vr(ACC,16)}")


def t_prefetch(a):
    a.c("read this wave's own table rows back once (streams them into the outer caches ahead of the random reads)")
    a(f"s_lshl_b32 s{sT0}, s{sNODE0}, 7")
    a(f"v_lshl_add_u32 v6, v{vLANE}, 4, s{sT0}")
    for kk in range(3):
        a(f"s_mov_b32 m0, {PFS - 1024*kk}")
        a(f"s_nop 0")
        a(f"buffer_load_dwordx4 v6, {sr(SRD_TS,4)}, 0 offen offset:{1024*kk}{' sc1' if 'pfsc1' in DIAG else ''} lds")


def tflag_addr(a, v):
    a(f"s_lshr_b32 s{sT0}, s{sSL}, 1")
    a(f"s_lshl_b32 s{sT0}, s{sT0}, 14")
    a(f"s_add_u32 s{sT0}, s{sT0}, {TFL_OFF}")
    a(f"v_lshl_add_u32 v{v}, v{vLANE}, 8, s{sT0}")


def tflag_loads(a, v):
    a(f"buffer_load_dwordx2 v[16:17], v{v}, {sr(SRD_HDR,4)}, 0 offen sc1")
    a(f"buffer_load_dwordx2 v[18:19], v{v}, {sr(SRD_HDR,4)}, 0 offen offset:128 sc1")


def tflag_issue(a, p):
    a(f"s_cmp_lg_u32 s{sWV}, {TFW}")
    a(f"s_cbranch_scc1 {p}_tf_noissue")
    tflag_addr(a, 3)
    tflag_loads(a, 3)
    a.lab(f"{p}_tf_noissue")


def tflag_wait(a, p):
    a.c("one wave waits until all 128 workgroups of this feature half have published their table rows")
    a(f"s_cmp_lg_u32 s{sWV}, {TFW}")
    a(f"s_cbranch_scc1 {p}_tf_done")
    a(f"s_cmp_lg_u32 s{sNOH}, 0")
    a(f"s_cbranch_scc1 {p}_tf_done")
    tflag_addr(a, 6)
    a(f"s_not_b32 s{sT1}, s{sNON}")
    a(f"s_mov_b32 s{sSPIN}, {SPIN_MAX}")
    a(f"s_branch {p}_tf_first")
    a.lab(f"{p}_tf_loop")
    tflag_loads(a, 6)
    a.lab(f"{p}_tf_first")
    a(f"s_waitcnt vmcnt(0)")
    a(f"v_xor_b32 v20, s{sNON}, v16")
    a(f"v_xor_b32 v21, s{sT1}, v17")
    a(f"v_xor_b32 v22, s{sNON}, v18")
    a(f"v_xor_b32 v23, s{sT1}, v19")
    a(f"v_or3_b32 v20, v20, v21, v22")
    a(f"v_or_b32 v20, v20, v23")
    a(f"v_cmp_ne_u32 vcc, 0, v20")
    a(f"s_and_b64 exec, exec, vcc")
    a(f"s_cbranch_scc0 {p}_tf_end")
    a(f"s_sleep 2")
    a(f"s_sub_u32 s{sSPIN}, s{sSPIN}, 1")
    a(f"s_cbranch_scc0 {p}_tf_loop")
    a.lab(f"{p}_tf_end")
    a(f"s_mov_b64 exec, -1")
    a(f"s_mov_b32 s{sNOH}, 1")
    a.lab(f"{p}_tf_done")


def main_phase(a, p, fused):
    a.lab(f"{p}_round")
    append1(a, p, "a")
    a(f"s_waitcnt lgkmcnt(0)")
    append2(a, p)
    stamp(a, 5)
    image_setup(a)
    tflag_wait(a, p)
    if "nopf" not in DIAG and "pfearly" not in DIAG and "pflate" not in DIAG: t_prefetch(a)
    a(f"s_waitcnt lgkmcnt(0)")
    a(f"s_barrier")
    stamp(a, 6)
    if STAMPS:
        a("s_memtime s[100:101]")
        a("s_waitcnt lgkmcnt(0)")
        a(f"s_mov_b32 s{sM1}, s100")
    a(f"ds_write_b128 v{vER}, {vr(Z,4)}")
    a(f"ds_write_b128 v{vER}, {vr(Z,4)} offset:1024")
    if "pflate" in DIAG or "pf2x" in DIAG: t_prefetch(a)
    a(f"v_and_b32 v6, 31, v{vLANE}")
    a(f"v_lshlrev_b32 v{vKR}, 2, v6")
    a(f"ds_read_b32 v7, v{vKR} offset:{LCNT}")
    cursor_starts(a, 6, 8)
    a(f"v_add_u32 v6, {4*CAP}, v6")
    a(f"s_mul_i32 s{sT0}, s{sLJ}, {LS*4}")
    a(f"s_add_u32 s{sT0}, s{sT0}, {KEYB}")
    a(f"s_and_b32 s{sNT}, s{sWV}, 14")
    a(f"s_or_b32 s{sIT}, s{sWV}, 1")
    a(f"s_waitcnt lgkmcnt(0)")
    a(f"v_readlane_b32 s{sT1}, v7, s{sNT}")
    a(f"v_readlane_b32 s{sT2}, v7, s{sIT}")
    a(f"v_readlane_b32 s{sT3}, v7, 16")
    a(f"v_cmp_lt_u32 vcc, v6, v7")
    a(f"s_and_b32 s{sNT}, vcc_lo, 0xffff")
    a(f"s_cbranch_scc1 {p}_overflow")
    a.c("the last partial tile of the first half moves behind the second half; 64 dummy edges behind that")
    a(f"s_sub_u32 s{sN0}, s{sT1}, s{sT0}")
    a(f"s_and_b32 s{sIT}, s{sN0}, 127")
    a(f"s_sub_u32 s{sT1}, s{sT1}, s{sIT}")
    a(f"v_lshl_add_u32 v6, v{vLANE}, 2, s{sT1}")
    a(f"v_lshlrev_b32 v7, 1, v6")
    a(f"ds_read_b32 v{vKEY}, v6")
    a(f"ds_read_b64 v[8:9], v7 offset:{EOFF}")
    a(f"s_lshr_b32 s{sN0}, s{sN0}, 7")
    a(f"v_lshlrev_b32 v6, 2, v{vLANE}")
    a(f"v_cmp_gt_u32 vcc, s{sIT}, v6")
    a(f"v_add_u32 v6, s{sT2}, v6")
    a(f"v_lshlrev_b32 v7, 1, v6")
    a(f"v_mov_b32 v{AEX}, 0x{N | (46 << 16):x}")
    a(f"s_add_u32 s{sJMP}, s{sT0}, {4*CAP}")
    a(f"s_sub_u32 s{sNT}, s{sT2}, s{sJMP}")
    a(f"s_add_u32 s{sNT}, s{sNT}, s{sIT}")
    a(f"s_add_u32 s{sNT}, s{sNT}, 127")
    a(f"s_lshr_b32 s{sNT}, s{sNT}, 7")
    a(f"s_cmp_eq_u32 s{sN0}, 0")
    a(f"s_cselect_b32 s{sT0}, s{sJMP}, s{sT0}")
    a(f"v_add_u32 v{vKR}, s{sT0}, v{vKR}")
    a(f"v_lshlrev_b32 v{vER}, 1, v{vKR}")
    a(f"s_sub_u32 s{sJMP}, s{sJMP}, s{sT1}")
    a(f"s_add_u32 s{sJMP}, s{sJMP}, 128")
    a(f"s_waitcnt lgkmcnt(0)")
    a(f"v_cndmask_b32 v{vKEY}, v{AEX}, v{vKEY}, vcc")
    a(f"v_cndmask_b32 v8, 0, v8, vcc")
    a(f"v_cndmask_b32 v9, 0, v9, vcc")
    a(f"ds_write_b32 v6, v{vKEY}")
    a(f"ds_write_b64 v7, v[8:9] offset:{EOFF}")
    a(f"s_not_b64 exec, {sr(sHM,2)}")
    a(f"ds_write_b32 v6, v{AEX} offset:256")
    a(f"ds_write_b64 v7, {vr(Z,2)} offset:{EOFF + 512}")
    a(f"s_mov_b64 exec, -1")
    a(f"s_add_u32 s{sNT}, s{sNT}, s{sN0}")
    a(f"s_cmp_eq_u32 s{sNT}, 0")
    a(f"s_cbranch_scc1 {p}_tiles_done")
    a(f"s_mov_b32 s{sIT}, 0")
    rec_reads(a)
    step_calc(a, 1)
    step(a)
    a(f"s_waitcnt lgkmcnt(0)")
    addr_cvt(a)
    addr_pack(a)
    image_build(a)
    addr_mfma(a)
    aex_reads(a)
    rec_reads(a)
    step_calc(a, 2)
    step(a)
    a(f"s_sub_u32 s{sN0}, s{sN0}, 3")
    a(f"s_nop 15")
    a(f"s_waitcnt lgkmcnt(0)")
    addr_cvt(a)
    addr_pack(a)
    gathers(a, RA, fused)
    addr_mfma(a)
    a(f"s_nop 15")
    a(f"s_nop 3")
    if PRIO: a(f"s_setprio 3")
    a.lab(f"{p}_tile")
    for k in range(2):
        tile_body(a, (RA, RBUF)[k & 1], (RBUF, RA)[k & 1], fused, f"{p}_b{k}")
        a(f"s_cbranch_scc0 {p}_tiles_done" if k < 1 else f"s_cbranch_scc1 {p}_tile")
    a.lab(f"{p}_tiles_done")
    a(f"s_cmp_eq_u32 s{sT3}, 0")
    a(f"s_cbranch_scc1 {p}_epi")
    a(f"s_add_u32 s{sRB}, s{sRB}, s{sC}")
    a(f"s_branch {p}_next")
    a.lab(f"{p}_overflow")
    a(f"s_mov_b32 s{sC}, 1")
    a.lab(f"{p}_next")
    a.c("rare path: another round over the runs")
    a(f"s_waitcnt vmcnt(0) lgkmcnt(0)")
    a(f"s_barrier")
    init_counters(a, p, "r")
    rec_loads(a, p, "r", fused)
    a(f"s_waitcnt vmcnt(0) lgkmcnt(0)")
    a(f"s_barrier")
    a(f"s_branch {p}_round")
    a.lab(f"{p}_epi")
    stamp(a, 7)
    if STAMPS:
        a("s_memtime s[100:101]")
        a("s_waitcnt lgkmcnt(0)")
        a(f"s_sub_u32 s{sreg(9)}, s100, s{sM1}")
    a.c("---------------- epilogue: silu, pack, store")
    a(f"v_and_b32 v6, 31, v{vLANE}")
    a(f"v_cmp_gt_u32 vcc, s{sNN}, v6")
    a(f"v_add_u32 v6, s{sNODE0}, v6")
    a(f"v_lshlrev_b32 v6, 8, v6")
    a(f"v_lshrrev_b32 v7, 5, v{vLANE}")
    a(f"v_lshl_add_u32 v6, v7, 5, v6")
    a(f"s_lshl_b32 s{sT0}, s{sSL}, 6")
    a(f"v_add_u32 v6, s{sT0}, v6")
    a(f"s_nop 7")
    for j in range(16):
        a(f"v_mul_f32 v{Z+j}, s{sNL2E}, v{ACC+j}")
    for j in range(16):
        a(f"v_exp_f32 v{Z+j}, v{Z+j}")
    for j in range(16):
        a(f"v_add_f32 v{Z+j}, 1.0, v{Z+j}")
    for j in range(16):
        a(f"v_rcp_f32 v{Z+j}, v{Z+j}")
    for j in range(16):
        a(f"v_mul_f32 v{Z+j}, v{Z+j}, v{ACC+j}")
    for k in range(8):
        a(f"v_cvt_pk_bf16_f32 v{AEX+k}, v{Z+2*k}, v{Z+2*k+1}")
    a(f"s_mov_b64 exec, vcc")
    osc = " sc1" if "osc1" in DIAG else "" if "oplain" in DIAG else " nt"
    a(f"buffer_store_dwordx4 {vr(AEX,4)}, v6, {sr(SRD_OUT,4)}, 0 offen{osc}")
    a(f"buffer_store_dwordx4 {vr(AEX+4,4)}, v6, {sr(SRD_OUT,4)}, 0 offen offset:16{osc}")


def kernel_header(name):
    return f""".globl {name}
.p2align 8
.type {name},@function
{name}:
"""

def kernel_desc(name):
    return f""".amdhsa_kernel {name}
  .amdhsa_next_free_vgpr 128
  .amdhsa_next_free_sgpr 102
  .amdhsa_accum_offset 128
  .amdhsa_group_segment_fixed_size 0
  .amdhsa_kernarg_size 80
  .amdhsa_user_sgpr_count 2
  .amdhsa_user_sgpr_kernarg_segment_ptr 1
  .amdhsa_system_sgpr_workgroup_id_x 1
.end_amdhsa_kernel
"""

def file_head():
    return open("cdna_kernels/" + NAME + ".s.ref").read().split("; Override launch geometry")[0]


def finish(a, kidx):
    stamp(a, 8)
    stamp_out(a, kidx, 12)


def hdr_peek(a):
    a(f"v_mov_b32 v7, 0")
    a(f"ds_read_b32 v13, v7 offset:{NONCE}")
    a(f"ds_read_b64 v[14:15], v{vHS}")


def csum_acc(a, p, tag):
    for i in range(NI):
        q = REC + 4 * i
        a(f"s_mov_b64 exec, {sr(MASKS[i],2)}")
        a(f"s_cbranch_execz {p}_cs{tag}")
        a(f"v_add3_u32 v2, v2, v{q}, v{q+1}")
        a(f"v_add_u32 v2, v2, v{q+2}")
    a.lab(f"{p}_cs{tag}")
    a(f"s_mov_b64 exec, -1")


def csum_check(a):
    a(f"s_nop 1")
    a(f"v_add_u32_dpp v2, v2, v2 quad_perm:[1,0,3,2] row_mask:0xf bank_mask:0xf")
    a(f"s_nop 1")
    a(f"v_add_u32_dpp v2, v2, v2 quad_perm:[2,3,0,1] row_mask:0xf bank_mask:0xf")
    a(f"v_cmp_ne_u32 vcc, v2, v15")
    a(f"s_cmp_lg_u64 vcc, 0")


def gen_1k():
    k = NAME + "_kernel"
    a = A(); p = "K"
    setup(a, p)
    stamp(a, 0)
    front(a, p)
    stamp(a, 2)
    if "frontonly" in DIAG:
        stamp_out(a, 0, 12)
        a("s_endpgm")
    w_addr(a)
    a.c("wait for the weights, the end of the record copy-out (staging area reused) and the x rows")
    a(f"s_lshl_b32 s{sT0}, s{sLJ}, 2")
    a(f"v_mov_b32 v12, s{sT0}")
    a.lab(f"{p}_xw")
    a(f"ds_read_b64 v[14:15], v10 offset:{S3}")
    a(f"ds_read_b32 v13, v12 offset:{XFL}")
    a(f"s_waitcnt lgkmcnt(0)")
    a(f"v_add3_u32 v7, v14, v15, v13")
    a(f"s_nop 0")
    a(f"v_readfirstlane_b32 s{sT0}, v7")
    a(f"s_cmp_eq_u32 s{sT0}, {14 + 1 + 4}")
    a(f"s_cbranch_scc1 {p}_xok")
    a(f"s_sleep 1")
    a(f"s_branch {p}_xw")
    a.lab(f"{p}_xok")
    a(f"s_setprio {XP[4]}")
    a(f"s_cmp_lg_u32 s{sWV}, 15")
    a(f"s_cbranch_scc1 {p}_xp")
    a(f"s_setprio 3")
    a.lab(f"{p}_xp")
    stamp(a, 3)
    poll(a, p, "a", first=True)
    x_reads(a)
    for st in range(4):
        w_reads(a, 1, 2, st)
    gemm_pass(a, 1, 2, False, True)
    poll(a, p, "b")
    table_store(a, True)
    stamp(a, 4)
    a(f"s_setprio {XP[5]}")
    a(f"v_mov_b32 v{vZ0}, 0")
    a(f"s_mov_b32 s{sNT}, 0")
    a(f"s_cmp_lt_u32 s{sWV}, {PUBW}")
    a(f"s_cbranch_scc1 {p}_pass2")
    a(f"s_waitcnt vmcnt(0)")
    a(f"s_call_b64 {sr(sRET,2)}, {p}_sub_pub")
    a(f"s_mov_b32 s{sNT}, 1")
    a.lab(f"{p}_pass2")
    poll(a, p, "c", last=True)
    spin(a, f"{p}_wf2", WF2, 4)
    a(f"v_lshrrev_b32 v{vHS}, 2, v0")
    a(f"v_lshlrev_b32 v{vHS}, 3, v{vHS}")
    a(f"v_add_u32 v{vHS}, {STG}, v{vHS}")
    hdr_peek(a)
    a(f"s_waitcnt lgkmcnt(0)")
    a(f"v_readfirstlane_b32 s{sNON}, v13")
    a(f"s_cmp_eq_u32 s{sNON}, 0")
    a(f"s_cbranch_scc1 {p}_hlate")
    a(f"s_call_b64 {sr(sRET,2)}, {p}_sub_first")
    a.lab(f"{p}_hlate")
    pu_pass(a)
    load_C(a)
    pop_pack(a)
    spin(a, f"{p}_xr", XR, 16)
    a(f"s_cmp_lg_u32 s{sNON}, 0")
    a(f"s_cbranch_scc1 {p}_hgone")
    a.lab(f"{p}_hwait")
    hdr_peek(a)
    a(f"s_waitcnt lgkmcnt(0)")
    a(f"v_readfirstlane_b32 s{sNON}, v13")
    a(f"s_cmp_lg_u32 s{sNON}, 0")
    a(f"s_cbranch_scc1 {p}_hgo")
    a(f"s_cmp_lg_u32 s{sNT}, 0")
    a(f"s_cbranch_scc1 {p}_hsleep")
    a(f"s_waitcnt vmcnt(0)")
    a(f"s_call_b64 {sr(sRET,2)}, {p}_sub_pub")
    a(f"s_mov_b32 s{sNT}, 1")
    a.lab(f"{p}_hsleep")
    a(f"s_sleep 1")
    a(f"s_branch {p}_hwait")
    a.lab(f"{p}_hgo")
    a(f"s_call_b64 {sr(sRET,2)}, {p}_sub_first")
    a.lab(f"{p}_hgone")
    stamp(a, 1)
    a(f"s_cmp_lg_u32 s{sNT}, 0")
    a(f"s_cbranch_scc1 {p}_pubdone")
    a(f"s_waitcnt vmcnt({NI})")
    a(f"s_call_b64 {sr(sRET,2)}, {p}_sub_pub")
    a.lab(f"{p}_pubdone")
    if "pfearly" in DIAG:
        t_prefetch(a)
        a("s_waitcnt vmcnt(3)")
    else:
        a("s_waitcnt vmcnt(0)")
    stamp(a, 11)
    a(f"s_mov_b32 s{sNOH}, 0")
    tflag_issue(a, p)
    a.c("the records must add up to the checksums published with the headers")
    csum_acc(a, p, "a")
    a(f"v_and_b32 v6, 3, v0")
    a(f"v_add_u32 v6, v6, v{vHL}")
    a(f"v_cmp_lt_i32 {sr(sEX,2)}, {CFAST}, v6")
    csum_check(a)
    a(f"s_cbranch_scc1 {p}_vslow")
    a(f"s_cmp_lg_u64 {sr(sEX,2)}, 0")
    a(f"s_cbranch_scc1 {p}_vslow")
    a.lab(f"{p}_valid")
    main_phase(a, p, True)
    finish(a, 0)
    a.lab(f"{p}_end")
    a("s_endpgm")
    a.c("---------------- subroutines / rare paths")
    a.lab(f"{p}_sub_pub")
    a.c("the last wave whose table rows are out publishes the workgroup's flag")
    a(f"v_mov_b32 v6, 1")
    a(f"s_mov_b64 exec, 1")
    a(f"ds_add_rtn_u32 v6, v{vZ0}, v6 offset:{DONE}")
    a(f"ds_read_b32 v7, v{vZ0} offset:{NON2}")
    a(f"s_waitcnt lgkmcnt(0)")
    a(f"v_readfirstlane_b32 s{sT0}, v6")
    a(f"v_readfirstlane_b32 s{sT2}, v7")
    a(f"s_cmp_lg_u32 s{sT0}, 15")
    a(f"s_cbranch_scc1 {p}_nopub")
    a(f"s_lshr_b32 s{sT0}, s{sSL}, 1")
    a(f"s_lshl_b32 s{sT0}, s{sT0}, 7")
    a(f"s_add_u32 s{sT0}, s{sT0}, s{sBIN}")
    a(f"s_lshl_b32 s{sT0}, s{sT0}, 7")
    a(f"s_add_u32 s{sT0}, s{sT0}, {TFL_OFF}")
    a(f"s_not_b32 s{sT1}, s{sT2}")
    a(f"v_mov_b32 v6, s{sT0}")
    a(f"v_mov_b32 v90, s{sT2}")
    a(f"v_mov_b32 v91, s{sT1}")
    a(f"buffer_store_dwordx2 v[90:91], v6, {sr(SRD_HDR,4)}, 0 offen sc1")
    a.lab(f"{p}_nopub")
    a(f"s_mov_b64 exec, -1")
    a(f"s_setpc_b64 {sr(sRET,2)}")
    a.lab(f"{p}_sub_first")
    hdr_decode(a)
    rec_loads(a, p, "f", False, True)
    a(f"s_setpc_b64 {sr(sRET,2)}")
    a.lab(f"{p}_sub_loads")
    rec_loads(a, p, "s", True)
    a(f"s_setpc_b64 {sr(sRET,2)}")
    a.lab(f"{p}_vslow")
    a.c("long runs, or records not yet visible: add up every run completely, again until it fits")
    a(f"s_mov_b32 s{sSPIN}, {SPIN_MAX}")
    a.lab(f"{p}_vs_retry")
    a(f"s_mov_b32 s{sRB}, 0")
    a(f"v_mov_b32 v2, 0")
    a.lab(f"{p}_vs_part")
    a(f"s_call_b64 {sr(sRET,2)}, {p}_sub_loads")
    a(f"s_waitcnt vmcnt(0)")
    csum_acc(a, p, "v")
    a(f"s_add_u32 s{sRB}, s{sRB}, {CFAST}")
    a(f"v_and_b32 v6, 3, v0")
    a(f"v_add_u32 v6, v6, v{vHL}")
    a(f"v_cmp_lt_i32 vcc, s{sRB}, v6")
    a(f"s_cmp_lg_u64 vcc, 0")
    a(f"s_cbranch_scc1 {p}_vs_part")
    csum_check(a)
    a(f"s_cbranch_scc0 {p}_vs_ok")
    a(f"s_sub_u32 s{sSPIN}, s{sSPIN}, 1")
    a(f"s_cbranch_scc0 {p}_vs_retry")
    a.lab(f"{p}_vs_ok")
    a(f"s_mov_b32 s{sRB}, 0")
    a(f"s_call_b64 {sr(sRET,2)}, {p}_sub_loads")
    a(f"s_waitcnt vmcnt(0)")
    a(f"s_branch {p}_valid")
    a.lab(f"{p}_code_end")
    s = file_head()
    s += f"; @launch grid=(256,1,1) block=(1024,1,1) lds={LDS_BYTES}\n"
    s += '.amdgcn_target "amdgcn-amd-amdhsa--gfx950"\n.text\n'
    s += kernel_header(k) + a.text()
    s += '.section .rodata,"a"\n.p2align 6\n' + kernel_desc(k)
    return s


if __name__ == "__main__":
    if "-stamps" in sys.argv:
        STAMPS = True; sys.argv.remove("-stamps")
    if "-noprio" in sys.argv:
        PRIO = False; sys.argv.remove("-noprio")
    for x in list(sys.argv):
        if x.startswith("-TF"):
            TFW = int(x[3:]); sys.argv.remove(x)
        if x.startswith("-PR"):
            PREW = int(x[3:]); sys.argv.remove(x)
        if x.startswith("-PW"):
            PUBW = int(x[3:]); sys.argv.remove(x)
        if x.startswith("-XP"):
            XP = [int(c) for c in x[3:]]; sys.argv.remove(x)
        if x.startswith("-XE"):
            XEARLY = int(x[3:]); sys.argv.remove(x)
        if x.startswith("-PS"):
            PS1, PS2 = map(int, x[3:].split(",")); sys.argv.remove(x)
        if x.startswith("-D"):
            DIAG.add(x[2:]); sys.argv.remove(x)
    mode = gen_1k
    if "-1k" in sys.argv:
        mode = gen_1k; sys.argv.remove("-1k")
    out = sys.argv[1] if len(sys.argv) > 1 else "cdna_kernels/" + NAME + ".s"
    open(out, "w").write(mode())
    print("wrote", out, "LDS", LDS_BYTES)
```

```python
import sys

N = 25000
E = 400000
NAME = "gather_scatter__edge_featured_mpnn_egc__graph"

TS = 25024 * 128
REC_OFF = 0x1000000
REC_BYTES = 250 * 19200
HDR_OFF = 0x1800000
HDR_BYTES = 128 * 256 * 16
TFL_OFF = HDR_BYTES
HDR_SRD_BYTES = HDR_BYTES + 256 * 128
MAGIC_OFF = 0x4B000000

CNT = 0
CSUM = 512
OFFS = 1024
LCNT = 1536
NONCE, DONE, NON2, S2, S3, WF, WF2, XR = [LCNT + 128 + 4 * i for i in range(8)]
XFL = LCNT + 192
assert S3 % 8 == 0
CAP = 270
LS = 2 * CAP + 96
KEYB = 1792
EB = KEYB + 8 * LS * 4
EOFF = EB - 2 * KEYB
IMG = EB + 8 * LS * 8
XB = KEYB
XT = 26 * 256
assert XB % 256 == 0 and XB + 8 * XT + 6 * 256 <= IMG + 2048
STG = IMG
WB = IMG + 32768
PFS = WB + 65536
CB = PFS + 1024
LDS_BYTES = CB + 512
NI = 8
CFAST = 4 * NI

SRD_X, SRD_E, SRD_SRC, SRD_DST, SRD_W, SRD_OUT, SRD_TS, SRD_TG, SRD_REC, SRD_HDR, SRD_G = [4 + 4 * i for i in range(11)]
SRD_DBG = SRD_E
KP = 48
sLJ = 3
sNR = 71
sWV, sBIN, sSL, sNODE0, sNN = 68, 69, 70, 72, 73
sSPIN = 95
sNL2E, sMAXF, sSELLO, sSELHI, sMAGIC, s127, sM1, sM2, sM3, sM4, sSTG, sKMAX = range(74, 86)
sHM = 86
sT0, sT1, sT2, sT3 = 88, 89, 90, 91
sRB, sC, sNT, sIT = 92, 93, 94, 95
sEX = 96
sNON, sNOH = 98, 99
sRET = 64
MASKS = [4 + 2 * i for i in range(8)]
SPIN_MAX = 40000

vLANE = 1
ACC = 32; REC = 96
POP, AEX, SAG = 48, 56, 64
OFF = 16
RA, RBUF, Z = 72, 88, 104


class A:
    def __init__(self):
        self.l = []
    def __call__(self, s):
        for x in s.strip("\n").split("\n"):
            self.l.append("    " + x.strip())
    def lab(self, s):
        self.l.append(s + ":")
    def c(self, s):
        self.l.append("    ; " + s)
    def text(self):
        return "\n".join(self.l) + "\n"


def vr(a, n):
    return f"v[{a}:{a+n-1}]"
def sr(a, n):
    return f"s[{a}:{a+n-1}]"


STAMPS = False
PRIO = True
PS1, PS2 = 8, 8
XEARLY = 4
XP = [0, 0, 0, 0, 2, 1]
PUBW = 4
NS_SL = 3
PREW = 0
MIDPUB = -1
TFW = 14
DIAG = set()
STAMP_OFF = 0x2000000
def sreg(i):
    return KP + i if i < 8 else KP + 4 + i
def stamp(a, i):
    if not STAMPS: return
    a(f"s_memrealtime s[100:101]")
    a(f"s_waitcnt lgkmcnt(0)")
    a(f"s_mov_b32 s{sreg(i)}, s100")

def stamp_out(a, kidx, n):
    if not STAMPS: return
    a(f"s_mov_b64 exec, -1")
    if "dbgmax" in DIAG:
        a(f"s_load_dwordx2 {sr(sT2,2)}, s[0:1], 64")
        a(f"s_waitcnt lgkmcnt(0)")
        srd(a, SRD_W, sT2, sT3, 256)
        a(f"v_mov_b32 v6, 0")
        a(f"ds_read_b32 v8, v6 offset:{NON2}")
        a(f"s_waitcnt lgkmcnt(0)")
        a(f"s_mov_b64 exec, 1")
        for i in (0, 2, 3, 4, 11, 5, 6, 7, 8):
            a(f"v_sub_u32 v7, s{sreg(i)}, v8")
            a(f"v_max_i32 v7, 0, v7")
            a(f"buffer_atomic_umax v7, v6, {sr(SRD_W,4)}, 0 offen offset:{4*(i+1)}")
        return
    a(f"s_add_u32 s{sT2}, s{KP+18}, 0x{STAMP_OFF + kidx * 0x100000:x}")
    a(f"s_addc_u32 s{sT3}, s{KP+19}, 0")
    srd(a, SRD_W, sT2, sT3, 0x100000)
    a(f"s_lshl_b32 s{sT0}, s2, 4")
    a(f"s_add_u32 s{sT0}, s{sT0}, s{sWV}")
    a(f"s_lshl_b32 s{sT0}, s{sT0}, 6")
    a(f"v_mov_b32 v6, s{sT0}")
    for i in range(n):
        a(f"v_mov_b32 v7, s{sreg(i)}")
        a(f"buffer_store_dword v7, v6, {sr(SRD_W,4)}, 0 offen offset:{4*i}")


def srd(a, d, lo, hi, nbytes):
    a(f"s_mov_b32 s{d}, s{lo}")
    a(f"s_mov_b32 s{d+1}, s{hi}")
    a(f"s_mov_b32 s{d+2}, {nbytes}")
    a(f"s_mov_b32 s{d+3}, 0x00020000")


def setup(a, p):
    a.c("---------------- setup")
    a(f"s_cmp_ge_u32 s2, 256")
    a(f"s_cbranch_scc1 {p}_end")
    a(f"s_load_dwordx16 {sr(KP,16)}, s[0:1], 0")
    a(f"s_load_dwordx4 {sr(KP+16,4)}, s[0:1], 64")
    a(f"s_memrealtime s[100:101]")
    a(f"v_lshrrev_b32 v2, 6, v0")
    a(f"v_and_b32 v{vLANE}, 63, v0")
    a(f"v_readfirstlane_b32 s{sWV}, v2")
    a(f"s_lshr_b32 s{sBIN}, s2, 3")
    a(f"s_and_b32 s{sT0}, s2, 3")
    a(f"s_lshl_b32 s{sT0}, s{sT0}, 5")
    a(f"s_or_b32 s{sBIN}, s{sBIN}, s{sT0}")
    a(f"s_lshr_b32 s{sSL}, s2, 1")
    a(f"s_and_b32 s{sSL}, s{sSL}, 2")
    a(f"s_and_b32 s{sT0}, s{sWV}, 1")
    a(f"s_or_b32 s{sSL}, s{sSL}, s{sT0}")
    a(f"s_lshr_b32 s{sLJ}, s{sWV}, 1")
    a(f"s_mul_i32 s{sT0}, s2, 6400")
    a(f"v_lshl_add_u32 v3, v0, 4, s{sT0}")
    a(f"v_lshlrev_b32 v4, 1, v3")
    a(f"s_mul_i32 s{sT1}, s{sSL}, {TS}")
    a(f"s_waitcnt lgkmcnt(0)")
    x, e, src, dst, u, v, g, out, dbg, ws = [KP + 2 * i for i in range(10)]
    a(f"s_or_b32 s{sT0}, s2, s{sWV}")
    a(f"s_cbranch_scc1 {p}_notag")
    a.c("launch tag: the first wave of workgroup 0 publishes a clock value in d_debug, everyone picks it up")
    srd(a, SRD_DBG, dbg, dbg + 1, 256)
    a(f"s_or_b32 s{sT0}, s100, 1")
    a(f"v_mov_b32 v13, s{sT0}")
    a(f"v_mov_b32 v10, 0")
    a(f"s_mov_b64 exec, 1")
    a(f"buffer_store_dword v13, v10, {sr(SRD_DBG,4)}, 0 offen sc1")
    if "xcc" in DIAG:
        a(f"s_getreg_b32 s{sT0}, hwreg(HW_REG_XCC_ID)")
        a(f"v_mov_b32 v12, s{sT0}")
        a(f"buffer_store_dword v12, v10, {sr(SRD_DBG,4)}, 0 offen offset:128")
    a(f"s_mov_b64 exec, -1")
    a.lab(f"{p}_notag")
    srd(a, SRD_DST, dst, dst + 1, E * 4)
    srd(a, SRD_SRC, src, src + 1, E * 4)
    srd(a, SRD_E, e, e + 1, E * 8)
    a(f"s_cmp_ge_u32 s{sWV}, 7")
    a(f"s_cbranch_scc1 {p}_noedge")
    a(f"buffer_load_dwordx4 {vr(vD,4)}, v3, {sr(SRD_DST,4)}, 0 offen")
    a(f"buffer_load_dwordx4 {vr(vS,4)}, v3, {sr(SRD_SRC,4)}, 0 offen")
    a(f"buffer_load_dwordx4 {vr(vE,4)}, v4, {sr(SRD_E,4)}, 0 offen")
    a(f"buffer_load_dwordx4 {vr(vE+4,4)}, v4, {sr(SRD_E,4)}, 0 offen offset:16")
    a.lab(f"{p}_noedge")
    a(f"s_lshl_b32 s{sT0}, s{sBIN}, 3")
    a(f"s_add_u32 s{sT0}, s{sT0}, s{sLJ}")
    a(f"s_mul_i32 s{sT0}, s{sT0}, 3125")
    a(f"s_lshr_b32 s{sNODE0}, s{sT0}, 7")
    a(f"s_add_u32 s{sT0}, s{sT0}, 3125")
    a(f"s_lshr_b32 s{sNN}, s{sT0}, 7")
    a(f"s_cmp_eq_u32 s{sNN}, {N}")
    a(f"s_cselect_b32 s{sNR}, 1, 0")
    a(f"s_sub_u32 s{sNN}, s{sNN}, s{sNODE0}")
    a(f"s_add_u32 s{sNR}, s{sNR}, s{sNN}")
    a(f"s_mov_b32 s{sHM}, 0")
    a(f"s_mov_b32 s{sHM+1}, -1")
    srd(a, SRD_X, x, x + 1, N * 256)
    srd(a, SRD_OUT, out, out + 1, N * 256)
    srd(a, SRD_G, g, g + 1, 260 * 256)
    a(f"s_add_u32 s{sT2}, s{ws}, s{sT1}")
    a(f"s_addc_u32 s{sT3}, s{ws+1}, 0")
    srd(a, SRD_TS, sT2, sT3, (N + 1) * 128)
    a(f"s_sub_u32 s{sT2}, s{sT2}, 0x{MAGIC_OFF:x}")
    a(f"s_subb_u32 s{sT3}, s{sT3}, 0")
    srd(a, SRD_TG, sT2, sT3, MAGIC_OFF + (N + 1) * 128)
    a(f"s_add_u32 s{sT2}, s{ws}, 0x{REC_OFF:x}")
    a(f"s_addc_u32 s{sT3}, s{ws+1}, 0")
    srd(a, SRD_REC, sT2, sT3, REC_BYTES)
    a(f"s_add_u32 s{sT2}, s{ws}, 0x{HDR_OFF:x}")
    a(f"s_addc_u32 s{sT3}, s{ws+1}, 0")
    srd(a, SRD_HDR, sT2, sT3, HDR_SRD_BYTES)
    a(f"s_mov_b32 s{sNL2E}, 0xbfb8aa3b")
    a(f"s_mov_b32 s{sMAXF}, 0x7f7f0000")
    a(f"s_mov_b32 s{sSELLO}, 0x07060100")
    a(f"s_mov_b32 s{sSELHI}, 0x07060302")
    a(f"s_mov_b32 s{sMAGIC}, 10995117")
    a(f"s_mov_b32 s{s127}, 127")
    a(f"s_mov_b32 s{sM1}, 0x260000")
    a(f"s_mov_b32 s{sM2}, 0x100000")
    a(f"s_mov_b32 s{sM3}, 0x080000")
    a(f"s_mov_b32 s{sM4}, 0x38000000")
    a(f"s_mov_b32 s{sSTG}, {STG}")
    a(f"s_mov_b32 s{sKMAX}, {EB - 4}")
    a(f"v_mov_b32 v{vONE}, 1")
    a(f"v_mov_b32 v10, 0")


def spin(a, lab, off, val):
    a.lab(lab)
    a(f"ds_read_b32 v11, v10 offset:{off}")
    a(f"s_waitcnt lgkmcnt(0)")
    a(f"v_readfirstlane_b32 s{sT0}, v11")
    a(f"s_cmp_lt_u32 s{sT0}, {val}")
    a(f"s_cbranch_scc1 {lab}")


def signal(a, off):
    a(f"s_mov_b64 exec, 1")
    a(f"ds_add_u32 v10, v{vONE} offset:{off}")
    a(f"s_mov_b64 exec, -1")


def cursor_starts(a, d, t):
    a(f"v_lshrrev_b32 v{d}, 1, v{vLANE}")
    a(f"v_mul_u32_u24 v{d}, {LS*4}, v{d}")
    a(f"v_and_b32 v{t}, 1, v{vLANE}")
    a(f"v_mul_u32_u24 v{t}, {CAP*4}, v{t}")
    a(f"v_add_u32 v{d}, v{d}, v{t}")
    a(f"v_add_u32 v{d}, {KEYB}, v{d}")


def init_counters(a, p, tag):
    a.c("wave 0: list cursors = list starts")
    a(f"s_cmp_lg_u32 s{sWV}, 0")
    a(f"s_cbranch_scc1 {p}_ic{tag}")
    a(f"v_lshlrev_b32 v7, 2, v{vLANE}")
    cursor_starts(a, 8, 9)
    a(f"v_cmp_gt_u32 vcc, 16, v{vLANE}")
    a(f"s_nop 1")
    a(f"v_cndmask_b32 v8, 0, v8, vcc")
    a(f"s_not_b64 exec, {sr(sHM,2)}")
    a(f"ds_write_b32 v7, v8 offset:{LCNT}")
    a(f"s_mov_b64 exec, -1")
    a.lab(f"{p}_ic{tag}")


def scan64(a, v):
    for sh in (1, 2, 4, 8):
        a(f"s_nop 1")
        a(f"v_add_u32_dpp v{v}, v{v}, v{v} row_shr:{sh} row_mask:0xf bank_mask:0xf bound_ctrl:0")
    a(f"s_nop 1")
    a(f"v_add_u32_dpp v{v}, v{v}, v{v} row_bcast:15 row_mask:0xa bank_mask:0xf")
    a(f"s_nop 1")
    a(f"v_add_u32_dpp v{v}, v{v}, v{v} row_bcast:31 row_mask:0xc bank_mask:0xf")


vD, vS, vE, vK, vB, vR = 72, 76, 80, 88, 92, 96
vTa, vTb, vTc = 100, 101, 102
vONE = 2


vC2, vO2 = 104, 106
def offsets_scan(a):
    a(f"v_lshlrev_b32 v{vTa}, 3, v{vLANE}")
    a(f"ds_read_b64 {vr(vC2,2)}, v{vTa} offset:{CNT}")
    a(f"s_waitcnt lgkmcnt(0)")
    a(f"v_add_u32 v{vTb}, v{vC2}, v{vC2+1}")
    a(f"v_mov_b32 v{vTc}, v{vTb}")
    scan64(a, vTc)
    a(f"v_sub_u32 v{vO2}, v{vTc}, v{vTb}")
    a(f"v_add_u32 v{vO2+1}, v{vO2}, v{vC2}")


def noh_from_non(a):
    a(f"s_mul_i32 s{sNOH}, s{sNON}, 0x9e3779b1")
    a(f"s_and_b32 s{sNOH}, s{sNOH}, 0xf800f800")


def w_dma(a):
    u, v, g = KP + 8, KP + 10, KP + 12
    a(f"s_sub_u32 s{sT2}, s{sWV}, 7")
    a(f"s_and_b32 s{sT3}, s{sT2}, 6")
    a(f"s_lshr_b32 s{sT3}, 0xc9, s{sT3}")
    a(f"s_and_b32 s{sT3}, s{sT3}, 3")
    a(f"s_cmp_eq_u32 s{sT3}, 2")
    a(f"s_cselect_b64 {sr(SRD_W,2)}, {sr(v,2)}, {sr(u,2)}")
    a(f"s_mov_b32 s{SRD_W+2}, 32768")
    a(f"s_cmp_lt_u32 s{sT3}, 2")
    a(f"s_cselect_b64 {sr(SRD_W,2)}, {sr(g,2)}, {sr(SRD_W,2)}")
    a(f"s_cselect_b32 s{SRD_W+2}, 65536, s{SRD_W+2}")
    a(f"s_mov_b32 s{SRD_W+3}, 0x00020000")
    a(f"s_cmp_eq_u32 s{sT3}, 1")
    a(f"s_cselect_b32 s{sT0}, 32768, 0")
    a(f"s_and_b32 s{sT2}, s{sT2}, 1")
    a(f"s_lshl_b32 s{sT1}, s{sT2}, 14")
    a(f"s_add_u32 s{sT0}, s{sT0}, s{sT1}")
    a(f"s_lshr_b32 s{sT1}, s{sSL}, 1")
    a(f"s_lshl_b32 s{sT1}, s{sT1}, 7")
    a(f"s_add_u32 s{sT0}, s{sT0}, s{sT1}")
    a.c("row lane>>3, 16-byte piece lane&7; the 64-byte halves of rows 2,3 (mod 4) are swapped")
    a(f"v_lshrrev_b32 v4, 3, v{vLANE}")
    a(f"v_lshl_add_u32 v4, v4, 8, s{sT0}")
    a(f"v_bfe_u32 v6, v{vLANE}, 4, 1")
    a(f"v_lshlrev_b32 v6, 2, v6")
    a(f"v_xor_b32 v6, v6, v{vLANE}")
    a(f"v_and_b32 v6, 7, v6")
    a(f"v_lshl_add_u32 v4, v6, 4, v4")
    a(f"s_lshl_b32 s{sT0}, s{sT3}, 14")
    a(f"s_lshl_b32 s{sT2}, s{sT2}, 13")
    a(f"s_add_u32 s{sT0}, s{sT0}, s{sT2}")
    for d in range(8):
        a(f"s_add_u32 m0, s{sT0}, {WB + 1024 * d}")
        a(f"s_mov_b32 s{sT1}, {2048 * d}")
        a(f"buffer_load_dwordx4 v4, {sr(SRD_W,4)}, s{sT1} offen lds")


def front(a, p):
    a(f"s_sub_u32 s{sT0}, s{sWV}, 7")
    a(f"s_cmp_ge_u32 s{sT0}, {PREW}")
    a(f"s_cbranch_scc1 {p}_f_nobv")
    w_dma(a)
    a.lab(f"{p}_f_nobv")
    if "nowpf" not in DIAG:
        a(f"s_cmp_lg_u32 s{sWV}, 8")
        a(f"s_cbranch_scc1 {p}_f_nowpf")
        a.c("wave 8: touch 16 of the 512 weight lines this XCD needs (the 32 workgroups of an XCD share them out)")
        u, v, g = KP + 8, KP + 10, KP + 12
        a(f"s_lshr_b32 s{sT2}, s2, 3")
        a(f"s_lshr_b32 s{sT3}, s{sT2}, 3")
        a(f"s_cmp_eq_u32 s{sT3}, 2")
        a(f"s_cselect_b64 {sr(SRD_W,2)}, {sr(v,2)}, {sr(u,2)}")
        a(f"s_mov_b32 s{SRD_W+2}, 32768")
        a(f"s_cmp_lt_u32 s{sT3}, 2")
        a(f"s_cselect_b64 {sr(SRD_W,2)}, {sr(g,2)}, {sr(SRD_W,2)}")
        a(f"s_cselect_b32 s{SRD_W+2}, 65536, s{SRD_W+2}")
        a(f"s_cselect_b32 s{sT0}, 15, 7")
        a(f"s_mov_b32 s{SRD_W+3}, 0x00020000")
        a(f"s_and_b32 s{sT2}, s{sT2}, s{sT0}")
        a(f"s_lshl_b32 s{sT2}, s{sT2}, 12")
        a(f"s_lshr_b32 s{sT1}, s{sSL}, 1")
        a(f"s_lshl_b32 s{sT1}, s{sT1}, 7")
        a(f"s_add_u32 s{sT2}, s{sT2}, s{sT1}")
        a(f"v_lshl_add_u32 v6, v{vLANE}, 8, s{sT2}")
        a(f"s_mov_b64 exec, 0xffff")
        a(f"buffer_load_dword v104, v6, {sr(SRD_W,4)}, 0 offen")
        a(f"s_mov_b64 exec, -1")
        a.lab(f"{p}_f_nowpf")
    a(f"s_cmp_lg_u32 s{sWV}, 7")
    a(f"s_cbranch_scc1 {p}_f_noinit")
    a.c("wave 7: bin counters, checksums, flags = 0, list cursors = list starts")
    a(f"v_lshlrev_b32 v7, 2, v{vLANE}")
    cursor_starts(a, 8, 9)
    a(f"v_cmp_gt_u32 vcc, 16, v{vLANE}")
    for k in range(4):
        a(f"ds_write_b32 v7, v10 offset:{CNT + 256 * k}")
    a(f"v_cndmask_b32 v8, 0, v8, vcc")
    a(f"ds_write_b32 v7, v8 offset:{LCNT}")
    a(f"v_and_b32 v6, 7, v{vLANE}")
    a(f"v_lshrrev_b32 v4, 3, v{vLANE}")
    a(f"v_lshlrev_b32 v4, 8, v4")
    a(f"v_lshl_add_u32 v4, v6, 4, v4")
    a(f"s_lshr_b32 s{sT1}, s{sSL}, 1")
    a(f"s_lshl_b32 s{sT1}, s{sT1}, 7")
    a(f"s_add_u32 s{sT1}, s{sT1}, 65536")
    a(f"s_mov_b32 m0, {CB}")
    a(f"s_not_b64 exec, {sr(sHM,2)}")
    a(f"buffer_load_dwordx4 v4, {sr(SRD_G,4)}, s{sT1} offen lds")
    a(f"s_mov_b64 exec, -1")
    if "noicpf" not in DIAG:
        a.c("read the kernel's own code once so that later instruction fetches find it in the L2")
        a(f"s_getpc_b64 {sr(sT2,2)}")
        a.lab(f"{p}_pc")
        a(f"v_lshlrev_b32 v9, 7, v{vLANE}")
        a(f"global_load_dword v104, v9, {sr(sT2,2)}")
        a(f"v_add_u32 v9, 8192, v9")
        a(f"v_cmp_gt_u32 vcc, {p}_code_end - {p}_pc - 4, v9")
        a(f"s_mov_b64 exec, vcc")
        a(f"global_load_dword v105, v9, {sr(sT2,2)}")
        a(f"s_mov_b64 exec, -1")
    a(f"s_waitcnt lgkmcnt(0)")
    a.lab(f"{p}_f_noinit")
    a(f"s_cmp_lg_u32 s{sWV}, 15")
    a(f"s_cbranch_scc1 {p}_tag_done")
    srd(a, SRD_DBG, KP + 16, KP + 17, 256)
    a(f"buffer_load_dword v72, v10, {sr(SRD_DBG,4)}, 0 offen sc1")
    a.lab(f"{p}_tag_done")
    a(f"s_barrier")
    a(f"s_cmp_eq_u32 s{sWV}, 15")
    a(f"s_cbranch_scc1 {p}_f_w15")
    a(f"s_cmp_ge_u32 s{sWV}, 7")
    a(f"s_cbranch_scc1 {p}_f_loader")

    a.c("---------------- waves 0-6: sort this workgroup's 1600 edges by destination bin")
    a(f"s_setprio {XP[3]}")
    a(f"s_cmp_lt_u32 s2, 250")
    a(f"s_cselect_b32 s{sT0}, 400, 0")
    a(f"v_cmp_gt_u32 vcc, s{sT0}, v0")
    a(f"s_mov_b64 {sr(sEX,2)}, vcc")
    a(f"s_waitcnt vmcnt(3)")
    stamp(a, 1)
    for e in range(4):
        a(f"v_lshl_or_b32 v{vK+e}, v{vD+e}, 7, s{s127}")
        a(f"v_mul_hi_u32 v{vK+e}, v{vK+e}, s{sMAGIC}")
        a(f"v_lshrrev_b32 v{vB+e}, 4, v{vK+e}")
        a(f"v_and_b32 v{vB+e}, 0x1fc, v{vB+e}")
    a(f"s_mov_b64 exec, {sr(sEX,2)}")
    for e in range(4):
        a(f"ds_add_rtn_u32 v{vR+e}, v{vB+e}, v{vONE} offset:{CNT}")
    signal(a, S2)
    for e in range(4):
        d, k = vD + e, vK + e
        a(f"v_lshrrev_b32 v{vTa}, 3, v{k}")
        a(f"v_mul_u32_u24 v{vTb}, 3125, v{vTa}")
        a(f"v_lshrrev_b32 v{vTb}, 7, v{vTb}")
        a(f"v_sub_u32 v{vTb}, v{d}, v{vTb}")
        a(f"v_lshlrev_b32 v{k}, 27, v{vTa}")
        a(f"v_and_b32 v{k}, s{sM4}, v{k}")
        a(f"v_lshlrev_b32 v{vTc}, 17, v{vTb}")
        a(f"v_and_or_b32 v{k}, v{vTc}, s{sM1}, v{k}")
        a(f"v_lshlrev_b32 v{vTc}, 18, v{vTb}")
        a(f"v_and_or_b32 v{k}, v{vTc}, s{sM2}, v{k}")
        a(f"v_lshlrev_b32 v{vTc}, 16, v{vTb}")
        a(f"v_and_or_b32 v{k}, v{vTc}, s{sM3}, v{k}")
    a(f"s_lshl_b32 s{sT1}, s{sWV}, 10")
    a(f"v_lshl_add_u32 v3, v{vLANE}, 4, s{sT1}")
    a(f"v_add_u32 v7, {STG}, v3")
    a(f"s_mul_i32 s{sT1}, s2, 19200")
    a(f"v_add_u32 v3, s{sT1}, v3")
    spin(a, f"{p}_f_s2", S2, 7)
    stamp(a, 10)
    offsets_scan(a)
    a(f"ds_write_b64 v{vTa}, {vr(vO2,2)} offset:{OFFS}")
    for e in range(4):
        a(f"ds_read_b32 v{vD+e}, v{vB+e} offset:{OFFS}")
    a(f"s_mov_b32 s{sT2}, {32768 - N // 2}")
    a(f"s_mov_b32 s{sT3}, 0x04000000")
    a(f"s_waitcnt vmcnt(0)")
    for e in range(4):
        a(f"v_add_lshl_u32 v{vTb}, v{vS+e}, s{sT2}, 11")
        a(f"v_or_b32 v{vK+e}, v{vK+e}, v{vS+e}")
        a(f"v_and_or_b32 v{vK+e}, v{vTb}, s{sT3}, v{vK+e}")
        a(f"v_add3_u32 v{vS+e}, v{vE+2*e}, v{vE+2*e+1}, v{vK+e}")
    a(f"s_waitcnt lgkmcnt(0)")
    for e in range(4):
        a(f"v_add_u32 v{vR+e}, v{vR+e}, v{vD+e}")
        a(f"v_mad_u32_u24 v{vR+e}, v{vR+e}, 12, s{sSTG}")
    a(f"s_mov_b64 exec, {sr(sEX,2)}")
    for e in range(4):
        a(f"ds_write2_b32 v{vR+e}, v{vE+2*e}, v{vE+2*e+1} offset0:0 offset1:1")
        a(f"ds_write_b32 v{vR+e}, v{vK+e} offset:8")
        a(f"ds_add_u32 v{vB+e}, v{vS+e} offset:{CSUM}")
    signal(a, S3)
    spin(a, f"{p}_f_s3", S3, 7)
    a.c("copy the sorted records out: 1 KiB pieces wv, wv + 7, wv + 14")
    for k in range(3):
        a(f"ds_read_b128 {vr(104 + 4*k, 4)}, v7 offset:{7168*k}")
    signal(a, S3)
    a(f"v_add_u32 v4, 7168, v3")
    a(f"v_add_u32 v5, 14336, v3")
    a(f"s_waitcnt lgkmcnt(3)")
    a(f"buffer_store_dwordx4 {vr(104,4)}, v3, {sr(SRD_REC,4)}, 0 offen sc1")
    a(f"s_waitcnt lgkmcnt(2)")
    a(f"buffer_store_dwordx4 {vr(108,4)}, v4, {sr(SRD_REC,4)}, 0 offen sc1")
    a(f"s_cmp_gt_u32 s{sWV}, 4")
    a(f"s_cbranch_scc1 {p}_f_x0")
    a(f"s_cmp_eq_u32 s{sWV}, 4")
    a(f"s_cselect_b32 exec_hi, 0xffff, -1")
    a(f"s_waitcnt lgkmcnt(1)")
    a(f"buffer_store_dwordx4 {vr(112,4)}, v5, {sr(SRD_REC,4)}, 0 offen sc1")
    a(f"s_mov_b64 exec, -1")
    a.lab(f"{p}_f_x0")
    a(f"s_setprio 0")
    a(f"s_branch {p}_f_done")

    a.c("---------------- waves 7-14: one x tile each into LDS; waves 11-14 then half of A / U")
    a.lab(f"{p}_f_loader")
    a(f"s_setprio 3")
    a(f"s_sub_u32 s{sT3}, s{sWV}, 7")
    a(f"s_lshl_b32 s{sT0}, s{sT3}, 2")
    a(f"v_mov_b32 v12, s{sT0}")
    a.c("x tile: row (lane>>4) + 4i, slot lane&15 holds chunk slot ^ (row & 15)")
    a(f"v_lshrrev_b32 v6, 4, v{vLANE}")
    a(f"v_xor_b32 v7, v6, v{vLANE}")
    a(f"v_and_b32 v7, 15, v7")
    a(f"v_lshlrev_b32 v72, 8, v6")
    a(f"v_lshl_add_u32 v72, v7, 4, v72")
    for k in range(1, 4):
        a(f"v_xor_b32 v{72+k}, {64*k}, v72")
    a(f"s_mul_i32 s{sT2}, s{sT3}, {XT}")
    a(f"s_lshl_b32 s{sT1}, s{sBIN}, 3")
    a(f"s_add_u32 s{sT1}, s{sT1}, s{sT3}")
    a(f"s_mul_i32 s{sT1}, s{sT1}, 3125")
    a(f"s_lshr_b32 s{sT1}, s{sT1}, 7")
    a(f"s_lshl_b32 s{sT1}, s{sT1}, 8")
    for i in range(7):
        a(f"s_add_u32 m0, s{sT2}, {XB + 1024 * i}")
        a(f"v_add_u32 v6, s{sT1}, v{72 + (i & 3)}")
        if i < 6:
            a(f"s_add_u32 s{sT1}, s{sT1}, 1024")
        else:
            a(f"s_not_b64 exec, {sr(sHM,2)}")
        a(f"buffer_load_dwordx4 v6, {sr(SRD_X,4)}, 0 offen lds")
    a(f"s_mov_b64 exec, -1")
    a(f"s_cmp_lt_u32 s{sWV}, 11")
    a(f"s_cselect_b32 s{sT0}, 0, 4")
    a(f"v_mov_b32 v11, s{sT0}")
    a(f"s_cmp_lt_u32 s{sWV}, {7 + PREW}")
    a(f"s_cbranch_scc0 {p}_f_wlate")
    a(f"s_setprio 0")
    a(f"s_waitcnt vmcnt(7)")
    a(f"s_mov_b64 exec, 1")
    a(f"ds_add_u32 v11, v{vONE} offset:{WF}")
    a(f"s_mov_b64 exec, -1")
    stamp(a, 10)
    a(f"s_waitcnt vmcnt(0)")
    a(f"ds_write_b32 v12, v{vONE} offset:{XFL}")
    a(f"s_branch {p}_f_done")
    a.lab(f"{p}_f_wlate")
    a(f"s_setprio 2")
    a(f"s_cmp_lt_u32 s{sWV}, 11")
    a(f"s_cbranch_scc1 {p}_f_wnow")
    a(f"s_setprio 0")
    a(f"s_waitcnt vmcnt(0)")
    a(f"ds_write_b32 v12, v{vONE} offset:{XFL}")
    a.lab(f"{p}_f_wnow")
    w_dma(a)
    a(f"s_setprio 0")
    if "auearly" not in DIAG:
        a(f"s_cmp_ge_u32 s{sWV}, 11")
        a(f"s_cbranch_scc1 {p}_f_done")
    a(f"s_waitcnt vmcnt(8)")
    a(f"ds_write_b32 v12, v{vONE} offset:{XFL}")
    a(f"s_waitcnt vmcnt(0)")
    a(f"s_mov_b64 exec, 1")
    a(f"ds_add_u32 v11, v{vONE} offset:{WF}")
    a(f"s_mov_b64 exec, -1")
    stamp(a, 10)
    a(f"s_branch {p}_f_done")

    a.c("---------------- wave 15 publishes / collects the headers")
    a.lab(f"{p}_f_w15")
    a(f"s_setprio 3")
    a(f"s_lshl_b32 s{sT0}, s2, 11")
    a(f"v_lshl_add_u32 v4, v{vLANE}, 5, s{sT0}")
    a(f"s_mov_b32 s{sSPIN}, {SPIN_MAX}")
    for k in range(1, 4):
        a(f"s_sleep {NS_SL}")
        a(f"buffer_load_dword v{72+k}, v10, {sr(SRD_DBG,4)}, 0 offen sc1")
    for k in range(4):
        a(f"s_waitcnt vmcnt({3-k})")
        a(f"v_readfirstlane_b32 s{sNON}, v{72+k}")
        a(f"s_cmp_lg_u32 s{sNON}, 0")
        a(f"s_cbranch_scc1 {p}_tag_ok")
    a.lab(f"{p}_tag_loop")
    a(f"buffer_load_dword v13, v10, {sr(SRD_DBG,4)}, 0 offen sc1")
    a(f"s_waitcnt vmcnt(0)")
    a(f"v_readfirstlane_b32 s{sNON}, v13")
    a(f"s_cmp_lg_u32 s{sNON}, 0")
    a(f"s_cbranch_scc1 {p}_tag_ok")
    a(f"s_sub_u32 s{sSPIN}, s{sSPIN}, 1")
    a(f"s_cbranch_scc0 {p}_tag_loop")
    a(f"s_mov_b32 s{sNON}, 1")
    a.lab(f"{p}_tag_ok")
    stamp(a, 11)
    a(f"v_mov_b32 v13, s{sNON}")
    a(f"ds_write_b32 v10, v13 offset:{NON2}")
    noh_from_non(a)
    spin(a, f"{p}_f_s2b", S2, 7)
    offsets_scan(a)
    for k in range(2):
        a(f"v_lshl_or_b32 v{108+4*k}, v{vC2+k}, 16, v{vO2+k}")
        a(f"v_or_b32 v{108+4*k}, s{sNOH}, v{108+4*k}")
        a(f"v_mov_b32 v{109+4*k}, v13")
    spin(a, f"{p}_f_s3b", S3, 7)
    a(f"ds_read_b32 v110, v{vTa} offset:{CSUM}")
    a(f"ds_read_b32 v114, v{vTa} offset:{CSUM+4}")
    a(f"s_waitcnt lgkmcnt(0)")
    a(f"buffer_store_dwordx4 v[108:111], v4, {sr(SRD_HDR,4)}, 0 offen sc1")
    a(f"buffer_store_dwordx4 v[112:115], v4, {sr(SRD_HDR,4)}, 0 offen offset:16 sc1")
    stamp(a, 1)
    a(f"s_setprio 0")
    a.lab(f"{p}_f_done")


HP = (48, 52, 120, 124)
sPM = 44
def poll(a, p, tag, first=False, last=False):
    if first:
        a(f"s_lshl_b32 s{sT0}, s{sBIN}, 4")
        a(f"v_lshl_add_u32 v8, v{vLANE}, 13, s{sT0}")
        a(f"v_add_u32 v9, 4096, v8")
    a(f"s_cmp_lg_u32 s{sWV}, 15")
    a(f"s_cbranch_scc1 {p}_po{tag}")
    if first:
        a(f"s_mov_b64 {sr(sPM,2)}, -1")
        a(f"s_mov_b32 s{sSPIN}, {SPIN_MAX}")
    else:
        a(f"s_cmp_eq_u64 {sr(sPM,2)}, 0")
        a(f"s_cbranch_scc1 {p}_po{tag}")
        a.lab(f"{p}_pl{tag}")
        a(f"s_waitcnt vmcnt(0)")
        for k, h in enumerate(HP):
            a(f"v_xor_b32 v{h+3}, s{sNOH}, v{h}")
            a(f"v_and_b32 v{h+3}, 0xf800f800, v{h+3}")
            a(f"v_xor_b32 v7, s{sNON}, v{h+1}")
            a(f"v_or3_b32 v6, v{h+3}, v7, {'0' if k == 0 else 'v6'}")
        a(f"v_cmp_ne_u32 {sr(sPM,2)}, 0, v6")
        a(f"s_sub_u32 s{sSPIN}, s{sSPIN}, 1")
        a(f"s_cselect_b64 {sr(sPM,2)}, 0, {sr(sPM,2)}")
        a(f"s_cmp_lg_u64 {sr(sPM,2)}, 0")
        a(f"s_cbranch_scc1 {p}_pa{tag}")
        a(f"v_lshlrev_b32 v7, 5, v{vLANE}")
        a(f"v_add_u32 v7, {STG}, v7")
        a(f"v_mov_b32 v6, s{sNON}")
        for k, h in enumerate(HP):
            a(f"ds_write2_b32 v7, v{h}, v{h+2} offset0:{2*k} offset1:{2*k+1}")
        a(f"ds_write_b32 v10, v6 offset:{NONCE}")
        stamp(a, 10)
        a(f"s_branch {p}_po{tag}")
        a.lab(f"{p}_pa{tag}")
        if last:
            a(f"s_sleep {PS2}")
    a(f"s_mov_b64 exec, {sr(sPM,2)}")
    for k, h in enumerate(HP):
        a(f"buffer_load_dwordx3 {vr(h,3)}, v{8 + (k>>1)}, {sr(SRD_HDR,4)}, 0 offen offset:{2048*(k&1)} sc1")
    a(f"s_mov_b64 exec, -1")
    if last:
        a(f"s_branch {p}_pl{tag}")
    a.lab(f"{p}_po{tag}")


vZ0 = 2
vXA, vWA, vTMP = 3, 4, 5
def w_addr(a):
    a(f"s_and_b32 s{sT1}, s{sWV}, 1")
    a(f"v_lshrrev_b32 v6, 5, v{vLANE}")
    a(f"v_lshlrev_b32 v{vWA}, 10, v6")
    a(f"v_bfe_u32 v6, v{vLANE}, 2, 2")
    a(f"v_lshl_add_u32 v{vWA}, v6, 7, v{vWA}")
    a(f"v_bfe_u32 v6, v{vLANE}, 3, 1")
    a(f"v_xor_b32 v6, s{sT1}, v6")
    a(f"v_lshl_add_u32 v{vWA}, v6, 6, v{vWA}")
    a(f"v_and_b32 v6, 1, v{vLANE}")
    a(f"v_lshl_add_u32 v{vWA}, v6, 5, v{vWA}")
    a(f"v_and_b32 v6, 16, v{vLANE}")
    a(f"v_add_u32 v{vWA}, v6, v{vWA}")
    a(f"v_and_b32 v6, 2, v{vLANE}")
    a(f"v_lshl_add_u32 v{vWA}, v6, 2, v{vWA}")
    a(f"v_add_u32 v{vWA}, {WB}, v{vWA}")


def xf(s):
    return 16 + 4 * s if s < 4 else 56 + 4 * (s - 4)

def x_reads(a):
    a.c("x fragments of this wave's sub-block")
    a(f"s_mul_i32 s{sT1}, s{sLJ}, {XT}")
    a(f"s_add_u32 s{sT1}, s{sT1}, {XB}")
    a(f"v_and_b32 v6, 31, v{vLANE}")
    a(f"v_lshrrev_b32 v7, 5, v{vLANE}")
    a(f"v_xor_b32 v7, v7, v6")
    a(f"v_and_b32 v7, 15, v7")
    a(f"v_lshl_add_u32 v6, v6, 8, s{sT1}")
    a(f"v_lshl_add_u32 v6, v7, 4, v6")
    for s in range(8):
        if s:
            a(f"v_xor_b32 v7, {32*s}, v6")
        a(f"ds_read_b128 {vr(xf(s),4)}, v{7 if s else 6}")
    signal(a, XR)


def w_reads(a, m1, m2, s):
    for k, m in enumerate((m1, m2)):
        for u in range(2):
            a(f"ds_read_b64_tr_b16 {vr(RA+8*(s%4)+4*k+2*u,2)}, v{vWA} offset:{m*16384 + s*2048 + u*512}")


def gemm_pass(a, m1, m2, swap2, first_issued=False, nxt=None):
    if not first_issued:
        for s in range(4):
            w_reads(a, m1, m2, s)
    for s in range(8):
        r = RA + 8 * (s % 4)
        a(f"s_waitcnt lgkmcnt({12 if s <= 4 else 4 * (7 - s)})")
        c1 = "0" if s == 0 else vr(Z, 16)
        c2 = "0" if s == 0 else vr(ACC, 16)
        a(f"v_mfma_f32_32x32x16_bf16 {vr(Z,16)}, {vr(xf(s),4)}, {vr(r,4)}, {c1}")
        if swap2:
            a(f"v_mfma_f32_32x32x16_bf16 {vr(ACC,16)}, {vr(r+4,4)}, {vr(xf(s),4)}, {c2}")
        else:
            a(f"v_mfma_f32_32x32x16_bf16 {vr(ACC,16)}, {vr(xf(s),4)}, {vr(r+4,4)}, {c2}")
        if s < 4:
            w_reads(a, m1, m2, s + 4)


G2 = 72
def pu_pass(a, p):
    slot = (88, 48)
    def rd(st):
        for k, m in enumerate((0, 3)):
            for u in range(2):
                a(f"ds_read_b64_tr_b16 {vr(slot[st%2]+4*k+2*u,2)}, v{vWA} offset:{m*16384 + st*2048 + u*512}")
    rd(0)
    rd(1)
    for st in range(8):
        r = slot[st % 2]
        a(f"s_waitcnt lgkmcnt({4 if st < 7 else 0})")
        c1 = "0" if st == 0 else vr(G2, 16)
        c2 = "0" if st == 0 else vr(ACC, 16)
        a(f"v_mfma_f32_32x32x16_bf16 {vr(G2,16)}, {vr(xf(st),4)}, {vr(r,4)}, {c1}")
        a(f"v_mfma_f32_32x32x16_bf16 {vr(ACC,16)}, {vr(r+4,4)}, {vr(xf(st),4)}, {c2}")
        if st + 2 < 8:
            rd(st + 2)
        if st == MIDPUB:
            a(f"s_cmp_lg_u32 s{sNT}, 0")
            a(f"s_cbranch_scc1 {p}_mp_done")
            a(f"s_cmp_lg_u32 s{sNON}, 0")
            a(f"s_cbranch_scc1 {p}_mp_rec")
            a(f"s_waitcnt vmcnt(0)")
            a.lab(f"{p}_mp_rec")
            a(f"s_waitcnt vmcnt({NI})")
            a(f"s_call_b64 {sr(sRET,2)}, {p}_sub_pub")
            a(f"s_mov_b32 s{sNT}, 1")
            a.lab(f"{p}_mp_done")


def table_store(a, fused):
    a.c("table rows: hi16 = -log2e * (x B), lo16 = bf16(1 / (x V)); 8 rows at a time through LDS, whole lines out")
    a(f"s_lshl_b32 s{sT1}, s{sWV}, 10")
    a(f"s_add_u32 s{sT1}, s{sT1}, {STG + 2048}")
    a(f"v_lshrrev_b32 v6, 5, v{vLANE}")
    a(f"v_lshl_add_u32 v6, v6, 9, s{sT1}")
    a(f"v_and_b32 v7, 31, v{vLANE}")
    a(f"v_lshl_add_u32 v6, v7, 2, v6")
    a(f"v_lshl_add_u32 v7, v{vLANE}, 4, s{sT1}")
    a(f"s_lshl_b32 s{sT0}, s{sNODE0}, 7")
    a(f"v_lshl_add_u32 v{vTMP}, v{vLANE}, 4, s{sT0}")
    a(f"s_nop 5")
    for j in range(0, 14, 2):
        for k in (j, j + 1):
            a(f"v_rcp_f32 v{ACC+k}, v{ACC+k}")
            a(f"v_mul_f32 v{Z+k}, s{sNL2E}, v{Z+k}")
        for k in (j, j + 1):
            a(f"v_med3_f32 v{ACC+k}, v{ACC+k}, s{sMAXF}, -s{sMAXF}")
        a(f"v_cvt_pk_bf16_f32 v{ACC+j}, v{ACC+j}, v{ACC+j+1}")
        a(f"v_perm_b32 v{Z+j}, v{Z+j}, v{ACC+j}, s{sSELLO}")
        a(f"v_perm_b32 v{Z+j+1}, v{Z+j+1}, v{ACC+j}, s{sSELHI}")
        for k in (j, j + 1):
            a(f"ds_write_b32 v6, v{Z+k} offset:{(k&3)*128}")
        if j % 4 == 2 or j == 12:
            g = j // 4
            a(f"ds_read_b128 {vr(RA+4*g,4)}, v7")
    for g in range(4):
        a(f"s_waitcnt lgkmcnt({(10, 5, 3, 0)[g] if False else 0})") if g == 0 else None
        if g == 3:
            a(f"s_sub_u32 s{sT0}, s{sNR}, 24")
            a(f"s_lshl_b32 s{sT0}, s{sT0}, 3")
            a(f"s_bfm_b64 exec, s{sT0}, 0")
        a(f"buffer_store_dwordx4 {vr(RA+4*g,4)}, v{vTMP}, {sr(SRD_TS,4)}, 0 offen offset:{1024*g} sc1")
    a(f"s_mov_b64 exec, -1")
    a(f"s_nop 0")


vC0 = 88
def load_C(a):
    a.c("edge-feature weights g_w[256+k][32*slice + pi(n)]")
    a(f"v_bfe_u32 v6, v{vLANE}, 2, 1")
    a(f"v_lshlrev_b32 v6, 5, v6")
    a(f"v_bfe_u32 v7, v{vLANE}, 3, 2")
    a(f"v_lshl_add_u32 v6, v7, 3, v6")
    a(f"v_and_b32 v7, 3, v{vLANE}")
    a(f"v_lshl_add_u32 v6, v7, 1, v6")
    a(f"s_and_b32 s{sT0}, s{sWV}, 1")
    a(f"s_lshl_b32 s{sT0}, s{sT0}, 6")
    a(f"s_add_u32 s{sT0}, s{sT0}, {CB}")
    a(f"v_add_u32 v6, s{sT0}, v6")
    for k in range(4):
        a(f"ds_read_u16 v{vC0+k}, v6 offset:{128*k}")


def pop_pack(a):
    a.c("P' operand (rows 26.. replaced by the edge-feature weights / zero)")
    a(f"s_waitcnt lgkmcnt(0)")
    for k in range(4):
        a(f"v_lshlrev_b32 v{vC0+k}, 16, v{vC0+k}")
    for k in range(4):
        a(f"v_mul_f32 v{vC0+k}, s{sNL2E}, v{vC0+k}")
    a(f"v_cvt_pk_bf16_f32 v6, v{vC0}, v{vC0+1}")
    a(f"v_cvt_pk_bf16_f32 v7, v{vC0+2}, v{vC0+3}")
    a(f"s_nop 3")
    for k in range(14):
        a(f"v_mul_f32 v{G2+k}, s{sNL2E}, v{G2+k}")
    for k in range(7):
        a(f"v_cvt_pk_bf16_f32 v{POP+k}, v{G2+2*k}, v{G2+2*k+1}")
    a(f"s_cmp_eq_u32 s{sNN}, 25")
    a(f"s_cselect_b32 s{sT0}, 0xffff, 0")
    a(f"v_and_b32 v{POP+6}, s{sT0}, v{POP+6}")
    a(f"v_cndmask_b32 v{POP+6}, v{POP+6}, v6, {sr(sHM,2)}")
    a(f"v_cndmask_b32 v{POP+7}, 0, v7, {sr(sHM,2)}")


vHS, vHL = 12, 13
def hdr_load(a, fused, addr=7):
    a(f"buffer_load_dwordx2 v[14:15], v{addr}, {sr(SRD_HDR,4)}, 0 offen{' sc1' if fused else ''}")

def hdr_addr(a, addr=7):
    a(f"v_lshrrev_b32 v{addr}, 2, v0")
    a(f"s_lshl_b32 s{sT0}, s{sBIN}, 4")
    a(f"v_lshl_add_u32 v{addr}, v{addr}, 10, s{sT0}")


def hdr_decode(a):
    a(f"v_and_b32 v6, 3, v0")
    a(f"v_and_b32 v7, 0x7ff, v14")
    a(f"v_add_u32 v7, v7, v6")
    a(f"v_mul_u32_u24 v7, 12, v7")
    a(f"v_lshrrev_b32 v{vHS}, 2, v0")
    a(f"v_mul_u32_u24 v{vHS}, 19200, v{vHS}")
    a(f"v_add_u32 v{vHS}, v{vHS}, v7")
    a(f"v_bfe_u32 v{vHL}, v14, 16, 11")
    a(f"v_sub_u32 v{vHL}, v{vHL}, v6")
    a(f"s_mov_b32 s{sRB}, 0")
    a(f"s_mov_b32 s{sC}, {CFAST}")


def rec_loads(a, p, tag, fused, fixed=False):
    sc = " sc1" if fused else ""
    a(f"v_subrev_u32 v7, s{sRB}, v{vHL}")
    a(f"v_and_b32 v6, 3, v0")
    a(f"v_sub_u32 v6, s{sC}, v6")
    a(f"v_min_i32 v7, v7, v6")
    a(f"s_mul_i32 s{sT0}, s{sRB}, 12")
    a(f"v_add_u32 v6, s{sT0}, v{vHS}")
    for i in range(NI):
        a(f"v_cmp_lt_i32 {sr(MASKS[i],2)}, {4*i}, v7")
    for i in range(NI):
        a(f"s_mov_b64 exec, {sr(MASKS[i],2)}")
        if not fixed: a(f"s_cbranch_execz {p}_rl_done{tag}")
        a(f"buffer_load_dwordx3 {vr(REC+4*i,3)}, v6, {sr(SRD_REC,4)}, 0 offen offset:{48*i}{sc}")
    a.lab(f"{p}_rl_done{tag}")
    a(f"s_mov_b64 exec, -1")


def append1(a, p, tag):
    a.c("---------------- list slots for the records (16 sub-block lists)")
    a(f"s_add_u32 s{sT0}, s{sRB}, s{sC}")
    a(f"v_and_b32 v6, 3, v0")
    a(f"v_add_u32 v6, v6, v{vHL}")
    a(f"v_cmp_lt_i32 vcc, s{sT0}, v6")
    a(f"v_mov_b32 v6, 4")
    a(f"v_mov_b32 v7, 64")
    a(f"s_mov_b64 exec, vcc")
    a(f"ds_add_u32 v7, v6 offset:{LCNT}")
    a(f"s_mov_b64 exec, -1")
    a(f"v_mov_b32 v7, 0x3c")
    for i in range(NI):
        q = REC + 4 * i
        a(f"s_mov_b64 exec, {sr(MASKS[i],2)}")
        a(f"s_cbranch_execz {p}_ap1{tag}")
        a(f"v_and_b32_sdwa v{q+3}, v{q+2}, v7 dst_sel:DWORD dst_unused:UNUSED_PAD src0_sel:BYTE_3 src1_sel:DWORD")
        a(f"ds_add_rtn_u32 v{q+3}, v{q+3}, v6 offset:{LCNT}")
    a.lab(f"{p}_ap1{tag}")
    a(f"s_mov_b64 exec, -1")


def append2(a, p):
    for i in range(NI):
        q = REC + 4 * i
        a(f"s_mov_b64 exec, {sr(MASKS[i],2)}")
        a(f"s_cbranch_execz {p}_ap2")
        a(f"v_min_u32 v{q+3}, s{sKMAX}, v{q+3}")
        a(f"v_lshlrev_b32 v6, 1, v{q+3}")
        a(f"ds_write_b32 v{q+3}, v{q+2}")
        a(f"ds_write_b64 v6, {vr(q,2)} offset:{EOFF}")
    a.lab(f"{p}_ap2")
    a(f"s_mov_b64 exec, -1")


vKR, vER, vIW, vIE, vIA0, vIA1, vIT0, vIT1, vOLD, vKEY = 4, 5, 120, 121, 122, 123, 124, 125, 126, 127
vEE, vB16, vZERO = 8, 10, 11
AD, BD = 2, 14


def image_setup(a):
    a.c("---------------- selection image addresses; zero the image")
    a(f"s_lshl_b32 s{sT0}, s{sWV}, 11")
    a(f"s_add_u32 s{sT0}, s{sT0}, {IMG}")
    a(f"v_lshl_add_u32 v{vER}, v{vLANE}, 4, s{sT0}")
    for k in range(4):
        a(f"v_mov_b32 v{Z+k}, 0")
    a(f"v_mov_b32 v{vB16}, 0x3f80")
    a(f"v_mov_b32 v{vZERO}, 0")
    a(f"v_and_b32 v6, 31, v{vLANE}")
    a(f"v_mov_b32 v{AD+1}, 0x3f803f80")
    a(f"v_lshlrev_b32 v7, 2, v6")
    a(f"v_cvt_f32_u32 v7, v7")
    a(f"v_lshrrev_b32 v7, 16, v7")
    a(f"v_or_b32 v7, 0x4b000000, v7")
    a(f"v_mov_b32 v{BD}, 0x47004300")
    a(f"v_cndmask_b32 v{BD}, v{BD}, v{vZERO}, {sr(sHM,2)}")
    a(f"v_cndmask_b32 v{BD+1}, v7, v{vZERO}, {sr(sHM,2)}")
    a(f"v_lshl_add_u32 v6, v6, 6, s{sT0}")
    a(f"v_bfe_u32 v7, v{vLANE}, 2, 2")
    a(f"v_lshl_add_u32 v{vIW}, v7, 4, v6")
    a(f"v_xor_b32 v{vIE}, 56, v{vIW}")
    a(f"v_lshrrev_b32 v6, 5, v{vLANE}")
    a(f"v_lshlrev_b32 v{vIA0}, 4, v6")
    a(f"v_xor_b32 v{vIA0}, v{vIA0}, v{vIW}")
    a(f"v_xor_b32 v{vIA1}, 32, v{vIA0}")
    a(f"v_mov_b32 v{vOLD}, v{vIW}")
    a(f"v_lshl_add_u32 v7, v6, 2, v7")
    a(f"v_lshl_add_u32 v{vIT0}, v7, 6, s{sT0}")
    a(f"v_bfe_u32 v7, v{vLANE}, 4, 1")
    a(f"v_lshlrev_b32 v7, 1, v7")
    a(f"v_and_b32 v{vIT1}, 1, v{vLANE}")
    a(f"v_or_b32 v7, v7, v{vIT1}")
    a(f"v_xor_b32 v7, v7, v6")
    a(f"v_lshl_add_u32 v{vIT0}, v7, 4, v{vIT0}")
    a(f"v_and_b32 v7, 2, v{vLANE}")
    a(f"v_lshl_add_u32 v{vIT0}, v7, 2, v{vIT0}")
    a(f"v_xor_b32 v{vIT1}, 32, v{vIT0}")
    a(f"v_add_u32 v{vIT1}, 512, v{vIT1}")


def gathers(a, R, fused):
    sc = " sc1" if fused and "sc1g" in DIAG else ""
    if "nogather" in DIAG: return
    for k in range(16):
        a(f"buffer_load_dword v{R+k}, v{OFF+k}, {sr(SRD_TG,4)}, 0 offen{sc}")

sN0, sJMP = sM2, sM3
def rec_reads(a):
    a(f"ds_read_b32 v{vKEY}, v{vKR}")
    a(f"ds_read_b64 {vr(vEE,2)}, v{vER} offset:{EOFF}")

def step_calc(a, cur):
    a(f"s_cmp_eq_u32 s{sN0}, {cur}")
    a(f"s_cselect_b32 s{sT1}, s{sJMP}, 128")
    a(f"s_lshl_b32 s{sT2}, s{sT1}, 1")

def step(a):
    a(f"v_add_u32 v{vKR}, s{sT1}, v{vKR}")
    a(f"v_add_u32 v{vER}, s{sT2}, v{vER}")

def image_build(a):
    a(f"ds_write_b16 v{vOLD}, v{vZERO}")
    a(f"v_xor_b32_sdwa v{vOLD}, v{vKEY}, v{vIW} dst_sel:DWORD dst_unused:UNUSED_PAD src0_sel:BYTE_2 src1_sel:DWORD")
    a(f"ds_write_b64 v{vIE}, {vr(vEE,2)}")
    a(f"ds_write_b16 v{vOLD}, v{vB16}")

def aex_reads(a):
    a(f"ds_read_b128 {vr(AEX,4)}, v{vIA0}")
    a(f"ds_read_b128 {vr(AEX+4,4)}, v{vIA1}")

def sag_reads(a):
    for s in range(2):
        a(f"ds_read_b64_tr_b16 {vr(SAG+4*s,2)}, v{vIT0} offset:{1024*s}")
        a(f"ds_read_b64_tr_b16 {vr(SAG+4*s+2,2)}, v{vIT1} offset:{1024*s}")

def addr_cvt(a):
    a(f"v_cvt_f32_ubyte0 v6, v{vKEY}")
    a(f"v_cvt_f32_ubyte1 v7, v{vKEY}")
def addr_pack(a):
    a(f"v_perm_b32 v{AD}, v7, v6, s{sSELHI}")
def addr_mfma(a):
    a(f"v_mfma_f32_32x32x8_bf16 {vr(OFF,16)}, {vr(AD,2)}, {vr(BD,2)}, 0")


def tile_body(a, R, Rn, fused, lb):
    gathers(a, Rn, fused)
    step_calc(a, f"s{sIT}")
    if PRIO:
        a(f"s_sub_u32 s{sT0}, s{sNT}, s{sIT}")
        for lvl, r in enumerate((1, 3, 6)):
            a(f"s_cmp_lg_u32 s{sT0}, {r}")
            a(f"s_cbranch_scc1 {lb}_p{lvl}")
            a(f"s_setprio {lvl}")
            a.lab(f"{lb}_p{lvl}")
    a(f"s_waitcnt vmcnt(16)")
    a(f"v_mfma_f32_32x32x16_bf16 {vr(Z,16)}, {vr(AEX,4)}, {vr(POP,4)}, {vr(R,16)}")
    a(f"v_mfma_f32_32x32x16_bf16 {vr(Z,16)}, {vr(AEX+4,4)}, {vr(POP+4,4)}, {vr(Z,16)}")
    if "nolds" not in DIAG:
        sag_reads(a)
        image_build(a)
        aex_reads(a)
    else:
        a("s_nop 9")
    rec_reads(a)
    step(a)
    for j in range(16):
        if "notrans" not in DIAG: a(f"v_exp_f32 v{Z+j}, v{Z+j}")
        if "b64" in DIAG:
            if j % 2: a(f"v_lshlrev_b64 {vr(R+j-1,2)}, 16, {vr(R+j-1,2)}")
        else:
            a(f"v_lshlrev_b32 v{R+j}, 16, v{R+j}")
    a(f"s_waitcnt lgkmcnt(0)")
    addr_cvt(a)
    for j in range(0, 16, 2):
        if "nopk" in DIAG:
            a(f"v_fma_f32 v{Z+j}, v{Z+j}, v{R+j}, v{R+j}")
            a(f"v_fma_f32 v{Z+j+1}, v{Z+j+1}, v{R+j+1}, v{R+j+1}")
        else:
            a(f"v_pk_fma_f32 {vr(Z+j,2)}, {vr(Z+j,2)}, {vr(R+j,2)}, {vr(R+j,2)}")
        if j == 0:
            addr_pack(a)
    addr_mfma(a)
    for j in range(16):
        if "notrans" not in DIAG: a(f"v_rcp_f32 v{Z+j}, v{Z+j}")
        if j >= 3 and j % 2 == 1:
            k = (j - 3) // 2
            a(f"v_cvt_pk_bf16_f32 v{R+k}, v{Z+2*k}, v{Z+2*k+1}")
    a(f"s_add_u32 s{sIT}, s{sIT}, 1")
    a(f"v_cvt_pk_bf16_f32 v{R+7}, v{Z+14}, v{Z+15}")
    a(f"s_cmp_lt_u32 s{sIT}, s{sNT}")
    a(f"v_mfma_f32_32x32x16_bf16 {vr(ACC,16)}, {vr(R,4)}, {vr(SAG,4)}, {vr(ACC,16)}")
    a(f"v_mfma_f32_32x32x16_bf16 {vr(ACC,16)}, {vr(R+4,4)}, {vr(SAG+4,4)}, {vr(ACC,16)}")


def t_prefetch(a):
    a.c("read this wave's own table rows back once (streams them into the outer caches ahead of the random reads)")
    a(f"s_lshl_b32 s{sT0}, s{sNODE0}, 7")
    a(f"v_lshl_add_u32 v6, v{vLANE}, 4, s{sT0}")
    for kk in range(3):
        a(f"s_mov_b32 m0, {PFS - 1024*kk}")
        a(f"s_nop 0")
        a(f"buffer_load_dwordx4 v6, {sr(SRD_TS,4)}, 0 offen offset:{1024*kk}{' sc1' if 'pfsc1' in DIAG else ''} lds")


def tflag_addr(a, v):
    a(f"s_lshr_b32 s{sT0}, s{sSL}, 1")
    a(f"s_lshl_b32 s{sT0}, s{sT0}, 14")
    a(f"s_add_u32 s{sT0}, s{sT0}, {TFL_OFF}")
    a(f"v_lshl_add_u32 v{v}, v{vLANE}, 8, s{sT0}")


def tflag_loads(a, v):
    a(f"buffer_load_dwordx2 v[16:17], v{v}, {sr(SRD_HDR,4)}, 0 offen sc1")
    a(f"buffer_load_dwordx2 v[18:19], v{v}, {sr(SRD_HDR,4)}, 0 offen offset:128 sc1")


def tflag_issue(a, p):
    a(f"s_cmp_lg_u32 s{sWV}, {TFW}")
    a(f"s_cbranch_scc1 {p}_tf_noissue")
    tflag_addr(a, 3)
    tflag_loads(a, 3)
    a.lab(f"{p}_tf_noissue")


def tflag_wait(a, p):
    a.c("one wave waits until all 128 workgroups of this feature half have published their table rows")
    a(f"s_cmp_lg_u32 s{sWV}, {TFW}")
    a(f"s_cbranch_scc1 {p}_tf_done")
    a(f"s_cmp_lg_u32 s{sNOH}, 0")
    a(f"s_cbranch_scc1 {p}_tf_done")
    tflag_addr(a, 6)
    a(f"s_not_b32 s{sT1}, s{sNON}")
    a(f"s_mov_b32 s{sSPIN}, {SPIN_MAX}")
    a(f"s_branch {p}_tf_first")
    a.lab(f"{p}_tf_loop")
    tflag_loads(a, 6)
    a.lab(f"{p}_tf_first")
    a(f"s_waitcnt vmcnt(0)")
    a(f"v_xor_b32 v20, s{sNON}, v16")
    a(f"v_xor_b32 v21, s{sT1}, v17")
    a(f"v_xor_b32 v22, s{sNON}, v18")
    a(f"v_xor_b32 v23, s{sT1}, v19")
    a(f"v_or3_b32 v20, v20, v21, v22")
    a(f"v_or_b32 v20, v20, v23")
    a(f"v_cmp_ne_u32 vcc, 0, v20")
    a(f"s_and_b64 exec, exec, vcc")
    a(f"s_cbranch_scc0 {p}_tf_end")
    a(f"s_sleep 2")
    a(f"s_sub_u32 s{sSPIN}, s{sSPIN}, 1")
    a(f"s_cbranch_scc0 {p}_tf_loop")
    a.lab(f"{p}_tf_end")
    a(f"s_mov_b64 exec, -1")
    a(f"s_mov_b32 s{sNOH}, 1")
    a.lab(f"{p}_tf_done")


def main_phase(a, p, fused):
    a.lab(f"{p}_round")
    append1(a, p, "a")
    a(f"s_waitcnt lgkmcnt(0)")
    append2(a, p)
    stamp(a, 5)
    image_setup(a)
    tflag_wait(a, p)
    if "nopf" not in DIAG and "pfearly" not in DIAG and "pflate" not in DIAG: t_prefetch(a)
    a(f"s_waitcnt lgkmcnt(0)")
    a(f"s_barrier")
    stamp(a, 6)
    if STAMPS:
        a("s_memtime s[100:101]")
        a("s_waitcnt lgkmcnt(0)")
        a(f"s_mov_b32 s{sM1}, s100")
    a(f"ds_write_b128 v{vER}, {vr(Z,4)}")
    a(f"ds_write_b128 v{vER}, {vr(Z,4)} offset:1024")
    if "pflate" in DIAG or "pf2x" in DIAG: t_prefetch(a)
    a(f"v_and_b32 v6, 31, v{vLANE}")
    a(f"v_lshlrev_b32 v{vKR}, 2, v6")
    a(f"ds_read_b32 v7, v{vKR} offset:{LCNT}")
    cursor_starts(a, 6, 8)
    a(f"v_add_u32 v6, {4*CAP}, v6")
    a(f"s_mul_i32 s{sT0}, s{sLJ}, {LS*4}")
    a(f"s_add_u32 s{sT0}, s{sT0}, {KEYB}")
    a(f"s_and_b32 s{sNT}, s{sWV}, 14")
    a(f"s_or_b32 s{sIT}, s{sWV}, 1")
    a(f"s_waitcnt lgkmcnt(0)")
    a(f"v_readlane_b32 s{sT1}, v7, s{sNT}")
    a(f"v_readlane_b32 s{sT2}, v7, s{sIT}")
    a(f"v_readlane_b32 s{sT3}, v7, 16")
    a(f"v_cmp_lt_u32 vcc, v6, v7")
    a(f"s_and_b32 s{sNT}, vcc_lo, 0xffff")
    a(f"s_cbranch_scc1 {p}_overflow")
    a.c("the last partial tile of the first half moves behind the second half; 64 dummy edges behind that")
    a(f"s_sub_u32 s{sN0}, s{sT1}, s{sT0}")
    a(f"s_and_b32 s{sIT}, s{sN0}, 127")
    a(f"s_sub_u32 s{sT1}, s{sT1}, s{sIT}")
    a(f"v_lshl_add_u32 v6, v{vLANE}, 2, s{sT1}")
    a(f"v_lshlrev_b32 v7, 1, v6")
    a(f"ds_read_b32 v{vKEY}, v6")
    a(f"ds_read_b64 v[8:9], v7 offset:{EOFF}")
    a(f"s_lshr_b32 s{sN0}, s{sN0}, 7")
    a(f"v_lshlrev_b32 v6, 2, v{vLANE}")
    a(f"v_cmp_gt_u32 vcc, s{sIT}, v6")
    a(f"v_add_u32 v6, s{sT2}, v6")
    a(f"v_lshlrev_b32 v7, 1, v6")
    a(f"v_mov_b32 v{AEX}, 0x{N | (46 << 16):x}")
    a(f"s_add_u32 s{sJMP}, s{sT0}, {4*CAP}")
    a(f"s_sub_u32 s{sNT}, s{sT2}, s{sJMP}")
    a(f"s_add_u32 s{sNT}, s{sNT}, s{sIT}")
    a(f"s_add_u32 s{sNT}, s{sNT}, 127")
    a(f"s_lshr_b32 s{sNT}, s{sNT}, 7")
    a(f"s_cmp_eq_u32 s{sN0}, 0")
    a(f"s_cselect_b32 s{sT0}, s{sJMP}, s{sT0}")
    a(f"v_add_u32 v{vKR}, s{sT0}, v{vKR}")
    a(f"v_lshlrev_b32 v{vER}, 1, v{vKR}")
    a(f"s_sub_u32 s{sJMP}, s{sJMP}, s{sT1}")
    a(f"s_add_u32 s{sJMP}, s{sJMP}, 128")
    a(f"s_waitcnt lgkmcnt(0)")
    a(f"v_cndmask_b32 v{vKEY}, v{AEX}, v{vKEY}, vcc")
    a(f"v_cndmask_b32 v8, 0, v8, vcc")
    a(f"v_cndmask_b32 v9, 0, v9, vcc")
    a(f"ds_write_b32 v6, v{vKEY}")
    a(f"ds_write_b64 v7, v[8:9] offset:{EOFF}")
    a(f"s_not_b64 exec, {sr(sHM,2)}")
    a(f"ds_write_b32 v6, v{AEX} offset:256")
    a(f"ds_write_b64 v7, {vr(Z,2)} offset:{EOFF + 512}")
    a(f"s_mov_b64 exec, -1")
    a(f"s_add_u32 s{sNT}, s{sNT}, s{sN0}")
    a(f"s_cmp_eq_u32 s{sNT}, 0")
    a(f"s_cbranch_scc1 {p}_tiles_done")
    a(f"s_mov_b32 s{sIT}, 0")
    rec_reads(a)
    step_calc(a, 1)
    step(a)
    a(f"s_waitcnt lgkmcnt(0)")
    addr_cvt(a)
    addr_pack(a)
    image_build(a)
    addr_mfma(a)
    aex_reads(a)
    rec_reads(a)
    step_calc(a, 2)
    step(a)
    a(f"s_sub_u32 s{sN0}, s{sN0}, 3")
    a(f"s_nop 15")
    a(f"s_waitcnt lgkmcnt(0)")
    addr_cvt(a)
    addr_pack(a)
    gathers(a, RA, fused)
    addr_mfma(a)
    a(f"s_nop 15")
    a(f"s_nop 3")
    if PRIO: a(f"s_setprio 3")
    a.lab(f"{p}_tile")
    for k in range(2):
        tile_body(a, (RA, RBUF)[k & 1], (RBUF, RA)[k & 1], fused, f"{p}_b{k}")
        a(f"s_cbranch_scc0 {p}_tiles_done" if k < 1 else f"s_cbranch_scc1 {p}_tile")
    a.lab(f"{p}_tiles_done")
    a(f"s_cmp_eq_u32 s{sT3}, 0")
    a(f"s_cbranch_scc1 {p}_epi")
    a(f"s_add_u32 s{sRB}, s{sRB}, s{sC}")
    a(f"s_branch {p}_next")
    a.lab(f"{p}_overflow")
    a(f"s_mov_b32 s{sC}, 1")
    a.lab(f"{p}_next")
    a.c("rare path: another round over the runs")
    a(f"s_waitcnt vmcnt(0) lgkmcnt(0)")
    a(f"s_barrier")
    init_counters(a, p, "r")
    rec_loads(a, p, "r", fused)
    a(f"s_waitcnt vmcnt(0) lgkmcnt(0)")
    a(f"s_barrier")
    a(f"s_branch {p}_round")
    a.lab(f"{p}_epi")
    stamp(a, 7)
    if STAMPS:
        a("s_memtime s[100:101]")
        a("s_waitcnt lgkmcnt(0)")
        a(f"s_sub_u32 s{sreg(9)}, s100, s{sM1}")
    a.c("---------------- epilogue: silu, pack, store")
    a(f"v_and_b32 v6, 31, v{vLANE}")
    a(f"v_cmp_gt_u32 vcc, s{sNN}, v6")
    a(f"v_add_u32 v6, s{sNODE0}, v6")
    a(f"v_lshlrev_b32 v6, 8, v6")
    a(f"v_lshrrev_b32 v7, 5, v{vLANE}")
    a(f"v_lshl_add_u32 v6, v7, 5, v6")
    a(f"s_lshl_b32 s{sT0}, s{sSL}, 6")
    a(f"v_add_u32 v6, s{sT0}, v6")
    a(f"s_nop 7")
    for j in range(16):
        a(f"v_mul_f32 v{Z+j}, s{sNL2E}, v{ACC+j}")
    for j in range(16):
        a(f"v_exp_f32 v{Z+j}, v{Z+j}")
    for j in range(16):
        a(f"v_add_f32 v{Z+j}, 1.0, v{Z+j}")
    for j in range(16):
        a(f"v_rcp_f32 v{Z+j}, v{Z+j}")
    for j in range(16):
        a(f"v_mul_f32 v{Z+j}, v{Z+j}, v{ACC+j}")
    for k in range(8):
        a(f"v_cvt_pk_bf16_f32 v{AEX+k}, v{Z+2*k}, v{Z+2*k+1}")
    a(f"s_mov_b64 exec, vcc")
    osc = " sc1" if "osc1" in DIAG else "" if "oplain" in DIAG else " nt"
    a(f"buffer_store_dwordx4 {vr(AEX,4)}, v6, {sr(SRD_OUT,4)}, 0 offen{osc}")
    a(f"buffer_store_dwordx4 {vr(AEX+4,4)}, v6, {sr(SRD_OUT,4)}, 0 offen offset:16{osc}")


def kernel_header(name):
    return f""".globl {name}
.p2align 8
.type {name},@function
{name}:
"""

def kernel_desc(name):
    return f""".amdhsa_kernel {name}
  .amdhsa_next_free_vgpr 128
  .amdhsa_next_free_sgpr 102
  .amdhsa_accum_offset 128
  .amdhsa_group_segment_fixed_size 0
  .amdhsa_kernarg_size 80
  .amdhsa_user_sgpr_count 2
  .amdhsa_user_sgpr_kernarg_segment_ptr 1
  .amdhsa_system_sgpr_workgroup_id_x 1
.end_amdhsa_kernel
"""

def file_head():
    return open("cdna_kernels/" + NAME + ".s.ref").read().split("; Override launch geometry")[0]


def finish(a, kidx):
    stamp(a, 8)
    stamp_out(a, kidx, 12)


def hdr_peek(a):
    a(f"v_mov_b32 v7, 0")
    a(f"ds_read_b32 v13, v7 offset:{NONCE}")
    a(f"ds_read_b64 v[14:15], v{vHS}")


def csum_acc(a, p, tag):
    for i in range(NI):
        q = REC + 4 * i
        a(f"s_mov_b64 exec, {sr(MASKS[i],2)}")
        a(f"s_cbranch_execz {p}_cs{tag}")
        a(f"v_add3_u32 v2, v2, v{q}, v{q+1}")
        a(f"v_add_u32 v2, v2, v{q+2}")
    a.lab(f"{p}_cs{tag}")
    a(f"s_mov_b64 exec, -1")


def csum_check(a):
    a(f"s_nop 1")
    a(f"v_add_u32_dpp v2, v2, v2 quad_perm:[1,0,3,2] row_mask:0xf bank_mask:0xf")
    a(f"s_nop 1")
    a(f"v_add_u32_dpp v2, v2, v2 quad_perm:[2,3,0,1] row_mask:0xf bank_mask:0xf")
    a(f"v_cmp_ne_u32 vcc, v2, v15")
    a(f"s_cmp_lg_u64 vcc, 0")


def gen_1k():
    k = NAME + "_kernel"
    a = A(); p = "K"
    setup(a, p)
    stamp(a, 0)
    front(a, p)
    stamp(a, 2)
    if "frontonly" in DIAG:
        stamp_out(a, 0, 12)
        a("s_endpgm")
    w_addr(a)
    a.c("wait for the weights, the end of the record copy-out (staging area reused) and the x rows")
    a(f"s_lshl_b32 s{sT0}, s{sLJ}, 2")
    a(f"v_mov_b32 v12, s{sT0}")
    a.lab(f"{p}_xw")
    a(f"ds_read_b64 v[14:15], v10 offset:{S3}")
    a(f"ds_read_b32 v13, v12 offset:{XFL}")
    a(f"s_waitcnt lgkmcnt(0)")
    a(f"v_add3_u32 v7, v14, v15, v13")
    a(f"s_nop 0")
    a(f"v_readfirstlane_b32 s{sT0}, v7")
    a(f"s_cmp_eq_u32 s{sT0}, {14 + 1 + 4}")
    a(f"s_cbranch_scc1 {p}_xok")
    a(f"s_sleep 1")
    a(f"s_branch {p}_xw")
    a.lab(f"{p}_xok")
    a(f"s_setprio {XP[4]}")
    a(f"s_cmp_lg_u32 s{sWV}, 15")
    a(f"s_cbranch_scc1 {p}_xp")
    a(f"s_setprio 3")
    a.lab(f"{p}_xp")
    stamp(a, 3)
    poll(a, p, "a", first=True)
    x_reads(a)
    for st in range(4):
        w_reads(a, 1, 2, st)
    gemm_pass(a, 1, 2, False, True)
    poll(a, p, "b")
    if "auearly" not in DIAG:
        a(f"s_sub_u32 s{sT0}, s{sWV}, 11")
        a(f"s_cmp_ge_u32 s{sT0}, 4")
        a(f"s_cbranch_scc1 {p}_noau")
        a(f"s_waitcnt vmcnt(0)")
        signal(a, WF2)
        a.lab(f"{p}_noau")
    table_store(a, True)
    stamp(a, 4)
    a(f"s_setprio {XP[5]}")
    a(f"v_mov_b32 v{vZ0}, 0")
    a(f"s_mov_b32 s{sNT}, 0")
    poll(a, p, "c", last=True)
    a(f"s_cmp_lt_u32 s{sWV}, {PUBW}")
    a(f"s_cbranch_scc1 {p}_pass2")
    a(f"s_waitcnt vmcnt(0)")
    a(f"s_call_b64 {sr(sRET,2)}, {p}_sub_pub")
    a(f"s_mov_b32 s{sNT}, 1")
    a.lab(f"{p}_pass2")
    spin(a, f"{p}_wf2", WF2, 4)
    a(f"v_lshrrev_b32 v{vHS}, 2, v0")
    a(f"v_lshlrev_b32 v{vHS}, 3, v{vHS}")
    a(f"v_add_u32 v{vHS}, {STG}, v{vHS}")
    hdr_peek(a)
    a(f"s_waitcnt lgkmcnt(0)")
    a(f"v_readfirstlane_b32 s{sNON}, v13")
    a(f"s_cmp_eq_u32 s{sNON}, 0")
    a(f"s_cbranch_scc1 {p}_hlate")
    a(f"s_call_b64 {sr(sRET,2)}, {p}_sub_first")
    a.lab(f"{p}_hlate")
    pu_pass(a, p)
    load_C(a)
    pop_pack(a)
    spin(a, f"{p}_xr", XR, 16)
    a(f"s_cmp_lg_u32 s{sNON}, 0")
    a(f"s_cbranch_scc1 {p}_hgone")
    a.lab(f"{p}_hwait")
    hdr_peek(a)
    a(f"s_waitcnt lgkmcnt(0)")
    a(f"v_readfirstlane_b32 s{sNON}, v13")
    a(f"s_cmp_lg_u32 s{sNON}, 0")
    a(f"s_cbranch_scc1 {p}_hgo")
    a(f"s_cmp_lg_u32 s{sNT}, 0")
    a(f"s_cbranch_scc1 {p}_hsleep")
    a(f"s_waitcnt vmcnt(0)")
    a(f"s_call_b64 {sr(sRET,2)}, {p}_sub_pub")
    a(f"s_mov_b32 s{sNT}, 1")
    a.lab(f"{p}_hsleep")
    a(f"s_sleep 1")
    a(f"s_branch {p}_hwait")
    a.lab(f"{p}_hgo")
    a(f"s_call_b64 {sr(sRET,2)}, {p}_sub_first")
    a.lab(f"{p}_hgone")
    stamp(a, 1)
    a(f"s_cmp_lg_u32 s{sNT}, 0")
    a(f"s_cbranch_scc1 {p}_pubdone")
    a(f"s_waitcnt vmcnt({NI})")
    a(f"s_call_b64 {sr(sRET,2)}, {p}_sub_pub")
    a.lab(f"{p}_pubdone")
    if "pfearly" in DIAG:
        t_prefetch(a)
        a("s_waitcnt vmcnt(3)")
    else:
        a("s_waitcnt vmcnt(0)")
    stamp(a, 11)
    a(f"s_mov_b32 s{sNOH}, 0")
    tflag_issue(a, p)
    a.c("the records must add up to the checksums published with the headers")
    csum_acc(a, p, "a")
    a(f"v_and_b32 v6, 3, v0")
    a(f"v_add_u32 v6, v6, v{vHL}")
    a(f"v_cmp_lt_i32 {sr(sEX,2)}, {CFAST}, v6")
    csum_check(a)
    a(f"s_cbranch_scc1 {p}_vslow")
    a(f"s_cmp_lg_u64 {sr(sEX,2)}, 0")
    a(f"s_cbranch_scc1 {p}_vslow")
    a.lab(f"{p}_valid")
    main_phase(a, p, True)
    finish(a, 0)
    a.lab(f"{p}_end")
    a("s_endpgm")
    a.c("---------------- subroutines / rare paths")
    a.lab(f"{p}_sub_pub")
    a.c("the last wave whose table rows are out publishes the workgroup's flag")
    a(f"v_mov_b32 v6, 1")
    a(f"s_mov_b64 exec, 1")
    a(f"ds_add_rtn_u32 v6, v{vZ0}, v6 offset:{DONE}")
    a(f"ds_read_b32 v7, v{vZ0} offset:{NON2}")
    a(f"s_waitcnt lgkmcnt(0)")
    a(f"v_readfirstlane_b32 s{sT0}, v6")
    a(f"v_readfirstlane_b32 s{sT2}, v7")
    a(f"s_cmp_lg_u32 s{sT0}, 15")
    a(f"s_cbranch_scc1 {p}_nopub")
    a(f"s_lshr_b32 s{sT0}, s{sSL}, 1")
    a(f"s_lshl_b32 s{sT0}, s{sT0}, 7")
    a(f"s_add_u32 s{sT0}, s{sT0}, s{sBIN}")
    a(f"s_lshl_b32 s{sT0}, s{sT0}, 7")
    a(f"s_add_u32 s{sT0}, s{sT0}, {TFL_OFF}")
    a(f"s_not_b32 s{sT1}, s{sT2}")
    a(f"v_mov_b32 v6, s{sT0}")
    a(f"v_mov_b32 v8, s{sT2}")
    a(f"v_mov_b32 v9, s{sT1}")
    a(f"buffer_store_dwordx2 v[8:9], v6, {sr(SRD_HDR,4)}, 0 offen sc1")
    a.lab(f"{p}_nopub")
    a(f"s_mov_b64 exec, -1")
    a(f"s_setpc_b64 {sr(sRET,2)}")
    a.lab(f"{p}_sub_first")
    hdr_decode(a)
    rec_loads(a, p, "f", False, True)
    a(f"s_setpc_b64 {sr(sRET,2)}")
    a.lab(f"{p}_sub_loads")
    rec_loads(a, p, "s", True)
    a(f"s_setpc_b64 {sr(sRET,2)}")
    a.lab(f"{p}_vslow")
    a.c("long runs, or records not yet visible: add up every run completely, again until it fits")
    a(f"s_mov_b32 s{sSPIN}, {SPIN_MAX}")
    a.lab(f"{p}_vs_retry")
    a(f"s_mov_b32 s{sRB}, 0")
    a(f"v_mov_b32 v2, 0")
    a.lab(f"{p}_vs_part")
    a(f"s_call_b64 {sr(sRET,2)}, {p}_sub_loads")
    a(f"s_waitcnt vmcnt(0)")
    csum_acc(a, p, "v")
    a(f"s_add_u32 s{sRB}, s{sRB}, {CFAST}")
    a(f"v_and_b32 v6, 3, v0")
    a(f"v_add_u32 v6, v6, v{vHL}")
    a(f"v_cmp_lt_i32 vcc, s{sRB}, v6")
    a(f"s_cmp_lg_u64 vcc, 0")
    a(f"s_cbranch_scc1 {p}_vs_part")
    csum_check(a)
    a(f"s_cbranch_scc0 {p}_vs_ok")
    a(f"s_sub_u32 s{sSPIN}, s{sSPIN}, 1")
    a(f"s_cbranch_scc0 {p}_vs_retry")
    a.lab(f"{p}_vs_ok")
    a(f"s_mov_b32 s{sRB}, 0")
    a(f"s_call_b64 {sr(sRET,2)}, {p}_sub_loads")
    a(f"s_waitcnt vmcnt(0)")
    a(f"s_branch {p}_valid")
    a.lab(f"{p}_code_end")
    s = file_head()
    s += f"; @launch grid=(256,1,1) block=(1024,1,1) lds={LDS_BYTES}\n"
    s += '.amdgcn_target "amdgcn-amd-amdhsa--gfx950"\n.text\n'
    s += kernel_header(k) + a.text()
    s += '.section .rodata,"a"\n.p2align 6\n' + kernel_desc(k)
    return s


if __name__ == "__main__":
    if "-stamps" in sys.argv:
        STAMPS = True; sys.argv.remove("-stamps")
    if "-noprio" in sys.argv:
        PRIO = False; sys.argv.remove("-noprio")
    for x in list(sys.argv):
        if x.startswith("-TF"):
            TFW = int(x[3:]); sys.argv.remove(x)
        if x.startswith("-PR"):
            PREW = int(x[3:]); sys.argv.remove(x)
        if x.startswith("-MP"):
            MIDPUB = int(x[3:]); sys.argv.remove(x)
        if x.startswith("-PW"):
            PUBW = int(x[3:]); sys.argv.remove(x)
        if x.startswith("-XP"):
            XP = [int(c) for c in x[3:]]; sys.argv.remove(x)
        if x.startswith("-XE"):
            XEARLY = int(x[3:]); sys.argv.remove(x)
        if x.startswith("-PS"):
            PS1, PS2 = map(int, x[3:].split(",")); sys.argv.remove(x)
        if x.startswith("-D"):
            DIAG.add(x[2:]); sys.argv.remove(x)
    mode = gen_1k
    if "-1k" in sys.argv:
        mode = gen_1k; sys.argv.remove("-1k")
    out = sys.argv[1] if len(sys.argv) > 1 else "cdna_kernels/" + NAME + ".s"
    open(out, "w").write(mode())
    print("wrote", out, "LDS", LDS_BYTES)
```

```python
import sys

N = 25000
E = 400000
NAME = "gather_scatter__edge_featured_mpnn_egc__graph"

TS = 25024 * 128
REC_OFF = 0x1000000
REC_BYTES = 250 * 19200
HDR_OFF = 0x1800000
HDR_BYTES = 128 * 256 * 16
TFL_OFF = HDR_BYTES
HDR_SRD_BYTES = HDR_BYTES + 256 * 128
MAGIC_OFF = 0x4B000000

CNT = 0
CSUM = 512
OFFS = 1024
LCNT = 1536
NONCE, DONE, NON2, S2, S3, WF, WF2, XR = [LCNT + 128 + 4 * i for i in range(8)]
XFL = LCNT + 192
assert S3 % 8 == 0
CAP = 270
LS = 2 * CAP + 96
KEYB = 1792
EB = KEYB + 8 * LS * 4
EOFF = EB - 2 * KEYB
IMG = EB + 8 * LS * 8
XB = KEYB
XT = 26 * 256
assert XB % 256 == 0 and XB + 8 * XT + 6 * 256 <= IMG + 2048
STG = IMG
WB = IMG + 32768
PFS = WB + 65536
CB = PFS + 1024
LDS_BYTES = CB + 512
NI = 8
CFAST = 4 * NI

SRD_X, SRD_E, SRD_SRC, SRD_DST, SRD_W, SRD_OUT, SRD_TS, SRD_TG, SRD_REC, SRD_HDR, SRD_G = [4 + 4 * i for i in range(11)]
SRD_DBG = SRD_E
KP = 48
sLJ = 3
sNR = 71
sWV, sBIN, sSL, sNODE0, sNN = 68, 69, 70, 72, 73
sSPIN = 95
sNL2E, sMAXF, sSELLO, sSELHI, sMAGIC, s127, sM1, sM2, sM3, sM4, sSTG, sKMAX = range(74, 86)
sHM = 86
sT0, sT1, sT2, sT3 = 88, 89, 90, 91
sRB, sC, sNT, sIT = 92, 93, 94, 95
sEX = 96
sNON, sNOH = 98, 99
sRET = 64
MASKS = [4 + 2 * i for i in range(8)]
SPIN_MAX = 40000

vLANE = 1
ACC = 32; REC = 96
POP, AEX, SAG = 48, 56, 64
OFF = 16
RA, RBUF, Z = 72, 88, 104


class A:
    def __init__(self):
        self.l = []
    def __call__(self, s):
        for x in s.strip("\n").split("\n"):
            self.l.append("    " + x.strip())
    def lab(self, s):
        self.l.append(s + ":")
    def c(self, s):
        self.l.append("    ; " + s)
    def text(self):
        return "\n".join(self.l) + "\n"


def vr(a, n):
    return f"v[{a}:{a+n-1}]"
def sr(a, n):
    return f"s[{a}:{a+n-1}]"


STAMPS = False
PRIO = True
PS1, PS2 = 8, 8
XEARLY = 4
XP = [0, 0, 0, 0, 2, 1]
PUBW = 4
NS_SL = 3
PREW = 0
MIDPUB = -1
WS_BASE = 0
PPB = None
TFW = 14
DIAG = set()
STAMP_OFF = 0x2000000
def sreg(i):
    return KP + i if i < 8 else KP + 4 + i
def stamp(a, i):
    if not STAMPS: return
    a(f"s_memrealtime s[100:101]")
    a(f"s_waitcnt lgkmcnt(0)")
    a(f"s_mov_b32 s{sreg(i)}, s100")

def stamp_out(a, kidx, n):
    if not STAMPS: return
    a(f"s_mov_b64 exec, -1")
    if "dbgmax" in DIAG:
        a(f"s_load_dwordx2 {sr(sT2,2)}, s[0:1], 64")
        a(f"s_waitcnt lgkmcnt(0)")
        srd(a, SRD_W, sT2, sT3, 256)
        a(f"v_mov_b32 v6, 0")
        a(f"ds_read_b32 v8, v6 offset:{NON2}")
        a(f"s_waitcnt lgkmcnt(0)")
        a(f"s_mov_b64 exec, 1")
        for i in (0, 2, 3, 4, 11, 5, 6, 7, 8):
            a(f"v_sub_u32 v7, s{sreg(i)}, v8")
            a(f"v_max_i32 v7, 0, v7")
            a(f"buffer_atomic_umax v7, v6, {sr(SRD_W,4)}, 0 offen offset:{4*(i+1)}")
        return
    a(f"s_add_u32 s{sT2}, s{KP+18}, 0x{STAMP_OFF + kidx * 0x100000:x}")
    a(f"s_addc_u32 s{sT3}, s{KP+19}, 0")
    srd(a, SRD_W, sT2, sT3, 0x100000)
    a(f"s_lshl_b32 s{sT0}, s2, 4")
    a(f"s_add_u32 s{sT0}, s{sT0}, s{sWV}")
    a(f"s_lshl_b32 s{sT0}, s{sT0}, 6")
    a(f"v_mov_b32 v6, s{sT0}")
    for i in range(n):
        a(f"v_mov_b32 v7, s{sreg(i)}")
        a(f"buffer_store_dword v7, v6, {sr(SRD_W,4)}, 0 offen offset:{4*i}")


def srd(a, d, lo, hi, nbytes):
    a(f"s_mov_b32 s{d}, s{lo}")
    a(f"s_mov_b32 s{d+1}, s{hi}")
    a(f"s_mov_b32 s{d+2}, {nbytes}")
    a(f"s_mov_b32 s{d+3}, 0x00020000")


def setup(a, p):
    a.c("---------------- setup")
    a(f"s_cmp_ge_u32 s2, 256")
    a(f"s_cbranch_scc1 {p}_end")
    a(f"s_load_dwordx16 {sr(KP,16)}, s[0:1], 0")
    a(f"s_load_dwordx4 {sr(KP+16,4)}, s[0:1], 64")
    a(f"s_memrealtime s[100:101]")
    a(f"v_lshrrev_b32 v2, 6, v0")
    a(f"v_and_b32 v{vLANE}, 63, v0")
    a(f"v_readfirstlane_b32 s{sWV}, v2")
    a(f"s_lshr_b32 s{sBIN}, s2, 3")
    a(f"s_and_b32 s{sT0}, s2, 3")
    a(f"s_lshl_b32 s{sT0}, s{sT0}, 5")
    a(f"s_or_b32 s{sBIN}, s{sBIN}, s{sT0}")
    a(f"s_lshr_b32 s{sSL}, s2, 1")
    a(f"s_and_b32 s{sSL}, s{sSL}, 2")
    a(f"s_and_b32 s{sT0}, s{sWV}, 1")
    a(f"s_or_b32 s{sSL}, s{sSL}, s{sT0}")
    a(f"s_lshr_b32 s{sLJ}, s{sWV}, 1")
    a(f"s_mul_i32 s{sT0}, s2, 6400")
    a(f"v_lshl_add_u32 v3, v0, 4, s{sT0}")
    a(f"v_lshlrev_b32 v4, 1, v3")
    a(f"s_mul_i32 s{sT1}, s{sSL}, {TS}")
    a(f"s_waitcnt lgkmcnt(0)")
    x, e, src, dst, u, v, g, out, dbg, ws = [KP + 2 * i for i in range(10)]
    if WS_BASE:
        a(f"s_add_u32 s{ws}, s{ws}, 0x{WS_BASE:x}")
        a(f"s_addc_u32 s{ws+1}, s{ws+1}, 0")
    a(f"s_or_b32 s{sT0}, s2, s{sWV}")
    a(f"s_cbranch_scc1 {p}_notag")
    a.c("launch tag: the first wave of workgroup 0 publishes a clock value in d_debug, everyone picks it up")
    srd(a, SRD_DBG, dbg, dbg + 1, 256)
    a(f"s_or_b32 s{sT0}, s100, 1")
    a(f"v_mov_b32 v13, s{sT0}")
    a(f"v_mov_b32 v10, 0")
    a(f"s_mov_b64 exec, 1")
    a(f"buffer_store_dword v13, v10, {sr(SRD_DBG,4)}, 0 offen sc1")
    if "xcc" in DIAG:
        a(f"s_getreg_b32 s{sT0}, hwreg(HW_REG_XCC_ID)")
        a(f"v_mov_b32 v12, s{sT0}")
        a(f"buffer_store_dword v12, v10, {sr(SRD_DBG,4)}, 0 offen offset:128")
    a(f"s_mov_b64 exec, -1")
    a.lab(f"{p}_notag")
    srd(a, SRD_DST, dst, dst + 1, E * 4)
    srd(a, SRD_SRC, src, src + 1, E * 4)
    srd(a, SRD_E, e, e + 1, E * 8)
    a(f"s_cmp_ge_u32 s{sWV}, 7")
    a(f"s_cbranch_scc1 {p}_noedge")
    a(f"buffer_load_dwordx4 {vr(vD,4)}, v3, {sr(SRD_DST,4)}, 0 offen")
    a(f"buffer_load_dwordx4 {vr(vS,4)}, v3, {sr(SRD_SRC,4)}, 0 offen")
    a(f"buffer_load_dwordx4 {vr(vE,4)}, v4, {sr(SRD_E,4)}, 0 offen")
    a(f"buffer_load_dwordx4 {vr(vE+4,4)}, v4, {sr(SRD_E,4)}, 0 offen offset:16")
    a.lab(f"{p}_noedge")
    a(f"s_lshl_b32 s{sT0}, s{sBIN}, 3")
    a(f"s_add_u32 s{sT0}, s{sT0}, s{sLJ}")
    a(f"s_mul_i32 s{sT0}, s{sT0}, 3125")
    a(f"s_lshr_b32 s{sNODE0}, s{sT0}, 7")
    a(f"s_add_u32 s{sT0}, s{sT0}, 3125")
    a(f"s_lshr_b32 s{sNN}, s{sT0}, 7")
    a(f"s_cmp_eq_u32 s{sNN}, {N}")
    a(f"s_cselect_b32 s{sNR}, 1, 0")
    a(f"s_sub_u32 s{sNN}, s{sNN}, s{sNODE0}")
    a(f"s_add_u32 s{sNR}, s{sNR}, s{sNN}")
    a(f"s_mov_b32 s{sHM}, 0")
    a(f"s_mov_b32 s{sHM+1}, -1")
    srd(a, SRD_X, x, x + 1, N * 256)
    srd(a, SRD_OUT, out, out + 1, N * 256)
    srd(a, SRD_G, g, g + 1, 260 * 256)
    a(f"s_add_u32 s{sT2}, s{ws}, s{sT1}")
    a(f"s_addc_u32 s{sT3}, s{ws+1}, 0")
    srd(a, SRD_TS, sT2, sT3, (N + 1) * 128)
    a(f"s_sub_u32 s{sT2}, s{sT2}, 0x{MAGIC_OFF:x}")
    a(f"s_subb_u32 s{sT3}, s{sT3}, 0")
    srd(a, SRD_TG, sT2, sT3, MAGIC_OFF + (N + 1) * 128)
    a(f"s_add_u32 s{sT2}, s{ws}, 0x{REC_OFF:x}")
    a(f"s_addc_u32 s{sT3}, s{ws+1}, 0")
    srd(a, SRD_REC, sT2, sT3, REC_BYTES)
    a(f"s_add_u32 s{sT2}, s{ws}, 0x{HDR_OFF:x}")
    a(f"s_addc_u32 s{sT3}, s{ws+1}, 0")
    srd(a, SRD_HDR, sT2, sT3, HDR_SRD_BYTES)
    a(f"s_mov_b32 s{sNL2E}, 0xbfb8aa3b")
    a(f"s_mov_b32 s{sMAXF}, 0x7f7f0000")
    a(f"s_mov_b32 s{sSELLO}, 0x07060100")
    a(f"s_mov_b32 s{sSELHI}, 0x07060302")
    a(f"s_mov_b32 s{sMAGIC}, 10995117")
    a(f"s_mov_b32 s{s127}, 127")
    a(f"s_mov_b32 s{sM1}, 0x260000")
    a(f"s_mov_b32 s{sM2}, 0x100000")
    a(f"s_mov_b32 s{sM3}, 0x080000")
    a(f"s_mov_b32 s{sM4}, 0x38000000")
    a(f"s_mov_b32 s{sSTG}, {STG}")
    a(f"s_mov_b32 s{sKMAX}, {EB - 4}")
    a(f"v_mov_b32 v{vONE}, 1")
    a(f"v_mov_b32 v10, 0")


def spin(a, lab, off, val):
    a.lab(lab)
    a(f"ds_read_b32 v11, v10 offset:{off}")
    a(f"s_waitcnt lgkmcnt(0)")
    a(f"v_readfirstlane_b32 s{sT0}, v11")
    a(f"s_cmp_lt_u32 s{sT0}, {val}")
    a(f"s_cbranch_scc1 {lab}")


def signal(a, off):
    a(f"s_mov_b64 exec, 1")
    a(f"ds_add_u32 v10, v{vONE} offset:{off}")
    a(f"s_mov_b64 exec, -1")


def cursor_starts(a, d, t):
    a(f"v_lshrrev_b32 v{d}, 1, v{vLANE}")
    a(f"v_mul_u32_u24 v{d}, {LS*4}, v{d}")
    a(f"v_and_b32 v{t}, 1, v{vLANE}")
    a(f"v_mul_u32_u24 v{t}, {CAP*4}, v{t}")
    a(f"v_add_u32 v{d}, v{d}, v{t}")
    a(f"v_add_u32 v{d}, {KEYB}, v{d}")


def init_counters(a, p, tag):
    a.c("wave 0: list cursors = list starts")
    a(f"s_cmp_lg_u32 s{sWV}, 0")
    a(f"s_cbranch_scc1 {p}_ic{tag}")
    a(f"v_lshlrev_b32 v7, 2, v{vLANE}")
    cursor_starts(a, 8, 9)
    a(f"v_cmp_gt_u32 vcc, 16, v{vLANE}")
    a(f"s_nop 1")
    a(f"v_cndmask_b32 v8, 0, v8, vcc")
    a(f"s_not_b64 exec, {sr(sHM,2)}")
    a(f"ds_write_b32 v7, v8 offset:{LCNT}")
    a(f"s_mov_b64 exec, -1")
    a.lab(f"{p}_ic{tag}")


def scan64(a, v):
    for sh in (1, 2, 4, 8):
        a(f"s_nop 1")
        a(f"v_add_u32_dpp v{v}, v{v}, v{v} row_shr:{sh} row_mask:0xf bank_mask:0xf bound_ctrl:0")
    a(f"s_nop 1")
    a(f"v_add_u32_dpp v{v}, v{v}, v{v} row_bcast:15 row_mask:0xa bank_mask:0xf")
    a(f"s_nop 1")
    a(f"v_add_u32_dpp v{v}, v{v}, v{v} row_bcast:31 row_mask:0xc bank_mask:0xf")


vD, vS, vE, vK, vB, vR = 72, 76, 80, 88, 92, 96
vTa, vTb, vTc = 100, 101, 102
vONE = 2


vC2, vO2 = 104, 106
def offsets_scan(a):
    a(f"v_lshlrev_b32 v{vTa}, 3, v{vLANE}")
    a(f"ds_read_b64 {vr(vC2,2)}, v{vTa} offset:{CNT}")
    a(f"s_waitcnt lgkmcnt(0)")
    a(f"v_add_u32 v{vTb}, v{vC2}, v{vC2+1}")
    a(f"v_mov_b32 v{vTc}, v{vTb}")
    scan64(a, vTc)
    a(f"v_sub_u32 v{vO2}, v{vTc}, v{vTb}")
    a(f"v_add_u32 v{vO2+1}, v{vO2}, v{vC2}")


def noh_from_non(a):
    a(f"s_mul_i32 s{sNOH}, s{sNON}, 0x9e3779b1")
    a(f"s_and_b32 s{sNOH}, s{sNOH}, 0xf800f800")


def w_dma(a):
    u, v, g = KP + 8, KP + 10, KP + 12
    a(f"s_sub_u32 s{sT2}, s{sWV}, 7")
    a(f"s_and_b32 s{sT3}, s{sT2}, 6")
    a(f"s_lshr_b32 s{sT3}, 0xc9, s{sT3}")
    a(f"s_and_b32 s{sT3}, s{sT3}, 3")
    a(f"s_cmp_eq_u32 s{sT3}, 2")
    a(f"s_cselect_b64 {sr(SRD_W,2)}, {sr(v,2)}, {sr(u,2)}")
    a(f"s_mov_b32 s{SRD_W+2}, 32768")
    a(f"s_cmp_lt_u32 s{sT3}, 2")
    a(f"s_cselect_b64 {sr(SRD_W,2)}, {sr(g,2)}, {sr(SRD_W,2)}")
    a(f"s_cselect_b32 s{SRD_W+2}, 65536, s{SRD_W+2}")
    a(f"s_mov_b32 s{SRD_W+3}, 0x00020000")
    a(f"s_cmp_eq_u32 s{sT3}, 1")
    a(f"s_cselect_b32 s{sT0}, 32768, 0")
    a(f"s_and_b32 s{sT2}, s{sT2}, 1")
    a(f"s_lshl_b32 s{sT1}, s{sT2}, 14")
    a(f"s_add_u32 s{sT0}, s{sT0}, s{sT1}")
    a(f"s_lshr_b32 s{sT1}, s{sSL}, 1")
    a(f"s_lshl_b32 s{sT1}, s{sT1}, 7")
    a(f"s_add_u32 s{sT0}, s{sT0}, s{sT1}")
    a.c("row lane>>3, 16-byte piece lane&7; the 64-byte halves of rows 2,3 (mod 4) are swapped")
    a(f"v_lshrrev_b32 v4, 3, v{vLANE}")
    a(f"v_lshl_add_u32 v4, v4, 8, s{sT0}")
    a(f"v_bfe_u32 v6, v{vLANE}, 4, 1")
    a(f"v_lshlrev_b32 v6, 2, v6")
    a(f"v_xor_b32 v6, v6, v{vLANE}")
    a(f"v_and_b32 v6, 7, v6")
    a(f"v_lshl_add_u32 v4, v6, 4, v4")
    a(f"s_lshl_b32 s{sT0}, s{sT3}, 14")
    a(f"s_lshl_b32 s{sT2}, s{sT2}, 13")
    a(f"s_add_u32 s{sT0}, s{sT0}, s{sT2}")
    for d in range(8):
        a(f"s_add_u32 m0, s{sT0}, {WB + 1024 * d}")
        a(f"s_mov_b32 s{sT1}, {2048 * d}")
        a(f"buffer_load_dwordx4 v4, {sr(SRD_W,4)}, s{sT1} offen lds")


def front(a, p):
    a(f"s_sub_u32 s{sT0}, s{sWV}, 7")
    a(f"s_cmp_ge_u32 s{sT0}, {PREW}")
    a(f"s_cbranch_scc1 {p}_f_nobv")
    w_dma(a)
    a.lab(f"{p}_f_nobv")
    if "nowpf" not in DIAG:
        a(f"s_cmp_lg_u32 s{sWV}, 8")
        a(f"s_cbranch_scc1 {p}_f_nowpf")
        a.c("wave 8: touch 16 of the 512 weight lines this XCD needs (the 32 workgroups of an XCD share them out)")
        u, v, g = KP + 8, KP + 10, KP + 12
        a(f"s_lshr_b32 s{sT2}, s2, 3")
        a(f"s_lshr_b32 s{sT3}, s{sT2}, 3")
        a(f"s_cmp_eq_u32 s{sT3}, 2")
        a(f"s_cselect_b64 {sr(SRD_W,2)}, {sr(v,2)}, {sr(u,2)}")
        a(f"s_mov_b32 s{SRD_W+2}, 32768")
        a(f"s_cmp_lt_u32 s{sT3}, 2")
        a(f"s_cselect_b64 {sr(SRD_W,2)}, {sr(g,2)}, {sr(SRD_W,2)}")
        a(f"s_cselect_b32 s{SRD_W+2}, 65536, s{SRD_W+2}")
        a(f"s_cselect_b32 s{sT0}, 15, 7")
        a(f"s_mov_b32 s{SRD_W+3}, 0x00020000")
        a(f"s_and_b32 s{sT2}, s{sT2}, s{sT0}")
        a(f"s_lshl_b32 s{sT2}, s{sT2}, 12")
        a(f"s_lshr_b32 s{sT1}, s{sSL}, 1")
        a(f"s_lshl_b32 s{sT1}, s{sT1}, 7")
        a(f"s_add_u32 s{sT2}, s{sT2}, s{sT1}")
        a(f"v_lshl_add_u32 v6, v{vLANE}, 8, s{sT2}")
        a(f"s_mov_b64 exec, 0xffff")
        a(f"buffer_load_dword v104, v6, {sr(SRD_W,4)}, 0 offen")
        a(f"s_mov_b64 exec, -1")
        a.lab(f"{p}_f_nowpf")
    a(f"s_cmp_lg_u32 s{sWV}, 7")
    a(f"s_cbranch_scc1 {p}_f_noinit")
    a.c("wave 7: bin counters, checksums, flags = 0, list cursors = list starts")
    a(f"v_lshlrev_b32 v7, 2, v{vLANE}")
    cursor_starts(a, 8, 9)
    a(f"v_cmp_gt_u32 vcc, 16, v{vLANE}")
    for k in range(4):
        a(f"ds_write_b32 v7, v10 offset:{CNT + 256 * k}")
    a(f"v_cndmask_b32 v8, 0, v8, vcc")
    a(f"ds_write_b32 v7, v8 offset:{LCNT}")
    a(f"v_and_b32 v6, 7, v{vLANE}")
    a(f"v_lshrrev_b32 v4, 3, v{vLANE}")
    a(f"v_lshlrev_b32 v4, 8, v4")
    a(f"v_lshl_add_u32 v4, v6, 4, v4")
    a(f"s_lshr_b32 s{sT1}, s{sSL}, 1")
    a(f"s_lshl_b32 s{sT1}, s{sT1}, 7")
    a(f"s_add_u32 s{sT1}, s{sT1}, 65536")
    a(f"s_mov_b32 m0, {CB}")
    a(f"s_not_b64 exec, {sr(sHM,2)}")
    a(f"buffer_load_dwordx4 v4, {sr(SRD_G,4)}, s{sT1} offen lds")
    a(f"s_mov_b64 exec, -1")
    if "noicpf" not in DIAG:
        a.c("read the kernel's own code once so that later instruction fetches find it in the L2")
        a(f"s_getpc_b64 {sr(sT2,2)}")
        a.lab(f"{p}_pc")
        a(f"v_lshlrev_b32 v9, 7, v{vLANE}")
        a(f"global_load_dword v104, v9, {sr(sT2,2)}")
        a(f"v_add_u32 v9, 8192, v9")
        a(f"v_cmp_gt_u32 vcc, {p}_code_end - {p}_pc - 4, v9")
        a(f"s_mov_b64 exec, vcc")
        a(f"global_load_dword v105, v9, {sr(sT2,2)}")
        a(f"s_mov_b64 exec, -1")
    a(f"s_waitcnt lgkmcnt(0)")
    a.lab(f"{p}_f_noinit")
    a(f"s_cmp_lg_u32 s{sWV}, 15")
    a(f"s_cbranch_scc1 {p}_tag_done")
    srd(a, SRD_DBG, KP + 16, KP + 17, 256)
    a(f"buffer_load_dword v72, v10, {sr(SRD_DBG,4)}, 0 offen sc1")
    a.lab(f"{p}_tag_done")
    a(f"s_barrier")
    a(f"s_cmp_eq_u32 s{sWV}, 15")
    a(f"s_cbranch_scc1 {p}_f_w15")
    a(f"s_cmp_ge_u32 s{sWV}, 7")
    a(f"s_cbranch_scc1 {p}_f_loader")

    a.c("---------------- waves 0-6: sort this workgroup's 1600 edges by destination bin")
    a(f"s_setprio {XP[3]}")
    a(f"s_cmp_lt_u32 s2, 250")
    a(f"s_cselect_b32 s{sT0}, 400, 0")
    a(f"v_cmp_gt_u32 vcc, s{sT0}, v0")
    a(f"s_mov_b64 {sr(sEX,2)}, vcc")
    a(f"s_waitcnt vmcnt(3)")
    stamp(a, 1)
    for e in range(4):
        a(f"v_lshl_or_b32 v{vK+e}, v{vD+e}, 7, s{s127}")
        a(f"v_mul_hi_u32 v{vK+e}, v{vK+e}, s{sMAGIC}")
        a(f"v_lshrrev_b32 v{vB+e}, 4, v{vK+e}")
        a(f"v_and_b32 v{vB+e}, 0x1fc, v{vB+e}")
    a(f"s_mov_b64 exec, {sr(sEX,2)}")
    for e in range(4):
        a(f"ds_add_rtn_u32 v{vR+e}, v{vB+e}, v{vONE} offset:{CNT}")
    signal(a, S2)
    for e in range(4):
        d, k = vD + e, vK + e
        a(f"v_lshrrev_b32 v{vTa}, 3, v{k}")
        a(f"v_mul_u32_u24 v{vTb}, 3125, v{vTa}")
        a(f"v_lshrrev_b32 v{vTb}, 7, v{vTb}")
        a(f"v_sub_u32 v{vTb}, v{d}, v{vTb}")
        a(f"v_lshlrev_b32 v{k}, 27, v{vTa}")
        a(f"v_and_b32 v{k}, s{sM4}, v{k}")
        a(f"v_lshlrev_b32 v{vTc}, 17, v{vTb}")
        a(f"v_and_or_b32 v{k}, v{vTc}, s{sM1}, v{k}")
        a(f"v_lshlrev_b32 v{vTc}, 18, v{vTb}")
        a(f"v_and_or_b32 v{k}, v{vTc}, s{sM2}, v{k}")
        a(f"v_lshlrev_b32 v{vTc}, 16, v{vTb}")
        a(f"v_and_or_b32 v{k}, v{vTc}, s{sM3}, v{k}")
    a(f"s_lshl_b32 s{sT1}, s{sWV}, 10")
    a(f"v_lshl_add_u32 v3, v{vLANE}, 4, s{sT1}")
    a(f"v_add_u32 v7, {STG}, v3")
    a(f"s_mul_i32 s{sT1}, s2, 19200")
    a(f"v_add_u32 v3, s{sT1}, v3")
    spin(a, f"{p}_f_s2", S2, 7)
    stamp(a, 10)
    offsets_scan(a)
    a(f"ds_write_b64 v{vTa}, {vr(vO2,2)} offset:{OFFS}")
    for e in range(4):
        a(f"ds_read_b32 v{vD+e}, v{vB+e} offset:{OFFS}")
    a(f"s_mov_b32 s{sT2}, {32768 - N // 2}")
    a(f"s_mov_b32 s{sT3}, 0x04000000")
    a(f"s_waitcnt vmcnt(0)")
    for e in range(4):
        a(f"v_add_lshl_u32 v{vTb}, v{vS+e}, s{sT2}, 11")
        a(f"v_or_b32 v{vK+e}, v{vK+e}, v{vS+e}")
        a(f"v_and_or_b32 v{vK+e}, v{vTb}, s{sT3}, v{vK+e}")
        a(f"v_add3_u32 v{vS+e}, v{vE+2*e}, v{vE+2*e+1}, v{vK+e}")
    a(f"s_waitcnt lgkmcnt(0)")
    for e in range(4):
        a(f"v_add_u32 v{vR+e}, v{vR+e}, v{vD+e}")
        a(f"v_mad_u32_u24 v{vR+e}, v{vR+e}, 12, s{sSTG}")
    a(f"s_mov_b64 exec, {sr(sEX,2)}")
    for e in range(4):
        a(f"ds_write2_b32 v{vR+e}, v{vE+2*e}, v{vE+2*e+1} offset0:0 offset1:1")
        a(f"ds_write_b32 v{vR+e}, v{vK+e} offset:8")
        a(f"ds_add_u32 v{vB+e}, v{vS+e} offset:{CSUM}")
    signal(a, S3)
    spin(a, f"{p}_f_s3", S3, 7)
    a.c("copy the sorted records out: 1 KiB pieces wv, wv + 7, wv + 14")
    for k in range(3):
        a(f"ds_read_b128 {vr(104 + 4*k, 4)}, v7 offset:{7168*k}")
    signal(a, S3)
    a(f"v_add_u32 v4, 7168, v3")
    a(f"v_add_u32 v5, 14336, v3")
    a(f"s_waitcnt lgkmcnt(3)")
    a(f"buffer_store_dwordx4 {vr(104,4)}, v3, {sr(SRD_REC,4)}, 0 offen sc1")
    a(f"s_waitcnt lgkmcnt(2)")
    a(f"buffer_store_dwordx4 {vr(108,4)}, v4, {sr(SRD_REC,4)}, 0 offen sc1")
    a(f"s_cmp_gt_u32 s{sWV}, 4")
    a(f"s_cbranch_scc1 {p}_f_x0")
    a(f"s_cmp_eq_u32 s{sWV}, 4")
    a(f"s_cselect_b32 exec_hi, 0xffff, -1")
    a(f"s_waitcnt lgkmcnt(1)")
    a(f"buffer_store_dwordx4 {vr(112,4)}, v5, {sr(SRD_REC,4)}, 0 offen sc1")
    a(f"s_mov_b64 exec, -1")
    a.lab(f"{p}_f_x0")
    a(f"s_setprio 0")
    a(f"s_branch {p}_f_done")

    a.c("---------------- waves 7-14: one x tile each into LDS; waves 11-14 then half of A / U")
    a.lab(f"{p}_f_loader")
    a(f"s_setprio 3")
    a(f"s_sub_u32 s{sT3}, s{sWV}, 7")
    a(f"s_lshl_b32 s{sT0}, s{sT3}, 2")
    a(f"v_mov_b32 v12, s{sT0}")
    a.c("x tile: row (lane>>4) + 4i, slot lane&15 holds chunk slot ^ (row & 15)")
    a(f"v_lshrrev_b32 v6, 4, v{vLANE}")
    a(f"v_xor_b32 v7, v6, v{vLANE}")
    a(f"v_and_b32 v7, 15, v7")
    a(f"v_lshlrev_b32 v72, 8, v6")
    a(f"v_lshl_add_u32 v72, v7, 4, v72")
    for k in range(1, 4):
        a(f"v_xor_b32 v{72+k}, {64*k}, v72")
    a(f"s_mul_i32 s{sT2}, s{sT3}, {XT}")
    a(f"s_lshl_b32 s{sT1}, s{sBIN}, 3")
    a(f"s_add_u32 s{sT1}, s{sT1}, s{sT3}")
    a(f"s_mul_i32 s{sT1}, s{sT1}, 3125")
    a(f"s_lshr_b32 s{sT1}, s{sT1}, 7")
    a(f"s_lshl_b32 s{sT1}, s{sT1}, 8")
    for i in range(7):
        a(f"s_add_u32 m0, s{sT2}, {XB + 1024 * i}")
        a(f"v_add_u32 v6, s{sT1}, v{72 + (i & 3)}")
        if i < 6:
            a(f"s_add_u32 s{sT1}, s{sT1}, 1024")
        else:
            a(f"s_not_b64 exec, {sr(sHM,2)}")
        a(f"buffer_load_dwordx4 v6, {sr(SRD_X,4)}, 0 offen lds")
    a(f"s_mov_b64 exec, -1")
    a(f"s_cmp_lt_u32 s{sWV}, 11")
    a(f"s_cselect_b32 s{sT0}, 0, 4")
    a(f"v_mov_b32 v11, s{sT0}")
    a(f"s_cmp_lt_u32 s{sWV}, {7 + PREW}")
    a(f"s_cbranch_scc0 {p}_f_wlate")
    a(f"s_setprio 0")
    a(f"s_waitcnt vmcnt(7)")
    a(f"s_mov_b64 exec, 1")
    a(f"ds_add_u32 v11, v{vONE} offset:{WF}")
    a(f"s_mov_b64 exec, -1")
    stamp(a, 10)
    a(f"s_waitcnt vmcnt(0)")
    a(f"ds_write_b32 v12, v{vONE} offset:{XFL}")
    a(f"s_branch {p}_f_done")
    a.lab(f"{p}_f_wlate")
    a(f"s_setprio 2")
    a(f"s_cmp_lt_u32 s{sWV}, 11")
    a(f"s_cbranch_scc1 {p}_f_wnow")
    a(f"s_setprio 0")
    a(f"s_waitcnt vmcnt(0)")
    a(f"ds_write_b32 v12, v{vONE} offset:{XFL}")
    a.lab(f"{p}_f_wnow")
    w_dma(a)
    a(f"s_setprio 0")
    if "auearly" not in DIAG:
        a(f"s_cmp_ge_u32 s{sWV}, 11")
        a(f"s_cbranch_scc1 {p}_f_done")
    a(f"s_waitcnt vmcnt(8)")
    a(f"ds_write_b32 v12, v{vONE} offset:{XFL}")
    a(f"s_waitcnt vmcnt(0)")
    a(f"s_mov_b64 exec, 1")
    a(f"ds_add_u32 v11, v{vONE} offset:{WF}")
    a(f"s_mov_b64 exec, -1")
    stamp(a, 10)
    a(f"s_branch {p}_f_done")

    a.c("---------------- wave 15 publishes / collects the headers")
    a.lab(f"{p}_f_w15")
    a(f"s_setprio 3")
    a(f"s_lshl_b32 s{sT0}, s2, 11")
    a(f"v_lshl_add_u32 v4, v{vLANE}, 5, s{sT0}")
    a(f"s_mov_b32 s{sSPIN}, {SPIN_MAX}")
    for k in range(1, 4):
        a(f"s_sleep {NS_SL}")
        a(f"buffer_load_dword v{72+k}, v10, {sr(SRD_DBG,4)}, 0 offen sc1")
    for k in range(4):
        a(f"s_waitcnt vmcnt({3-k})")
        a(f"v_readfirstlane_b32 s{sNON}, v{72+k}")
        a(f"s_cmp_lg_u32 s{sNON}, 0")
        a(f"s_cbranch_scc1 {p}_tag_ok")
    a.lab(f"{p}_tag_loop")
    a(f"buffer_load_dword v13, v10, {sr(SRD_DBG,4)}, 0 offen sc1")
    a(f"s_waitcnt vmcnt(0)")
    a(f"v_readfirstlane_b32 s{sNON}, v13")
    a(f"s_cmp_lg_u32 s{sNON}, 0")
    a(f"s_cbranch_scc1 {p}_tag_ok")
    a(f"s_sub_u32 s{sSPIN}, s{sSPIN}, 1")
    a(f"s_cbranch_scc0 {p}_tag_loop")
    a(f"s_mov_b32 s{sNON}, 1")
    a.lab(f"{p}_tag_ok")
    stamp(a, 11)
    a(f"v_mov_b32 v13, s{sNON}")
    a(f"ds_write_b32 v10, v13 offset:{NON2}")
    noh_from_non(a)
    spin(a, f"{p}_f_s2b", S2, 7)
    offsets_scan(a)
    for k in range(2):
        a(f"v_lshl_or_b32 v{108+4*k}, v{vC2+k}, 16, v{vO2+k}")
        a(f"v_or_b32 v{108+4*k}, s{sNOH}, v{108+4*k}")
        a(f"v_mov_b32 v{109+4*k}, v13")
    spin(a, f"{p}_f_s3b", S3, 7)
    a(f"ds_read_b32 v110, v{vTa} offset:{CSUM}")
    a(f"ds_read_b32 v114, v{vTa} offset:{CSUM+4}")
    a(f"s_waitcnt lgkmcnt(0)")
    a(f"buffer_store_dwordx4 v[108:111], v4, {sr(SRD_HDR,4)}, 0 offen sc1")
    a(f"buffer_store_dwordx4 v[112:115], v4, {sr(SRD_HDR,4)}, 0 offen offset:16 sc1")
    stamp(a, 1)
    a(f"s_setprio 0")
    a.lab(f"{p}_f_done")


HP = (48, 52, 120, 124)
sPM = 44
def poll(a, p, tag, first=False, last=False):
    if first:
        a(f"s_lshl_b32 s{sT0}, s{sBIN}, 4")
        a(f"v_lshl_add_u32 v8, v{vLANE}, 13, s{sT0}")
        a(f"v_add_u32 v9, 4096, v8")
    a(f"s_cmp_lg_u32 s{sWV}, 15")
    a(f"s_cbranch_scc1 {p}_po{tag}")
    if first:
        a(f"s_mov_b64 {sr(sPM,2)}, -1")
        a(f"s_mov_b32 s{sSPIN}, {SPIN_MAX}")
    else:
        a(f"s_cmp_eq_u64 {sr(sPM,2)}, 0")
        a(f"s_cbranch_scc1 {p}_po{tag}")
        a.lab(f"{p}_pl{tag}")
        a(f"s_waitcnt vmcnt(0)")
        for k, h in enumerate(HP):
            a(f"v_xor_b32 v{h+3}, s{sNOH}, v{h}")
            a(f"v_and_b32 v{h+3}, 0xf800f800, v{h+3}")
            a(f"v_xor_b32 v7, s{sNON}, v{h+1}")
            a(f"v_or3_b32 v6, v{h+3}, v7, {'0' if k == 0 else 'v6'}")
        a(f"v_cmp_ne_u32 {sr(sPM,2)}, 0, v6")
        a(f"s_sub_u32 s{sSPIN}, s{sSPIN}, 1")
        a(f"s_cselect_b64 {sr(sPM,2)}, 0, {sr(sPM,2)}")
        a(f"s_cmp_lg_u64 {sr(sPM,2)}, 0")
        a(f"s_cbranch_scc1 {p}_pa{tag}")
        a(f"v_lshlrev_b32 v7, 5, v{vLANE}")
        a(f"v_add_u32 v7, {STG}, v7")
        a(f"v_mov_b32 v6, s{sNON}")
        for k, h in enumerate(HP):
            a(f"ds_write2_b32 v7, v{h}, v{h+2} offset0:{2*k} offset1:{2*k+1}")
        a(f"ds_write_b32 v10, v6 offset:{NONCE}")
        stamp(a, 10)
        a(f"s_branch {p}_po{tag}")
        a.lab(f"{p}_pa{tag}")
        if last:
            a(f"s_sleep {PS2}")
    a(f"s_mov_b64 exec, {sr(sPM,2)}")
    for k, h in enumerate(HP):
        a(f"buffer_load_dwordx3 {vr(h,3)}, v{8 + (k>>1)}, {sr(SRD_HDR,4)}, 0 offen offset:{2048*(k&1)} sc1")
    a(f"s_mov_b64 exec, -1")
    if last:
        a(f"s_branch {p}_pl{tag}")
    a.lab(f"{p}_po{tag}")


vZ0 = 2
vXA, vWA, vTMP = 3, 4, 5
def w_addr(a):
    a(f"s_and_b32 s{sT1}, s{sWV}, 1")
    a(f"v_lshrrev_b32 v6, 5, v{vLANE}")
    a(f"v_lshlrev_b32 v{vWA}, 10, v6")
    a(f"v_bfe_u32 v6, v{vLANE}, 2, 2")
    a(f"v_lshl_add_u32 v{vWA}, v6, 7, v{vWA}")
    a(f"v_bfe_u32 v6, v{vLANE}, 3, 1")
    a(f"v_xor_b32 v6, s{sT1}, v6")
    a(f"v_lshl_add_u32 v{vWA}, v6, 6, v{vWA}")
    a(f"v_and_b32 v6, 1, v{vLANE}")
    a(f"v_lshl_add_u32 v{vWA}, v6, 5, v{vWA}")
    a(f"v_and_b32 v6, 16, v{vLANE}")
    a(f"v_add_u32 v{vWA}, v6, v{vWA}")
    a(f"v_and_b32 v6, 2, v{vLANE}")
    a(f"v_lshl_add_u32 v{vWA}, v6, 2, v{vWA}")
    a(f"v_add_u32 v{vWA}, {WB}, v{vWA}")


def xf(s):
    return 16 + 4 * s if s < 4 else 56 + 4 * (s - 4)

def x_reads(a):
    a.c("x fragments of this wave's sub-block")
    a(f"s_mul_i32 s{sT1}, s{sLJ}, {XT}")
    a(f"s_add_u32 s{sT1}, s{sT1}, {XB}")
    a(f"v_and_b32 v6, 31, v{vLANE}")
    a(f"v_lshrrev_b32 v7, 5, v{vLANE}")
    a(f"v_xor_b32 v7, v7, v6")
    a(f"v_and_b32 v7, 15, v7")
    a(f"v_lshl_add_u32 v6, v6, 8, s{sT1}")
    a(f"v_lshl_add_u32 v6, v7, 4, v6")
    for s in range(8):
        if s:
            a(f"v_xor_b32 v7, {32*s}, v6")
        a(f"ds_read_b128 {vr(xf(s),4)}, v{7 if s else 6}")
    signal(a, XR)


def w_reads(a, m1, m2, s):
    for k, m in enumerate((m1, m2)):
        for u in range(2):
            a(f"ds_read_b64_tr_b16 {vr(RA+8*(s%4)+4*k+2*u,2)}, v{vWA} offset:{m*16384 + s*2048 + u*512}")


def gemm_pass(a, m1, m2, swap2, first_issued=False, nxt=None):
    if not first_issued:
        for s in range(4):
            w_reads(a, m1, m2, s)
    for s in range(8):
        r = RA + 8 * (s % 4)
        a(f"s_waitcnt lgkmcnt({12 if s <= 4 else 4 * (7 - s)})")
        c1 = "0" if s == 0 else vr(Z, 16)
        c2 = "0" if s == 0 else vr(ACC, 16)
        a(f"v_mfma_f32_32x32x16_bf16 {vr(Z,16)}, {vr(xf(s),4)}, {vr(r,4)}, {c1}")
        if swap2:
            a(f"v_mfma_f32_32x32x16_bf16 {vr(ACC,16)}, {vr(r+4,4)}, {vr(xf(s),4)}, {c2}")
        else:
            a(f"v_mfma_f32_32x32x16_bf16 {vr(ACC,16)}, {vr(xf(s),4)}, {vr(r+4,4)}, {c2}")
        if s < 4:
            w_reads(a, m1, m2, s + 4)


G2 = 72
def pu_pass(a, p):
    slot = (88, 48)
    def rd(st):
        for k, m in enumerate((0, 3)):
            for u in range(2):
                a(f"ds_read_b64_tr_b16 {vr(slot[st%2]+4*k+2*u,2)}, v{vWA} offset:{m*16384 + st*2048 + u*512}")
    rd(0)
    rd(1)
    for st in range(8):
        r = slot[st % 2]
        a(f"s_waitcnt lgkmcnt({4 if st < 7 else 0})")
        c1 = "0" if st == 0 else vr(G2, 16)
        c2 = "0" if st == 0 else vr(ACC, 16)
        a(f"v_mfma_f32_32x32x16_bf16 {vr(G2,16)}, {vr(xf(st),4)}, {vr(r,4)}, {c1}")
        a(f"v_mfma_f32_32x32x16_bf16 {vr(ACC,16)}, {vr(r+4,4)}, {vr(xf(st),4)}, {c2}")
        if st + 2 < 8:
            rd(st + 2)
        if st == MIDPUB:
            a(f"s_cmp_lg_u32 s{sNT}, 0")
            a(f"s_cbranch_scc1 {p}_mp_done")
            a(f"s_cmp_lg_u32 s{sNON}, 0")
            a(f"s_cbranch_scc1 {p}_mp_rec")
            a(f"s_waitcnt vmcnt(0)")
            a.lab(f"{p}_mp_rec")
            a(f"s_waitcnt vmcnt({NI})")
            a(f"s_call_b64 {sr(sRET,2)}, {p}_sub_pub")
            a(f"s_mov_b32 s{sNT}, 1")
            a.lab(f"{p}_mp_done")


def table_store(a, fused):
    a.c("table rows: hi16 = -log2e * (x B), lo16 = bf16(1 / (x V)); 8 rows at a time through LDS, whole lines out")
    a(f"s_lshl_b32 s{sT1}, s{sWV}, 10")
    a(f"s_add_u32 s{sT1}, s{sT1}, {STG + 2048}")
    a(f"v_lshrrev_b32 v6, 5, v{vLANE}")
    a(f"v_lshl_add_u32 v6, v6, 9, s{sT1}")
    a(f"v_and_b32 v7, 31, v{vLANE}")
    a(f"v_lshl_add_u32 v6, v7, 2, v6")
    a(f"v_lshl_add_u32 v7, v{vLANE}, 4, s{sT1}")
    a(f"s_lshl_b32 s{sT0}, s{sNODE0}, 7")
    a(f"v_lshl_add_u32 v{vTMP}, v{vLANE}, 4, s{sT0}")
    a(f"s_nop 5")
    for j in range(0, 14, 2):
        for k in (j, j + 1):
            a(f"v_rcp_f32 v{ACC+k}, v{ACC+k}")
            a(f"v_mul_f32 v{Z+k}, s{sNL2E}, v{Z+k}")
        for k in (j, j + 1):
            a(f"v_med3_f32 v{ACC+k}, v{ACC+k}, s{sMAXF}, -s{sMAXF}")
        a(f"v_cvt_pk_bf16_f32 v{ACC+j}, v{ACC+j}, v{ACC+j+1}")
        a(f"v_perm_b32 v{Z+j}, v{Z+j}, v{ACC+j}, s{sSELLO}")
        a(f"v_perm_b32 v{Z+j+1}, v{Z+j+1}, v{ACC+j}, s{sSELHI}")
        for k in (j, j + 1):
            a(f"ds_write_b32 v6, v{Z+k} offset:{(k&3)*128}")
        if j % 4 == 2 or j == 12:
            g = j // 4
            a(f"ds_read_b128 {vr(RA+4*g,4)}, v7")
    for g in range(4):
        a(f"s_waitcnt lgkmcnt({(10, 5, 3, 0)[g] if False else 0})") if g == 0 else None
        if g == 3:
            a(f"s_sub_u32 s{sT0}, s{sNR}, 24")
            a(f"s_lshl_b32 s{sT0}, s{sT0}, 3")
            a(f"s_bfm_b64 exec, s{sT0}, 0")
        a(f"buffer_store_dwordx4 {vr(RA+4*g,4)}, v{vTMP}, {sr(SRD_TS,4)}, 0 offen offset:{1024*g} sc1")
    a(f"s_mov_b64 exec, -1")
    a(f"s_nop 0")


vC0 = 88
def load_C(a):
    a.c("edge-feature weights g_w[256+k][32*slice + pi(n)]")
    a(f"v_bfe_u32 v6, v{vLANE}, 2, 1")
    a(f"v_lshlrev_b32 v6, 5, v6")
    a(f"v_bfe_u32 v7, v{vLANE}, 3, 2")
    a(f"v_lshl_add_u32 v6, v7, 3, v6")
    a(f"v_and_b32 v7, 3, v{vLANE}")
    a(f"v_lshl_add_u32 v6, v7, 1, v6")
    a(f"s_and_b32 s{sT0}, s{sWV}, 1")
    a(f"s_lshl_b32 s{sT0}, s{sT0}, 6")
    a(f"s_add_u32 s{sT0}, s{sT0}, {CB}")
    a(f"v_add_u32 v6, s{sT0}, v6")
    for k in range(4):
        a(f"ds_read_u16 v{vC0+k}, v6 offset:{128*k}")


def pop_pack(a):
    a.c("P' operand (rows 26.. replaced by the edge-feature weights / zero)")
    a(f"s_waitcnt lgkmcnt(0)")
    for k in range(4):
        a(f"v_lshlrev_b32 v{vC0+k}, 16, v{vC0+k}")
    for k in range(4):
        a(f"v_mul_f32 v{vC0+k}, s{sNL2E}, v{vC0+k}")
    a(f"v_cvt_pk_bf16_f32 v6, v{vC0}, v{vC0+1}")
    a(f"v_cvt_pk_bf16_f32 v7, v{vC0+2}, v{vC0+3}")
    a(f"s_nop 3")
    for k in range(14):
        a(f"v_mul_f32 v{G2+k}, s{sNL2E}, v{G2+k}")
    for k in range(7):
        a(f"v_cvt_pk_bf16_f32 v{POP+k}, v{G2+2*k}, v{G2+2*k+1}")
    a(f"s_cmp_eq_u32 s{sNN}, 25")
    a(f"s_cselect_b32 s{sT0}, 0xffff, 0")
    a(f"v_and_b32 v{POP+6}, s{sT0}, v{POP+6}")
    a(f"v_cndmask_b32 v{POP+6}, v{POP+6}, v6, {sr(sHM,2)}")
    a(f"v_cndmask_b32 v{POP+7}, 0, v7, {sr(sHM,2)}")


vHS, vHL = 12, 13
def hdr_load(a, fused, addr=7):
    a(f"buffer_load_dwordx2 v[14:15], v{addr}, {sr(SRD_HDR,4)}, 0 offen{' sc1' if fused else ''}")

def hdr_addr(a, addr=7):
    a(f"v_lshrrev_b32 v{addr}, 2, v0")
    a(f"s_lshl_b32 s{sT0}, s{sBIN}, 4")
    a(f"v_lshl_add_u32 v{addr}, v{addr}, 10, s{sT0}")


def hdr_decode(a):
    a(f"v_and_b32 v6, 3, v0")
    a(f"v_and_b32 v7, 0x7ff, v14")
    a(f"v_add_u32 v7, v7, v6")
    a(f"v_mul_u32_u24 v7, 12, v7")
    a(f"v_lshrrev_b32 v{vHS}, 2, v0")
    a(f"v_mul_u32_u24 v{vHS}, 19200, v{vHS}")
    a(f"v_add_u32 v{vHS}, v{vHS}, v7")
    a(f"v_bfe_u32 v{vHL}, v14, 16, 11")
    a(f"v_sub_u32 v{vHL}, v{vHL}, v6")
    a(f"s_mov_b32 s{sRB}, 0")
    a(f"s_mov_b32 s{sC}, {CFAST}")


def rec_loads(a, p, tag, fused, fixed=False):
    sc = " sc1" if fused else ""
    a(f"v_subrev_u32 v7, s{sRB}, v{vHL}")
    a(f"v_and_b32 v6, 3, v0")
    a(f"v_sub_u32 v6, s{sC}, v6")
    a(f"v_min_i32 v7, v7, v6")
    a(f"s_mul_i32 s{sT0}, s{sRB}, 12")
    a(f"v_add_u32 v6, s{sT0}, v{vHS}")
    for i in range(NI):
        a(f"v_cmp_lt_i32 {sr(MASKS[i],2)}, {4*i}, v7")
    for i in range(NI):
        a(f"s_mov_b64 exec, {sr(MASKS[i],2)}")
        if not fixed: a(f"s_cbranch_execz {p}_rl_done{tag}")
        a(f"buffer_load_dwordx3 {vr(REC+4*i,3)}, v6, {sr(SRD_REC,4)}, 0 offen offset:{48*i}{sc}")
    a.lab(f"{p}_rl_done{tag}")
    a(f"s_mov_b64 exec, -1")


def append1(a, p, tag):
    a.c("---------------- list slots for the records (16 sub-block lists)")
    a(f"s_add_u32 s{sT0}, s{sRB}, s{sC}")
    a(f"v_and_b32 v6, 3, v0")
    a(f"v_add_u32 v6, v6, v{vHL}")
    a(f"v_cmp_lt_i32 vcc, s{sT0}, v6")
    a(f"v_mov_b32 v6, 4")
    a(f"v_mov_b32 v7, 64")
    a(f"s_mov_b64 exec, vcc")
    a(f"ds_add_u32 v7, v6 offset:{LCNT}")
    a(f"s_mov_b64 exec, -1")
    a(f"v_mov_b32 v7, 0x3c")
    for i in range(NI):
        q = REC + 4 * i
        a(f"s_mov_b64 exec, {sr(MASKS[i],2)}")
        a(f"s_cbranch_execz {p}_ap1{tag}")
        a(f"v_and_b32_sdwa v{q+3}, v{q+2}, v7 dst_sel:DWORD dst_unused:UNUSED_PAD src0_sel:BYTE_3 src1_sel:DWORD")
        a(f"ds_add_rtn_u32 v{q+3}, v{q+3}, v6 offset:{LCNT}")
    a.lab(f"{p}_ap1{tag}")
    a(f"s_mov_b64 exec, -1")


def append2(a, p):
    for i in range(NI):
        q = REC + 4 * i
        a(f"s_mov_b64 exec, {sr(MASKS[i],2)}")
        a(f"s_cbranch_execz {p}_ap2")
        a(f"v_min_u32 v{q+3}, s{sKMAX}, v{q+3}")
        a(f"v_lshlrev_b32 v6, 1, v{q+3}")
        a(f"ds_write_b32 v{q+3}, v{q+2}")
        a(f"ds_write_b64 v6, {vr(q,2)} offset:{EOFF}")
    a.lab(f"{p}_ap2")
    a(f"s_mov_b64 exec, -1")


vKR, vER, vIW, vIE, vIA0, vIA1, vIT0, vIT1, vOLD, vKEY = 4, 5, 120, 121, 122, 123, 124, 125, 126, 127
vEE, vB16, vZERO = 8, 10, 11
AD, BD = 2, 14


def image_setup(a):
    a.c("---------------- selection image addresses; zero the image")
    a(f"s_lshl_b32 s{sT0}, s{sWV}, 11")
    a(f"s_add_u32 s{sT0}, s{sT0}, {IMG}")
    a(f"v_lshl_add_u32 v{vER}, v{vLANE}, 4, s{sT0}")
    for k in range(4):
        a(f"v_mov_b32 v{Z+k}, 0")
    a(f"v_mov_b32 v{vB16}, 0x3f80")
    a(f"v_mov_b32 v{vZERO}, 0")
    a(f"v_and_b32 v6, 31, v{vLANE}")
    a(f"v_mov_b32 v{AD+1}, 0x3f803f80")
    a(f"v_lshlrev_b32 v7, 2, v6")
    a(f"v_cvt_f32_u32 v7, v7")
    a(f"v_lshrrev_b32 v7, 16, v7")
    a(f"v_or_b32 v7, 0x4b000000, v7")
    a(f"v_mov_b32 v{BD}, 0x47004300")
    a(f"v_cndmask_b32 v{BD}, v{BD}, v{vZERO}, {sr(sHM,2)}")
    a(f"v_cndmask_b32 v{BD+1}, v7, v{vZERO}, {sr(sHM,2)}")
    a(f"v_lshl_add_u32 v6, v6, 6, s{sT0}")
    a(f"v_bfe_u32 v7, v{vLANE}, 2, 2")
    a(f"v_lshl_add_u32 v{vIW}, v7, 4, v6")
    a(f"v_xor_b32 v{vIE}, 56, v{vIW}")
    a(f"v_lshrrev_b32 v6, 5, v{vLANE}")
    a(f"v_lshlrev_b32 v{vIA0}, 4, v6")
    a(f"v_xor_b32 v{vIA0}, v{vIA0}, v{vIW}")
    a(f"v_xor_b32 v{vIA1}, 32, v{vIA0}")
    a(f"v_mov_b32 v{vOLD}, v{vIW}")
    a(f"v_lshl_add_u32 v7, v6, 2, v7")
    a(f"v_lshl_add_u32 v{vIT0}, v7, 6, s{sT0}")
    a(f"v_bfe_u32 v7, v{vLANE}, 4, 1")
    a(f"v_lshlrev_b32 v7, 1, v7")
    a(f"v_and_b32 v{vIT1}, 1, v{vLANE}")
    a(f"v_or_b32 v7, v7, v{vIT1}")
    a(f"v_xor_b32 v7, v7, v6")
    a(f"v_lshl_add_u32 v{vIT0}, v7, 4, v{vIT0}")
    a(f"v_and_b32 v7, 2, v{vLANE}")
    a(f"v_lshl_add_u32 v{vIT0}, v7, 2, v{vIT0}")
    a(f"v_xor_b32 v{vIT1}, 32, v{vIT0}")
    a(f"v_add_u32 v{vIT1}, 512, v{vIT1}")


def gathers(a, R, fused):
    sc = " sc1" if fused and "sc1g" in DIAG else ""
    if "nogather" in DIAG: return
    for k in range(16):
        a(f"buffer_load_dword v{R+k}, v{OFF+k}, {sr(SRD_TG,4)}, 0 offen{sc}")

sN0, sJMP = sM2, sM3
def rec_reads(a):
    a(f"ds_read_b32 v{vKEY}, v{vKR}")
    a(f"ds_read_b64 {vr(vEE,2)}, v{vER} offset:{EOFF}")

def step_calc(a, cur):
    a(f"s_cmp_eq_u32 s{sN0}, {cur}")
    a(f"s_cselect_b32 s{sT1}, s{sJMP}, 128")
    a(f"s_lshl_b32 s{sT2}, s{sT1}, 1")

def step(a):
    a(f"v_add_u32 v{vKR}, s{sT1}, v{vKR}")
    a(f"v_add_u32 v{vER}, s{sT2}, v{vER}")

def image_build(a):
    a(f"ds_write_b16 v{vOLD}, v{vZERO}")
    a(f"v_xor_b32_sdwa v{vOLD}, v{vKEY}, v{vIW} dst_sel:DWORD dst_unused:UNUSED_PAD src0_sel:BYTE_2 src1_sel:DWORD")
    a(f"ds_write_b64 v{vIE}, {vr(vEE,2)}")
    a(f"ds_write_b16 v{vOLD}, v{vB16}")

def aex_reads(a):
    a(f"ds_read_b128 {vr(AEX,4)}, v{vIA0}")
    a(f"ds_read_b128 {vr(AEX+4,4)}, v{vIA1}")

def sag_reads(a):
    for s in range(2):
        a(f"ds_read_b64_tr_b16 {vr(SAG+4*s,2)}, v{vIT0} offset:{1024*s}")
        a(f"ds_read_b64_tr_b16 {vr(SAG+4*s+2,2)}, v{vIT1} offset:{1024*s}")

def addr_cvt(a):
    a(f"v_cvt_f32_ubyte0 v6, v{vKEY}")
    a(f"v_cvt_f32_ubyte1 v7, v{vKEY}")
def addr_pack(a):
    a(f"v_perm_b32 v{AD}, v7, v6, s{sSELHI}")
def addr_mfma(a):
    a(f"v_mfma_f32_32x32x8_bf16 {vr(OFF,16)}, {vr(AD,2)}, {vr(BD,2)}, 0")


def tile_body(a, R, Rn, fused, lb):
    gathers(a, Rn, fused)
    step_calc(a, f"s{sIT}")
    if PRIO:
        a(f"s_sub_u32 s{sT0}, s{sNT}, s{sIT}")
        for lvl, r in enumerate((1, 3, 6)):
            a(f"s_cmp_lg_u32 s{sT0}, {r}")
            a(f"s_cbranch_scc1 {lb}_p{lvl}")
            a(f"s_setprio {lvl}")
            a.lab(f"{lb}_p{lvl}")
    a(f"s_waitcnt vmcnt(16)")
    a(f"v_mfma_f32_32x32x16_bf16 {vr(Z,16)}, {vr(AEX,4)}, {vr(POP,4)}, {vr(R,16)}")
    a(f"v_mfma_f32_32x32x16_bf16 {vr(Z,16)}, {vr(AEX+4,4)}, {vr(POP+4,4)}, {vr(Z,16)}")
    if "nolds" not in DIAG:
        sag_reads(a)
        image_build(a)
        aex_reads(a)
    else:
        a("s_nop 9")
    rec_reads(a)
    step(a)
    if PPB is not None:
        a(f"s_cmp_lg_u32 s{sIT}, {PPB}")
        a(f"s_cbranch_scc1 {lb}_nopp")
        phase_prefetch(a, 1)
        a.lab(f"{lb}_nopp")
    for j in range(16):
        if "notrans" not in DIAG: a(f"v_exp_f32 v{Z+j}, v{Z+j}")
        if "b64" in DIAG:
            if j % 2: a(f"v_lshlrev_b64 {vr(R+j-1,2)}, 16, {vr(R+j-1,2)}")
        else:
            a(f"v_lshlrev_b32 v{R+j}, 16, v{R+j}")
    a(f"s_waitcnt lgkmcnt(0)")
    addr_cvt(a)
    for j in range(0, 16, 2):
        if "nopk" in DIAG:
            a(f"v_fma_f32 v{Z+j}, v{Z+j}, v{R+j}, v{R+j}")
            a(f"v_fma_f32 v{Z+j+1}, v{Z+j+1}, v{R+j+1}, v{R+j+1}")
        else:
            a(f"v_pk_fma_f32 {vr(Z+j,2)}, {vr(Z+j,2)}, {vr(R+j,2)}, {vr(R+j,2)}")
        if j == 0:
            addr_pack(a)
    addr_mfma(a)
    for j in range(16):
        if "notrans" not in DIAG: a(f"v_rcp_f32 v{Z+j}, v{Z+j}")
        if j >= 3 and j % 2 == 1:
            k = (j - 3) // 2
            a(f"v_cvt_pk_bf16_f32 v{R+k}, v{Z+2*k}, v{Z+2*k+1}")
    a(f"s_add_u32 s{sIT}, s{sIT}, 1")
    a(f"v_cvt_pk_bf16_f32 v{R+7}, v{Z+14}, v{Z+15}")
    a(f"s_cmp_lt_u32 s{sIT}, s{sNT}")
    a(f"v_mfma_f32_32x32x16_bf16 {vr(ACC,16)}, {vr(R,4)}, {vr(SAG,4)}, {vr(ACC,16)}")
    a(f"v_mfma_f32_32x32x16_bf16 {vr(ACC,16)}, {vr(R+4,4)}, {vr(SAG+4,4)}, {vr(ACC,16)}")


sHALF = sM4
def half_body(a, R):
    a(f"s_waitcnt vmcnt(0)")
    a(f"v_mfma_f32_32x32x16_bf16 {vr(Z,16)}, {vr(AEX,4)}, {vr(POP,4)}, {vr(R,16)}")
    a(f"v_mfma_f32_32x32x16_bf16 {vr(Z,16)}, {vr(AEX+4,4)}, {vr(POP+4,4)}, {vr(Z,16)}")
    a(f"ds_read_b64_tr_b16 {vr(SAG,2)}, v{vIT0}")
    a(f"ds_read_b64_tr_b16 {vr(SAG+2,2)}, v{vIT1}")
    a(f"s_nop 9")
    for j in range(8):
        a(f"v_exp_f32 v{Z+j}, v{Z+j}")
        a(f"v_lshlrev_b32 v{R+j}, 16, v{R+j}")
    for j in range(0, 8, 2):
        a(f"v_pk_fma_f32 {vr(Z+j,2)}, {vr(Z+j,2)}, {vr(R+j,2)}, {vr(R+j,2)}")
    for j in range(8):
        a(f"v_rcp_f32 v{Z+j}, v{Z+j}")
    for k in range(4):
        a(f"v_cvt_pk_bf16_f32 v{R+k}, v{Z+2*k}, v{Z+2*k+1}")
    a(f"s_waitcnt lgkmcnt(0)")
    a(f"s_nop 0")
    a(f"v_mfma_f32_32x32x16_bf16 {vr(ACC,16)}, {vr(R,4)}, {vr(SAG,4)}, {vr(ACC,16)}")


def t_prefetch(a):
    a.c("read this wave's own table rows back once (streams them into the outer caches ahead of the random reads)")
    a(f"s_lshl_b32 s{sT0}, s{sNODE0}, 7")
    a(f"v_lshl_add_u32 v6, v{vLANE}, 4, s{sT0}")
    for kk in range(3):
        a(f"s_mov_b32 m0, {PFS - 1024*kk}")
        a(f"s_nop 0")
        a(f"buffer_load_dwordx4 v6, {sr(SRD_TS,4)}, 0 offen offset:{1024*kk}{' sc1' if 'pfsc1' in DIAG else ''} lds")


def phase_prefetch(a, phase):
    a(f"s_lshr_b32 s{sT0}, s2, 3")
    a(f"s_lshl_b32 s{sT0}, s{sT0}, 3")
    a(f"s_add_u32 s{sT0}, s{sT0}, s{sLJ}")
    a(f"s_mul_i32 s{sT0}, s{sT0}, 12500")
    a(f"s_lshr_b32 s{sT0}, s{sT0}, 8")
    a(f"s_lshl_b32 s{sT0}, s{sT0}, 7")
    if phase:
        a(f"s_add_u32 s{sT0}, s{sT0}, {12500*128}")
    a(f"v_lshl_add_u32 v6, v{vLANE}, 4, s{sT0}")
    a(f"v_add_u32 v7, 3072, v6")
    for kk in range(6):
        a(f"s_mov_b32 m0, {PFS - 1024*(kk%3)}")
        a(f"s_nop 0")
        a(f"buffer_load_dwordx4 v{6 + kk//3}, {sr(SRD_TS,4)}, 0 offen offset:{1024*(kk%3)} lds")


def tflag_addr(a, v):
    a(f"s_lshr_b32 s{sT0}, s{sSL}, 1")
    a(f"s_lshl_b32 s{sT0}, s{sT0}, 14")
    a(f"s_add_u32 s{sT0}, s{sT0}, {TFL_OFF}")
    a(f"v_lshl_add_u32 v{v}, v{vLANE}, 8, s{sT0}")


def tflag_loads(a, v):
    a(f"buffer_load_dwordx2 v[16:17], v{v}, {sr(SRD_HDR,4)}, 0 offen sc1")
    a(f"buffer_load_dwordx2 v[18:19], v{v}, {sr(SRD_HDR,4)}, 0 offen offset:128 sc1")


def tflag_issue(a, p):
    a(f"s_cmp_lg_u32 s{sWV}, {TFW}")
    a(f"s_cbranch_scc1 {p}_tf_noissue")
    tflag_addr(a, 3)
    tflag_loads(a, 3)
    a.lab(f"{p}_tf_noissue")


def tflag_wait(a, p):
    a.c("one wave waits until all 128 workgroups of this feature half have published their table rows")
    a(f"s_cmp_lg_u32 s{sWV}, {TFW}")
    a(f"s_cbranch_scc1 {p}_tf_done")
    a(f"s_cmp_lg_u32 s{sNOH}, 0")
    a(f"s_cbranch_scc1 {p}_tf_done")
    tflag_addr(a, 6)
    a(f"s_not_b32 s{sT1}, s{sNON}")
    a(f"s_mov_b32 s{sSPIN}, {SPIN_MAX}")
    a(f"s_branch {p}_tf_first")
    a.lab(f"{p}_tf_loop")
    tflag_loads(a, 6)
    a.lab(f"{p}_tf_first")
    a(f"s_waitcnt vmcnt(0)")
    a(f"v_xor_b32 v20, s{sNON}, v16")
    a(f"v_xor_b32 v21, s{sT1}, v17")
    a(f"v_xor_b32 v22, s{sNON}, v18")
    a(f"v_xor_b32 v23, s{sT1}, v19")
    a(f"v_or3_b32 v20, v20, v21, v22")
    a(f"v_or_b32 v20, v20, v23")
    a(f"v_cmp_ne_u32 vcc, 0, v20")
    a(f"s_and_b64 exec, exec, vcc")
    a(f"s_cbranch_scc0 {p}_tf_end")
    a(f"s_sleep 2")
    a(f"s_sub_u32 s{sSPIN}, s{sSPIN}, 1")
    a(f"s_cbranch_scc0 {p}_tf_loop")
    a.lab(f"{p}_tf_end")
    a(f"s_mov_b64 exec, -1")
    a(f"s_mov_b32 s{sNOH}, 1")
    a.lab(f"{p}_tf_done")


def main_phase(a, p, fused):
    a.lab(f"{p}_round")
    append1(a, p, "a")
    a(f"s_waitcnt lgkmcnt(0)")
    append2(a, p)
    stamp(a, 5)
    image_setup(a)
    tflag_wait(a, p)
    if "nopf" not in DIAG and "pfearly" not in DIAG and "pflate" not in DIAG: t_prefetch(a)
    a(f"s_waitcnt lgkmcnt(0)")
    a(f"s_barrier")
    stamp(a, 6)
    if STAMPS:
        a("s_memtime s[100:101]")
        a("s_waitcnt lgkmcnt(0)")
        a(f"s_mov_b32 s{sM1}, s100")
    a(f"ds_write_b128 v{vER}, {vr(Z,4)}")
    a(f"ds_write_b128 v{vER}, {vr(Z,4)} offset:1024")
    if "pflate" in DIAG or "pf2x" in DIAG: t_prefetch(a)
    a(f"v_and_b32 v6, 31, v{vLANE}")
    a(f"v_lshlrev_b32 v{vKR}, 2, v6")
    a(f"ds_read_b32 v7, v{vKR} offset:{LCNT}")
    cursor_starts(a, 6, 8)
    a(f"v_add_u32 v6, {4*CAP}, v6")
    a(f"s_mul_i32 s{sT0}, s{sLJ}, {LS*4}")
    a(f"s_add_u32 s{sT0}, s{sT0}, {KEYB}")
    a(f"s_and_b32 s{sNT}, s{sWV}, 14")
    a(f"s_or_b32 s{sIT}, s{sWV}, 1")
    a(f"s_waitcnt lgkmcnt(0)")
    a(f"v_readlane_b32 s{sT1}, v7, s{sNT}")
    a(f"v_readlane_b32 s{sT2}, v7, s{sIT}")
    a(f"v_readlane_b32 s{sT3}, v7, 16")
    a(f"v_cmp_lt_u32 vcc, v6, v7")
    a(f"s_and_b32 s{sNT}, vcc_lo, 0xffff")
    a(f"s_cbranch_scc1 {p}_overflow")
    a.c("the last partial tile of the first half moves behind the second half; 64 dummy edges behind that")
    a(f"s_sub_u32 s{sN0}, s{sT1}, s{sT0}")
    a(f"s_and_b32 s{sIT}, s{sN0}, 127")
    a(f"s_sub_u32 s{sT1}, s{sT1}, s{sIT}")
    a(f"v_lshl_add_u32 v6, v{vLANE}, 2, s{sT1}")
    a(f"v_lshlrev_b32 v7, 1, v6")
    a(f"ds_read_b32 v{vKEY}, v6")
    a(f"ds_read_b64 v[8:9], v7 offset:{EOFF}")
    a(f"s_lshr_b32 s{sN0}, s{sN0}, 7")
    a(f"v_lshlrev_b32 v6, 2, v{vLANE}")
    a(f"v_cmp_gt_u32 vcc, s{sIT}, v6")
    a(f"v_add_u32 v6, s{sT2}, v6")
    a(f"v_lshlrev_b32 v7, 1, v6")
    a(f"v_mov_b32 v{AEX}, 0x{N | (46 << 16):x}")
    a(f"s_add_u32 s{sJMP}, s{sT0}, {4*CAP}")
    a(f"s_sub_u32 s{sNT}, s{sT2}, s{sJMP}")
    a(f"s_add_u32 s{sNT}, s{sNT}, s{sIT}")
    a(f"s_add_u32 s{sNT}, s{sNT}, 63")
    a(f"s_lshr_b32 s{sNT}, s{sNT}, 6")
    a(f"s_and_b32 s{sHALF}, s{sNT}, 1")
    a(f"s_lshr_b32 s{sNT}, s{sNT}, 1")
    a(f"s_cmp_eq_u32 s{sN0}, 0")
    a(f"s_cselect_b32 s{sT0}, s{sJMP}, s{sT0}")
    a(f"v_add_u32 v{vKR}, s{sT0}, v{vKR}")
    a(f"v_lshlrev_b32 v{vER}, 1, v{vKR}")
    a(f"s_sub_u32 s{sJMP}, s{sJMP}, s{sT1}")
    a(f"s_add_u32 s{sJMP}, s{sJMP}, 128")
    a(f"s_waitcnt lgkmcnt(0)")
    a(f"v_cndmask_b32 v{vKEY}, v{AEX}, v{vKEY}, vcc")
    a(f"v_cndmask_b32 v8, 0, v8, vcc")
    a(f"v_cndmask_b32 v9, 0, v9, vcc")
    a(f"ds_write_b32 v6, v{vKEY}")
    a(f"ds_write_b64 v7, v[8:9] offset:{EOFF}")
    a(f"s_not_b64 exec, {sr(sHM,2)}")
    a(f"ds_write_b32 v6, v{AEX} offset:256")
    a(f"ds_write_b64 v7, {vr(Z,2)} offset:{EOFF + 512}")
    a(f"s_mov_b64 exec, -1")
    a(f"s_add_u32 s{sNT}, s{sNT}, s{sN0}")
    a(f"s_or_b32 s{sT0}, s{sNT}, s{sHALF}")
    a(f"s_cbranch_scc0 {p}_tiles_done")
    a(f"s_mov_b32 s{sIT}, 0")
    if "ppa" in DIAG: phase_prefetch(a, 0)
    rec_reads(a)
    step_calc(a, 1)
    step(a)
    a(f"s_waitcnt lgkmcnt(0)")
    addr_cvt(a)
    addr_pack(a)
    image_build(a)
    addr_mfma(a)
    aex_reads(a)
    rec_reads(a)
    step_calc(a, 2)
    step(a)
    a(f"s_sub_u32 s{sN0}, s{sN0}, 3")
    a(f"s_nop 15")
    a(f"s_waitcnt lgkmcnt(0)")
    addr_cvt(a)
    addr_pack(a)
    gathers(a, RA, fused)
    addr_mfma(a)
    a(f"s_nop 15")
    a(f"s_nop 3")
    if PRIO: a(f"s_setprio 3")
    a(f"s_cmp_eq_u32 s{sNT}, 0")
    a(f"s_cbranch_scc1 {p}_half0")
    a.lab(f"{p}_tile")
    tile_body(a, RA, RBUF, fused, f"{p}_b0")
    a(f"s_cbranch_scc0 {p}_exit1")
    tile_body(a, RBUF, RA, fused, f"{p}_b1")
    a(f"s_cbranch_scc1 {p}_tile")
    a(f"s_cmp_eq_u32 s{sHALF}, 0")
    a(f"s_cbranch_scc1 {p}_tiles_done")
    a.lab(f"{p}_half0")
    half_body(a, RA)
    a(f"s_branch {p}_tiles_done")
    a.lab(f"{p}_exit1")
    a(f"s_cmp_eq_u32 s{sHALF}, 0")
    a(f"s_cbranch_scc1 {p}_tiles_done")
    half_body(a, RBUF)
    a.lab(f"{p}_tiles_done")
    a(f"s_cmp_eq_u32 s{sT3}, 0")
    a(f"s_cbranch_scc1 {p}_epi")
    a(f"s_add_u32 s{sRB}, s{sRB}, s{sC}")
    a(f"s_branch {p}_next")
    a.lab(f"{p}_overflow")
    a(f"s_mov_b32 s{sC}, 1")
    a.lab(f"{p}_next")
    a.c("rare path: another round over the runs")
    a(f"s_waitcnt vmcnt(0) lgkmcnt(0)")
    a(f"s_barrier")
    init_counters(a, p, "r")
    rec_loads(a, p, "r", fused)
    a(f"s_waitcnt vmcnt(0) lgkmcnt(0)")
    a(f"s_barrier")
    a(f"s_branch {p}_round")
    a.lab(f"{p}_epi")
    stamp(a, 7)
    if STAMPS:
        a("s_memtime s[100:101]")
        a("s_waitcnt lgkmcnt(0)")
        a(f"s_sub_u32 s{sreg(9)}, s100, s{sM1}")
    a.c("---------------- epilogue: silu, pack, store")
    a(f"v_and_b32 v6, 31, v{vLANE}")
    a(f"v_cmp_gt_u32 vcc, s{sNN}, v6")
    a(f"v_add_u32 v6, s{sNODE0}, v6")
    a(f"v_lshlrev_b32 v6, 8, v6")
    a(f"v_lshrrev_b32 v7, 5, v{vLANE}")
    a(f"v_lshl_add_u32 v6, v7, 5, v6")
    a(f"s_lshl_b32 s{sT0}, s{sSL}, 6")
    a(f"v_add_u32 v6, s{sT0}, v6")
    a(f"s_nop 7")
    for j in range(16):
        a(f"v_mul_f32 v{Z+j}, s{sNL2E}, v{ACC+j}")
    for j in range(16):
        a(f"v_exp_f32 v{Z+j}, v{Z+j}")
    for j in range(16):
        a(f"v_add_f32 v{Z+j}, 1.0, v{Z+j}")
    for j in range(16):
        a(f"v_rcp_f32 v{Z+j}, v{Z+j}")
    for j in range(16):
        a(f"v_mul_f32 v{Z+j}, v{Z+j}, v{ACC+j}")
    for k in range(8):
        a(f"v_cvt_pk_bf16_f32 v{AEX+k}, v{Z+2*k}, v{Z+2*k+1}")
    a(f"s_mov_b64 exec, vcc")
    osc = " sc1" if "osc1" in DIAG else "" if "oplain" in DIAG else " nt"
    a(f"buffer_store_dwordx4 {vr(AEX,4)}, v6, {sr(SRD_OUT,4)}, 0 offen{osc}")
    a(f"buffer_store_dwordx4 {vr(AEX+4,4)}, v6, {sr(SRD_OUT,4)}, 0 offen offset:16{osc}")


def kernel_header(name):
    return f""".globl {name}
.p2align 8
.type {name},@function
{name}:
"""

def kernel_desc(name):
    return f""".amdhsa_kernel {name}
  .amdhsa_next_free_vgpr 128
  .amdhsa_next_free_sgpr 102
  .amdhsa_accum_offset 128
  .amdhsa_group_segment_fixed_size 0
  .amdhsa_kernarg_size 80
  .amdhsa_user_sgpr_count 2
  .amdhsa_user_sgpr_kernarg_segment_ptr 1
  .amdhsa_system_sgpr_workgroup_id_x 1
.end_amdhsa_kernel
"""

def file_head():
    return open("cdna_kernels/" + NAME + ".s.ref").read().split("; Override launch geometry")[0]


def finish(a, kidx):
    stamp(a, 8)
    stamp_out(a, kidx, 12)


def hdr_peek(a):
    a(f"v_mov_b32 v7, 0")
    a(f"ds_read_b32 v13, v7 offset:{NONCE}")
    a(f"ds_read_b64 v[14:15], v{vHS}")


def csum_acc(a, p, tag):
    for i in range(NI):
        q = REC + 4 * i
        a(f"s_mov_b64 exec, {sr(MASKS[i],2)}")
        a(f"s_cbranch_execz {p}_cs{tag}")
        a(f"v_add3_u32 v2, v2, v{q}, v{q+1}")
        a(f"v_add_u32 v2, v2, v{q+2}")
    a.lab(f"{p}_cs{tag}")
    a(f"s_mov_b64 exec, -1")


def csum_check(a):
    a(f"s_nop 1")
    a(f"v_add_u32_dpp v2, v2, v2 quad_perm:[1,0,3,2] row_mask:0xf bank_mask:0xf")
    a(f"s_nop 1")
    a(f"v_add_u32_dpp v2, v2, v2 quad_perm:[2,3,0,1] row_mask:0xf bank_mask:0xf")
    a(f"v_cmp_ne_u32 vcc, v2, v15")
    a(f"s_cmp_lg_u64 vcc, 0")


def gen_1k():
    k = NAME + "_kernel"
    a = A(); p = "K"
    setup(a, p)
    stamp(a, 0)
    front(a, p)
    stamp(a, 2)
    if "frontonly" in DIAG:
        stamp_out(a, 0, 12)
        a("s_endpgm")
    w_addr(a)
    a.c("wait for the weights, the end of the record copy-out (staging area reused) and the x rows")
    a(f"s_lshl_b32 s{sT0}, s{sLJ}, 2")
    a(f"v_mov_b32 v12, s{sT0}")
    a.lab(f"{p}_xw")
    a(f"ds_read_b64 v[14:15], v10 offset:{S3}")
    a(f"ds_read_b32 v13, v12 offset:{XFL}")
    a(f"s_waitcnt lgkmcnt(0)")
    a(f"v_add3_u32 v7, v14, v15, v13")
    a(f"s_nop 0")
    a(f"v_readfirstlane_b32 s{sT0}, v7")
    a(f"s_cmp_eq_u32 s{sT0}, {14 + 1 + 4}")
    a(f"s_cbranch_scc1 {p}_xok")
    a(f"s_sleep 1")
    a(f"s_branch {p}_xw")
    a.lab(f"{p}_xok")
    a(f"s_setprio {XP[4]}")
    a(f"s_cmp_lg_u32 s{sWV}, 15")
    a(f"s_cbranch_scc1 {p}_xp")
    a(f"s_setprio 3")
    a.lab(f"{p}_xp")
    stamp(a, 3)
    poll(a, p, "a", first=True)
    x_reads(a)
    for st in range(4):
        w_reads(a, 1, 2, st)
    gemm_pass(a, 1, 2, False, True)
    poll(a, p, "b")
    if "auearly" not in DIAG:
        a(f"s_sub_u32 s{sT0}, s{sWV}, 11")
        a(f"s_cmp_ge_u32 s{sT0}, 4")
        a(f"s_cbranch_scc1 {p}_noau")
        a(f"s_waitcnt vmcnt(0)")
        signal(a, WF2)
        a.lab(f"{p}_noau")
    table_store(a, True)
    stamp(a, 4)
    a(f"s_setprio {XP[5]}")
    a(f"v_mov_b32 v{vZ0}, 0")
    a(f"s_mov_b32 s{sNT}, 0")
    poll(a, p, "c", last=True)
    a(f"s_cmp_lt_u32 s{sWV}, {PUBW}")
    a(f"s_cbranch_scc1 {p}_pass2")
    a(f"s_waitcnt vmcnt(0)")
    a(f"s_call_b64 {sr(sRET,2)}, {p}_sub_pub")
    a(f"s_mov_b32 s{sNT}, 1")
    a.lab(f"{p}_pass2")
    spin(a, f"{p}_wf2", WF2, 4)
    a(f"v_lshrrev_b32 v{vHS}, 2, v0")
    a(f"v_lshlrev_b32 v{vHS}, 3, v{vHS}")
    a(f"v_add_u32 v{vHS}, {STG}, v{vHS}")
    hdr_peek(a)
    a(f"s_waitcnt lgkmcnt(0)")
    a(f"v_readfirstlane_b32 s{sNON}, v13")
    a(f"s_cmp_eq_u32 s{sNON}, 0")
    a(f"s_cbranch_scc1 {p}_hlate")
    a(f"s_call_b64 {sr(sRET,2)}, {p}_sub_first")
    a.lab(f"{p}_hlate")
    pu_pass(a, p)
    load_C(a)
    pop_pack(a)
    spin(a, f"{p}_xr", XR, 16)
    a(f"s_cmp_lg_u32 s{sNON}, 0")
    a(f"s_cbranch_scc1 {p}_hgone")
    a.lab(f"{p}_hwait")
    hdr_peek(a)
    a(f"s_waitcnt lgkmcnt(0)")
    a(f"v_readfirstlane_b32 s{sNON}, v13")
    a(f"s_cmp_lg_u32 s{sNON}, 0")
    a(f"s_cbranch_scc1 {p}_hgo")
    a(f"s_cmp_lg_u32 s{sNT}, 0")
    a(f"s_cbranch_scc1 {p}_hsleep")
    a(f"s_waitcnt vmcnt(0)")
    a(f"s_call_b64 {sr(sRET,2)}, {p}_sub_pub")
    a(f"s_mov_b32 s{sNT}, 1")
    a.lab(f"{p}_hsleep")
    a(f"s_sleep 1")
    a(f"s_branch {p}_hwait")
    a.lab(f"{p}_hgo")
    a(f"s_call_b64 {sr(sRET,2)}, {p}_sub_first")
    a.lab(f"{p}_hgone")
    stamp(a, 1)
    a(f"s_cmp_lg_u32 s{sNT}, 0")
    a(f"s_cbranch_scc1 {p}_pubdone")
    a(f"s_waitcnt vmcnt(0)")
    a(f"s_call_b64 {sr(sRET,2)}, {p}_sub_pub")
    a.lab(f"{p}_pubdone")
    if "pfearly" in DIAG:
        t_prefetch(a)
        a("s_waitcnt vmcnt(3)")
    else:
        a("s_waitcnt vmcnt(0)")
    stamp(a, 11)
    a(f"s_mov_b32 s{sNOH}, 0")
    tflag_issue(a, p)
    a.c("the records must add up to the checksums published with the headers")
    csum_acc(a, p, "a")
    a(f"v_and_b32 v6, 3, v0")
    a(f"v_add_u32 v6, v6, v{vHL}")
    a(f"v_cmp_lt_i32 {sr(sEX,2)}, {CFAST}, v6")
    csum_check(a)
    a(f"s_cbranch_scc1 {p}_vslow")
    a(f"s_cmp_lg_u64 {sr(sEX,2)}, 0")
    a(f"s_cbranch_scc1 {p}_vslow")
    a.lab(f"{p}_valid")
    main_phase(a, p, True)
    finish(a, 0)
    a.lab(f"{p}_end")
    a("s_endpgm")
    a.c("---------------- subroutines / rare paths")
    a.lab(f"{p}_sub_pub")
    a.c("the last wave whose table rows are out publishes the workgroup's flag")
    a(f"v_mov_b32 v6, 1")
    a(f"s_mov_b64 exec, 1")
    a(f"ds_add_rtn_u32 v6, v{vZ0}, v6 offset:{DONE}")
    a(f"ds_read_b32 v7, v{vZ0} offset:{NON2}")
    a(f"s_waitcnt lgkmcnt(0)")
    a(f"v_readfirstlane_b32 s{sT0}, v6")
    a(f"v_readfirstlane_b32 s{sT2}, v7")
    a(f"s_cmp_lg_u32 s{sT0}, 15")
    a(f"s_cbranch_scc1 {p}_nopub")
    a(f"s_lshr_b32 s{sT0}, s{sSL}, 1")
    a(f"s_lshl_b32 s{sT0}, s{sT0}, 7")
    a(f"s_add_u32 s{sT0}, s{sT0}, s{sBIN}")
    a(f"s_lshl_b32 s{sT0}, s{sT0}, 7")
    a(f"s_add_u32 s{sT0}, s{sT0}, {TFL_OFF}")
    a(f"s_not_b32 s{sT1}, s{sT2}")
    a(f"v_mov_b32 v6, s{sT0}")
    a(f"v_mov_b32 v8, s{sT2}")
    a(f"v_mov_b32 v9, s{sT1}")
    a(f"buffer_store_dwordx2 v[8:9], v6, {sr(SRD_HDR,4)}, 0 offen sc1")
    a.lab(f"{p}_nopub")
    a(f"s_mov_b64 exec, -1")
    a(f"s_setpc_b64 {sr(sRET,2)}")
    a.lab(f"{p}_sub_first")
    hdr_decode(a)
    rec_loads(a, p, "f", False, True)
    a(f"s_setpc_b64 {sr(sRET,2)}")
    a.lab(f"{p}_sub_loads")
    rec_loads(a, p, "s", True)
    a(f"s_setpc_b64 {sr(sRET,2)}")
    a.lab(f"{p}_vslow")
    a.c("long runs, or records not yet visible: add up every run completely, again until it fits")
    a(f"s_mov_b32 s{sSPIN}, {SPIN_MAX}")
    a.lab(f"{p}_vs_retry")
    a(f"s_mov_b32 s{sRB}, 0")
    a(f"v_mov_b32 v2, 0")
    a.lab(f"{p}_vs_part")
    a(f"s_call_b64 {sr(sRET,2)}, {p}_sub_loads")
    a(f"s_waitcnt vmcnt(0)")
    csum_acc(a, p, "v")
    a(f"s_add_u32 s{sRB}, s{sRB}, {CFAST}")
    a(f"v_and_b32 v6, 3, v0")
    a(f"v_add_u32 v6, v6, v{vHL}")
    a(f"v_cmp_lt_i32 vcc, s{sRB}, v6")
    a(f"s_cmp_lg_u64 vcc, 0")
    a(f"s_cbranch_scc1 {p}_vs_part")
    csum_check(a)
    a(f"s_cbranch_scc0 {p}_vs_ok")
    a(f"s_sub_u32 s{sSPIN}, s{sSPIN}, 1")
    a(f"s_cbranch_scc0 {p}_vs_retry")
    a.lab(f"{p}_vs_ok")
    a(f"s_mov_b32 s{sRB}, 0")
    a(f"s_call_b64 {sr(sRET,2)}, {p}_sub_loads")
    a(f"s_waitcnt vmcnt(0)")
    a(f"s_branch {p}_valid")
    a.lab(f"{p}_code_end")
    s = file_head()
    s += f"; @launch grid=(256,1,1) block=(1024,1,1) lds={LDS_BYTES}\n"
    s += '.amdgcn_target "amdgcn-amd-amdhsa--gfx950"\n.text\n'
    s += kernel_header(k) + a.text()
    s += '.section .rodata,"a"\n.p2align 6\n' + kernel_desc(k)
    return s


if __name__ == "__main__":
    if "-stamps" in sys.argv:
        STAMPS = True; sys.argv.remove("-stamps")
    if "-noprio" in sys.argv:
        PRIO = False; sys.argv.remove("-noprio")
    for x in list(sys.argv):
        if x.startswith("-TF"):
            TFW = int(x[3:]); sys.argv.remove(x)
        if x.startswith("-PR"):
            PREW = int(x[3:]); sys.argv.remove(x)
        if x.startswith("-MP"):
            MIDPUB = int(x[3:]); sys.argv.remove(x)
        if x.startswith("-WB"):
            WS_BASE = int(x[3:]) << 20; sys.argv.remove(x)
        if x.startswith("-PB"):
            PPB = int(x[3:]); sys.argv.remove(x)
        if x.startswith("-PW"):
            PUBW = int(x[3:]); sys.argv.remove(x)
        if x.startswith("-XP"):
            XP = [int(c) for c in x[3:]]; sys.argv.remove(x)
        if x.startswith("-XE"):
            XEARLY = int(x[3:]); sys.argv.remove(x)
        if x.startswith("-PS"):
            PS1, PS2 = map(int, x[3:].split(",")); sys.argv.remove(x)
        if x.startswith("-D"):
            DIAG.add(x[2:]); sys.argv.remove(x)
    mode = gen_1k
    if "-1k" in sys.argv:
        mode = gen_1k; sys.argv.remove("-1k")
    out = sys.argv[1] if len(sys.argv) > 1 else "cdna_kernels/" + NAME + ".s"
    open(out, "w").write(mode())
    print("wrote", out, "LDS", LDS_BYTES)
```

```python
import sys

N = 25000
E = 400000
NAME = "gather_scatter__edge_featured_mpnn_egc__graph"

TS = 25024 * 128
REC_OFF = 0x1000000
REC_BYTES = 250 * 19200
HDR_OFF = 0x1800000
HDR_BYTES = 128 * 256 * 16
TFL_OFF = HDR_BYTES
HDR_SRD_BYTES = HDR_BYTES + 256 * 128
MAGIC_OFF = 0x4B000000

CNT = 0
CSUM = 512
OFFS = 1024
LCNT = 1536
NONCE, DONE, NON2, S2, S3, WF, WF2, XR = [LCNT + 128 + 4 * i for i in range(8)]
XFL = LCNT + 192
assert S3 % 8 == 0
CAP = 270
LS = 2 * CAP + 96
KEYB = 1792
EB = KEYB + 8 * LS * 4
EOFF = EB - 2 * KEYB
IMG = EB + 8 * LS * 8
XB = KEYB
XT = 26 * 256
assert XB % 256 == 0 and XB + 8 * XT + 6 * 256 <= IMG + 2048
STG = IMG
WB = IMG + 32768
PFS = WB + 65536
CB = PFS + 1024
LDS_BYTES = CB + 512
NI = 8
CFAST = 4 * NI

SRD_X, SRD_E, SRD_SRC, SRD_DST, SRD_W, SRD_OUT, SRD_TS, SRD_TG, SRD_REC, SRD_HDR, SRD_G = [4 + 4 * i for i in range(11)]
SRD_DBG = SRD_E
KP = 48
sLJ = 3
sNR = 71
sWV, sBIN, sSL, sNODE0, sNN = 68, 69, 70, 72, 73
sSPIN = 95
sNL2E, sMAXF, sSELLO, sSELHI, sMAGIC, s127, sM1, sM2, sM3, sM4, sSTG, sKMAX = range(74, 86)
sHM = 86
sT0, sT1, sT2, sT3 = 88, 89, 90, 91
sRB, sC, sNT, sIT = 92, 93, 94, 95
sEX = 96
sNON, sNOH = 98, 99
sRET = 64
MASKS = [4 + 2 * i for i in range(8)]
SPIN_MAX = 40000

vLANE = 1
ACC = 32; REC = 96
POP, AEX, SAG = 48, 56, 64
OFF = 16
RA, RBUF, Z = 72, 88, 104


class A:
    def __init__(self):
        self.l = []
    def __call__(self, s):
        for x in s.strip("\n").split("\n"):
            self.l.append("    " + x.strip())
    def lab(self, s):
        self.l.append(s + ":")
    def c(self, s):
        self.l.append("    ; " + s)
    def text(self):
        return "\n".join(self.l) + "\n"


def vr(a, n):
    return f"v[{a}:{a+n-1}]"
def sr(a, n):
    return f"s[{a}:{a+n-1}]"


STAMPS = False
PRIO = True
PS1, PS2 = 8, 8
XEARLY = 4
XP = [0, 0, 0, 0, 2, 1]
PUBW = 4
NS_SL = 3
PREW = 0
MIDPUB = -1
WS_BASE = 0
PPB = None
XORD = (1, 0)
TFW = 14
DIAG = set()
STAMP_OFF = 0x2000000
def sreg(i):
    return KP + i if i < 8 else KP + 4 + i
def stamp(a, i):
    if not STAMPS: return
    a(f"s_memrealtime s[100:101]")
    a(f"s_waitcnt lgkmcnt(0)")
    a(f"s_mov_b32 s{sreg(i)}, s100")

def stamp_out(a, kidx, n):
    if not STAMPS: return
    a(f"s_mov_b64 exec, -1")
    if "dbgmax" in DIAG:
        a(f"s_load_dwordx2 {sr(sT2,2)}, s[0:1], 64")
        a(f"s_waitcnt lgkmcnt(0)")
        srd(a, SRD_W, sT2, sT3, 256)
        a(f"v_mov_b32 v6, 0")
        a(f"ds_read_b32 v8, v6 offset:{NON2}")
        a(f"s_waitcnt lgkmcnt(0)")
        a(f"s_mov_b64 exec, 1")
        for i in (0, 2, 3, 4, 11, 5, 6, 7, 8):
            a(f"v_sub_u32 v7, s{sreg(i)}, v8")
            a(f"v_max_i32 v7, 0, v7")
            a(f"buffer_atomic_umax v7, v6, {sr(SRD_W,4)}, 0 offen offset:{4*(i+1)}")
        return
    a(f"s_add_u32 s{sT2}, s{KP+18}, 0x{STAMP_OFF + kidx * 0x100000:x}")
    a(f"s_addc_u32 s{sT3}, s{KP+19}, 0")
    srd(a, SRD_W, sT2, sT3, 0x100000)
    a(f"s_lshl_b32 s{sT0}, s2, 4")
    a(f"s_add_u32 s{sT0}, s{sT0}, s{sWV}")
    a(f"s_lshl_b32 s{sT0}, s{sT0}, 6")
    a(f"v_mov_b32 v6, s{sT0}")
    for i in range(n):
        a(f"v_mov_b32 v7, s{sreg(i)}")
        a(f"buffer_store_dword v7, v6, {sr(SRD_W,4)}, 0 offen offset:{4*i}")


def srd(a, d, lo, hi, nbytes):
    a(f"s_mov_b32 s{d}, s{lo}")
    a(f"s_mov_b32 s{d+1}, s{hi}")
    a(f"s_mov_b32 s{d+2}, {nbytes}")
    a(f"s_mov_b32 s{d+3}, 0x00020000")


def setup(a, p):
    a.c("---------------- setup")
    a(f"s_cmp_ge_u32 s2, 256")
    a(f"s_cbranch_scc1 {p}_end")
    a(f"s_load_dwordx16 {sr(KP,16)}, s[0:1], 0")
    a(f"s_load_dwordx4 {sr(KP+16,4)}, s[0:1], 64")
    a(f"s_memrealtime s[100:101]")
    a(f"v_lshrrev_b32 v2, 6, v0")
    a(f"v_and_b32 v{vLANE}, 63, v0")
    a(f"v_readfirstlane_b32 s{sWV}, v2")
    a(f"s_lshr_b32 s{sBIN}, s2, 3")
    a(f"s_and_b32 s{sT0}, s2, 3")
    a(f"s_lshl_b32 s{sT0}, s{sT0}, 5")
    a(f"s_or_b32 s{sBIN}, s{sBIN}, s{sT0}")
    a(f"s_lshr_b32 s{sSL}, s2, 1")
    a(f"s_and_b32 s{sSL}, s{sSL}, 2")
    a(f"s_and_b32 s{sT0}, s{sWV}, 1")
    a(f"s_or_b32 s{sSL}, s{sSL}, s{sT0}")
    a(f"s_lshr_b32 s{sLJ}, s{sWV}, 1")
    a(f"s_mul_i32 s{sT0}, s2, 6400")
    a(f"v_lshl_add_u32 v3, v0, 4, s{sT0}")
    a(f"v_lshlrev_b32 v4, 1, v3")
    a(f"s_mul_i32 s{sT1}, s{sSL}, {TS}")
    a(f"s_waitcnt lgkmcnt(0)")
    x, e, src, dst, u, v, g, out, dbg, ws = [KP + 2 * i for i in range(10)]
    if WS_BASE:
        a(f"s_add_u32 s{ws}, s{ws}, 0x{WS_BASE:x}")
        a(f"s_addc_u32 s{ws+1}, s{ws+1}, 0")
    a(f"s_or_b32 s{sT0}, s2, s{sWV}")
    a(f"s_cbranch_scc1 {p}_notag")
    a.c("launch tag: the first wave of workgroup 0 publishes a clock value in d_debug, everyone picks it up")
    srd(a, SRD_DBG, dbg, dbg + 1, 256)
    a(f"s_or_b32 s{sT0}, s100, 1")
    a(f"v_mov_b32 v13, s{sT0}")
    a(f"v_mov_b32 v10, 0")
    a(f"s_mov_b64 exec, 1")
    a(f"buffer_store_dword v13, v10, {sr(SRD_DBG,4)}, 0 offen sc1")
    if "xcc" in DIAG:
        a(f"s_getreg_b32 s{sT0}, hwreg(HW_REG_XCC_ID)")
        a(f"v_mov_b32 v12, s{sT0}")
        a(f"buffer_store_dword v12, v10, {sr(SRD_DBG,4)}, 0 offen offset:128")
    a(f"s_mov_b64 exec, -1")
    a.lab(f"{p}_notag")
    srd(a, SRD_DST, dst, dst + 1, E * 4)
    srd(a, SRD_SRC, src, src + 1, E * 4)
    srd(a, SRD_E, e, e + 1, E * 8)
    a(f"s_cmp_ge_u32 s{sWV}, 7")
    a(f"s_cbranch_scc1 {p}_noedge")
    a(f"buffer_load_dwordx4 {vr(vD,4)}, v3, {sr(SRD_DST,4)}, 0 offen")
    a(f"buffer_load_dwordx4 {vr(vS,4)}, v3, {sr(SRD_SRC,4)}, 0 offen")
    a(f"buffer_load_dwordx4 {vr(vE,4)}, v4, {sr(SRD_E,4)}, 0 offen")
    a(f"buffer_load_dwordx4 {vr(vE+4,4)}, v4, {sr(SRD_E,4)}, 0 offen offset:16")
    a.lab(f"{p}_noedge")
    a(f"s_lshl_b32 s{sT0}, s{sBIN}, 3")
    a(f"s_add_u32 s{sT0}, s{sT0}, s{sLJ}")
    a(f"s_mul_i32 s{sT0}, s{sT0}, 3125")
    a(f"s_lshr_b32 s{sNODE0}, s{sT0}, 7")
    a(f"s_add_u32 s{sT0}, s{sT0}, 3125")
    a(f"s_lshr_b32 s{sNN}, s{sT0}, 7")
    a(f"s_cmp_eq_u32 s{sNN}, {N}")
    a(f"s_cselect_b32 s{sNR}, 1, 0")
    a(f"s_sub_u32 s{sNN}, s{sNN}, s{sNODE0}")
    a(f"s_add_u32 s{sNR}, s{sNR}, s{sNN}")
    a(f"s_mov_b32 s{sHM}, 0")
    a(f"s_mov_b32 s{sHM+1}, -1")
    srd(a, SRD_X, x, x + 1, N * 256)
    srd(a, SRD_OUT, out, out + 1, N * 256)
    srd(a, SRD_G, g, g + 1, 260 * 256)
    a(f"s_add_u32 s{sT2}, s{ws}, s{sT1}")
    a(f"s_addc_u32 s{sT3}, s{ws+1}, 0")
    srd(a, SRD_TS, sT2, sT3, (N + 1) * 128)
    a(f"s_sub_u32 s{sT2}, s{sT2}, 0x{MAGIC_OFF:x}")
    a(f"s_subb_u32 s{sT3}, s{sT3}, 0")
    srd(a, SRD_TG, sT2, sT3, MAGIC_OFF + (N + 1) * 128)
    a(f"s_add_u32 s{sT2}, s{ws}, 0x{REC_OFF:x}")
    a(f"s_addc_u32 s{sT3}, s{ws+1}, 0")
    srd(a, SRD_REC, sT2, sT3, REC_BYTES)
    a(f"s_add_u32 s{sT2}, s{ws}, 0x{HDR_OFF:x}")
    a(f"s_addc_u32 s{sT3}, s{ws+1}, 0")
    srd(a, SRD_HDR, sT2, sT3, HDR_SRD_BYTES)
    a(f"s_mov_b32 s{sNL2E}, 0xbfb8aa3b")
    a(f"s_mov_b32 s{sMAXF}, 0x7f7f0000")
    a(f"s_mov_b32 s{sSELLO}, 0x07060100")
    a(f"s_mov_b32 s{sSELHI}, 0x07060302")
    a(f"s_mov_b32 s{sMAGIC}, 10995117")
    a(f"s_mov_b32 s{s127}, 127")
    a(f"s_mov_b32 s{sM1}, 0x260000")
    a(f"s_mov_b32 s{sM2}, 0x100000")
    a(f"s_mov_b32 s{sM3}, 0x080000")
    a(f"s_mov_b32 s{sM4}, 0x38000000")
    a(f"s_mov_b32 s{sSTG}, {STG}")
    a(f"s_mov_b32 s{sKMAX}, {EB - 4}")
    a(f"v_mov_b32 v{vONE}, 1")
    a(f"v_mov_b32 v10, 0")


def spin(a, lab, off, val):
    a.lab(lab)
    a(f"ds_read_b32 v11, v10 offset:{off}")
    a(f"s_waitcnt lgkmcnt(0)")
    a(f"v_readfirstlane_b32 s{sT0}, v11")
    a(f"s_cmp_lt_u32 s{sT0}, {val}")
    a(f"s_cbranch_scc1 {lab}")


def signal(a, off):
    a(f"s_mov_b64 exec, 1")
    a(f"ds_add_u32 v10, v{vONE} offset:{off}")
    a(f"s_mov_b64 exec, -1")


def cursor_starts(a, d, t):
    a(f"v_lshrrev_b32 v{d}, 1, v{vLANE}")
    a(f"v_mul_u32_u24 v{d}, {LS*4}, v{d}")
    a(f"v_and_b32 v{t}, 1, v{vLANE}")
    a(f"v_mul_u32_u24 v{t}, {CAP*4}, v{t}")
    a(f"v_add_u32 v{d}, v{d}, v{t}")
    a(f"v_add_u32 v{d}, {KEYB}, v{d}")


def init_counters(a, p, tag):
    a.c("wave 0: list cursors = list starts")
    a(f"s_cmp_lg_u32 s{sWV}, 0")
    a(f"s_cbranch_scc1 {p}_ic{tag}")
    a(f"v_lshlrev_b32 v7, 2, v{vLANE}")
    cursor_starts(a, 8, 9)
    a(f"v_cmp_gt_u32 vcc, 16, v{vLANE}")
    a(f"s_nop 1")
    a(f"v_cndmask_b32 v8, 0, v8, vcc")
    a(f"s_not_b64 exec, {sr(sHM,2)}")
    a(f"ds_write_b32 v7, v8 offset:{LCNT}")
    a(f"s_mov_b64 exec, -1")
    a.lab(f"{p}_ic{tag}")


def scan64(a, v):
    for sh in (1, 2, 4, 8):
        a(f"s_nop 1")
        a(f"v_add_u32_dpp v{v}, v{v}, v{v} row_shr:{sh} row_mask:0xf bank_mask:0xf bound_ctrl:0")
    a(f"s_nop 1")
    a(f"v_add_u32_dpp v{v}, v{v}, v{v} row_bcast:15 row_mask:0xa bank_mask:0xf")
    a(f"s_nop 1")
    a(f"v_add_u32_dpp v{v}, v{v}, v{v} row_bcast:31 row_mask:0xc bank_mask:0xf")


vD, vS, vE, vK, vB, vR = 72, 76, 80, 88, 92, 96
vTa, vTb, vTc = 100, 101, 102
vONE = 2
NQ = (51, 55, 123, 127)


vC2, vO2 = 104, 106
def offsets_scan(a):
    a(f"v_lshlrev_b32 v{vTa}, 3, v{vLANE}")
    a(f"ds_read_b64 {vr(vC2,2)}, v{vTa} offset:{CNT}")
    a(f"s_waitcnt lgkmcnt(0)")
    a(f"v_add_u32 v{vTb}, v{vC2}, v{vC2+1}")
    a(f"v_mov_b32 v{vTc}, v{vTb}")
    scan64(a, vTc)
    a(f"v_sub_u32 v{vO2}, v{vTc}, v{vTb}")
    a(f"v_add_u32 v{vO2+1}, v{vO2}, v{vC2}")


def noh_from_non(a):
    a(f"s_mul_i32 s{sNOH}, s{sNON}, 0x9e3779b1")
    a(f"s_and_b32 s{sNOH}, s{sNOH}, 0xf800f800")


def w_dma(a, first):
    u, v, g = KP + 8, KP + 10, KP + 12
    a(f"s_sub_u32 s{sT2}, s{sWV}, {first}")
    a(f"s_and_b32 s{sT3}, s{sT2}, 6")
    a(f"s_lshr_b32 s{sT3}, 0xc9, s{sT3}")
    a(f"s_and_b32 s{sT3}, s{sT3}, 3")
    a(f"s_cmp_eq_u32 s{sT3}, 2")
    a(f"s_cselect_b64 {sr(SRD_W,2)}, {sr(v,2)}, {sr(u,2)}")
    a(f"s_mov_b32 s{SRD_W+2}, 32768")
    a(f"s_cmp_lt_u32 s{sT3}, 2")
    a(f"s_cselect_b64 {sr(SRD_W,2)}, {sr(g,2)}, {sr(SRD_W,2)}")
    a(f"s_cselect_b32 s{SRD_W+2}, 65536, s{SRD_W+2}")
    a(f"s_mov_b32 s{SRD_W+3}, 0x00020000")
    a(f"s_cmp_eq_u32 s{sT3}, 1")
    a(f"s_cselect_b32 s{sT0}, 32768, 0")
    a(f"s_and_b32 s{sT2}, s{sT2}, 1")
    a(f"s_lshl_b32 s{sT1}, s{sT2}, 14")
    a(f"s_add_u32 s{sT0}, s{sT0}, s{sT1}")
    a(f"s_lshr_b32 s{sT1}, s{sSL}, 1")
    a(f"s_lshl_b32 s{sT1}, s{sT1}, 7")
    a(f"s_add_u32 s{sT0}, s{sT0}, s{sT1}")
    a.c("row lane>>3, 16-byte piece lane&7; the 64-byte halves of rows 2,3 (mod 4) are swapped")
    a(f"v_lshrrev_b32 v4, 3, v{vLANE}")
    a(f"v_lshl_add_u32 v4, v4, 8, s{sT0}")
    a(f"v_bfe_u32 v6, v{vLANE}, 4, 1")
    a(f"v_lshlrev_b32 v6, 2, v6")
    a(f"v_xor_b32 v6, v6, v{vLANE}")
    a(f"v_and_b32 v6, 7, v6")
    a(f"v_lshl_add_u32 v4, v6, 4, v4")
    a(f"s_lshl_b32 s{sT0}, s{sT3}, 14")
    a(f"s_lshl_b32 s{sT2}, s{sT2}, 13")
    a(f"s_add_u32 s{sT0}, s{sT0}, s{sT2}")
    for d in range(8):
        a(f"s_add_u32 m0, s{sT0}, {WB + 1024 * d}")
        a(f"s_mov_b32 s{sT1}, {2048 * d}")
        a(f"buffer_load_dwordx4 v4, {sr(SRD_W,4)}, s{sT1} offen lds")


def front(a, p):
    if "nowpf" not in DIAG:
        a(f"s_sub_u32 s{sT0}, s{sWV}, 11")
        a(f"s_cmp_ge_u32 s{sT0}, 4")
        a(f"s_cbranch_scc1 {p}_f_nowpf")
        a(f"s_lshl_b32 s{sIT}, s{sT0}, 10")
        a.c("wave 8: touch 16 of the 512 weight lines this XCD needs (the 32 workgroups of an XCD share them out)")
        u, v, g = KP + 8, KP + 10, KP + 12
        a(f"s_lshr_b32 s{sT2}, s2, 3")
        a(f"s_lshr_b32 s{sT3}, s{sT2}, 3")
        a(f"s_cmp_eq_u32 s{sT3}, 2")
        a(f"s_cselect_b64 {sr(SRD_W,2)}, {sr(v,2)}, {sr(u,2)}")
        a(f"s_mov_b32 s{SRD_W+2}, 32768")
        a(f"s_cmp_lt_u32 s{sT3}, 2")
        a(f"s_cselect_b64 {sr(SRD_W,2)}, {sr(g,2)}, {sr(SRD_W,2)}")
        a(f"s_cselect_b32 s{SRD_W+2}, 65536, s{SRD_W+2}")
        a(f"s_cselect_b32 s{sT0}, 15, 7")
        a(f"s_mov_b32 s{SRD_W+3}, 0x00020000")
        a(f"s_and_b32 s{sT2}, s{sT2}, s{sT0}")
        a(f"s_lshl_b32 s{sT2}, s{sT2}, 12")
        a(f"s_lshr_b32 s{sT1}, s{sSL}, 1")
        a(f"s_lshl_b32 s{sT1}, s{sT1}, 7")
        a(f"s_add_u32 s{sT2}, s{sT2}, s{sT1}")
        a(f"s_add_u32 s{sT2}, s{sT2}, s{sIT}")
        a(f"v_lshl_add_u32 v6, v{vLANE}, 8, s{sT2}")
        a(f"s_mov_b64 exec, 15")
        a(f"buffer_load_dword v104, v6, {sr(SRD_W,4)}, 0 offen")
        a(f"s_mov_b64 exec, -1")
        a.lab(f"{p}_f_nowpf")
    a(f"s_cmp_lg_u32 s{sWV}, 7")
    a(f"s_cbranch_scc1 {p}_f_noinit")
    a.c("wave 7: bin counters, checksums, flags = 0, list cursors = list starts")
    a(f"v_lshlrev_b32 v7, 2, v{vLANE}")
    cursor_starts(a, 8, 9)
    a(f"v_cmp_gt_u32 vcc, 16, v{vLANE}")
    for k in range(4):
        a(f"ds_write_b32 v7, v10 offset:{CNT + 256 * k}")
    a(f"v_cndmask_b32 v8, 0, v8, vcc")
    a(f"ds_write_b32 v7, v8 offset:{LCNT}")
    if "noicpf" not in DIAG:
        a.c("read the kernel's own code once so that later instruction fetches find it in the L2")
        a(f"s_getpc_b64 {sr(sT2,2)}")
        a.lab(f"{p}_pc")
        a(f"v_lshlrev_b32 v9, 7, v{vLANE}")
        a(f"global_load_dword v104, v9, {sr(sT2,2)}")
        a(f"v_add_u32 v9, 8192, v9")
        a(f"v_cmp_gt_u32 vcc, {p}_code_end - {p}_pc - 4, v9")
        a(f"s_mov_b64 exec, vcc")
        a(f"global_load_dword v105, v9, {sr(sT2,2)}")
        a(f"s_mov_b64 exec, -1")
    a(f"s_waitcnt lgkmcnt(0)")
    a.lab(f"{p}_f_noinit")
    a(f"s_cmp_lg_u32 s{sWV}, 15")
    a(f"s_cbranch_scc1 {p}_tag_done")
    srd(a, SRD_DBG, KP + 16, KP + 17, 256)
    a(f"buffer_load_dword v{NQ[0]}, v10, {sr(SRD_DBG,4)}, 0 offen sc1")
    a.lab(f"{p}_tag_done")
    a(f"s_barrier")
    a(f"s_cmp_eq_u32 s{sWV}, 15")
    a(f"s_cbranch_scc1 {p}_f_w15")
    a(f"s_cmp_ge_u32 s{sWV}, 7")
    a(f"s_cbranch_scc1 {p}_f_loader")

    a.c("---------------- waves 0-6: sort this workgroup's 1600 edges by destination bin")
    a(f"s_setprio {XP[3]}")
    a(f"s_cmp_lt_u32 s2, 250")
    a(f"s_cselect_b32 s{sT0}, 400, 0")
    a(f"v_cmp_gt_u32 vcc, s{sT0}, v0")
    a(f"s_mov_b64 {sr(sEX,2)}, vcc")
    a(f"s_waitcnt vmcnt(3)")
    stamp(a, 1)
    for e in range(4):
        a(f"v_lshl_or_b32 v{vK+e}, v{vD+e}, 7, s{s127}")
        a(f"v_mul_hi_u32 v{vK+e}, v{vK+e}, s{sMAGIC}")
        a(f"v_lshrrev_b32 v{vB+e}, 4, v{vK+e}")
        a(f"v_and_b32 v{vB+e}, 0x1fc, v{vB+e}")
    a(f"s_mov_b64 exec, {sr(sEX,2)}")
    for e in range(4):
        a(f"ds_add_rtn_u32 v{vR+e}, v{vB+e}, v{vONE} offset:{CNT}")
    signal(a, S2)
    for e in range(4):
        d, k = vD + e, vK + e
        a(f"v_lshrrev_b32 v{vTa}, 3, v{k}")
        a(f"v_mul_u32_u24 v{vTb}, 3125, v{vTa}")
        a(f"v_lshrrev_b32 v{vTb}, 7, v{vTb}")
        a(f"v_sub_u32 v{vTb}, v{d}, v{vTb}")
        a(f"v_lshlrev_b32 v{k}, 27, v{vTa}")
        a(f"v_and_b32 v{k}, s{sM4}, v{k}")
        a(f"v_lshlrev_b32 v{vTc}, 17, v{vTb}")
        a(f"v_and_or_b32 v{k}, v{vTc}, s{sM1}, v{k}")
        a(f"v_lshlrev_b32 v{vTc}, 18, v{vTb}")
        a(f"v_and_or_b32 v{k}, v{vTc}, s{sM2}, v{k}")
        a(f"v_lshlrev_b32 v{vTc}, 16, v{vTb}")
        a(f"v_and_or_b32 v{k}, v{vTc}, s{sM3}, v{k}")
    a(f"s_lshl_b32 s{sT1}, s{sWV}, 10")
    a(f"v_lshl_add_u32 v3, v{vLANE}, 4, s{sT1}")
    a(f"v_add_u32 v7, {STG}, v3")
    a(f"s_mul_i32 s{sT1}, s2, 19200")
    a(f"v_add_u32 v3, s{sT1}, v3")
    spin(a, f"{p}_f_s2", S2, 7)
    stamp(a, 10)
    offsets_scan(a)
    a(f"ds_write_b64 v{vTa}, {vr(vO2,2)} offset:{OFFS}")
    for e in range(4):
        a(f"ds_read_b32 v{vD+e}, v{vB+e} offset:{OFFS}")
    a(f"s_mov_b32 s{sT2}, {32768 - N // 2}")
    a(f"s_mov_b32 s{sT3}, 0x04000000")
    a(f"s_waitcnt vmcnt(0)")
    for e in range(4):
        a(f"v_add_lshl_u32 v{vTb}, v{vS+e}, s{sT2}, 11")
        a(f"v_or_b32 v{vK+e}, v{vK+e}, v{vS+e}")
        a(f"v_and_or_b32 v{vK+e}, v{vTb}, s{sT3}, v{vK+e}")
        a(f"v_add3_u32 v{vS+e}, v{vE+2*e}, v{vE+2*e+1}, v{vK+e}")
    a(f"s_waitcnt lgkmcnt(0)")
    for e in range(4):
        a(f"v_add_u32 v{vR+e}, v{vR+e}, v{vD+e}")
        a(f"v_mad_u32_u24 v{vR+e}, v{vR+e}, 12, s{sSTG}")
    a(f"s_mov_b64 exec, {sr(sEX,2)}")
    for e in range(4):
        a(f"ds_write2_b32 v{vR+e}, v{vE+2*e}, v{vE+2*e+1} offset0:0 offset1:1")
        a(f"ds_write_b32 v{vR+e}, v{vK+e} offset:8")
        a(f"ds_add_u32 v{vB+e}, v{vS+e} offset:{CSUM}")
    signal(a, S3)
    spin(a, f"{p}_f_s3", S3, 7)
    a.c("copy the sorted records out: 1 KiB pieces wv, wv + 7, wv + 14")
    for k in range(3):
        a(f"ds_read_b128 {vr(104 + 4*k, 4)}, v7 offset:{7168*k}")
    signal(a, S3)
    a(f"v_add_u32 v4, 7168, v3")
    a(f"v_add_u32 v5, 14336, v3")
    a(f"s_waitcnt lgkmcnt(3)")
    a(f"buffer_store_dwordx4 {vr(104,4)}, v3, {sr(SRD_REC,4)}, 0 offen sc1")
    a(f"s_waitcnt lgkmcnt(2)")
    a(f"buffer_store_dwordx4 {vr(108,4)}, v4, {sr(SRD_REC,4)}, 0 offen sc1")
    a(f"s_cmp_gt_u32 s{sWV}, 4")
    a(f"s_cbranch_scc1 {p}_f_x0")
    a(f"s_cmp_eq_u32 s{sWV}, 4")
    a(f"s_cselect_b32 exec_hi, 0xffff, -1")
    a(f"s_waitcnt lgkmcnt(1)")
    a(f"buffer_store_dwordx4 {vr(112,4)}, v5, {sr(SRD_REC,4)}, 0 offen sc1")
    a(f"s_mov_b64 exec, -1")
    a.lab(f"{p}_f_x0")
    a(f"s_setprio 0")
    a(f"s_branch {p}_f_done")

    a.c("---------------- waves 7-10: two x tiles each into LDS; waves 11-14: the weights")
    a.lab(f"{p}_f_loader")
    a(f"s_cmp_ge_u32 s{sWV}, 11")
    a(f"s_cbranch_scc1 {p}_f_w")
    a.c("x tile: row (lane>>4) + 4i, slot lane&15 holds chunk slot ^ (row & 15)")
    a(f"v_lshrrev_b32 v6, 4, v{vLANE}")
    a(f"v_xor_b32 v7, v6, v{vLANE}")
    a(f"v_and_b32 v7, 15, v7")
    a(f"v_lshlrev_b32 v72, 8, v6")
    a(f"v_lshl_add_u32 v72, v7, 4, v72")
    for k in range(1, 4):
        a(f"v_xor_b32 v{72+k}, {64*k}, v72")
    for n in range(2):
        a(f"s_sub_u32 s{sT3}, s{sWV}, {7 - 4 * XORD[n]}")
        a(f"s_mul_i32 s{sT2}, s{sT3}, {XT}")
        a(f"s_lshl_b32 s{sT1}, s{sBIN}, 3")
        a(f"s_add_u32 s{sT1}, s{sT1}, s{sT3}")
        a(f"s_mul_i32 s{sT1}, s{sT1}, 3125")
        a(f"s_lshr_b32 s{sT1}, s{sT1}, 7")
        a(f"s_lshl_b32 s{sT1}, s{sT1}, 8")
        a(f"s_lshl_b32 s{sT0}, s{sT3}, 2")
        a(f"v_mov_b32 v{12+n}, s{sT0}")
        for i in range(7):
            a(f"s_add_u32 m0, s{sT2}, {XB + 1024 * i}")
            a(f"v_add_u32 v6, s{sT1}, v{72 + (i & 3)}")
            if i < 6:
                a(f"s_add_u32 s{sT1}, s{sT1}, 1024")
            else:
                a(f"s_not_b64 exec, {sr(sHM,2)}")
            a(f"buffer_load_dwordx4 v6, {sr(SRD_X,4)}, 0 offen lds")
        a(f"s_mov_b64 exec, -1")
    a(f"s_waitcnt vmcnt(7)")
    a(f"ds_write_b32 v12, v{vONE} offset:{XFL}")
    stamp(a, 10)
    a(f"s_waitcnt vmcnt(0)")
    a(f"ds_write_b32 v13, v{vONE} offset:{XFL}")
    a(f"s_branch {p}_f_done")
    a.lab(f"{p}_f_w")
    a(f"s_waitcnt vmcnt(0)")
    a(f"s_setprio 3")
    w_dma(a, 11)
    a(f"s_setprio 0")
    a(f"s_waitcnt vmcnt(0)")
    signal(a, WF)
    stamp(a, 10)
    w_dma(a, 7)
    a(f"s_cmp_lg_u32 s{sWV}, 11")
    a(f"s_cbranch_scc1 {p}_f_done")
    a(f"v_and_b32 v6, 7, v{vLANE}")
    a(f"v_lshrrev_b32 v4, 3, v{vLANE}")
    a(f"v_lshlrev_b32 v4, 8, v4")
    a(f"v_lshl_add_u32 v4, v6, 4, v4")
    a(f"s_lshr_b32 s{sT1}, s{sSL}, 1")
    a(f"s_lshl_b32 s{sT1}, s{sT1}, 7")
    a(f"s_add_u32 s{sT1}, s{sT1}, 65536")
    a(f"s_mov_b32 m0, {CB}")
    a(f"s_not_b64 exec, {sr(sHM,2)}")
    a(f"buffer_load_dwordx4 v4, {sr(SRD_G,4)}, s{sT1} offen lds")
    a(f"s_mov_b64 exec, -1")
    a(f"s_branch {p}_f_done")

    a.c("---------------- wave 15 publishes / collects the headers")
    a.lab(f"{p}_f_w15")
    a(f"s_setprio 3")
    a(f"s_lshl_b32 s{sT0}, s2, 11")
    a(f"v_lshl_add_u32 v4, v{vLANE}, 5, s{sT0}")
    a(f"s_mov_b32 s{sSPIN}, {SPIN_MAX}")
    for k in range(1, 4):
        a(f"s_sleep {NS_SL}")
        a(f"buffer_load_dword v{NQ[k]}, v10, {sr(SRD_DBG,4)}, 0 offen sc1")
    for k in range(4):
        a(f"s_waitcnt vmcnt({3-k})")
        a(f"v_readfirstlane_b32 s{sNON}, v{NQ[k]}")
        a(f"s_cmp_lg_u32 s{sNON}, 0")
        a(f"s_cbranch_scc1 {p}_tag_ok")
    a.lab(f"{p}_tag_loop")
    a(f"buffer_load_dword v13, v10, {sr(SRD_DBG,4)}, 0 offen sc1")
    a(f"s_waitcnt vmcnt(0)")
    a(f"v_readfirstlane_b32 s{sNON}, v13")
    a(f"s_cmp_lg_u32 s{sNON}, 0")
    a(f"s_cbranch_scc1 {p}_tag_ok")
    a(f"s_sub_u32 s{sSPIN}, s{sSPIN}, 1")
    a(f"s_cbranch_scc0 {p}_tag_loop")
    a(f"s_mov_b32 s{sNON}, 1")
    a.lab(f"{p}_tag_ok")
    stamp(a, 11)
    a(f"v_mov_b32 v13, s{sNON}")
    a(f"ds_write_b32 v10, v13 offset:{NON2}")
    noh_from_non(a)
    spin(a, f"{p}_f_s2b", S2, 7)
    offsets_scan(a)
    for k in range(2):
        a(f"v_lshl_or_b32 v{108+4*k}, v{vC2+k}, 16, v{vO2+k}")
        a(f"v_or_b32 v{108+4*k}, s{sNOH}, v{108+4*k}")
        a(f"v_mov_b32 v{109+4*k}, v13")
    spin(a, f"{p}_f_s3b", S3, 7)
    a(f"ds_read_b32 v110, v{vTa} offset:{CSUM}")
    a(f"ds_read_b32 v114, v{vTa} offset:{CSUM+4}")
    a(f"s_waitcnt lgkmcnt(0)")
    a(f"buffer_store_dwordx4 v[108:111], v4, {sr(SRD_HDR,4)}, 0 offen sc1")
    a(f"buffer_store_dwordx4 v[112:115], v4, {sr(SRD_HDR,4)}, 0 offen offset:16 sc1")
    stamp(a, 1)
    a(f"s_setprio 0")
    a.lab(f"{p}_f_done")


HP = (48, 52, 120, 124)
sPM = 44
def poll(a, p, tag, first=False, last=False):
    if first:
        a(f"s_lshl_b32 s{sT0}, s{sBIN}, 4")
        a(f"v_lshl_add_u32 v8, v{vLANE}, 13, s{sT0}")
        a(f"v_add_u32 v9, 4096, v8")
    a(f"s_cmp_lg_u32 s{sWV}, 15")
    a(f"s_cbranch_scc1 {p}_po{tag}")
    if first:
        a(f"s_mov_b64 {sr(sPM,2)}, -1")
        a(f"s_mov_b32 s{sSPIN}, {SPIN_MAX}")
    else:
        a(f"s_cmp_eq_u64 {sr(sPM,2)}, 0")
        a(f"s_cbranch_scc1 {p}_po{tag}")
        a.lab(f"{p}_pl{tag}")
        a(f"s_waitcnt vmcnt(0)")
        for k, h in enumerate(HP):
            a(f"v_xor_b32 v{h+3}, s{sNOH}, v{h}")
            a(f"v_and_b32 v{h+3}, 0xf800f800, v{h+3}")
            a(f"v_xor_b32 v7, s{sNON}, v{h+1}")
            a(f"v_or3_b32 v6, v{h+3}, v7, {'0' if k == 0 else 'v6'}")
        a(f"v_cmp_ne_u32 {sr(sPM,2)}, 0, v6")
        a(f"s_sub_u32 s{sSPIN}, s{sSPIN}, 1")
        a(f"s_cselect_b64 {sr(sPM,2)}, 0, {sr(sPM,2)}")
        a(f"s_cmp_lg_u64 {sr(sPM,2)}, 0")
        a(f"s_cbranch_scc1 {p}_pa{tag}")
        a(f"v_lshlrev_b32 v7, 5, v{vLANE}")
        a(f"v_add_u32 v7, {STG}, v7")
        a(f"v_mov_b32 v6, s{sNON}")
        for k, h in enumerate(HP):
            a(f"ds_write2_b32 v7, v{h}, v{h+2} offset0:{2*k} offset1:{2*k+1}")
        a(f"ds_write_b32 v10, v6 offset:{NONCE}")
        stamp(a, 10)
        a(f"s_branch {p}_po{tag}")
        a.lab(f"{p}_pa{tag}")
        if last:
            a(f"s_sleep {PS2}")
    a(f"s_mov_b64 exec, {sr(sPM,2)}")
    for k, h in enumerate(HP):
        a(f"buffer_load_dwordx3 {vr(h,3)}, v{8 + (k>>1)}, {sr(SRD_HDR,4)}, 0 offen offset:{2048*(k&1)} sc1")
    a(f"s_mov_b64 exec, -1")
    if last:
        a(f"s_branch {p}_pl{tag}")
    a.lab(f"{p}_po{tag}")


vZ0 = 2
vXA, vWA, vTMP = 3, 4, 5
def w_addr(a):
    a(f"s_and_b32 s{sT1}, s{sWV}, 1")
    a(f"v_lshrrev_b32 v6, 5, v{vLANE}")
    a(f"v_lshlrev_b32 v{vWA}, 10, v6")
    a(f"v_bfe_u32 v6, v{vLANE}, 2, 2")
    a(f"v_lshl_add_u32 v{vWA}, v6, 7, v{vWA}")
    a(f"v_bfe_u32 v6, v{vLANE}, 3, 1")
    a(f"v_xor_b32 v6, s{sT1}, v6")
    a(f"v_lshl_add_u32 v{vWA}, v6, 6, v{vWA}")
    a(f"v_and_b32 v6, 1, v{vLANE}")
    a(f"v_lshl_add_u32 v{vWA}, v6, 5, v{vWA}")
    a(f"v_and_b32 v6, 16, v{vLANE}")
    a(f"v_add_u32 v{vWA}, v6, v{vWA}")
    a(f"v_and_b32 v6, 2, v{vLANE}")
    a(f"v_lshl_add_u32 v{vWA}, v6, 2, v{vWA}")
    a(f"v_add_u32 v{vWA}, {WB}, v{vWA}")


def xf(s):
    return 16 + 4 * s if s < 4 else 56 + 4 * (s - 4)

def x_reads(a):
    a.c("x fragments of this wave's sub-block")
    a(f"s_mul_i32 s{sT1}, s{sLJ}, {XT}")
    a(f"s_add_u32 s{sT1}, s{sT1}, {XB}")
    a(f"v_and_b32 v6, 31, v{vLANE}")
    a(f"v_lshrrev_b32 v7, 5, v{vLANE}")
    a(f"v_xor_b32 v7, v7, v6")
    a(f"v_and_b32 v7, 15, v7")
    a(f"v_lshl_add_u32 v6, v6, 8, s{sT1}")
    a(f"v_lshl_add_u32 v6, v7, 4, v6")
    for s in range(8):
        if s:
            a(f"v_xor_b32 v7, {32*s}, v6")
        a(f"ds_read_b128 {vr(xf(s),4)}, v{7 if s else 6}")
    signal(a, XR)


def w_reads(a, m1, m2, s):
    for k, m in enumerate((m1, m2)):
        for u in range(2):
            a(f"ds_read_b64_tr_b16 {vr(RA+8*(s%4)+4*k+2*u,2)}, v{vWA} offset:{m*16384 + s*2048 + u*512}")


def gemm_pass(a, m1, m2, swap2, first_issued=False, nxt=None):
    if not first_issued:
        for s in range(4):
            w_reads(a, m1, m2, s)
    for s in range(8):
        r = RA + 8 * (s % 4)
        a(f"s_waitcnt lgkmcnt({12 if s <= 4 else 4 * (7 - s)})")
        c1 = "0" if s == 0 else vr(Z, 16)
        c2 = "0" if s == 0 else vr(ACC, 16)
        a(f"v_mfma_f32_32x32x16_bf16 {vr(Z,16)}, {vr(xf(s),4)}, {vr(r,4)}, {c1}")
        if swap2:
            a(f"v_mfma_f32_32x32x16_bf16 {vr(ACC,16)}, {vr(r+4,4)}, {vr(xf(s),4)}, {c2}")
        else:
            a(f"v_mfma_f32_32x32x16_bf16 {vr(ACC,16)}, {vr(xf(s),4)}, {vr(r+4,4)}, {c2}")
        if s < 4:
            w_reads(a, m1, m2, s + 4)


G2 = 72
def pu_pass(a, p):
    slot = (88, 48)
    def rd(st):
        for k, m in enumerate((0, 3)):
            for u in range(2):
                a(f"ds_read_b64_tr_b16 {vr(slot[st%2]+4*k+2*u,2)}, v{vWA} offset:{m*16384 + st*2048 + u*512}")
    rd(0)
    rd(1)
    for st in range(8):
        r = slot[st % 2]
        a(f"s_waitcnt lgkmcnt({4 if st < 7 else 0})")
        c1 = "0" if st == 0 else vr(G2, 16)
        c2 = "0" if st == 0 else vr(ACC, 16)
        a(f"v_mfma_f32_32x32x16_bf16 {vr(G2,16)}, {vr(xf(st),4)}, {vr(r,4)}, {c1}")
        a(f"v_mfma_f32_32x32x16_bf16 {vr(ACC,16)}, {vr(r+4,4)}, {vr(xf(st),4)}, {c2}")
        if st + 2 < 8:
            rd(st + 2)
        if st == MIDPUB:
            a(f"s_cmp_lg_u32 s{sNT}, 0")
            a(f"s_cbranch_scc1 {p}_mp_done")
            a(f"s_cmp_lg_u32 s{sNON}, 0")
            a(f"s_cbranch_scc1 {p}_mp_rec")
            a(f"s_waitcnt vmcnt(0)")
            a.lab(f"{p}_mp_rec")
            a(f"s_waitcnt vmcnt({NI})")
            a(f"s_call_b64 {sr(sRET,2)}, {p}_sub_pub")
            a(f"s_mov_b32 s{sNT}, 1")
            a.lab(f"{p}_mp_done")


def table_store(a, fused):
    a.c("table rows: hi16 = -log2e * (x B), lo16 = bf16(1 / (x V)); 8 rows at a time through LDS, whole lines out")
    a(f"s_lshl_b32 s{sT1}, s{sWV}, 10")
    a(f"s_add_u32 s{sT1}, s{sT1}, {STG + 2048}")
    a(f"v_lshrrev_b32 v6, 5, v{vLANE}")
    a(f"v_lshl_add_u32 v6, v6, 9, s{sT1}")
    a(f"v_and_b32 v7, 31, v{vLANE}")
    a(f"v_lshl_add_u32 v6, v7, 2, v6")
    a(f"v_lshl_add_u32 v7, v{vLANE}, 4, s{sT1}")
    a(f"s_lshl_b32 s{sT0}, s{sNODE0}, 7")
    a(f"v_lshl_add_u32 v{vTMP}, v{vLANE}, 4, s{sT0}")
    a(f"s_nop 5")
    for j in range(0, 14, 2):
        for k in (j, j + 1):
            a(f"v_rcp_f32 v{ACC+k}, v{ACC+k}")
            a(f"v_mul_f32 v{Z+k}, s{sNL2E}, v{Z+k}")
        for k in (j, j + 1):
            a(f"v_med3_f32 v{ACC+k}, v{ACC+k}, s{sMAXF}, -s{sMAXF}")
        a(f"v_cvt_pk_bf16_f32 v{ACC+j}, v{ACC+j}, v{ACC+j+1}")
        a(f"v_perm_b32 v{Z+j}, v{Z+j}, v{ACC+j}, s{sSELLO}")
        a(f"v_perm_b32 v{Z+j+1}, v{Z+j+1}, v{ACC+j}, s{sSELHI}")
        for k in (j, j + 1):
            a(f"ds_write_b32 v6, v{Z+k} offset:{(k&3)*128}")
        if j % 4 == 2 or j == 12:
            g = j // 4
            a(f"ds_read_b128 {vr(RA+4*g,4)}, v7")
    for g in range(4):
        a(f"s_waitcnt lgkmcnt({(10, 5, 3, 0)[g] if False else 0})") if g == 0 else None
        if g == 3:
            a(f"s_sub_u32 s{sT0}, s{sNR}, 24")
            a(f"s_lshl_b32 s{sT0}, s{sT0}, 3")
            a(f"s_bfm_b64 exec, s{sT0}, 0")
        a(f"buffer_store_dwordx4 {vr(RA+4*g,4)}, v{vTMP}, {sr(SRD_TS,4)}, 0 offen offset:{1024*g} sc1")
    a(f"s_mov_b64 exec, -1")
    a(f"s_nop 0")


vC0 = 88
def load_C(a):
    a.c("edge-feature weights g_w[256+k][32*slice + pi(n)]")
    a(f"v_bfe_u32 v6, v{vLANE}, 2, 1")
    a(f"v_lshlrev_b32 v6, 5, v6")
    a(f"v_bfe_u32 v7, v{vLANE}, 3, 2")
    a(f"v_lshl_add_u32 v6, v7, 3, v6")
    a(f"v_and_b32 v7, 3, v{vLANE}")
    a(f"v_lshl_add_u32 v6, v7, 1, v6")
    a(f"s_and_b32 s{sT0}, s{sWV}, 1")
    a(f"s_lshl_b32 s{sT0}, s{sT0}, 6")
    a(f"s_add_u32 s{sT0}, s{sT0}, {CB}")
    a(f"v_add_u32 v6, s{sT0}, v6")
    for k in range(4):
        a(f"ds_read_u16 v{vC0+k}, v6 offset:{128*k}")


def pop_pack(a):
    a.c("P' operand (rows 26.. replaced by the edge-feature weights / zero)")
    a(f"s_waitcnt lgkmcnt(0)")
    for k in range(4):
        a(f"v_lshlrev_b32 v{vC0+k}, 16, v{vC0+k}")
    for k in range(4):
        a(f"v_mul_f32 v{vC0+k}, s{sNL2E}, v{vC0+k}")
    a(f"v_cvt_pk_bf16_f32 v6, v{vC0}, v{vC0+1}")
    a(f"v_cvt_pk_bf16_f32 v7, v{vC0+2}, v{vC0+3}")
    a(f"s_nop 3")
    for k in range(14):
        a(f"v_mul_f32 v{G2+k}, s{sNL2E}, v{G2+k}")
    for k in range(7):
        a(f"v_cvt_pk_bf16_f32 v{POP+k}, v{G2+2*k}, v{G2+2*k+1}")
    a(f"s_cmp_eq_u32 s{sNN}, 25")
    a(f"s_cselect_b32 s{sT0}, 0xffff, 0")
    a(f"v_and_b32 v{POP+6}, s{sT0}, v{POP+6}")
    a(f"v_cndmask_b32 v{POP+6}, v{POP+6}, v6, {sr(sHM,2)}")
    a(f"v_cndmask_b32 v{POP+7}, 0, v7, {sr(sHM,2)}")


vHS, vHL = 12, 13
def hdr_load(a, fused, addr=7):
    a(f"buffer_load_dwordx2 v[14:15], v{addr}, {sr(SRD_HDR,4)}, 0 offen{' sc1' if fused else ''}")

def hdr_addr(a, addr=7):
    a(f"v_lshrrev_b32 v{addr}, 2, v0")
    a(f"s_lshl_b32 s{sT0}, s{sBIN}, 4")
    a(f"v_lshl_add_u32 v{addr}, v{addr}, 10, s{sT0}")


def hdr_decode(a):
    a(f"v_and_b32 v6, 3, v0")
    a(f"v_and_b32 v7, 0x7ff, v14")
    a(f"v_add_u32 v7, v7, v6")
    a(f"v_mul_u32_u24 v7, 12, v7")
    a(f"v_lshrrev_b32 v{vHS}, 2, v0")
    a(f"v_mul_u32_u24 v{vHS}, 19200, v{vHS}")
    a(f"v_add_u32 v{vHS}, v{vHS}, v7")
    a(f"v_bfe_u32 v{vHL}, v14, 16, 11")
    a(f"v_sub_u32 v{vHL}, v{vHL}, v6")
    a(f"s_mov_b32 s{sRB}, 0")
    a(f"s_mov_b32 s{sC}, {CFAST}")


def rec_loads(a, p, tag, fused, fixed=False):
    sc = " sc1" if fused else ""
    a(f"v_subrev_u32 v7, s{sRB}, v{vHL}")
    a(f"v_and_b32 v6, 3, v0")
    a(f"v_sub_u32 v6, s{sC}, v6")
    a(f"v_min_i32 v7, v7, v6")
    a(f"s_mul_i32 s{sT0}, s{sRB}, 12")
    a(f"v_add_u32 v6, s{sT0}, v{vHS}")
    for i in range(NI):
        a(f"v_cmp_lt_i32 {sr(MASKS[i],2)}, {4*i}, v7")
    for i in range(NI):
        a(f"s_mov_b64 exec, {sr(MASKS[i],2)}")
        if not fixed: a(f"s_cbranch_execz {p}_rl_done{tag}")
        a(f"buffer_load_dwordx3 {vr(REC+4*i,3)}, v6, {sr(SRD_REC,4)}, 0 offen offset:{48*i}{sc}")
    a.lab(f"{p}_rl_done{tag}")
    a(f"s_mov_b64 exec, -1")


def append1(a, p, tag):
    a.c("---------------- list slots for the records (16 sub-block lists)")
    a(f"s_add_u32 s{sT0}, s{sRB}, s{sC}")
    a(f"v_and_b32 v6, 3, v0")
    a(f"v_add_u32 v6, v6, v{vHL}")
    a(f"v_cmp_lt_i32 vcc, s{sT0}, v6")
    a(f"v_mov_b32 v6, 4")
    a(f"v_mov_b32 v7, 64")
    a(f"s_mov_b64 exec, vcc")
    a(f"ds_add_u32 v7, v6 offset:{LCNT}")
    a(f"s_mov_b64 exec, -1")
    a(f"v_mov_b32 v7, 0x3c")
    for i in range(NI):
        q = REC + 4 * i
        a(f"s_mov_b64 exec, {sr(MASKS[i],2)}")
        a(f"s_cbranch_execz {p}_ap1{tag}")
        a(f"v_and_b32_sdwa v{q+3}, v{q+2}, v7 dst_sel:DWORD dst_unused:UNUSED_PAD src0_sel:BYTE_3 src1_sel:DWORD")
        a(f"ds_add_rtn_u32 v{q+3}, v{q+3}, v6 offset:{LCNT}")
    a.lab(f"{p}_ap1{tag}")
    a(f"s_mov_b64 exec, -1")


def append2(a, p):
    for i in range(NI):
        q = REC + 4 * i
        a(f"s_mov_b64 exec, {sr(MASKS[i],2)}")
        a(f"s_cbranch_execz {p}_ap2")
        a(f"v_min_u32 v{q+3}, s{sKMAX}, v{q+3}")
        a(f"v_lshlrev_b32 v6, 1, v{q+3}")
        a(f"ds_write_b32 v{q+3}, v{q+2}")
        a(f"ds_write_b64 v6, {vr(q,2)} offset:{EOFF}")
    a.lab(f"{p}_ap2")
    a(f"s_mov_b64 exec, -1")


vKR, vER, vIW, vIE, vIA0, vIA1, vIT0, vIT1, vOLD, vKEY = 4, 5, 120, 121, 122, 123, 124, 125, 126, 127
vEE, vB16, vZERO = 8, 10, 11
AD, BD = 2, 14


def image_setup(a):
    a.c("---------------- selection image addresses; zero the image")
    a(f"s_lshl_b32 s{sT0}, s{sWV}, 11")
    a(f"s_add_u32 s{sT0}, s{sT0}, {IMG}")
    a(f"v_lshl_add_u32 v{vER}, v{vLANE}, 4, s{sT0}")
    for k in range(4):
        a(f"v_mov_b32 v{Z+k}, 0")
    a(f"v_mov_b32 v{vB16}, 0x3f80")
    a(f"v_mov_b32 v{vZERO}, 0")
    a(f"v_and_b32 v6, 31, v{vLANE}")
    a(f"v_mov_b32 v{AD+1}, 0x3f803f80")
    a(f"v_lshlrev_b32 v7, 2, v6")
    a(f"v_cvt_f32_u32 v7, v7")
    a(f"v_lshrrev_b32 v7, 16, v7")
    a(f"v_or_b32 v7, 0x4b000000, v7")
    a(f"v_mov_b32 v{BD}, 0x47004300")
    a(f"v_cndmask_b32 v{BD}, v{BD}, v{vZERO}, {sr(sHM,2)}")
    a(f"v_cndmask_b32 v{BD+1}, v7, v{vZERO}, {sr(sHM,2)}")
    a(f"v_lshl_add_u32 v6, v6, 6, s{sT0}")
    a(f"v_bfe_u32 v7, v{vLANE}, 2, 2")
    a(f"v_lshl_add_u32 v{vIW}, v7, 4, v6")
    a(f"v_xor_b32 v{vIE}, 56, v{vIW}")
    a(f"v_lshrrev_b32 v6, 5, v{vLANE}")
    a(f"v_lshlrev_b32 v{vIA0}, 4, v6")
    a(f"v_xor_b32 v{vIA0}, v{vIA0}, v{vIW}")
    a(f"v_xor_b32 v{vIA1}, 32, v{vIA0}")
    a(f"v_mov_b32 v{vOLD}, v{vIW}")
    a(f"v_lshl_add_u32 v7, v6, 2, v7")
    a(f"v_lshl_add_u32 v{vIT0}, v7, 6, s{sT0}")
    a(f"v_bfe_u32 v7, v{vLANE}, 4, 1")
    a(f"v_lshlrev_b32 v7, 1, v7")
    a(f"v_and_b32 v{vIT1}, 1, v{vLANE}")
    a(f"v_or_b32 v7, v7, v{vIT1}")
    a(f"v_xor_b32 v7, v7, v6")
    a(f"v_lshl_add_u32 v{vIT0}, v7, 4, v{vIT0}")
    a(f"v_and_b32 v7, 2, v{vLANE}")
    a(f"v_lshl_add_u32 v{vIT0}, v7, 2, v{vIT0}")
    a(f"v_xor_b32 v{vIT1}, 32, v{vIT0}")
    a(f"v_add_u32 v{vIT1}, 512, v{vIT1}")


def gathers(a, R, fused):
    sc = " sc1" if fused and "sc1g" in DIAG else ""
    if "nogather" in DIAG: return
    for k in range(16):
        a(f"buffer_load_dword v{R+k}, v{OFF+k}, {sr(SRD_TG,4)}, 0 offen{sc}")

sN0, sJMP = sM2, sM3
def rec_reads(a):
    a(f"ds_read_b32 v{vKEY}, v{vKR}")
    a(f"ds_read_b64 {vr(vEE,2)}, v{vER} offset:{EOFF}")

def step_calc(a, cur):
    a(f"s_cmp_eq_u32 s{sN0}, {cur}")
    a(f"s_cselect_b32 s{sT1}, s{sJMP}, 128")
    a(f"s_lshl_b32 s{sT2}, s{sT1}, 1")

def step(a):
    a(f"v_add_u32 v{vKR}, s{sT1}, v{vKR}")
    a(f"v_add_u32 v{vER}, s{sT2}, v{vER}")

def image_build(a):
    a(f"ds_write_b16 v{vOLD}, v{vZERO}")
    a(f"v_xor_b32_sdwa v{vOLD}, v{vKEY}, v{vIW} dst_sel:DWORD dst_unused:UNUSED_PAD src0_sel:BYTE_2 src1_sel:DWORD")
    a(f"ds_write_b64 v{vIE}, {vr(vEE,2)}")
    a(f"ds_write_b16 v{vOLD}, v{vB16}")

def aex_reads(a):
    a(f"ds_read_b128 {vr(AEX,4)}, v{vIA0}")
    a(f"ds_read_b128 {vr(AEX+4,4)}, v{vIA1}")

def sag_reads(a):
    for s in range(2):
        a(f"ds_read_b64_tr_b16 {vr(SAG+4*s,2)}, v{vIT0} offset:{1024*s}")
        a(f"ds_read_b64_tr_b16 {vr(SAG+4*s+2,2)}, v{vIT1} offset:{1024*s}")

def addr_cvt(a):
    a(f"v_cvt_f32_ubyte0 v6, v{vKEY}")
    a(f"v_cvt_f32_ubyte1 v7, v{vKEY}")
def addr_pack(a):
    a(f"v_perm_b32 v{AD}, v7, v6, s{sSELHI}")
def addr_mfma(a):
    a(f"v_mfma_f32_32x32x8_bf16 {vr(OFF,16)}, {vr(AD,2)}, {vr(BD,2)}, 0")


def tile_body(a, R, Rn, fused, lb):
    gathers(a, Rn, fused)
    step_calc(a, f"s{sIT}")
    if PRIO:
        a(f"s_sub_u32 s{sT0}, s{sNT}, s{sIT}")
        for lvl, r in enumerate((1, 3, 6)):
            a(f"s_cmp_lg_u32 s{sT0}, {r}")
            a(f"s_cbranch_scc1 {lb}_p{lvl}")
            a(f"s_setprio {lvl}")
            a.lab(f"{lb}_p{lvl}")
    a(f"s_waitcnt vmcnt(16)")
    a(f"v_mfma_f32_32x32x16_bf16 {vr(Z,16)}, {vr(AEX,4)}, {vr(POP,4)}, {vr(R,16)}")
    a(f"v_mfma_f32_32x32x16_bf16 {vr(Z,16)}, {vr(AEX+4,4)}, {vr(POP+4,4)}, {vr(Z,16)}")
    if "nolds" not in DIAG:
        sag_reads(a)
        image_build(a)
        aex_reads(a)
    else:
        a("s_nop 9")
    rec_reads(a)
    step(a)
    if PPB is not None:
        a(f"s_cmp_lg_u32 s{sIT}, {PPB}")
        a(f"s_cbranch_scc1 {lb}_nopp")
        phase_prefetch(a, 1)
        a.lab(f"{lb}_nopp")
    for j in range(16):
        if "notrans" not in DIAG: a(f"v_exp_f32 v{Z+j}, v{Z+j}")
        if "b64" in DIAG:
            if j % 2: a(f"v_lshlrev_b64 {vr(R+j-1,2)}, 16, {vr(R+j-1,2)}")
        else:
            a(f"v_lshlrev_b32 v{R+j}, 16, v{R+j}")
    a(f"s_waitcnt lgkmcnt(0)")
    addr_cvt(a)
    for j in range(0, 16, 2):
        if "nopk" in DIAG:
            a(f"v_fma_f32 v{Z+j}, v{Z+j}, v{R+j}, v{R+j}")
            a(f"v_fma_f32 v{Z+j+1}, v{Z+j+1}, v{R+j+1}, v{R+j+1}")
        else:
            a(f"v_pk_fma_f32 {vr(Z+j,2)}, {vr(Z+j,2)}, {vr(R+j,2)}, {vr(R+j,2)}")
        if j == 0:
            addr_pack(a)
    addr_mfma(a)
    for j in range(16):
        if "notrans" not in DIAG: a(f"v_rcp_f32 v{Z+j}, v{Z+j}")
        if j >= 3 and j % 2 == 1:
            k = (j - 3) // 2
            a(f"v_cvt_pk_bf16_f32 v{R+k}, v{Z+2*k}, v{Z+2*k+1}")
    a(f"s_add_u32 s{sIT}, s{sIT}, 1")
    a(f"v_cvt_pk_bf16_f32 v{R+7}, v{Z+14}, v{Z+15}")
    a(f"s_cmp_lt_u32 s{sIT}, s{sNT}")
    a(f"v_mfma_f32_32x32x16_bf16 {vr(ACC,16)}, {vr(R,4)}, {vr(SAG,4)}, {vr(ACC,16)}")
    a(f"v_mfma_f32_32x32x16_bf16 {vr(ACC,16)}, {vr(R+4,4)}, {vr(SAG+4,4)}, {vr(ACC,16)}")


sHALF = sM4
def half_body(a, R):
    a(f"s_waitcnt vmcnt(0)")
    a(f"v_mfma_f32_32x32x16_bf16 {vr(Z,16)}, {vr(AEX,4)}, {vr(POP,4)}, {vr(R,16)}")
    a(f"v_mfma_f32_32x32x16_bf16 {vr(Z,16)}, {vr(AEX+4,4)}, {vr(POP+4,4)}, {vr(Z,16)}")
    a(f"ds_read_b64_tr_b16 {vr(SAG,2)}, v{vIT0}")
    a(f"ds_read_b64_tr_b16 {vr(SAG+2,2)}, v{vIT1}")
    a(f"s_nop 9")
    for j in range(8):
        a(f"v_exp_f32 v{Z+j}, v{Z+j}")
        a(f"v_lshlrev_b32 v{R+j}, 16, v{R+j}")
    for j in range(0, 8, 2):
        a(f"v_pk_fma_f32 {vr(Z+j,2)}, {vr(Z+j,2)}, {vr(R+j,2)}, {vr(R+j,2)}")
    for j in range(8):
        a(f"v_rcp_f32 v{Z+j}, v{Z+j}")
    for k in range(4):
        a(f"v_cvt_pk_bf16_f32 v{R+k}, v{Z+2*k}, v{Z+2*k+1}")
    a(f"s_waitcnt lgkmcnt(0)")
    a(f"s_nop 0")
    a(f"v_mfma_f32_32x32x16_bf16 {vr(ACC,16)}, {vr(R,4)}, {vr(SAG,4)}, {vr(ACC,16)}")


def t_prefetch(a):
    a.c("read this wave's own table rows back once (streams them into the outer caches ahead of the random reads)")
    a(f"s_lshl_b32 s{sT0}, s{sNODE0}, 7")
    a(f"v_lshl_add_u32 v6, v{vLANE}, 4, s{sT0}")
    for kk in range(3):
        a(f"s_mov_b32 m0, {PFS - 1024*kk}")
        a(f"s_nop 0")
        a(f"buffer_load_dwordx4 v6, {sr(SRD_TS,4)}, 0 offen offset:{1024*kk}{' sc1' if 'pfsc1' in DIAG else ''} lds")


def phase_prefetch(a, phase):
    a(f"s_lshr_b32 s{sT0}, s2, 3")
    a(f"s_lshl_b32 s{sT0}, s{sT0}, 3")
    a(f"s_add_u32 s{sT0}, s{sT0}, s{sLJ}")
    a(f"s_mul_i32 s{sT0}, s{sT0}, 12500")
    a(f"s_lshr_b32 s{sT0}, s{sT0}, 8")
    a(f"s_lshl_b32 s{sT0}, s{sT0}, 7")
    if phase:
        a(f"s_add_u32 s{sT0}, s{sT0}, {12500*128}")
    a(f"v_lshl_add_u32 v6, v{vLANE}, 4, s{sT0}")
    a(f"v_add_u32 v7, 3072, v6")
    for kk in range(6):
        a(f"s_mov_b32 m0, {PFS - 1024*(kk%3)}")
        a(f"s_nop 0")
        a(f"buffer_load_dwordx4 v{6 + kk//3}, {sr(SRD_TS,4)}, 0 offen offset:{1024*(kk%3)} lds")


def tflag_addr(a, v):
    a(f"s_lshr_b32 s{sT0}, s{sSL}, 1")
    a(f"s_lshl_b32 s{sT0}, s{sT0}, 14")
    a(f"s_add_u32 s{sT0}, s{sT0}, {TFL_OFF}")
    a(f"v_lshl_add_u32 v{v}, v{vLANE}, 8, s{sT0}")


def tflag_loads(a, v):
    a(f"buffer_load_dwordx2 v[16:17], v{v}, {sr(SRD_HDR,4)}, 0 offen sc1")
    a(f"buffer_load_dwordx2 v[18:19], v{v}, {sr(SRD_HDR,4)}, 0 offen offset:128 sc1")


def tflag_issue(a, p):
    a(f"s_cmp_lg_u32 s{sWV}, {TFW}")
    a(f"s_cbranch_scc1 {p}_tf_noissue")
    tflag_addr(a, 3)
    tflag_loads(a, 3)
    a.lab(f"{p}_tf_noissue")


def tflag_wait(a, p):
    a.c("one wave waits until all 128 workgroups of this feature half have published their table rows")
    a(f"s_cmp_lg_u32 s{sWV}, {TFW}")
    a(f"s_cbranch_scc1 {p}_tf_done")
    a(f"s_cmp_lg_u32 s{sNOH}, 0")
    a(f"s_cbranch_scc1 {p}_tf_done")
    tflag_addr(a, 6)
    a(f"s_not_b32 s{sT1}, s{sNON}")
    a(f"s_mov_b32 s{sSPIN}, {SPIN_MAX}")
    a(f"s_branch {p}_tf_first")
    a.lab(f"{p}_tf_loop")
    tflag_loads(a, 6)
    a.lab(f"{p}_tf_first")
    a(f"s_waitcnt vmcnt(0)")
    a(f"v_xor_b32 v20, s{sNON}, v16")
    a(f"v_xor_b32 v21, s{sT1}, v17")
    a(f"v_xor_b32 v22, s{sNON}, v18")
    a(f"v_xor_b32 v23, s{sT1}, v19")
    a(f"v_or3_b32 v20, v20, v21, v22")
    a(f"v_or_b32 v20, v20, v23")
    a(f"v_cmp_ne_u32 vcc, 0, v20")
    a(f"s_and_b64 exec, exec, vcc")
    a(f"s_cbranch_scc0 {p}_tf_end")
    a(f"s_sleep 2")
    a(f"s_sub_u32 s{sSPIN}, s{sSPIN}, 1")
    a(f"s_cbranch_scc0 {p}_tf_loop")
    a.lab(f"{p}_tf_end")
    a(f"s_mov_b64 exec, -1")
    a(f"s_mov_b32 s{sNOH}, 1")
    a.lab(f"{p}_tf_done")


def main_phase(a, p, fused):
    a.lab(f"{p}_round")
    append1(a, p, "a")
    a(f"s_waitcnt lgkmcnt(0)")
    append2(a, p)
    stamp(a, 5)
    image_setup(a)
    tflag_wait(a, p)
    if "nopf" not in DIAG and "pfearly" not in DIAG and "pflate" not in DIAG: t_prefetch(a)
    a(f"s_waitcnt lgkmcnt(0)")
    a(f"s_barrier")
    stamp(a, 6)
    if STAMPS:
        a("s_memtime s[100:101]")
        a("s_waitcnt lgkmcnt(0)")
        a(f"s_mov_b32 s{sM1}, s100")
    a(f"ds_write_b128 v{vER}, {vr(Z,4)}")
    a(f"ds_write_b128 v{vER}, {vr(Z,4)} offset:1024")
    if "pflate" in DIAG or "pf2x" in DIAG: t_prefetch(a)
    a(f"v_and_b32 v6, 31, v{vLANE}")
    a(f"v_lshlrev_b32 v{vKR}, 2, v6")
    a(f"ds_read_b32 v7, v{vKR} offset:{LCNT}")
    cursor_starts(a, 6, 8)
    a(f"v_add_u32 v6, {4*CAP}, v6")
    a(f"s_mul_i32 s{sT0}, s{sLJ}, {LS*4}")
    a(f"s_add_u32 s{sT0}, s{sT0}, {KEYB}")
    a(f"s_and_b32 s{sNT}, s{sWV}, 14")
    a(f"s_or_b32 s{sIT}, s{sWV}, 1")
    a(f"s_waitcnt lgkmcnt(0)")
    a(f"v_readlane_b32 s{sT1}, v7, s{sNT}")
    a(f"v_readlane_b32 s{sT2}, v7, s{sIT}")
    a(f"v_readlane_b32 s{sT3}, v7, 16")
    a(f"v_cmp_lt_u32 vcc, v6, v7")
    a(f"s_and_b32 s{sNT}, vcc_lo, 0xffff")
    a(f"s_cbranch_scc1 {p}_overflow")
    a.c("the last partial tile of the first half moves behind the second half; 64 dummy edges behind that")
    a(f"s_sub_u32 s{sN0}, s{sT1}, s{sT0}")
    a(f"s_and_b32 s{sIT}, s{sN0}, 127")
    a(f"s_sub_u32 s{sT1}, s{sT1}, s{sIT}")
    a(f"v_lshl_add_u32 v6, v{vLANE}, 2, s{sT1}")
    a(f"v_lshlrev_b32 v7, 1, v6")
    a(f"ds_read_b32 v{vKEY}, v6")
    a(f"ds_read_b64 v[8:9], v7 offset:{EOFF}")
    a(f"s_lshr_b32 s{sN0}, s{sN0}, 7")
    a(f"v_lshlrev_b32 v6, 2, v{vLANE}")
    a(f"v_cmp_gt_u32 vcc, s{sIT}, v6")
    a(f"v_add_u32 v6, s{sT2}, v6")
    a(f"v_lshlrev_b32 v7, 1, v6")
    a(f"v_mov_b32 v{AEX}, 0x{N | (46 << 16):x}")
    a(f"s_add_u32 s{sJMP}, s{sT0}, {4*CAP}")
    a(f"s_sub_u32 s{sNT}, s{sT2}, s{sJMP}")
    a(f"s_add_u32 s{sNT}, s{sNT}, s{sIT}")
    a(f"s_add_u32 s{sNT}, s{sNT}, 63")
    a(f"s_lshr_b32 s{sNT}, s{sNT}, 6")
    a(f"s_and_b32 s{sHALF}, s{sNT}, 1")
    a(f"s_lshr_b32 s{sNT}, s{sNT}, 1")
    a(f"s_cmp_eq_u32 s{sN0}, 0")
    a(f"s_cselect_b32 s{sT0}, s{sJMP}, s{sT0}")
    a(f"v_add_u32 v{vKR}, s{sT0}, v{vKR}")
    a(f"v_lshlrev_b32 v{vER}, 1, v{vKR}")
    a(f"s_sub_u32 s{sJMP}, s{sJMP}, s{sT1}")
    a(f"s_add_u32 s{sJMP}, s{sJMP}, 128")
    a(f"s_waitcnt lgkmcnt(0)")
    a(f"v_cndmask_b32 v{vKEY}, v{AEX}, v{vKEY}, vcc")
    a(f"v_cndmask_b32 v8, 0, v8, vcc")
    a(f"v_cndmask_b32 v9, 0, v9, vcc")
    a(f"ds_write_b32 v6, v{vKEY}")
    a(f"ds_write_b64 v7, v[8:9] offset:{EOFF}")
    a(f"s_not_b64 exec, {sr(sHM,2)}")
    a(f"ds_write_b32 v6, v{AEX} offset:256")
    a(f"ds_write_b64 v7, {vr(Z,2)} offset:{EOFF + 512}")
    a(f"s_mov_b64 exec, -1")
    a(f"s_add_u32 s{sNT}, s{sNT}, s{sN0}")
    a(f"s_or_b32 s{sT0}, s{sNT}, s{sHALF}")
    a(f"s_cbranch_scc0 {p}_tiles_done")
    a(f"s_mov_b32 s{sIT}, 0")
    if "ppa" in DIAG: phase_prefetch(a, 0)
    rec_reads(a)
    step_calc(a, 1)
    step(a)
    a(f"s_waitcnt lgkmcnt(0)")
    addr_cvt(a)
    addr_pack(a)
    image_build(a)
    addr_mfma(a)
    aex_reads(a)
    rec_reads(a)
    step_calc(a, 2)
    step(a)
    a(f"s_sub_u32 s{sN0}, s{sN0}, 3")
    a(f"s_nop 15")
    a(f"s_waitcnt lgkmcnt(0)")
    addr_cvt(a)
    addr_pack(a)
    gathers(a, RA, fused)
    addr_mfma(a)
    a(f"s_nop 15")
    a(f"s_nop 3")
    if PRIO: a(f"s_setprio 3")
    a(f"s_cmp_eq_u32 s{sNT}, 0")
    a(f"s_cbranch_scc1 {p}_half0")
    a.lab(f"{p}_tile")
    tile_body(a, RA, RBUF, fused, f"{p}_b0")
    a(f"s_cbranch_scc0 {p}_exit1")
    tile_body(a, RBUF, RA, fused, f"{p}_b1")
    a(f"s_cbranch_scc1 {p}_tile")
    a(f"s_cmp_eq_u32 s{sHALF}, 0")
    a(f"s_cbranch_scc1 {p}_tiles_done")
    a.lab(f"{p}_half0")
    half_body(a, RA)
    a(f"s_branch {p}_tiles_done")
    a.lab(f"{p}_exit1")
    a(f"s_cmp_eq_u32 s{sHALF}, 0")
    a(f"s_cbranch_scc1 {p}_tiles_done")
    half_body(a, RBUF)
    a.lab(f"{p}_tiles_done")
    a(f"s_cmp_eq_u32 s{sT3}, 0")
    a(f"s_cbranch_scc1 {p}_epi")
    a(f"s_add_u32 s{sRB}, s{sRB}, s{sC}")
    a(f"s_branch {p}_next")
    a.lab(f"{p}_overflow")
    a(f"s_mov_b32 s{sC}, 1")
    a.lab(f"{p}_next")
    a.c("rare path: another round over the runs")
    a(f"s_waitcnt vmcnt(0) lgkmcnt(0)")
    a(f"s_barrier")
    init_counters(a, p, "r")
    rec_loads(a, p, "r", fused)
    a(f"s_waitcnt vmcnt(0) lgkmcnt(0)")
    a(f"s_barrier")
    a(f"s_branch {p}_round")
    a.lab(f"{p}_epi")
    stamp(a, 7)
    if STAMPS:
        a("s_memtime s[100:101]")
        a("s_waitcnt lgkmcnt(0)")
        a(f"s_sub_u32 s{sreg(9)}, s100, s{sM1}")
    a.c("---------------- epilogue: silu, pack, store")
    a(f"v_and_b32 v6, 31, v{vLANE}")
    a(f"v_cmp_gt_u32 vcc, s{sNN}, v6")
    a(f"v_add_u32 v6, s{sNODE0}, v6")
    a(f"v_lshlrev_b32 v6, 8, v6")
    a(f"v_lshrrev_b32 v7, 5, v{vLANE}")
    a(f"v_lshl_add_u32 v6, v7, 5, v6")
    a(f"s_lshl_b32 s{sT0}, s{sSL}, 6")
    a(f"v_add_u32 v6, s{sT0}, v6")
    a(f"s_nop 7")
    for j in range(16):
        a(f"v_mul_f32 v{Z+j}, s{sNL2E}, v{ACC+j}")
    for j in range(16):
        a(f"v_exp_f32 v{Z+j}, v{Z+j}")
    for j in range(16):
        a(f"v_add_f32 v{Z+j}, 1.0, v{Z+j}")
    for j in range(16):
        a(f"v_rcp_f32 v{Z+j}, v{Z+j}")
    for j in range(16):
        a(f"v_mul_f32 v{Z+j}, v{Z+j}, v{ACC+j}")
    for k in range(8):
        a(f"v_cvt_pk_bf16_f32 v{AEX+k}, v{Z+2*k}, v{Z+2*k+1}")
    a(f"s_mov_b64 exec, vcc")
    osc = " sc1" if "osc1" in DIAG else "" if "oplain" in DIAG else " nt"
    a(f"buffer_store_dwordx4 {vr(AEX,4)}, v6, {sr(SRD_OUT,4)}, 0 offen{osc}")
    a(f"buffer_store_dwordx4 {vr(AEX+4,4)}, v6, {sr(SRD_OUT,4)}, 0 offen offset:16{osc}")


def kernel_header(name):
    return f""".globl {name}
.p2align 8
.type {name},@function
{name}:
"""

def kernel_desc(name):
    return f""".amdhsa_kernel {name}
  .amdhsa_next_free_vgpr 128
  .amdhsa_next_free_sgpr 102
  .amdhsa_accum_offset 128
  .amdhsa_group_segment_fixed_size 0
  .amdhsa_kernarg_size 80
  .amdhsa_user_sgpr_count 2
  .amdhsa_user_sgpr_kernarg_segment_ptr 1
  .amdhsa_system_sgpr_workgroup_id_x 1
.end_amdhsa_kernel
"""

def file_head():
    return open("cdna_kernels/" + NAME + ".s.ref").read().split("; Override launch geometry")[0]


def finish(a, kidx):
    stamp(a, 8)
    stamp_out(a, kidx, 12)


def hdr_peek(a):
    a(f"v_mov_b32 v7, 0")
    a(f"ds_read_b32 v13, v7 offset:{NONCE}")
    a(f"ds_read_b64 v[14:15], v{vHS}")


def csum_acc(a, p, tag):
    for i in range(NI):
        q = REC + 4 * i
        a(f"s_mov_b64 exec, {sr(MASKS[i],2)}")
        a(f"s_cbranch_execz {p}_cs{tag}")
        a(f"v_add3_u32 v2, v2, v{q}, v{q+1}")
        a(f"v_add_u32 v2, v2, v{q+2}")
    a.lab(f"{p}_cs{tag}")
    a(f"s_mov_b64 exec, -1")


def csum_check(a):
    a(f"s_nop 1")
    a(f"v_add_u32_dpp v2, v2, v2 quad_perm:[1,0,3,2] row_mask:0xf bank_mask:0xf")
    a(f"s_nop 1")
    a(f"v_add_u32_dpp v2, v2, v2 quad_perm:[2,3,0,1] row_mask:0xf bank_mask:0xf")
    a(f"v_cmp_ne_u32 vcc, v2, v15")
    a(f"s_cmp_lg_u64 vcc, 0")


def gen_1k():
    k = NAME + "_kernel"
    a = A(); p = "K"
    setup(a, p)
    stamp(a, 0)
    front(a, p)
    stamp(a, 2)
    if "frontonly" in DIAG:
        stamp_out(a, 0, 12)
        a("s_endpgm")
    w_addr(a)
    a.c("wait for the weights, the end of the record copy-out (staging area reused) and the x rows")
    a(f"s_lshl_b32 s{sT0}, s{sLJ}, 2")
    a(f"v_mov_b32 v12, s{sT0}")
    a.lab(f"{p}_xw")
    a(f"ds_read_b64 v[14:15], v10 offset:{S3}")
    a(f"ds_read_b32 v13, v12 offset:{XFL}")
    a(f"s_waitcnt lgkmcnt(0)")
    a(f"v_add3_u32 v7, v14, v15, v13")
    a(f"s_nop 0")
    a(f"v_readfirstlane_b32 s{sT0}, v7")
    a(f"s_cmp_eq_u32 s{sT0}, {14 + 1 + 4}")
    a(f"s_cbranch_scc1 {p}_xok")
    a(f"s_sleep 1")
    a(f"s_branch {p}_xw")
    a.lab(f"{p}_xok")
    a(f"s_setprio {XP[4]}")
    a(f"s_cmp_lg_u32 s{sWV}, 15")
    a(f"s_cbranch_scc1 {p}_xp")
    a(f"s_setprio 3")
    a.lab(f"{p}_xp")
    stamp(a, 3)
    poll(a, p, "a", first=True)
    x_reads(a)
    for st in range(4):
        w_reads(a, 1, 2, st)
    gemm_pass(a, 1, 2, False, True)
    poll(a, p, "b")
    if True:
        a(f"s_sub_u32 s{sT0}, s{sWV}, 11")
        a(f"s_cmp_ge_u32 s{sT0}, 4")
        a(f"s_cbranch_scc1 {p}_noau")
        a(f"s_waitcnt vmcnt(0)")
        signal(a, WF2)
        a.lab(f"{p}_noau")
    table_store(a, True)
    stamp(a, 4)
    a(f"s_setprio {XP[5]}")
    a(f"v_mov_b32 v{vZ0}, 0")
    a(f"s_mov_b32 s{sNT}, 0")
    poll(a, p, "c", last=True)
    a(f"s_cmp_lt_u32 s{sWV}, {PUBW}")
    a(f"s_cbranch_scc1 {p}_pass2")
    a(f"s_waitcnt vmcnt(0)")
    a(f"s_call_b64 {sr(sRET,2)}, {p}_sub_pub")
    a(f"s_mov_b32 s{sNT}, 1")
    a.lab(f"{p}_pass2")
    spin(a, f"{p}_wf2", WF2, 4)
    a(f"v_lshrrev_b32 v{vHS}, 2, v0")
    a(f"v_lshlrev_b32 v{vHS}, 3, v{vHS}")
    a(f"v_add_u32 v{vHS}, {STG}, v{vHS}")
    hdr_peek(a)
    a(f"s_waitcnt lgkmcnt(0)")
    a(f"v_readfirstlane_b32 s{sNON}, v13")
    a(f"s_cmp_eq_u32 s{sNON}, 0")
    a(f"s_cbranch_scc1 {p}_hlate")
    a(f"s_call_b64 {sr(sRET,2)}, {p}_sub_first")
    a.lab(f"{p}_hlate")
    pu_pass(a, p)
    load_C(a)
    pop_pack(a)
    spin(a, f"{p}_xr", XR, 16)
    a(f"s_cmp_lg_u32 s{sNON}, 0")
    a(f"s_cbranch_scc1 {p}_hgone")
    a.lab(f"{p}_hwait")
    hdr_peek(a)
    a(f"s_waitcnt lgkmcnt(0)")
    a(f"v_readfirstlane_b32 s{sNON}, v13")
    a(f"s_cmp_lg_u32 s{sNON}, 0")
    a(f"s_cbranch_scc1 {p}_hgo")
    a(f"s_cmp_lg_u32 s{sNT}, 0")
    a(f"s_cbranch_scc1 {p}_hsleep")
    a(f"s_waitcnt vmcnt(0)")
    a(f"s_call_b64 {sr(sRET,2)}, {p}_sub_pub")
    a(f"s_mov_b32 s{sNT}, 1")
    a.lab(f"{p}_hsleep")
    a(f"s_sleep 1")
    a(f"s_branch {p}_hwait")
    a.lab(f"{p}_hgo")
    a(f"s_call_b64 {sr(sRET,2)}, {p}_sub_first")
    a.lab(f"{p}_hgone")
    stamp(a, 1)
    a(f"s_cmp_lg_u32 s{sNT}, 0")
    a(f"s_cbranch_scc1 {p}_pubdone")
    a(f"s_waitcnt vmcnt(0)")
    a(f"s_call_b64 {sr(sRET,2)}, {p}_sub_pub")
    a.lab(f"{p}_pubdone")
    if "pfearly" in DIAG:
        t_prefetch(a)
        a("s_waitcnt vmcnt(3)")
    else:
        a("s_waitcnt vmcnt(0)")
    stamp(a, 11)
    a(f"s_mov_b32 s{sNOH}, 0")
    tflag_issue(a, p)
    a.c("the records must add up to the checksums published with the headers")
    csum_acc(a, p, "a")
    a(f"v_and_b32 v6, 3, v0")
    a(f"v_add_u32 v6, v6, v{vHL}")
    a(f"v_cmp_lt_i32 {sr(sEX,2)}, {CFAST}, v6")
    csum_check(a)
    a(f"s_cbranch_scc1 {p}_vslow")
    a(f"s_cmp_lg_u64 {sr(sEX,2)}, 0")
    a(f"s_cbranch_scc1 {p}_vslow")
    a.lab(f"{p}_valid")
    main_phase(a, p, True)
    finish(a, 0)
    a.lab(f"{p}_end")
    a("s_endpgm")
    a.c("---------------- subroutines / rare paths")
    a.lab(f"{p}_sub_pub")
    a.c("the last wave whose table rows are out publishes the workgroup's flag")
    a(f"v_mov_b32 v6, 1")
    a(f"s_mov_b64 exec, 1")
    a(f"ds_add_rtn_u32 v6, v{vZ0}, v6 offset:{DONE}")
    a(f"ds_read_b32 v7, v{vZ0} offset:{NON2}")
    a(f"s_waitcnt lgkmcnt(0)")
    a(f"v_readfirstlane_b32 s{sT0}, v6")
    a(f"v_readfirstlane_b32 s{sT2}, v7")
    a(f"s_cmp_lg_u32 s{sT0}, 15")
    a(f"s_cbranch_scc1 {p}_nopub")
    a(f"s_lshr_b32 s{sT0}, s{sSL}, 1")
    a(f"s_lshl_b32 s{sT0}, s{sT0}, 7")
    a(f"s_add_u32 s{sT0}, s{sT0}, s{sBIN}")
    a(f"s_lshl_b32 s{sT0}, s{sT0}, 7")
    a(f"s_add_u32 s{sT0}, s{sT0}, {TFL_OFF}")
    a(f"s_not_b32 s{sT1}, s{sT2}")
    a(f"v_mov_b32 v6, s{sT0}")
    a(f"v_mov_b32 v8, s{sT2}")
    a(f"v_mov_b32 v9, s{sT1}")
    a(f"buffer_store_dwordx2 v[8:9], v6, {sr(SRD_HDR,4)}, 0 offen sc1")
    a.lab(f"{p}_nopub")
    a(f"s_mov_b64 exec, -1")
    a(f"s_setpc_b64 {sr(sRET,2)}")
    a.lab(f"{p}_sub_first")
    hdr_decode(a)
    rec_loads(a, p, "f", False, True)
    a(f"s_setpc_b64 {sr(sRET,2)}")
    a.lab(f"{p}_sub_loads")
    rec_loads(a, p, "s", True)
    a(f"s_setpc_b64 {sr(sRET,2)}")
    a.lab(f"{p}_vslow")
    a.c("long runs, or records not yet visible: add up every run completely, again until it fits")
    a(f"s_mov_b32 s{sSPIN}, {SPIN_MAX}")
    a.lab(f"{p}_vs_retry")
    a(f"s_mov_b32 s{sRB}, 0")
    a(f"v_mov_b32 v2, 0")
    a.lab(f"{p}_vs_part")
    a(f"s_call_b64 {sr(sRET,2)}, {p}_sub_loads")
    a(f"s_waitcnt vmcnt(0)")
    csum_acc(a, p, "v")
    a(f"s_add_u32 s{sRB}, s{sRB}, {CFAST}")
    a(f"v_and_b32 v6, 3, v0")
    a(f"v_add_u32 v6, v6, v{vHL}")
    a(f"v_cmp_lt_i32 vcc, s{sRB}, v6")
    a(f"s_cmp_lg_u64 vcc, 0")
    a(f"s_cbranch_scc1 {p}_vs_part")
    csum_check(a)
    a(f"s_cbranch_scc0 {p}_vs_ok")
    a(f"s_sub_u32 s{sSPIN}, s{sSPIN}, 1")
    a(f"s_cbranch_scc0 {p}_vs_retry")
    a.lab(f"{p}_vs_ok")
    a(f"s_mov_b32 s{sRB}, 0")
    a(f"s_call_b64 {sr(sRET,2)}, {p}_sub_loads")
    a(f"s_waitcnt vmcnt(0)")
    a(f"s_branch {p}_valid")
    a.lab(f"{p}_code_end")
    s = file_head()
    s += f"; @launch grid=(256,1,1) block=(1024,1,1) lds={LDS_BYTES}\n"
    s += '.amdgcn_target "amdgcn-amd-amdhsa--gfx950"\n.text\n'
    s += kernel_header(k) + a.text()
    s += '.section .rodata,"a"\n.p2align 6\n' + kernel_desc(k)
    return s


if __name__ == "__main__":
    if "-stamps" in sys.argv:
        STAMPS = True; sys.argv.remove("-stamps")
    if "-noprio" in sys.argv:
        PRIO = False; sys.argv.remove("-noprio")
    for x in list(sys.argv):
        if x.startswith("-TF"):
            TFW = int(x[3:]); sys.argv.remove(x)
        if x.startswith("-PR"):
            PREW = int(x[3:]); sys.argv.remove(x)
        if x.startswith("-MP"):
            MIDPUB = int(x[3:]); sys.argv.remove(x)
        if x.startswith("-WB"):
            WS_BASE = int(x[3:]) << 20; sys.argv.remove(x)
        if x.startswith("-PB"):
            PPB = int(x[3:]); sys.argv.remove(x)
        if x.startswith("-PW"):
            PUBW = int(x[3:]); sys.argv.remove(x)
        if x.startswith("-XP"):
            XP = [int(c) for c in x[3:]]; sys.argv.remove(x)
        if x.startswith("-XE"):
            XEARLY = int(x[3:]); sys.argv.remove(x)
        if x.startswith("-PS"):
            PS1, PS2 = map(int, x[3:].split(",")); sys.argv.remove(x)
        if x.startswith("-D"):
            DIAG.add(x[2:]); sys.argv.remove(x)
    mode = gen_1k
    if "-1k" in sys.argv:
        mode = gen_1k; sys.argv.remove("-1k")
    out = sys.argv[1] if len(sys.argv) > 1 else "cdna_kernels/" + NAME + ".s"
    open(out, "w").write(mode())
    print("wrote", out, "LDS", LDS_BYTES)
```

```python
import sys

N = 25000
E = 400000
NAME = "gather_scatter__edge_featured_mpnn_egc__graph"

TS = 25024 * 128
REC_OFF = 0x1000000
REC_BYTES = 250 * 19200
HDR_OFF = 0x1800000
HDR_BYTES = 128 * 256 * 16
TFL_OFF = HDR_BYTES
HDR_SRD_BYTES = HDR_BYTES + 256 * 128
MAGIC_OFF = 0x4B000000

CNT = 0
CSUM = 512
OFFS = 1024
LCNT = 1536
NONCE, DONE, NON2, S2, S3, WF, WF2, XR = [LCNT + 128 + 4 * i for i in range(8)]
XFL = LCNT + 192
assert S3 % 8 == 0
CAP = 270
LS = 2 * CAP + 96
KEYB = 1792
EB = KEYB + 8 * LS * 4
EOFF = EB - 2 * KEYB
IMG = EB + 8 * LS * 8
XB = KEYB
XT = 26 * 256
assert XB % 256 == 0 and XB + 8 * XT + 6 * 256 <= IMG + 2048
STG = IMG
WB = IMG + 32768
PFS = WB + 65536
CB = PFS + 1024
LDS_BYTES = CB + 512
NI = 8
CFAST = 4 * NI

SRD_X, SRD_E, SRD_SRC, SRD_DST, SRD_W, SRD_OUT, SRD_TS, SRD_TG, SRD_REC, SRD_HDR, SRD_G = [4 + 4 * i for i in range(11)]
SRD_DBG = SRD_E
KP = 48
sLJ = 3
sNR = 71
sWV, sBIN, sSL, sNODE0, sNN = 68, 69, 70, 72, 73
sSPIN = 95
sNL2E, sMAXF, sSELLO, sSELHI, sMAGIC, s127, sM1, sM2, sM3, sM4, sSTG, sKMAX = range(74, 86)
sHM = 86
sT0, sT1, sT2, sT3 = 88, 89, 90, 91
sRB, sC, sNT, sIT = 92, 93, 94, 95
sEX = 96
sNON, sNOH = 98, 99
sRET = 64
MASKS = [4 + 2 * i for i in range(8)]
SPIN_MAX = 1000000

vLANE = 1
ACC = 32; REC = 96
POP, AEX, SAG = 48, 56, 64
OFF = 16
RA, RBUF, Z = 72, 88, 104


class A:
    def __init__(self):
        self.l = []
    def __call__(self, s):
        for x in s.strip("\n").split("\n"):
            self.l.append("    " + x.strip())
    def lab(self, s):
        self.l.append(s + ":")
    def c(self, s):
        self.l.append("    ; " + s)
    def text(self):
        return "\n".join(self.l) + "\n"


def vr(a, n):
    return f"v[{a}:{a+n-1}]"
def sr(a, n):
    return f"s[{a}:{a+n-1}]"


STAMPS = False
PRIO = True
PS1, PS2 = 8, 8
XEARLY = 4
XP = [0, 0, 0, 0, 2, 1]
PUBW = 4
NS_SL = 3
PREW = 0
MIDPUB = -1
WS_BASE = 0
PPB = None
XORD = (1, 0)
NAP, NAP2 = 3, 1
TFW = 14
DIAG = set()
STAMP_OFF = 0x2000000
def sreg(i):
    return KP + i if i < 8 else KP + 4 + i
def stamp(a, i):
    if not STAMPS: return
    a(f"s_memrealtime s[100:101]")
    a(f"s_waitcnt lgkmcnt(0)")
    a(f"s_mov_b32 s{sreg(i)}, s100")

def stamp_out(a, kidx, n):
    if not STAMPS: return
    a(f"s_mov_b64 exec, -1")
    if "dbgmax" in DIAG:
        a(f"s_load_dwordx2 {sr(sT2,2)}, s[0:1], 64")
        a(f"s_waitcnt lgkmcnt(0)")
        srd(a, SRD_W, sT2, sT3, 256)
        a(f"v_mov_b32 v6, 0")
        a(f"ds_read_b32 v8, v6 offset:{NON2}")
        a(f"s_waitcnt lgkmcnt(0)")
        a(f"s_mov_b64 exec, 1")
        for i in (0, 2, 3, 4, 11, 5, 6, 7, 8):
            a(f"v_sub_u32 v7, s{sreg(i)}, v8")
            a(f"v_max_i32 v7, 0, v7")
            a(f"buffer_atomic_umax v7, v6, {sr(SRD_W,4)}, 0 offen offset:{4*(i+1)}")
        return
    a(f"s_add_u32 s{sT2}, s{KP+18}, 0x{STAMP_OFF + kidx * 0x100000:x}")
    a(f"s_addc_u32 s{sT3}, s{KP+19}, 0")
    srd(a, SRD_W, sT2, sT3, 0x100000)
    a(f"s_lshl_b32 s{sT0}, s2, 4")
    a(f"s_add_u32 s{sT0}, s{sT0}, s{sWV}")
    a(f"s_lshl_b32 s{sT0}, s{sT0}, 6")
    a(f"v_mov_b32 v6, s{sT0}")
    for i in range(n):
        a(f"v_mov_b32 v7, s{sreg(i)}")
        a(f"buffer_store_dword v7, v6, {sr(SRD_W,4)}, 0 offen offset:{4*i}")


def srd(a, d, lo, hi, nbytes):
    a(f"s_mov_b32 s{d}, s{lo}")
    a(f"s_mov_b32 s{d+1}, s{hi}")
    a(f"s_mov_b32 s{d+2}, {nbytes}")
    a(f"s_mov_b32 s{d+3}, 0x00020000")


def setup(a, p):
    a.c("---------------- setup")
    a(f"s_cmp_ge_u32 s2, 256")
    a(f"s_cbranch_scc1 {p}_end")
    a(f"s_load_dwordx16 {sr(KP,16)}, s[0:1], 0")
    a(f"s_load_dwordx4 {sr(KP+16,4)}, s[0:1], 64")
    a(f"s_memrealtime s[100:101]")
    a(f"v_lshrrev_b32 v2, 6, v0")
    a(f"v_and_b32 v{vLANE}, 63, v0")
    a(f"v_readfirstlane_b32 s{sWV}, v2")
    a(f"s_lshr_b32 s{sBIN}, s2, 3")
    a(f"s_and_b32 s{sT0}, s2, 3")
    a(f"s_lshl_b32 s{sT0}, s{sT0}, 5")
    a(f"s_or_b32 s{sBIN}, s{sBIN}, s{sT0}")
    a(f"s_lshr_b32 s{sSL}, s2, 1")
    a(f"s_and_b32 s{sSL}, s{sSL}, 2")
    a(f"s_and_b32 s{sT0}, s{sWV}, 1")
    a(f"s_or_b32 s{sSL}, s{sSL}, s{sT0}")
    a(f"s_lshr_b32 s{sLJ}, s{sWV}, 1")
    a(f"s_mul_i32 s{sT0}, s2, 6400")
    a(f"v_lshl_add_u32 v3, v0, 4, s{sT0}")
    a(f"v_lshlrev_b32 v4, 1, v3")
    a(f"s_mul_i32 s{sT1}, s{sSL}, {TS}")
    a(f"s_waitcnt lgkmcnt(0)")
    x, e, src, dst, u, v, g, out, dbg, ws = [KP + 2 * i for i in range(10)]
    if WS_BASE:
        a(f"s_add_u32 s{ws}, s{ws}, 0x{WS_BASE:x}")
        a(f"s_addc_u32 s{ws+1}, s{ws+1}, 0")
    a(f"s_or_b32 s{sT0}, s2, s{sWV}")
    a(f"s_cbranch_scc1 {p}_notag")
    a.c("launch tag: the first wave of workgroup 0 publishes a clock value in d_debug, everyone picks it up")
    srd(a, SRD_DBG, dbg, dbg + 1, 256)
    a(f"s_or_b32 s{sT0}, s100, 1")
    a(f"v_mov_b32 v13, s{sT0}")
    a(f"v_mov_b32 v10, 0")
    a(f"s_mov_b64 exec, 1")
    a(f"buffer_store_dword v13, v10, {sr(SRD_DBG,4)}, 0 offen sc1")
    if "xcc" in DIAG:
        a(f"s_getreg_b32 s{sT0}, hwreg(HW_REG_XCC_ID)")
        a(f"v_mov_b32 v12, s{sT0}")
        a(f"buffer_store_dword v12, v10, {sr(SRD_DBG,4)}, 0 offen offset:128")
    a(f"s_mov_b64 exec, -1")
    a.lab(f"{p}_notag")
    srd(a, SRD_DST, dst, dst + 1, E * 4)
    srd(a, SRD_SRC, src, src + 1, E * 4)
    srd(a, SRD_E, e, e + 1, E * 8)
    a(f"s_cmp_ge_u32 s{sWV}, 7")
    a(f"s_cbranch_scc1 {p}_noedge")
    a(f"buffer_load_dwordx4 {vr(vD,4)}, v3, {sr(SRD_DST,4)}, 0 offen")
    a(f"buffer_load_dwordx4 {vr(vS,4)}, v3, {sr(SRD_SRC,4)}, 0 offen")
    a(f"buffer_load_dwordx4 {vr(vE,4)}, v4, {sr(SRD_E,4)}, 0 offen")
    a(f"buffer_load_dwordx4 {vr(vE+4,4)}, v4, {sr(SRD_E,4)}, 0 offen offset:16")
    a.lab(f"{p}_noedge")
    a(f"s_lshl_b32 s{sT0}, s{sBIN}, 3")
    a(f"s_add_u32 s{sT0}, s{sT0}, s{sLJ}")
    a(f"s_mul_i32 s{sT0}, s{sT0}, 3125")
    a(f"s_lshr_b32 s{sNODE0}, s{sT0}, 7")
    a(f"s_add_u32 s{sT0}, s{sT0}, 3125")
    a(f"s_lshr_b32 s{sNN}, s{sT0}, 7")
    a(f"s_cmp_eq_u32 s{sNN}, {N}")
    a(f"s_cselect_b32 s{sNR}, 1, 0")
    a(f"s_sub_u32 s{sNN}, s{sNN}, s{sNODE0}")
    a(f"s_add_u32 s{sNR}, s{sNR}, s{sNN}")
    a(f"s_mov_b32 s{sHM}, 0")
    a(f"s_mov_b32 s{sHM+1}, -1")
    srd(a, SRD_X, x, x + 1, N * 256)
    srd(a, SRD_OUT, out, out + 1, N * 256)
    srd(a, SRD_G, g, g + 1, 260 * 256)
    a(f"s_add_u32 s{sT2}, s{ws}, s{sT1}")
    a(f"s_addc_u32 s{sT3}, s{ws+1}, 0")
    srd(a, SRD_TS, sT2, sT3, (N + 1) * 128)
    a(f"s_sub_u32 s{sT2}, s{sT2}, 0x{MAGIC_OFF:x}")
    a(f"s_subb_u32 s{sT3}, s{sT3}, 0")
    srd(a, SRD_TG, sT2, sT3, MAGIC_OFF + (N + 1) * 128)
    a(f"s_add_u32 s{sT2}, s{ws}, 0x{REC_OFF:x}")
    a(f"s_addc_u32 s{sT3}, s{ws+1}, 0")
    srd(a, SRD_REC, sT2, sT3, REC_BYTES)
    a(f"s_add_u32 s{sT2}, s{ws}, 0x{HDR_OFF:x}")
    a(f"s_addc_u32 s{sT3}, s{ws+1}, 0")
    srd(a, SRD_HDR, sT2, sT3, HDR_SRD_BYTES)
    a(f"s_mov_b32 s{sNL2E}, 0xbfb8aa3b")
    a(f"s_mov_b32 s{sMAXF}, 0x7f7f0000")
    a(f"s_mov_b32 s{sSELLO}, 0x07060100")
    a(f"s_mov_b32 s{sSELHI}, 0x07060302")
    a(f"s_mov_b32 s{sMAGIC}, 10995117")
    a(f"s_mov_b32 s{s127}, 127")
    a(f"s_mov_b32 s{sM1}, 0x260000")
    a(f"s_mov_b32 s{sM2}, 0x100000")
    a(f"s_mov_b32 s{sM3}, 0x080000")
    a(f"s_mov_b32 s{sM4}, 0x38000000")
    a(f"s_mov_b32 s{sSTG}, {STG}")
    a(f"s_mov_b32 s{sKMAX}, {EB - 4}")
    a(f"v_mov_b32 v{vONE}, 1")
    a(f"v_mov_b32 v10, 0")


def spin(a, lab, off, val, nap=0):
    if nap:
        a(f"s_branch {lab}")
        a.lab(lab + "_nap")
        a(f"s_sleep {nap}")
    a.lab(lab)
    a(f"ds_read_b32 v11, v10 offset:{off}")
    a(f"s_waitcnt lgkmcnt(0)")
    a(f"v_readfirstlane_b32 s{sT0}, v11")
    a(f"s_cmp_lt_u32 s{sT0}, {val}")
    a(f"s_cbranch_scc1 {lab + '_nap' if nap else lab}")


def signal(a, off):
    a(f"s_mov_b64 exec, 1")
    a(f"ds_add_u32 v10, v{vONE} offset:{off}")
    a(f"s_mov_b64 exec, -1")


def cursor_starts(a, d, t):
    a(f"v_lshrrev_b32 v{d}, 1, v{vLANE}")
    a(f"v_mul_u32_u24 v{d}, {LS*4}, v{d}")
    a(f"v_and_b32 v{t}, 1, v{vLANE}")
    a(f"v_mul_u32_u24 v{t}, {CAP*4}, v{t}")
    a(f"v_add_u32 v{d}, v{d}, v{t}")
    a(f"v_add_u32 v{d}, {KEYB}, v{d}")


def init_counters(a, p, tag):
    a.c("wave 0: list cursors = list starts")
    a(f"s_cmp_lg_u32 s{sWV}, 0")
    a(f"s_cbranch_scc1 {p}_ic{tag}")
    a(f"v_lshlrev_b32 v7, 2, v{vLANE}")
    cursor_starts(a, 8, 9)
    a(f"v_cmp_gt_u32 vcc, 16, v{vLANE}")
    a(f"s_nop 1")
    a(f"v_cndmask_b32 v8, 0, v8, vcc")
    a(f"s_not_b64 exec, {sr(sHM,2)}")
    a(f"ds_write_b32 v7, v8 offset:{LCNT}")
    a(f"s_mov_b64 exec, -1")
    a.lab(f"{p}_ic{tag}")


def scan64(a, v):
    for sh in (1, 2, 4, 8):
        a(f"s_nop 1")
        a(f"v_add_u32_dpp v{v}, v{v}, v{v} row_shr:{sh} row_mask:0xf bank_mask:0xf bound_ctrl:0")
    a(f"s_nop 1")
    a(f"v_add_u32_dpp v{v}, v{v}, v{v} row_bcast:15 row_mask:0xa bank_mask:0xf")
    a(f"s_nop 1")
    a(f"v_add_u32_dpp v{v}, v{v}, v{v} row_bcast:31 row_mask:0xc bank_mask:0xf")


vD, vS, vE, vK, vB, vR = 72, 76, 80, 88, 92, 96
vTa, vTb, vTc = 100, 101, 102
vONE = 2
NQ = (51, 55, 123, 127)


vC2, vO2 = 104, 106
def offsets_scan(a):
    a(f"v_lshlrev_b32 v{vTa}, 3, v{vLANE}")
    a(f"ds_read_b64 {vr(vC2,2)}, v{vTa} offset:{CNT}")
    a(f"s_waitcnt lgkmcnt(0)")
    a(f"v_add_u32 v{vTb}, v{vC2}, v{vC2+1}")
    a(f"v_mov_b32 v{vTc}, v{vTb}")
    scan64(a, vTc)
    a(f"v_sub_u32 v{vO2}, v{vTc}, v{vTb}")
    a(f"v_add_u32 v{vO2+1}, v{vO2}, v{vC2}")


def noh_from_non(a):
    a(f"s_mul_i32 s{sNOH}, s{sNON}, 0x9e3779b1")
    a(f"s_and_b32 s{sNOH}, s{sNOH}, 0xf800f800")


def w_dma(a, first):
    u, v, g = KP + 8, KP + 10, KP + 12
    a(f"s_sub_u32 s{sT2}, s{sWV}, {first}")
    a(f"s_and_b32 s{sT3}, s{sT2}, 6")
    a(f"s_lshr_b32 s{sT3}, 0xc9, s{sT3}")
    a(f"s_and_b32 s{sT3}, s{sT3}, 3")
    a(f"s_cmp_eq_u32 s{sT3}, 2")
    a(f"s_cselect_b64 {sr(SRD_W,2)}, {sr(v,2)}, {sr(u,2)}")
    a(f"s_mov_b32 s{SRD_W+2}, 32768")
    a(f"s_cmp_lt_u32 s{sT3}, 2")
    a(f"s_cselect_b64 {sr(SRD_W,2)}, {sr(g,2)}, {sr(SRD_W,2)}")
    a(f"s_cselect_b32 s{SRD_W+2}, 65536, s{SRD_W+2}")
    a(f"s_mov_b32 s{SRD_W+3}, 0x00020000")
    a(f"s_cmp_eq_u32 s{sT3}, 1")
    a(f"s_cselect_b32 s{sT0}, 32768, 0")
    a(f"s_and_b32 s{sT2}, s{sT2}, 1")
    a(f"s_lshl_b32 s{sT1}, s{sT2}, 14")
    a(f"s_add_u32 s{sT0}, s{sT0}, s{sT1}")
    a(f"s_lshr_b32 s{sT1}, s{sSL}, 1")
    a(f"s_lshl_b32 s{sT1}, s{sT1}, 7")
    a(f"s_add_u32 s{sT0}, s{sT0}, s{sT1}")
    a.c("row lane>>3, 16-byte piece lane&7; the 64-byte halves of rows 2,3 (mod 4) are swapped")
    a(f"v_lshrrev_b32 v4, 3, v{vLANE}")
    a(f"v_lshl_add_u32 v4, v4, 8, s{sT0}")
    a(f"v_bfe_u32 v6, v{vLANE}, 4, 1")
    a(f"v_lshlrev_b32 v6, 2, v6")
    a(f"v_xor_b32 v6, v6, v{vLANE}")
    a(f"v_and_b32 v6, 7, v6")
    a(f"v_lshl_add_u32 v4, v6, 4, v4")
    a(f"s_lshl_b32 s{sT0}, s{sT3}, 14")
    a(f"s_lshl_b32 s{sT2}, s{sT2}, 13")
    a(f"s_add_u32 s{sT0}, s{sT0}, s{sT2}")
    for d in range(8):
        a(f"s_add_u32 m0, s{sT0}, {WB + 1024 * d}")
        a(f"s_mov_b32 s{sT1}, {2048 * d}")
        a(f"buffer_load_dwordx4 v4, {sr(SRD_W,4)}, s{sT1} offen lds")


def front(a, p):
    if "nowpf" not in DIAG:
        a(f"s_sub_u32 s{sT0}, s{sWV}, 11")
        a(f"s_cmp_ge_u32 s{sT0}, 4")
        a(f"s_cbranch_scc1 {p}_f_nowpf")
        a(f"s_lshl_b32 s{sIT}, s{sT0}, 10")
        a.c("waves 11-14: touch 16 of the 512 weight lines this XCD needs (its 32 workgroups share them out)")
        u, v, g = KP + 8, KP + 10, KP + 12
        a(f"s_lshr_b32 s{sT2}, s2, 3")
        a(f"s_lshr_b32 s{sT3}, s{sT2}, 3")
        a(f"s_cmp_eq_u32 s{sT3}, 2")
        a(f"s_cselect_b64 {sr(SRD_W,2)}, {sr(v,2)}, {sr(u,2)}")
        a(f"s_mov_b32 s{SRD_W+2}, 32768")
        a(f"s_cmp_lt_u32 s{sT3}, 2")
        a(f"s_cselect_b64 {sr(SRD_W,2)}, {sr(g,2)}, {sr(SRD_W,2)}")
        a(f"s_cselect_b32 s{SRD_W+2}, 65536, s{SRD_W+2}")
        a(f"s_cselect_b32 s{sT0}, 15, 7")
        a(f"s_mov_b32 s{SRD_W+3}, 0x00020000")
        a(f"s_and_b32 s{sT2}, s{sT2}, s{sT0}")
        a(f"s_lshl_b32 s{sT2}, s{sT2}, 12")
        a(f"s_lshr_b32 s{sT1}, s{sSL}, 1")
        a(f"s_lshl_b32 s{sT1}, s{sT1}, 7")
        a(f"s_add_u32 s{sT2}, s{sT2}, s{sT1}")
        a(f"s_add_u32 s{sT2}, s{sT2}, s{sIT}")
        a(f"v_lshl_add_u32 v6, v{vLANE}, 8, s{sT2}")
        a(f"s_mov_b64 exec, 15")
        a(f"buffer_load_dword v104, v6, {sr(SRD_W,4)}, 0 offen")
        a(f"s_mov_b64 exec, -1")
        a.lab(f"{p}_f_nowpf")
    a(f"s_cmp_lg_u32 s{sWV}, 7")
    a(f"s_cbranch_scc1 {p}_f_noinit")
    a.c("wave 7: bin counters, checksums, flags = 0, list cursors = list starts")
    a(f"v_lshlrev_b32 v7, 2, v{vLANE}")
    cursor_starts(a, 8, 9)
    a(f"v_cmp_gt_u32 vcc, 16, v{vLANE}")
    for k in range(4):
        a(f"ds_write_b32 v7, v10 offset:{CNT + 256 * k}")
    a(f"v_cndmask_b32 v8, 0, v8, vcc")
    a(f"ds_write_b32 v7, v8 offset:{LCNT}")
    if "noicpf" not in DIAG:
        a.c("read the kernel's own code once so that later instruction fetches find it in the L2")
        a(f"s_getpc_b64 {sr(sT2,2)}")
        a.lab(f"{p}_pc")
        a(f"v_lshlrev_b32 v9, 7, v{vLANE}")
        a(f"global_load_dword v104, v9, {sr(sT2,2)}")
        a(f"v_add_u32 v9, 8192, v9")
        a(f"v_cmp_gt_u32 vcc, {p}_code_end - {p}_pc - 4, v9")
        a(f"s_mov_b64 exec, vcc")
        a(f"global_load_dword v105, v9, {sr(sT2,2)}")
        a(f"s_mov_b64 exec, -1")
    a(f"s_waitcnt lgkmcnt(0)")
    a.lab(f"{p}_f_noinit")
    a(f"s_cmp_lg_u32 s{sWV}, 15")
    a(f"s_cbranch_scc1 {p}_tag_done")
    srd(a, SRD_DBG, KP + 16, KP + 17, 256)
    a(f"buffer_load_dword v{NQ[0]}, v10, {sr(SRD_DBG,4)}, 0 offen sc1")
    a.lab(f"{p}_tag_done")
    a(f"s_barrier")
    a(f"s_cmp_eq_u32 s{sWV}, 15")
    a(f"s_cbranch_scc1 {p}_f_w15")
    a(f"s_cmp_ge_u32 s{sWV}, 7")
    a(f"s_cbranch_scc1 {p}_f_loader")

    a.c("---------------- waves 0-6: sort this workgroup's 1600 edges by destination bin")
    a(f"s_setprio {XP[3]}")
    a(f"s_cmp_lt_u32 s2, 250")
    a(f"s_cselect_b32 s{sT0}, 400, 0")
    a(f"v_cmp_gt_u32 vcc, s{sT0}, v0")
    a(f"s_mov_b64 {sr(sEX,2)}, vcc")
    a(f"s_waitcnt vmcnt(3)")
    stamp(a, 1)
    for e in range(4):
        a(f"v_lshl_or_b32 v{vK+e}, v{vD+e}, 7, s{s127}")
        a(f"v_mul_hi_u32 v{vK+e}, v{vK+e}, s{sMAGIC}")
        a(f"v_lshrrev_b32 v{vB+e}, 4, v{vK+e}")
        a(f"v_and_b32 v{vB+e}, 0x1fc, v{vB+e}")
    a(f"s_mov_b64 exec, {sr(sEX,2)}")
    for e in range(4):
        a(f"ds_add_rtn_u32 v{vR+e}, v{vB+e}, v{vONE} offset:{CNT}")
    signal(a, S2)
    for e in range(4):
        d, k = vD + e, vK + e
        a(f"v_lshrrev_b32 v{vTa}, 3, v{k}")
        a(f"v_mul_u32_u24 v{vTb}, 3125, v{vTa}")
        a(f"v_lshrrev_b32 v{vTb}, 7, v{vTb}")
        a(f"v_sub_u32 v{vTb}, v{d}, v{vTb}")
        a(f"v_lshlrev_b32 v{k}, 27, v{vTa}")
        a(f"v_and_b32 v{k}, s{sM4}, v{k}")
        a(f"v_lshlrev_b32 v{vTc}, 17, v{vTb}")
        a(f"v_and_or_b32 v{k}, v{vTc}, s{sM1}, v{k}")
        a(f"v_lshlrev_b32 v{vTc}, 18, v{vTb}")
        a(f"v_and_or_b32 v{k}, v{vTc}, s{sM2}, v{k}")
        a(f"v_lshlrev_b32 v{vTc}, 16, v{vTb}")
        a(f"v_and_or_b32 v{k}, v{vTc}, s{sM3}, v{k}")
    a(f"s_lshl_b32 s{sT1}, s{sWV}, 10")
    a(f"v_lshl_add_u32 v3, v{vLANE}, 4, s{sT1}")
    a(f"v_add_u32 v7, {STG}, v3")
    a(f"s_mul_i32 s{sT1}, s2, 19200")
    a(f"v_add_u32 v3, s{sT1}, v3")
    spin(a, f"{p}_f_s2", S2, 7)
    stamp(a, 10)
    offsets_scan(a)
    a(f"ds_write_b64 v{vTa}, {vr(vO2,2)} offset:{OFFS}")
    for e in range(4):
        a(f"ds_read_b32 v{vD+e}, v{vB+e} offset:{OFFS}")
    a(f"s_mov_b32 s{sT2}, {32768 - N // 2}")
    a(f"s_mov_b32 s{sT3}, 0x04000000")
    a(f"s_waitcnt vmcnt(0)")
    for e in range(4):
        a(f"v_add_lshl_u32 v{vTb}, v{vS+e}, s{sT2}, 11")
        a(f"v_or_b32 v{vK+e}, v{vK+e}, v{vS+e}")
        a(f"v_and_or_b32 v{vK+e}, v{vTb}, s{sT3}, v{vK+e}")
        a(f"v_add3_u32 v{vS+e}, v{vE+2*e}, v{vE+2*e+1}, v{vK+e}")
    a(f"s_waitcnt lgkmcnt(0)")
    for e in range(4):
        a(f"v_add_u32 v{vR+e}, v{vR+e}, v{vD+e}")
        a(f"v_mad_u32_u24 v{vR+e}, v{vR+e}, 12, s{sSTG}")
    a(f"s_mov_b64 exec, {sr(sEX,2)}")
    for e in range(4):
        a(f"ds_write2_b32 v{vR+e}, v{vE+2*e}, v{vE+2*e+1} offset0:0 offset1:1")
        a(f"ds_write_b32 v{vR+e}, v{vK+e} offset:8")
        a(f"ds_add_u32 v{vB+e}, v{vS+e} offset:{CSUM}")
    signal(a, S3)
    spin(a, f"{p}_f_s3", S3, 7)
    a.c("copy the sorted records out: 1 KiB pieces wv, wv + 7, wv + 14")
    for k in range(3):
        a(f"ds_read_b128 {vr(104 + 4*k, 4)}, v7 offset:{7168*k}")
    signal(a, S3)
    a(f"v_add_u32 v4, 7168, v3")
    a(f"v_add_u32 v5, 14336, v3")
    a(f"s_waitcnt lgkmcnt(3)")
    a(f"buffer_store_dwordx4 {vr(104,4)}, v3, {sr(SRD_REC,4)}, 0 offen sc1")
    a(f"s_waitcnt lgkmcnt(2)")
    a(f"buffer_store_dwordx4 {vr(108,4)}, v4, {sr(SRD_REC,4)}, 0 offen sc1")
    a(f"s_cmp_gt_u32 s{sWV}, 4")
    a(f"s_cbranch_scc1 {p}_f_x0")
    a(f"s_cmp_eq_u32 s{sWV}, 4")
    a(f"s_cselect_b32 exec_hi, 0xffff, -1")
    a(f"s_waitcnt lgkmcnt(1)")
    a(f"buffer_store_dwordx4 {vr(112,4)}, v5, {sr(SRD_REC,4)}, 0 offen sc1")
    a(f"s_mov_b64 exec, -1")
    a.lab(f"{p}_f_x0")
    a(f"s_setprio 0")
    a(f"s_branch {p}_f_done")

    a.c("---------------- waves 7-10: two x tiles each into LDS; waves 11-14: the weights")
    a.lab(f"{p}_f_loader")
    a(f"s_cmp_ge_u32 s{sWV}, 11")
    a(f"s_cbranch_scc1 {p}_f_w")
    a.c("x tile: row (lane>>4) + 4i, slot lane&15 holds chunk slot ^ (row & 15)")
    a(f"v_lshrrev_b32 v6, 4, v{vLANE}")
    a(f"v_xor_b32 v7, v6, v{vLANE}")
    a(f"v_and_b32 v7, 15, v7")
    a(f"v_lshlrev_b32 v72, 8, v6")
    a(f"v_lshl_add_u32 v72, v7, 4, v72")
    for k in range(1, 4):
        a(f"v_xor_b32 v{72+k}, {64*k}, v72")
    for n in range(2):
        a(f"s_sub_u32 s{sT3}, s{sWV}, {7 - 4 * XORD[n]}")
        a(f"s_mul_i32 s{sT2}, s{sT3}, {XT}")
        a(f"s_lshl_b32 s{sT1}, s{sBIN}, 3")
        a(f"s_add_u32 s{sT1}, s{sT1}, s{sT3}")
        a(f"s_mul_i32 s{sT1}, s{sT1}, 3125")
        a(f"s_lshr_b32 s{sT1}, s{sT1}, 7")
        a(f"s_lshl_b32 s{sT1}, s{sT1}, 8")
        a(f"s_lshl_b32 s{sT0}, s{sT3}, 2")
        a(f"v_mov_b32 v{12+n}, s{sT0}")
        for i in range(7):
            a(f"s_add_u32 m0, s{sT2}, {XB + 1024 * i}")
            a(f"v_add_u32 v6, s{sT1}, v{72 + (i & 3)}")
            if i < 6:
                a(f"s_add_u32 s{sT1}, s{sT1}, 1024")
            else:
                a(f"s_not_b64 exec, {sr(sHM,2)}")
            a(f"buffer_load_dwordx4 v6, {sr(SRD_X,4)}, 0 offen lds")
        a(f"s_mov_b64 exec, -1")
    a(f"s_waitcnt vmcnt(7)")
    a(f"ds_write_b32 v12, v{vONE} offset:{XFL}")
    stamp(a, 10)
    a(f"s_waitcnt vmcnt(0)")
    a(f"ds_write_b32 v13, v{vONE} offset:{XFL}")
    a(f"s_branch {p}_f_done")
    a.lab(f"{p}_f_w")
    a(f"s_waitcnt vmcnt(0)")
    a(f"s_setprio 3")
    w_dma(a, 11)
    a(f"s_setprio 0")
    a(f"s_waitcnt vmcnt(0)")
    signal(a, WF)
    stamp(a, 10)
    w_dma(a, 7)
    a(f"s_cmp_lg_u32 s{sWV}, 11")
    a(f"s_cbranch_scc1 {p}_f_done")
    a(f"v_and_b32 v6, 7, v{vLANE}")
    a(f"v_lshrrev_b32 v4, 3, v{vLANE}")
    a(f"v_lshlrev_b32 v4, 8, v4")
    a(f"v_lshl_add_u32 v4, v6, 4, v4")
    a(f"s_lshr_b32 s{sT1}, s{sSL}, 1")
    a(f"s_lshl_b32 s{sT1}, s{sT1}, 7")
    a(f"s_add_u32 s{sT1}, s{sT1}, 65536")
    a(f"s_mov_b32 m0, {CB}")
    a(f"s_not_b64 exec, {sr(sHM,2)}")
    a(f"buffer_load_dwordx4 v4, {sr(SRD_G,4)}, s{sT1} offen lds")
    a(f"s_mov_b64 exec, -1")
    a(f"s_branch {p}_f_done")

    a.c("---------------- wave 15 publishes / collects the headers")
    a.lab(f"{p}_f_w15")
    a(f"s_setprio 3")
    a(f"s_lshl_b32 s{sT0}, s2, 11")
    a(f"v_lshl_add_u32 v4, v{vLANE}, 5, s{sT0}")
    a(f"s_mov_b32 s{sSPIN}, {SPIN_MAX}")
    for k in range(1, 4):
        a(f"s_sleep {NS_SL}")
        a(f"buffer_load_dword v{NQ[k]}, v10, {sr(SRD_DBG,4)}, 0 offen sc1")
    for k in range(4):
        a(f"s_waitcnt vmcnt({3-k})")
        a(f"v_readfirstlane_b32 s{sNON}, v{NQ[k]}")
        a(f"s_cmp_lg_u32 s{sNON}, 0")
        a(f"s_cbranch_scc1 {p}_tag_ok")
    a.lab(f"{p}_tag_loop")
    a(f"buffer_load_dword v13, v10, {sr(SRD_DBG,4)}, 0 offen sc1")
    a(f"s_waitcnt vmcnt(0)")
    a(f"v_readfirstlane_b32 s{sNON}, v13")
    a(f"s_cmp_lg_u32 s{sNON}, 0")
    a(f"s_cbranch_scc1 {p}_tag_ok")
    a(f"s_sub_u32 s{sSPIN}, s{sSPIN}, 1")
    a(f"s_cbranch_scc0 {p}_tag_loop")
    a(f"s_mov_b32 s{sNON}, 1")
    a.lab(f"{p}_tag_ok")
    stamp(a, 11)
    a(f"v_mov_b32 v13, s{sNON}")
    a(f"ds_write_b32 v10, v13 offset:{NON2}")
    noh_from_non(a)
    spin(a, f"{p}_f_s2b", S2, 7)
    offsets_scan(a)
    for k in range(2):
        a(f"v_lshl_or_b32 v{108+4*k}, v{vC2+k}, 16, v{vO2+k}")
        a(f"v_or_b32 v{108+4*k}, s{sNOH}, v{108+4*k}")
        a(f"v_mov_b32 v{109+4*k}, v13")
    spin(a, f"{p}_f_s3b", S3, 7)
    a(f"ds_read_b32 v110, v{vTa} offset:{CSUM}")
    a(f"ds_read_b32 v114, v{vTa} offset:{CSUM+4}")
    a(f"s_waitcnt lgkmcnt(0)")
    a(f"buffer_store_dwordx4 v[108:111], v4, {sr(SRD_HDR,4)}, 0 offen sc1")
    a(f"buffer_store_dwordx4 v[112:115], v4, {sr(SRD_HDR,4)}, 0 offen offset:16 sc1")
    stamp(a, 1)
    a(f"s_setprio 0")
    a.lab(f"{p}_f_done")


HP = (48, 52, 120, 124)
sPM = 44
def poll(a, p, tag, first=False, last=False):
    if first:
        a(f"s_lshl_b32 s{sT0}, s{sBIN}, 4")
        a(f"v_lshl_add_u32 v8, v{vLANE}, 13, s{sT0}")
        a(f"v_add_u32 v9, 4096, v8")
    a(f"s_cmp_lg_u32 s{sWV}, 15")
    a(f"s_cbranch_scc1 {p}_po{tag}")
    if first:
        a(f"s_mov_b64 {sr(sPM,2)}, -1")
        a(f"s_mov_b32 s{sSPIN}, {SPIN_MAX}")
    else:
        a(f"s_cmp_eq_u64 {sr(sPM,2)}, 0")
        a(f"s_cbranch_scc1 {p}_po{tag}")
        a.lab(f"{p}_pl{tag}")
        a(f"s_waitcnt vmcnt(0)")
        for k, h in enumerate(HP):
            a(f"v_xor_b32 v{h+3}, s{sNOH}, v{h}")
            a(f"v_and_b32 v{h+3}, 0xf800f800, v{h+3}")
            a(f"v_xor_b32 v7, s{sNON}, v{h+1}")
            a(f"v_or3_b32 v6, v{h+3}, v7, {'0' if k == 0 else 'v6'}")
        a(f"v_cmp_ne_u32 {sr(sPM,2)}, 0, v6")
        a(f"s_sub_u32 s{sSPIN}, s{sSPIN}, 1")
        a(f"s_cselect_b64 {sr(sPM,2)}, 0, {sr(sPM,2)}")
        a(f"s_cmp_lg_u64 {sr(sPM,2)}, 0")
        a(f"s_cbranch_scc1 {p}_pa{tag}")
        a(f"v_lshlrev_b32 v7, 5, v{vLANE}")
        a(f"v_add_u32 v7, {STG}, v7")
        a(f"v_mov_b32 v6, s{sNON}")
        for k, h in enumerate(HP):
            a(f"ds_write2_b32 v7, v{h}, v{h+2} offset0:{2*k} offset1:{2*k+1}")
        a(f"ds_write_b32 v10, v6 offset:{NONCE}")
        stamp(a, 10)
        a(f"s_branch {p}_po{tag}")
        a.lab(f"{p}_pa{tag}")
        if last:
            a(f"s_sleep {PS2}")
    a(f"s_mov_b64 exec, {sr(sPM,2)}")
    for k, h in enumerate(HP):
        a(f"buffer_load_dwordx3 {vr(h,3)}, v{8 + (k>>1)}, {sr(SRD_HDR,4)}, 0 offen offset:{2048*(k&1)} sc1")
    a(f"s_mov_b64 exec, -1")
    if last:
        a(f"s_branch {p}_pl{tag}")
    a.lab(f"{p}_po{tag}")


vZ0 = 2
vXA, vWA, vTMP = 3, 4, 5
def w_addr(a):
    a(f"s_and_b32 s{sT1}, s{sWV}, 1")
    a(f"v_lshrrev_b32 v6, 5, v{vLANE}")
    a(f"v_lshlrev_b32 v{vWA}, 10, v6")
    a(f"v_bfe_u32 v6, v{vLANE}, 2, 2")
    a(f"v_lshl_add_u32 v{vWA}, v6, 7, v{vWA}")
    a(f"v_bfe_u32 v6, v{vLANE}, 3, 1")
    a(f"v_xor_b32 v6, s{sT1}, v6")
    a(f"v_lshl_add_u32 v{vWA}, v6, 6, v{vWA}")
    a(f"v_and_b32 v6, 1, v{vLANE}")
    a(f"v_lshl_add_u32 v{vWA}, v6, 5, v{vWA}")
    a(f"v_and_b32 v6, 16, v{vLANE}")
    a(f"v_add_u32 v{vWA}, v6, v{vWA}")
    a(f"v_and_b32 v6, 2, v{vLANE}")
    a(f"v_lshl_add_u32 v{vWA}, v6, 2, v{vWA}")
    a(f"v_add_u32 v{vWA}, {WB}, v{vWA}")


def xf(s):
    return 16 + 4 * s if s < 4 else 56 + 4 * (s - 4)

def x_reads(a):
    a.c("x fragments of this wave's sub-block")
    a(f"s_mul_i32 s{sT1}, s{sLJ}, {XT}")
    a(f"s_add_u32 s{sT1}, s{sT1}, {XB}")
    a(f"v_and_b32 v6, 31, v{vLANE}")
    a(f"v_lshrrev_b32 v7, 5, v{vLANE}")
    a(f"v_xor_b32 v7, v7, v6")
    a(f"v_and_b32 v7, 15, v7")
    a(f"v_lshl_add_u32 v6, v6, 8, s{sT1}")
    a(f"v_lshl_add_u32 v6, v7, 4, v6")
    for s in range(8):
        if s:
            a(f"v_xor_b32 v7, {32*s}, v6")
        a(f"ds_read_b128 {vr(xf(s),4)}, v{7 if s else 6}")
    signal(a, XR)


def w_reads(a, m1, m2, s):
    for k, m in enumerate((m1, m2)):
        for u in range(2):
            a(f"ds_read_b64_tr_b16 {vr(RA+8*(s%4)+4*k+2*u,2)}, v{vWA} offset:{m*16384 + s*2048 + u*512}")


def gemm_pass(a, m1, m2, swap2, first_issued=False, nxt=None):
    if not first_issued:
        for s in range(4):
            w_reads(a, m1, m2, s)
    for s in range(8):
        r = RA + 8 * (s % 4)
        a(f"s_waitcnt lgkmcnt({12 if s <= 4 else 4 * (7 - s)})")
        c1 = "0" if s == 0 else vr(Z, 16)
        c2 = "0" if s == 0 else vr(ACC, 16)
        a(f"v_mfma_f32_32x32x16_bf16 {vr(Z,16)}, {vr(xf(s),4)}, {vr(r,4)}, {c1}")
        if swap2:
            a(f"v_mfma_f32_32x32x16_bf16 {vr(ACC,16)}, {vr(r+4,4)}, {vr(xf(s),4)}, {c2}")
        else:
            a(f"v_mfma_f32_32x32x16_bf16 {vr(ACC,16)}, {vr(xf(s),4)}, {vr(r+4,4)}, {c2}")
        if s < 4:
            w_reads(a, m1, m2, s + 4)


G2 = 72
def pu_pass(a, p):
    slot = (88, 48)
    def rd(st):
        for k, m in enumerate((0, 3)):
            for u in range(2):
                a(f"ds_read_b64_tr_b16 {vr(slot[st%2]+4*k+2*u,2)}, v{vWA} offset:{m*16384 + st*2048 + u*512}")
    rd(0)
    rd(1)
    for st in range(8):
        r = slot[st % 2]
        a(f"s_waitcnt lgkmcnt({4 if st < 7 else 0})")
        c1 = "0" if st == 0 else vr(G2, 16)
        c2 = "0" if st == 0 else vr(ACC, 16)
        a(f"v_mfma_f32_32x32x16_bf16 {vr(G2,16)}, {vr(xf(st),4)}, {vr(r,4)}, {c1}")
        a(f"v_mfma_f32_32x32x16_bf16 {vr(ACC,16)}, {vr(r+4,4)}, {vr(xf(st),4)}, {c2}")
        if st + 2 < 8:
            rd(st + 2)
        if st == MIDPUB:
            a(f"s_cmp_lg_u32 s{sNT}, 0")
            a(f"s_cbranch_scc1 {p}_mp_done")
            a(f"s_cmp_lg_u32 s{sNON}, 0")
            a(f"s_cbranch_scc1 {p}_mp_rec")
            a(f"s_waitcnt vmcnt(0)")
            a.lab(f"{p}_mp_rec")
            a(f"s_waitcnt vmcnt({NI})")
            a(f"s_call_b64 {sr(sRET,2)}, {p}_sub_pub")
            a(f"s_mov_b32 s{sNT}, 1")
            a.lab(f"{p}_mp_done")


def table_store(a, fused):
    a.c("table rows: hi16 = -log2e * (x B), lo16 = bf16(1 / (x V)); 8 rows at a time through LDS, whole lines out")
    a(f"s_lshl_b32 s{sT1}, s{sWV}, 10")
    a(f"s_add_u32 s{sT1}, s{sT1}, {STG + 2048}")
    a(f"v_lshrrev_b32 v6, 5, v{vLANE}")
    a(f"v_lshl_add_u32 v6, v6, 9, s{sT1}")
    a(f"v_and_b32 v7, 31, v{vLANE}")
    a(f"v_lshl_add_u32 v6, v7, 2, v6")
    a(f"v_lshl_add_u32 v7, v{vLANE}, 4, s{sT1}")
    a(f"s_lshl_b32 s{sT0}, s{sNODE0}, 7")
    a(f"v_lshl_add_u32 v{vTMP}, v{vLANE}, 4, s{sT0}")
    a(f"s_nop 5")
    for j in range(0, 14, 2):
        for k in (j, j + 1):
            a(f"v_rcp_f32 v{ACC+k}, v{ACC+k}")
            a(f"v_mul_f32 v{Z+k}, s{sNL2E}, v{Z+k}")
        for k in (j, j + 1):
            a(f"v_med3_f32 v{ACC+k}, v{ACC+k}, s{sMAXF}, -s{sMAXF}")
        a(f"v_cvt_pk_bf16_f32 v{ACC+j}, v{ACC+j}, v{ACC+j+1}")
        a(f"v_perm_b32 v{Z+j}, v{Z+j}, v{ACC+j}, s{sSELLO}")
        a(f"v_perm_b32 v{Z+j+1}, v{Z+j+1}, v{ACC+j}, s{sSELHI}")
        for k in (j, j + 1):
            a(f"ds_write_b32 v6, v{Z+k} offset:{(k&3)*128}")
        if j % 4 == 2 or j == 12:
            g = j // 4
            a(f"ds_read_b128 {vr(RA+4*g,4)}, v7")
    for g in range(4):
        a(f"s_waitcnt lgkmcnt({(10, 5, 3, 0)[g] if False else 0})") if g == 0 else None
        if g == 3:
            a(f"s_sub_u32 s{sT0}, s{sNR}, 24")
            a(f"s_lshl_b32 s{sT0}, s{sT0}, 3")
            a(f"s_bfm_b64 exec, s{sT0}, 0")
        a(f"buffer_store_dwordx4 {vr(RA+4*g,4)}, v{vTMP}, {sr(SRD_TS,4)}, 0 offen offset:{1024*g} sc1")
    a(f"s_mov_b64 exec, -1")
    a(f"s_nop 0")


vC0 = 88
def load_C(a):
    a.c("edge-feature weights g_w[256+k][32*slice + pi(n)]")
    a(f"v_bfe_u32 v6, v{vLANE}, 2, 1")
    a(f"v_lshlrev_b32 v6, 5, v6")
    a(f"v_bfe_u32 v7, v{vLANE}, 3, 2")
    a(f"v_lshl_add_u32 v6, v7, 3, v6")
    a(f"v_and_b32 v7, 3, v{vLANE}")
    a(f"v_lshl_add_u32 v6, v7, 1, v6")
    a(f"s_and_b32 s{sT0}, s{sWV}, 1")
    a(f"s_lshl_b32 s{sT0}, s{sT0}, 6")
    a(f"s_add_u32 s{sT0}, s{sT0}, {CB}")
    a(f"v_add_u32 v6, s{sT0}, v6")
    for k in range(4):
        a(f"ds_read_u16 v{vC0+k}, v6 offset:{128*k}")


def pop_pack(a):
    a.c("P' operand (rows 26.. replaced by the edge-feature weights / zero)")
    a(f"s_waitcnt lgkmcnt(0)")
    for k in range(4):
        a(f"v_lshlrev_b32 v{vC0+k}, 16, v{vC0+k}")
    for k in range(4):
        a(f"v_mul_f32 v{vC0+k}, s{sNL2E}, v{vC0+k}")
    a(f"v_cvt_pk_bf16_f32 v6, v{vC0}, v{vC0+1}")
    a(f"v_cvt_pk_bf16_f32 v7, v{vC0+2}, v{vC0+3}")
    a(f"s_nop 3")
    for k in range(14):
        a(f"v_mul_f32 v{G2+k}, s{sNL2E}, v{G2+k}")
    for k in range(7):
        a(f"v_cvt_pk_bf16_f32 v{POP+k}, v{G2+2*k}, v{G2+2*k+1}")
    a(f"s_cmp_eq_u32 s{sNN}, 25")
    a(f"s_cselect_b32 s{sT0}, 0xffff, 0")
    a(f"v_and_b32 v{POP+6}, s{sT0}, v{POP+6}")
    a(f"v_cndmask_b32 v{POP+6}, v{POP+6}, v6, {sr(sHM,2)}")
    a(f"v_cndmask_b32 v{POP+7}, 0, v7, {sr(sHM,2)}")


vHS, vHL = 12, 13
def hdr_load(a, fused, addr=7):
    a(f"buffer_load_dwordx2 v[14:15], v{addr}, {sr(SRD_HDR,4)}, 0 offen{' sc1' if fused else ''}")

def hdr_addr(a, addr=7):
    a(f"v_lshrrev_b32 v{addr}, 2, v0")
    a(f"s_lshl_b32 s{sT0}, s{sBIN}, 4")
    a(f"v_lshl_add_u32 v{addr}, v{addr}, 10, s{sT0}")


def hdr_decode(a):
    a(f"v_and_b32 v6, 3, v0")
    a(f"v_and_b32 v7, 0x7ff, v14")
    a(f"v_add_u32 v7, v7, v6")
    a(f"v_mul_u32_u24 v7, 12, v7")
    a(f"v_lshrrev_b32 v{vHS}, 2, v0")
    a(f"v_mul_u32_u24 v{vHS}, 19200, v{vHS}")
    a(f"v_add_u32 v{vHS}, v{vHS}, v7")
    a(f"v_bfe_u32 v{vHL}, v14, 16, 11")
    a(f"v_sub_u32 v{vHL}, v{vHL}, v6")
    a(f"s_mov_b32 s{sRB}, 0")
    a(f"s_mov_b32 s{sC}, {CFAST}")


def rec_loads(a, p, tag, fused, fixed=False):
    sc = " sc1" if fused else ""
    a(f"v_subrev_u32 v7, s{sRB}, v{vHL}")
    a(f"v_and_b32 v6, 3, v0")
    a(f"v_sub_u32 v6, s{sC}, v6")
    a(f"v_min_i32 v7, v7, v6")
    a(f"s_mul_i32 s{sT0}, s{sRB}, 12")
    a(f"v_add_u32 v6, s{sT0}, v{vHS}")
    for i in range(NI):
        a(f"v_cmp_lt_i32 {sr(MASKS[i],2)}, {4*i}, v7")
    for i in range(NI):
        a(f"s_mov_b64 exec, {sr(MASKS[i],2)}")
        if not fixed: a(f"s_cbranch_execz {p}_rl_done{tag}")
        a(f"buffer_load_dwordx3 {vr(REC+4*i,3)}, v6, {sr(SRD_REC,4)}, 0 offen offset:{48*i}{sc}")
    a.lab(f"{p}_rl_done{tag}")
    a(f"s_mov_b64 exec, -1")


def append1(a, p, tag):
    a.c("---------------- list slots for the records (16 sub-block lists)")
    a(f"s_add_u32 s{sT0}, s{sRB}, s{sC}")
    a(f"v_and_b32 v6, 3, v0")
    a(f"v_add_u32 v6, v6, v{vHL}")
    a(f"v_cmp_lt_i32 vcc, s{sT0}, v6")
    a(f"v_mov_b32 v6, 4")
    a(f"v_mov_b32 v7, 64")
    a(f"s_mov_b64 exec, vcc")
    a(f"ds_add_u32 v7, v6 offset:{LCNT}")
    a(f"s_mov_b64 exec, -1")
    a(f"v_mov_b32 v7, 0x3c")
    for i in range(NI):
        q = REC + 4 * i
        a(f"s_mov_b64 exec, {sr(MASKS[i],2)}")
        a(f"s_cbranch_execz {p}_ap1{tag}")
        a(f"v_and_b32_sdwa v{q+3}, v{q+2}, v7 dst_sel:DWORD dst_unused:UNUSED_PAD src0_sel:BYTE_3 src1_sel:DWORD")
        a(f"ds_add_rtn_u32 v{q+3}, v{q+3}, v6 offset:{LCNT}")
    a.lab(f"{p}_ap1{tag}")
    a(f"s_mov_b64 exec, -1")


def append2(a, p):
    for i in range(NI):
        q = REC + 4 * i
        a(f"s_mov_b64 exec, {sr(MASKS[i],2)}")
        a(f"s_cbranch_execz {p}_ap2")
        a(f"v_min_u32 v{q+3}, s{sKMAX}, v{q+3}")
        a(f"v_lshlrev_b32 v6, 1, v{q+3}")
        a(f"ds_write_b32 v{q+3}, v{q+2}")
        a(f"ds_write_b64 v6, {vr(q,2)} offset:{EOFF}")
    a.lab(f"{p}_ap2")
    a(f"s_mov_b64 exec, -1")


vKR, vER, vIW, vIE, vIA0, vIA1, vIT0, vIT1, vOLD, vKEY = 4, 5, 120, 121, 122, 123, 124, 125, 126, 127
vEE, vB16, vZERO = 8, 10, 11
AD, BD = 2, 14


def image_setup(a):
    a.c("---------------- selection image addresses; zero the image")
    a(f"s_lshl_b32 s{sT0}, s{sWV}, 11")
    a(f"s_add_u32 s{sT0}, s{sT0}, {IMG}")
    a(f"v_lshl_add_u32 v{vER}, v{vLANE}, 4, s{sT0}")
    for k in range(4):
        a(f"v_mov_b32 v{Z+k}, 0")
    a(f"v_mov_b32 v{vB16}, 0x3f80")
    a(f"v_mov_b32 v{vZERO}, 0")
    a(f"v_and_b32 v6, 31, v{vLANE}")
    a(f"v_mov_b32 v{AD+1}, 0x3f803f80")
    a(f"v_lshlrev_b32 v7, 2, v6")
    a(f"v_cvt_f32_u32 v7, v7")
    a(f"v_lshrrev_b32 v7, 16, v7")
    a(f"v_or_b32 v7, 0x4b000000, v7")
    a(f"v_mov_b32 v{BD}, 0x47004300")
    a(f"v_cndmask_b32 v{BD}, v{BD}, v{vZERO}, {sr(sHM,2)}")
    a(f"v_cndmask_b32 v{BD+1}, v7, v{vZERO}, {sr(sHM,2)}")
    a(f"v_lshl_add_u32 v6, v6, 6, s{sT0}")
    a(f"v_bfe_u32 v7, v{vLANE}, 2, 2")
    a(f"v_lshl_add_u32 v{vIW}, v7, 4, v6")
    a(f"v_xor_b32 v{vIE}, 56, v{vIW}")
    a(f"v_lshrrev_b32 v6, 5, v{vLANE}")
    a(f"v_lshlrev_b32 v{vIA0}, 4, v6")
    a(f"v_xor_b32 v{vIA0}, v{vIA0}, v{vIW}")
    a(f"v_xor_b32 v{vIA1}, 32, v{vIA0}")
    a(f"v_mov_b32 v{vOLD}, v{vIW}")
    a(f"v_lshl_add_u32 v7, v6, 2, v7")
    a(f"v_lshl_add_u32 v{vIT0}, v7, 6, s{sT0}")
    a(f"v_bfe_u32 v7, v{vLANE}, 4, 1")
    a(f"v_lshlrev_b32 v7, 1, v7")
    a(f"v_and_b32 v{vIT1}, 1, v{vLANE}")
    a(f"v_or_b32 v7, v7, v{vIT1}")
    a(f"v_xor_b32 v7, v7, v6")
    a(f"v_lshl_add_u32 v{vIT0}, v7, 4, v{vIT0}")
    a(f"v_and_b32 v7, 2, v{vLANE}")
    a(f"v_lshl_add_u32 v{vIT0}, v7, 2, v{vIT0}")
    a(f"v_xor_b32 v{vIT1}, 32, v{vIT0}")
    a(f"v_add_u32 v{vIT1}, 512, v{vIT1}")


def gathers(a, R, fused):
    sc = " sc1" if fused and "sc1g" in DIAG else ""
    if "nogather" in DIAG: return
    for k in range(16):
        a(f"buffer_load_dword v{R+k}, v{OFF+k}, {sr(SRD_TG,4)}, 0 offen{sc}")

sN0, sJMP = sM2, sM3
def rec_reads(a):
    a(f"ds_read_b32 v{vKEY}, v{vKR}")
    a(f"ds_read_b64 {vr(vEE,2)}, v{vER} offset:{EOFF}")

def step_calc(a, cur):
    a(f"s_cmp_eq_u32 s{sN0}, {cur}")
    a(f"s_cselect_b32 s{sT1}, s{sJMP}, 128")
    a(f"s_lshl_b32 s{sT2}, s{sT1}, 1")

def step(a):
    a(f"v_add_u32 v{vKR}, s{sT1}, v{vKR}")
    a(f"v_add_u32 v{vER}, s{sT2}, v{vER}")

def image_build(a):
    a(f"ds_write_b16 v{vOLD}, v{vZERO}")
    a(f"v_xor_b32_sdwa v{vOLD}, v{vKEY}, v{vIW} dst_sel:DWORD dst_unused:UNUSED_PAD src0_sel:BYTE_2 src1_sel:DWORD")
    a(f"ds_write_b64 v{vIE}, {vr(vEE,2)}")
    a(f"ds_write_b16 v{vOLD}, v{vB16}")

def aex_reads(a):
    a(f"ds_read_b128 {vr(AEX,4)}, v{vIA0}")
    a(f"ds_read_b128 {vr(AEX+4,4)}, v{vIA1}")

def sag_reads(a):
    for s in range(2):
        a(f"ds_read_b64_tr_b16 {vr(SAG+4*s,2)}, v{vIT0} offset:{1024*s}")
        a(f"ds_read_b64_tr_b16 {vr(SAG+4*s+2,2)}, v{vIT1} offset:{1024*s}")

def addr_cvt(a):
    a(f"v_cvt_f32_ubyte0 v6, v{vKEY}")
    a(f"v_cvt_f32_ubyte1 v7, v{vKEY}")
def addr_pack(a):
    a(f"v_perm_b32 v{AD}, v7, v6, s{sSELHI}")
def addr_mfma(a):
    a(f"v_mfma_f32_32x32x8_bf16 {vr(OFF,16)}, {vr(AD,2)}, {vr(BD,2)}, 0")


def tile_body(a, R, Rn, fused, lb):
    gathers(a, Rn, fused)
    step_calc(a, f"s{sIT}")
    if PRIO:
        a(f"s_sub_u32 s{sT0}, s{sNT}, s{sIT}")
        for lvl, r in enumerate((1, 3, 6)):
            a(f"s_cmp_lg_u32 s{sT0}, {r}")
            a(f"s_cbranch_scc1 {lb}_p{lvl}")
            a(f"s_setprio {lvl}")
            a.lab(f"{lb}_p{lvl}")
    a(f"s_waitcnt vmcnt(16)")
    a(f"v_mfma_f32_32x32x16_bf16 {vr(Z,16)}, {vr(AEX,4)}, {vr(POP,4)}, {vr(R,16)}")
    a(f"v_mfma_f32_32x32x16_bf16 {vr(Z,16)}, {vr(AEX+4,4)}, {vr(POP+4,4)}, {vr(Z,16)}")
    if "nolds" not in DIAG:
        sag_reads(a)
        image_build(a)
        aex_reads(a)
    else:
        a("s_nop 9")
    rec_reads(a)
    step(a)
    if PPB is not None:
        a(f"s_cmp_lg_u32 s{sIT}, {PPB}")
        a(f"s_cbranch_scc1 {lb}_nopp")
        phase_prefetch(a, 1)
        a.lab(f"{lb}_nopp")
    for j in range(16):
        if "notrans" not in DIAG: a(f"v_exp_f32 v{Z+j}, v{Z+j}")
        if "b64" in DIAG:
            if j % 2: a(f"v_lshlrev_b64 {vr(R+j-1,2)}, 16, {vr(R+j-1,2)}")
        else:
            a(f"v_lshlrev_b32 v{R+j}, 16, v{R+j}")
    a(f"s_waitcnt lgkmcnt(0)")
    addr_cvt(a)
    for j in range(0, 16, 2):
        if "nopk" in DIAG:
            a(f"v_fma_f32 v{Z+j}, v{Z+j}, v{R+j}, v{R+j}")
            a(f"v_fma_f32 v{Z+j+1}, v{Z+j+1}, v{R+j+1}, v{R+j+1}")
        else:
            a(f"v_pk_fma_f32 {vr(Z+j,2)}, {vr(Z+j,2)}, {vr(R+j,2)}, {vr(R+j,2)}")
        if j == 0:
            addr_pack(a)
    addr_mfma(a)
    for j in range(16):
        if "notrans" not in DIAG: a(f"v_rcp_f32 v{Z+j}, v{Z+j}")
        if j >= 3 and j % 2 == 1:
            k = (j - 3) // 2
            a(f"v_cvt_pk_bf16_f32 v{R+k}, v{Z+2*k}, v{Z+2*k+1}")
    a(f"s_add_u32 s{sIT}, s{sIT}, 1")
    a(f"v_cvt_pk_bf16_f32 v{R+7}, v{Z+14}, v{Z+15}")
    a(f"s_cmp_lt_u32 s{sIT}, s{sNT}")
    a(f"v_mfma_f32_32x32x16_bf16 {vr(ACC,16)}, {vr(R,4)}, {vr(SAG,4)}, {vr(ACC,16)}")
    a(f"v_mfma_f32_32x32x16_bf16 {vr(ACC,16)}, {vr(R+4,4)}, {vr(SAG+4,4)}, {vr(ACC,16)}")


sHALF = sM4
def half_body(a, R):
    a(f"s_waitcnt vmcnt(0)")
    a(f"v_mfma_f32_32x32x16_bf16 {vr(Z,16)}, {vr(AEX,4)}, {vr(POP,4)}, {vr(R,16)}")
    a(f"v_mfma_f32_32x32x16_bf16 {vr(Z,16)}, {vr(AEX+4,4)}, {vr(POP+4,4)}, {vr(Z,16)}")
    a(f"ds_read_b64_tr_b16 {vr(SAG,2)}, v{vIT0}")
    a(f"ds_read_b64_tr_b16 {vr(SAG+2,2)}, v{vIT1}")
    a(f"s_nop 9")
    for j in range(8):
        a(f"v_exp_f32 v{Z+j}, v{Z+j}")
        a(f"v_lshlrev_b32 v{R+j}, 16, v{R+j}")
    for j in range(0, 8, 2):
        a(f"v_pk_fma_f32 {vr(Z+j,2)}, {vr(Z+j,2)}, {vr(R+j,2)}, {vr(R+j,2)}")
    for j in range(8):
        a(f"v_rcp_f32 v{Z+j}, v{Z+j}")
    for k in range(4):
        a(f"v_cvt_pk_bf16_f32 v{R+k}, v{Z+2*k}, v{Z+2*k+1}")
    a(f"s_waitcnt lgkmcnt(0)")
    a(f"s_nop 0")
    a(f"v_mfma_f32_32x32x16_bf16 {vr(ACC,16)}, {vr(R,4)}, {vr(SAG,4)}, {vr(ACC,16)}")


def t_prefetch(a):
    a.c("read this wave's own table rows back once (streams them into the outer caches ahead of the random reads)")
    a(f"s_lshl_b32 s{sT0}, s{sNODE0}, 7")
    a(f"v_lshl_add_u32 v6, v{vLANE}, 4, s{sT0}")
    for kk in range(3):
        a(f"s_mov_b32 m0, {PFS - 1024*kk}")
        a(f"s_nop 0")
        a(f"buffer_load_dwordx4 v6, {sr(SRD_TS,4)}, 0 offen offset:{1024*kk}{' sc1' if 'pfsc1' in DIAG else ''} lds")


def phase_prefetch(a, phase):
    a(f"s_lshr_b32 s{sT0}, s2, 3")
    a(f"s_lshl_b32 s{sT0}, s{sT0}, 3")
    a(f"s_add_u32 s{sT0}, s{sT0}, s{sLJ}")
    a(f"s_mul_i32 s{sT0}, s{sT0}, 12500")
    a(f"s_lshr_b32 s{sT0}, s{sT0}, 8")
    a(f"s_lshl_b32 s{sT0}, s{sT0}, 7")
    if phase:
        a(f"s_add_u32 s{sT0}, s{sT0}, {12500*128}")
    a(f"v_lshl_add_u32 v6, v{vLANE}, 4, s{sT0}")
    a(f"v_add_u32 v7, 3072, v6")
    for kk in range(6):
        a(f"s_mov_b32 m0, {PFS - 1024*(kk%3)}")
        a(f"s_nop 0")
        a(f"buffer_load_dwordx4 v{6 + kk//3}, {sr(SRD_TS,4)}, 0 offen offset:{1024*(kk%3)} lds")


def tflag_addr(a, v):
    a(f"s_lshr_b32 s{sT0}, s{sSL}, 1")
    a(f"s_lshl_b32 s{sT0}, s{sT0}, 14")
    a(f"s_add_u32 s{sT0}, s{sT0}, {TFL_OFF}")
    a(f"v_lshl_add_u32 v{v}, v{vLANE}, 8, s{sT0}")


def tflag_loads(a, v):
    a(f"buffer_load_dwordx2 v[16:17], v{v}, {sr(SRD_HDR,4)}, 0 offen sc1")
    a(f"buffer_load_dwordx2 v[18:19], v{v}, {sr(SRD_HDR,4)}, 0 offen offset:128 sc1")


def tflag_issue(a, p):
    a(f"s_cmp_lg_u32 s{sWV}, {TFW}")
    a(f"s_cbranch_scc1 {p}_tf_noissue")
    tflag_addr(a, 3)
    tflag_loads(a, 3)
    a.lab(f"{p}_tf_noissue")


def tflag_wait(a, p):
    a.c("one wave waits until all 128 workgroups of this feature half have published their table rows")
    a(f"s_cmp_lg_u32 s{sWV}, {TFW}")
    a(f"s_cbranch_scc1 {p}_tf_done")
    a(f"s_cmp_lg_u32 s{sNOH}, 0")
    a(f"s_cbranch_scc1 {p}_tf_done")
    tflag_addr(a, 6)
    a(f"s_not_b32 s{sT1}, s{sNON}")
    a(f"s_mov_b32 s{sSPIN}, {SPIN_MAX}")
    a(f"s_branch {p}_tf_first")
    a.lab(f"{p}_tf_loop")
    tflag_loads(a, 6)
    a.lab(f"{p}_tf_first")
    a(f"s_waitcnt vmcnt(0)")
    a(f"v_xor_b32 v20, s{sNON}, v16")
    a(f"v_xor_b32 v21, s{sT1}, v17")
    a(f"v_xor_b32 v22, s{sNON}, v18")
    a(f"v_xor_b32 v23, s{sT1}, v19")
    a(f"v_or3_b32 v20, v20, v21, v22")
    a(f"v_or_b32 v20, v20, v23")
    a(f"v_cmp_ne_u32 vcc, 0, v20")
    a(f"s_and_b64 exec, exec, vcc")
    a(f"s_cbranch_scc0 {p}_tf_end")
    a(f"s_sleep 2")
    a(f"s_sub_u32 s{sSPIN}, s{sSPIN}, 1")
    a(f"s_cbranch_scc0 {p}_tf_loop")
    a.lab(f"{p}_tf_end")
    a(f"s_mov_b64 exec, -1")
    a(f"s_mov_b32 s{sNOH}, 1")
    a.lab(f"{p}_tf_done")


def main_phase(a, p, fused):
    a.lab(f"{p}_round")
    append1(a, p, "a")
    a(f"s_waitcnt lgkmcnt(0)")
    append2(a, p)
    stamp(a, 5)
    image_setup(a)
    tflag_wait(a, p)
    if "nopf" not in DIAG and "pfearly" not in DIAG and "pflate" not in DIAG: t_prefetch(a)
    a(f"s_waitcnt lgkmcnt(0)")
    a(f"s_barrier")
    stamp(a, 6)
    if STAMPS:
        a("s_memtime s[100:101]")
        a("s_waitcnt lgkmcnt(0)")
        a(f"s_mov_b32 s{sM1}, s100")
    a(f"ds_write_b128 v{vER}, {vr(Z,4)}")
    a(f"ds_write_b128 v{vER}, {vr(Z,4)} offset:1024")
    if "pflate" in DIAG or "pf2x" in DIAG: t_prefetch(a)
    a(f"v_and_b32 v6, 31, v{vLANE}")
    a(f"v_lshlrev_b32 v{vKR}, 2, v6")
    a(f"ds_read_b32 v7, v{vKR} offset:{LCNT}")
    cursor_starts(a, 6, 8)
    a(f"v_add_u32 v6, {4*CAP}, v6")
    a(f"s_mul_i32 s{sT0}, s{sLJ}, {LS*4}")
    a(f"s_add_u32 s{sT0}, s{sT0}, {KEYB}")
    a(f"s_and_b32 s{sNT}, s{sWV}, 14")
    a(f"s_or_b32 s{sIT}, s{sWV}, 1")
    a(f"s_waitcnt lgkmcnt(0)")
    a(f"v_readlane_b32 s{sT1}, v7, s{sNT}")
    a(f"v_readlane_b32 s{sT2}, v7, s{sIT}")
    a(f"v_readlane_b32 s{sT3}, v7, 16")
    a(f"v_cmp_lt_u32 vcc, v6, v7")
    a(f"s_and_b32 s{sNT}, vcc_lo, 0xffff")
    a(f"s_cbranch_scc1 {p}_overflow")
    a.c("the last partial tile of the first half moves behind the second half; 64 dummy edges behind that")
    a(f"s_sub_u32 s{sN0}, s{sT1}, s{sT0}")
    a(f"s_and_b32 s{sIT}, s{sN0}, 127")
    a(f"s_sub_u32 s{sT1}, s{sT1}, s{sIT}")
    a(f"v_lshl_add_u32 v6, v{vLANE}, 2, s{sT1}")
    a(f"v_lshlrev_b32 v7, 1, v6")
    a(f"ds_read_b32 v{vKEY}, v6")
    a(f"ds_read_b64 v[8:9], v7 offset:{EOFF}")
    a(f"s_lshr_b32 s{sN0}, s{sN0}, 7")
    a(f"v_lshlrev_b32 v6, 2, v{vLANE}")
    a(f"v_cmp_gt_u32 vcc, s{sIT}, v6")
    a(f"v_add_u32 v6, s{sT2}, v6")
    a(f"v_lshlrev_b32 v7, 1, v6")
    a(f"v_mov_b32 v{AEX}, 0x{N | (46 << 16):x}")
    a(f"s_add_u32 s{sJMP}, s{sT0}, {4*CAP}")
    a(f"s_sub_u32 s{sNT}, s{sT2}, s{sJMP}")
    a(f"s_add_u32 s{sNT}, s{sNT}, s{sIT}")
    a(f"s_add_u32 s{sNT}, s{sNT}, 63")
    a(f"s_lshr_b32 s{sNT}, s{sNT}, 6")
    a(f"s_and_b32 s{sHALF}, s{sNT}, 1")
    a(f"s_lshr_b32 s{sNT}, s{sNT}, 1")
    a(f"s_cmp_eq_u32 s{sN0}, 0")
    a(f"s_cselect_b32 s{sT0}, s{sJMP}, s{sT0}")
    a(f"v_add_u32 v{vKR}, s{sT0}, v{vKR}")
    a(f"v_lshlrev_b32 v{vER}, 1, v{vKR}")
    a(f"s_sub_u32 s{sJMP}, s{sJMP}, s{sT1}")
    a(f"s_add_u32 s{sJMP}, s{sJMP}, 128")
    a(f"s_waitcnt lgkmcnt(0)")
    a(f"v_cndmask_b32 v{vKEY}, v{AEX}, v{vKEY}, vcc")
    a(f"v_cndmask_b32 v8, 0, v8, vcc")
    a(f"v_cndmask_b32 v9, 0, v9, vcc")
    a(f"ds_write_b32 v6, v{vKEY}")
    a(f"ds_write_b64 v7, v[8:9] offset:{EOFF}")
    a(f"s_not_b64 exec, {sr(sHM,2)}")
    a(f"ds_write_b32 v6, v{AEX} offset:256")
    a(f"ds_write_b64 v7, {vr(Z,2)} offset:{EOFF + 512}")
    a(f"s_mov_b64 exec, -1")
    a(f"s_add_u32 s{sNT}, s{sNT}, s{sN0}")
    a(f"s_or_b32 s{sT0}, s{sNT}, s{sHALF}")
    a(f"s_cbranch_scc0 {p}_tiles_done")
    a(f"s_mov_b32 s{sIT}, 0")
    if "ppa" in DIAG: phase_prefetch(a, 0)
    rec_reads(a)
    step_calc(a, 1)
    step(a)
    a(f"s_waitcnt lgkmcnt(0)")
    addr_cvt(a)
    addr_pack(a)
    image_build(a)
    addr_mfma(a)
    aex_reads(a)
    rec_reads(a)
    step_calc(a, 2)
    step(a)
    a(f"s_sub_u32 s{sN0}, s{sN0}, 3")
    a(f"s_nop 15")
    a(f"s_waitcnt lgkmcnt(0)")
    addr_cvt(a)
    addr_pack(a)
    gathers(a, RA, fused)
    addr_mfma(a)
    a(f"s_nop 15")
    a(f"s_nop 3")
    if PRIO: a(f"s_setprio 3")
    a(f"s_cmp_eq_u32 s{sNT}, 0")
    a(f"s_cbranch_scc1 {p}_half0")
    a.lab(f"{p}_tile")
    tile_body(a, RA, RBUF, fused, f"{p}_b0")
    a(f"s_cbranch_scc0 {p}_exit1")
    tile_body(a, RBUF, RA, fused, f"{p}_b1")
    a(f"s_cbranch_scc1 {p}_tile")
    a(f"s_cmp_eq_u32 s{sHALF}, 0")
    a(f"s_cbranch_scc1 {p}_tiles_done")
    a.lab(f"{p}_half0")
    half_body(a, RA)
    a(f"s_branch {p}_tiles_done")
    a.lab(f"{p}_exit1")
    a(f"s_cmp_eq_u32 s{sHALF}, 0")
    a(f"s_cbranch_scc1 {p}_tiles_done")
    half_body(a, RBUF)
    a.lab(f"{p}_tiles_done")
    a(f"s_cmp_eq_u32 s{sT3}, 0")
    a(f"s_cbranch_scc1 {p}_epi")
    a(f"s_add_u32 s{sRB}, s{sRB}, s{sC}")
    a(f"s_branch {p}_next")
    a.lab(f"{p}_overflow")
    a(f"s_mov_b32 s{sC}, 1")
    a.lab(f"{p}_next")
    a.c("rare path: another round over the runs")
    a(f"s_waitcnt vmcnt(0) lgkmcnt(0)")
    a(f"s_barrier")
    init_counters(a, p, "r")
    rec_loads(a, p, "r", fused)
    a(f"s_waitcnt vmcnt(0) lgkmcnt(0)")
    a(f"s_barrier")
    a(f"s_branch {p}_round")
    a.lab(f"{p}_epi")
    stamp(a, 7)
    if STAMPS:
        a("s_memtime s[100:101]")
        a("s_waitcnt lgkmcnt(0)")
        a(f"s_sub_u32 s{sreg(9)}, s100, s{sM1}")
    a.c("---------------- epilogue: silu, pack, store")
    a(f"v_and_b32 v6, 31, v{vLANE}")
    a(f"v_cmp_gt_u32 vcc, s{sNN}, v6")
    a(f"v_add_u32 v6, s{sNODE0}, v6")
    a(f"v_lshlrev_b32 v6, 8, v6")
    a(f"v_lshrrev_b32 v7, 5, v{vLANE}")
    a(f"v_lshl_add_u32 v6, v7, 5, v6")
    a(f"s_lshl_b32 s{sT0}, s{sSL}, 6")
    a(f"v_add_u32 v6, s{sT0}, v6")
    a(f"s_nop 7")
    for j in range(16):
        a(f"v_mul_f32 v{Z+j}, s{sNL2E}, v{ACC+j}")
    for j in range(16):
        a(f"v_exp_f32 v{Z+j}, v{Z+j}")
    for j in range(16):
        a(f"v_add_f32 v{Z+j}, 1.0, v{Z+j}")
    for j in range(16):
        a(f"v_rcp_f32 v{Z+j}, v{Z+j}")
    for j in range(16):
        a(f"v_mul_f32 v{Z+j}, v{Z+j}, v{ACC+j}")
    for k in range(8):
        a(f"v_cvt_pk_bf16_f32 v{AEX+k}, v{Z+2*k}, v{Z+2*k+1}")
    a(f"s_mov_b64 exec, vcc")
    osc = " sc1" if "osc1" in DIAG else "" if "oplain" in DIAG else " nt"
    a(f"buffer_store_dwordx4 {vr(AEX,4)}, v6, {sr(SRD_OUT,4)}, 0 offen{osc}")
    a(f"buffer_store_dwordx4 {vr(AEX+4,4)}, v6, {sr(SRD_OUT,4)}, 0 offen offset:16{osc}")


def kernel_header(name):
    return f""".globl {name}
.p2align 8
.type {name},@function
{name}:
"""

def kernel_desc(name):
    return f""".amdhsa_kernel {name}
  .amdhsa_next_free_vgpr 128
  .amdhsa_next_free_sgpr 102
  .amdhsa_accum_offset 128
  .amdhsa_group_segment_fixed_size 0
  .amdhsa_kernarg_size 80
  .amdhsa_user_sgpr_count 2
  .amdhsa_user_sgpr_kernarg_segment_ptr 1
  .amdhsa_system_sgpr_workgroup_id_x 1
.end_amdhsa_kernel
"""

DOC = """;
;     wave 15 publishes per-bin headers {start, len, launch tag, checksum} and collects the 250 headers of its bin.
;  2. every wave computes, with MFMA, its rows of the table T[slice][node][32] = {bf16(-log2e * x B), bf16(1 / (x V))},
"""

def file_head():
    return open("cdna_kernels/" + NAME + ".s.ref").read().split("; Override launch geometry")[0]


def finish(a, kidx):
    stamp(a, 8)
    stamp_out(a, kidx, 12)


def hdr_peek(a):
    a(f"v_mov_b32 v7, 0")
    a(f"ds_read_b32 v13, v7 offset:{NONCE}")
    a(f"ds_read_b64 v[14:15], v{vHS}")


def csum_acc(a, p, tag):
    for i in range(NI):
        q = REC + 4 * i
        a(f"s_mov_b64 exec, {sr(MASKS[i],2)}")
        a(f"s_cbranch_execz {p}_cs{tag}")
        a(f"v_add3_u32 v2, v2, v{q}, v{q+1}")
        a(f"v_add_u32 v2, v2, v{q+2}")
    a.lab(f"{p}_cs{tag}")
    a(f"s_mov_b64 exec, -1")


def csum_check(a):
    a(f"s_nop 1")
    a(f"v_add_u32_dpp v2, v2, v2 quad_perm:[1,0,3,2] row_mask:0xf bank_mask:0xf")
    a(f"s_nop 1")
    a(f"v_add_u32_dpp v2, v2, v2 quad_perm:[2,3,0,1] row_mask:0xf bank_mask:0xf")
    a(f"v_cmp_ne_u32 vcc, v2, v15")
    a(f"s_cmp_lg_u64 vcc, 0")


def gen_1k():
    k = NAME + "_kernel"
    a = A(); p = "K"
    setup(a, p)
    stamp(a, 0)
    front(a, p)
    stamp(a, 2)
    if "frontonly" in DIAG:
        stamp_out(a, 0, 12)
        a("s_endpgm")
    w_addr(a)
    a.c("wait for the weights, the end of the record copy-out (staging area reused) and the x rows")
    a(f"s_lshl_b32 s{sT0}, s{sLJ}, 2")
    a(f"v_mov_b32 v12, s{sT0}")
    a.lab(f"{p}_xw")
    a(f"ds_read_b64 v[14:15], v10 offset:{S3}")
    a(f"ds_read_b32 v13, v12 offset:{XFL}")
    a(f"s_waitcnt lgkmcnt(0)")
    a(f"v_add3_u32 v7, v14, v15, v13")
    a(f"s_nop 0")
    a(f"v_readfirstlane_b32 s{sT0}, v7")
    a(f"s_cmp_eq_u32 s{sT0}, {14 + 1 + 4}")
    a(f"s_cbranch_scc1 {p}_xok")
    a(f"s_sleep {NAP2}")
    a(f"s_branch {p}_xw")
    a.lab(f"{p}_xok")
    a(f"s_setprio {XP[4]}")
    a(f"s_cmp_lg_u32 s{sWV}, 15")
    a(f"s_cbranch_scc1 {p}_xp")
    a(f"s_setprio 3")
    a.lab(f"{p}_xp")
    stamp(a, 3)
    poll(a, p, "a", first=True)
    x_reads(a)
    for st in range(4):
        w_reads(a, 1, 2, st)
    gemm_pass(a, 1, 2, False, True)
    poll(a, p, "b")
    if True:
        a(f"s_sub_u32 s{sT0}, s{sWV}, 11")
        a(f"s_cmp_ge_u32 s{sT0}, 4")
        a(f"s_cbranch_scc1 {p}_noau")
        a(f"s_waitcnt vmcnt(0)")
        signal(a, WF2)
        a.lab(f"{p}_noau")
    table_store(a, True)
    stamp(a, 4)
    a(f"s_setprio {XP[5]}")
    a(f"v_mov_b32 v{vZ0}, 0")
    a(f"s_mov_b32 s{sNT}, 0")
    poll(a, p, "c", last=True)
    a(f"s_cmp_lt_u32 s{sWV}, {PUBW}")
    a(f"s_cbranch_scc1 {p}_pass2")
    a(f"s_waitcnt vmcnt(0)")
    a(f"s_call_b64 {sr(sRET,2)}, {p}_sub_pub")
    a(f"s_mov_b32 s{sNT}, 1")
    a.lab(f"{p}_pass2")
    spin(a, f"{p}_wf2", WF2, 4, NAP)
    a(f"v_lshrrev_b32 v{vHS}, 2, v0")
    a(f"v_lshlrev_b32 v{vHS}, 3, v{vHS}")
    a(f"v_add_u32 v{vHS}, {STG}, v{vHS}")
    hdr_peek(a)
    a(f"s_waitcnt lgkmcnt(0)")
    a(f"v_readfirstlane_b32 s{sNON}, v13")
    a(f"s_cmp_eq_u32 s{sNON}, 0")
    a(f"s_cbranch_scc1 {p}_hlate")
    a(f"s_call_b64 {sr(sRET,2)}, {p}_sub_first")
    a.lab(f"{p}_hlate")
    pu_pass(a, p)
    load_C(a)
    pop_pack(a)
    spin(a, f"{p}_xr", XR, 16, NAP)
    a(f"s_cmp_lg_u32 s{sNON}, 0")
    a(f"s_cbranch_scc1 {p}_hgone")
    a.lab(f"{p}_hwait")
    hdr_peek(a)
    a(f"s_waitcnt lgkmcnt(0)")
    a(f"v_readfirstlane_b32 s{sNON}, v13")
    a(f"s_cmp_lg_u32 s{sNON}, 0")
    a(f"s_cbranch_scc1 {p}_hgo")
    a(f"s_cmp_lg_u32 s{sNT}, 0")
    a(f"s_cbranch_scc1 {p}_hsleep")
    a(f"s_waitcnt vmcnt(0)")
    a(f"s_call_b64 {sr(sRET,2)}, {p}_sub_pub")
    a(f"s_mov_b32 s{sNT}, 1")
    a.lab(f"{p}_hsleep")
    a(f"s_sleep 1")
    a(f"s_branch {p}_hwait")
    a.lab(f"{p}_hgo")
    a(f"s_call_b64 {sr(sRET,2)}, {p}_sub_first")
    a.lab(f"{p}_hgone")
    stamp(a, 1)
    a(f"s_cmp_lg_u32 s{sNT}, 0")
    a(f"s_cbranch_scc1 {p}_pubdone")
    a(f"s_waitcnt vmcnt(0)")
    a(f"s_call_b64 {sr(sRET,2)}, {p}_sub_pub")
    a.lab(f"{p}_pubdone")
    if "pfearly" in DIAG:
        t_prefetch(a)
        a("s_waitcnt vmcnt(3)")
    else:
        a("s_waitcnt vmcnt(0)")
    stamp(a, 11)
    a(f"s_mov_b32 s{sNOH}, 0")
    tflag_issue(a, p)
    a.c("the records must add up to the checksums published with the headers")
    csum_acc(a, p, "a")
    a(f"v_and_b32 v6, 3, v0")
    a(f"v_add_u32 v6, v6, v{vHL}")
    a(f"v_cmp_lt_i32 {sr(sEX,2)}, {CFAST}, v6")
    csum_check(a)
    a(f"s_cbranch_scc1 {p}_vslow")
    a(f"s_cmp_lg_u64 {sr(sEX,2)}, 0")
    a(f"s_cbranch_scc1 {p}_vslow")
    a.lab(f"{p}_valid")
    main_phase(a, p, True)
    finish(a, 0)
    a.lab(f"{p}_end")
    a("s_endpgm")
    a.c("---------------- subroutines / rare paths")
    a.lab(f"{p}_sub_pub")
    a.c("the last wave whose table rows are out publishes the workgroup's flag")
    a(f"v_mov_b32 v6, 1")
    a(f"s_mov_b64 exec, 1")
    a(f"ds_add_rtn_u32 v6, v{vZ0}, v6 offset:{DONE}")
    a(f"ds_read_b32 v7, v{vZ0} offset:{NON2}")
    a(f"s_waitcnt lgkmcnt(0)")
    a(f"v_readfirstlane_b32 s{sT0}, v6")
    a(f"v_readfirstlane_b32 s{sT2}, v7")
    a(f"s_cmp_lg_u32 s{sT0}, 15")
    a(f"s_cbranch_scc1 {p}_nopub")
    a(f"s_lshr_b32 s{sT0}, s{sSL}, 1")
    a(f"s_lshl_b32 s{sT0}, s{sT0}, 7")
    a(f"s_add_u32 s{sT0}, s{sT0}, s{sBIN}")
    a(f"s_lshl_b32 s{sT0}, s{sT0}, 7")
    a(f"s_add_u32 s{sT0}, s{sT0}, {TFL_OFF}")
    a(f"s_not_b32 s{sT1}, s{sT2}")
    a(f"v_mov_b32 v6, s{sT0}")
    a(f"v_mov_b32 v8, s{sT2}")
    a(f"v_mov_b32 v9, s{sT1}")
    a(f"buffer_store_dwordx2 v[8:9], v6, {sr(SRD_HDR,4)}, 0 offen sc1")
    a.lab(f"{p}_nopub")
    a(f"s_mov_b64 exec, -1")
    a(f"s_setpc_b64 {sr(sRET,2)}")
    a.lab(f"{p}_sub_first")
    hdr_decode(a)
    rec_loads(a, p, "f", False, True)
    a(f"s_setpc_b64 {sr(sRET,2)}")
    a.lab(f"{p}_sub_loads")
    rec_loads(a, p, "s", True)
    a(f"s_setpc_b64 {sr(sRET,2)}")
    a.lab(f"{p}_vslow")
    a.c("long runs, or records not yet visible: add up every run completely, again until it fits")
    a(f"s_mov_b32 s{sSPIN}, {SPIN_MAX}")
    a.lab(f"{p}_vs_retry")
    a(f"s_mov_b32 s{sRB}, 0")
    a(f"v_mov_b32 v2, 0")
    a.lab(f"{p}_vs_part")
    a(f"s_call_b64 {sr(sRET,2)}, {p}_sub_loads")
    a(f"s_waitcnt vmcnt(0)")
    csum_acc(a, p, "v")
    a(f"s_add_u32 s{sRB}, s{sRB}, {CFAST}")
    a(f"v_and_b32 v6, 3, v0")
    a(f"v_add_u32 v6, v6, v{vHL}")
    a(f"v_cmp_lt_i32 vcc, s{sRB}, v6")
    a(f"s_cmp_lg_u64 vcc, 0")
    a(f"s_cbranch_scc1 {p}_vs_part")
    csum_check(a)
    a(f"s_cbranch_scc0 {p}_vs_ok")
    a(f"s_sub_u32 s{sSPIN}, s{sSPIN}, 1")
    a(f"s_cbranch_scc0 {p}_vs_retry")
    a.lab(f"{p}_vs_ok")
    a(f"s_mov_b32 s{sRB}, 0")
    a(f"s_call_b64 {sr(sRET,2)}, {p}_sub_loads")
    a(f"s_waitcnt vmcnt(0)")
    a(f"s_branch {p}_valid")
    a.lab(f"{p}_code_end")
    s = file_head()
    s += f"; @launch grid=(256,1,1) block=(1024,1,1) lds={LDS_BYTES}\n"
    s += DOC
    s += '.amdgcn_target "amdgcn-amd-amdhsa--gfx950"\n.text\n'
    s += kernel_header(k) + a.text()
    s += '.section .rodata,"a"\n.p2align 6\n' + kernel_desc(k)
    return s


if __name__ == "__main__":
    if "-stamps" in sys.argv:
        STAMPS = True; sys.argv.remove("-stamps")
    if "-noprio" in sys.argv:
        PRIO = False; sys.argv.remove("-noprio")
    for x in list(sys.argv):
        if x.startswith("-TF"):
            TFW = int(x[3:]); sys.argv.remove(x)
        if x.startswith("-PR"):
            PREW = int(x[3:]); sys.argv.remove(x)
        if x.startswith("-MP"):
            MIDPUB = int(x[3:]); sys.argv.remove(x)
        if x.startswith("-WB"):
            WS_BASE = int(x[3:]) << 20; sys.argv.remove(x)
        if x.startswith("-PB"):
            PPB = int(x[3:]); sys.argv.remove(x)
        if x.startswith("-NP"):
            NAP, NAP2 = map(int, x[3:].split(",")); sys.argv.remove(x)
        if x.startswith("-PW"):
            PUBW = int(x[3:]); sys.argv.remove(x)
        if x.startswith("-XP"):
            XP = [int(c) for c in x[3:]]; sys.argv.remove(x)
        if x.startswith("-XE"):
            XEARLY = int(x[3:]); sys.argv.remove(x)
        if x.startswith("-PS"):
            PS1, PS2 = map(int, x[3:].split(",")); sys.argv.remove(x)
        if x.startswith("-D"):
            DIAG.add(x[2:]); sys.argv.remove(x)
    mode = gen_1k
    if "-1k" in sys.argv:
        mode = gen_1k; sys.argv.remove("-1k")
    out = sys.argv[1] if len(sys.argv) > 1 else "cdna_kernels/" + NAME + ".s"
    open(out, "w").write(mode())
    print("wrote", out, "LDS", LDS_BYTES)
```

```python
import sys

N = 25000
E = 400000
NAME = "gather_scatter__edge_featured_mpnn_egc__graph"

TS = 25024 * 128
REC_OFF = 0x1000000
REC_BYTES = 250 * 19200
HDR_OFF = 0x1800000
HDR_BYTES = 128 * 256 * 16
TFL_OFF = HDR_BYTES
HDR_SRD_BYTES = HDR_BYTES + 256 * 128
MAGIC_OFF = 0x4B000000

CNT = 0
CSUM = 512
OFFS = 1024
LCNT = 1536
NONCE, DONE, NON2, S2, S3, WF, WF2, XR = [LCNT + 128 + 4 * i for i in range(8)]
XFL = LCNT + 192
assert S3 % 8 == 0
CAP = 270
LS = 2 * CAP + 96
KEYB = 1792
EB = KEYB + 8 * LS * 4
EOFF = EB - 2 * KEYB
IMG = EB + 8 * LS * 8
XB = KEYB
XT = 26 * 256
assert XB % 256 == 0 and XB + 8 * XT + 6 * 256 <= IMG + 2048
STG = IMG
WB = IMG + 32768
PFS = WB + 65536
CB = PFS + 1024
LDS_BYTES = CB + 512
NI = 8
CFAST = 4 * NI

SRD_X, SRD_E, SRD_SRC, SRD_DST, SRD_W, SRD_OUT, SRD_TS, SRD_TG, SRD_REC, SRD_HDR, SRD_G = [4 + 4 * i for i in range(11)]
SRD_DBG = SRD_E
KP = 48
sLJ = 3
sNR = 71
sWV, sBIN, sSL, sNODE0, sNN = 68, 69, 70, 72, 73
sSPIN = 95
sNL2E, sMAXF, sSELLO, sSELHI, sMAGIC, s127, sM1, sM2, sM3, sM4, sSTG, sKMAX = range(74, 86)
sHM = 86
sT0, sT1, sT2, sT3 = 88, 89, 90, 91
sRB, sC, sNT, sIT = 92, 93, 94, 95
sEX = 96
sNON, sNOH = 98, 99
sRET = 64
MASKS = [4 + 2 * i for i in range(8)]
SPIN_MAX = 1000000

vLANE = 1
ACC = 32; REC = 96
POP, AEX, SAG = 48, 56, 64
OFF = 16
RA, RBUF, Z = 72, 88, 104


class A:
    def __init__(self):
        self.l = []
    def __call__(self, s):
        for x in s.strip("\n").split("\n"):
            self.l.append("    " + x.strip())
    def lab(self, s):
        self.l.append(s + ":")
    def c(self, s):
        self.l.append("    ; " + s)
    def text(self):
        return "\n".join(self.l) + "\n"


def vr(a, n):
    return f"v[{a}:{a+n-1}]"
def sr(a, n):
    return f"s[{a}:{a+n-1}]"


STAMPS = False
PRIO = True
PS1, PS2 = 8, 8
XEARLY = 4
XP = [0, 0, 0, 0, 2, 1]
PUBW = 4
NS_SL = 3
PREW = 0
MIDPUB = -1
WS_BASE = 0
PPB = None
XORD = (1, 0)
NAP, NAP2 = 3, 1
PRL = (1, 3, 6)
TFW = 14
DIAG = set()
STAMP_OFF = 0x2000000
def sreg(i):
    return KP + i if i < 8 else KP + 4 + i
def stamp(a, i):
    if not STAMPS: return
    a(f"s_memrealtime s[100:101]")
    a(f"s_waitcnt lgkmcnt(0)")
    a(f"s_mov_b32 s{sreg(i)}, s100")

def stamp_out(a, kidx, n):
    if not STAMPS: return
    a(f"s_mov_b64 exec, -1")
    if "dbgmax" in DIAG:
        a(f"s_load_dwordx2 {sr(sT2,2)}, s[0:1], 64")
        a(f"s_waitcnt lgkmcnt(0)")
        srd(a, SRD_W, sT2, sT3, 256)
        a(f"v_mov_b32 v6, 0")
        a(f"ds_read_b32 v8, v6 offset:{NON2}")
        a(f"s_waitcnt lgkmcnt(0)")
        a(f"s_mov_b64 exec, 1")
        for i in (0, 2, 3, 4, 11, 5, 6, 7, 8):
            a(f"v_sub_u32 v7, s{sreg(i)}, v8")
            a(f"v_max_i32 v7, 0, v7")
            a(f"buffer_atomic_umax v7, v6, {sr(SRD_W,4)}, 0 offen offset:{4*(i+1)}")
        return
    a(f"s_add_u32 s{sT2}, s{KP+18}, 0x{STAMP_OFF + kidx * 0x100000:x}")
    a(f"s_addc_u32 s{sT3}, s{KP+19}, 0")
    srd(a, SRD_W, sT2, sT3, 0x100000)
    a(f"s_lshl_b32 s{sT0}, s2, 4")
    a(f"s_add_u32 s{sT0}, s{sT0}, s{sWV}")
    a(f"s_lshl_b32 s{sT0}, s{sT0}, 6")
    a(f"v_mov_b32 v6, s{sT0}")
    for i in range(n):
        a(f"v_mov_b32 v7, s{sreg(i)}")
        a(f"buffer_store_dword v7, v6, {sr(SRD_W,4)}, 0 offen offset:{4*i}")


def srd(a, d, lo, hi, nbytes):
    a(f"s_mov_b32 s{d}, s{lo}")
    a(f"s_mov_b32 s{d+1}, s{hi}")
    a(f"s_mov_b32 s{d+2}, {nbytes}")
    a(f"s_mov_b32 s{d+3}, 0x00020000")


def setup(a, p):
    a.c("---------------- setup")
    a(f"s_cmp_ge_u32 s2, 256")
    a(f"s_cbranch_scc1 {p}_end")
    a(f"s_load_dwordx16 {sr(KP,16)}, s[0:1], 0")
    a(f"s_load_dwordx4 {sr(KP+16,4)}, s[0:1], 64")
    a(f"s_memrealtime s[100:101]")
    a(f"v_lshrrev_b32 v2, 6, v0")
    a(f"v_and_b32 v{vLANE}, 63, v0")
    a(f"v_readfirstlane_b32 s{sWV}, v2")
    a(f"s_lshr_b32 s{sBIN}, s2, 3")
    a(f"s_and_b32 s{sT0}, s2, 3")
    a(f"s_lshl_b32 s{sT0}, s{sT0}, 5")
    a(f"s_or_b32 s{sBIN}, s{sBIN}, s{sT0}")
    a(f"s_lshr_b32 s{sSL}, s2, 1")
    a(f"s_and_b32 s{sSL}, s{sSL}, 2")
    a(f"s_and_b32 s{sT0}, s{sWV}, 1")
    a(f"s_or_b32 s{sSL}, s{sSL}, s{sT0}")
    a(f"s_lshr_b32 s{sLJ}, s{sWV}, 1")
    a(f"s_mul_i32 s{sT0}, s2, 6400")
    a(f"v_lshl_add_u32 v3, v0, 4, s{sT0}")
    a(f"v_lshlrev_b32 v4, 1, v3")
    a(f"s_mul_i32 s{sT1}, s{sSL}, {TS}")
    a(f"s_waitcnt lgkmcnt(0)")
    x, e, src, dst, u, v, g, out, dbg, ws = [KP + 2 * i for i in range(10)]
    if WS_BASE:
        a(f"s_add_u32 s{ws}, s{ws}, 0x{WS_BASE:x}")
        a(f"s_addc_u32 s{ws+1}, s{ws+1}, 0")
    a(f"s_or_b32 s{sT0}, s2, s{sWV}")
    a(f"s_cbranch_scc1 {p}_notag")
    a.c("launch tag: the first wave of workgroup 0 publishes a clock value in d_debug, everyone picks it up")
    srd(a, SRD_DBG, dbg, dbg + 1, 256)
    a(f"s_or_b32 s{sT0}, s100, 1")
    a(f"v_mov_b32 v13, s{sT0}")
    a(f"v_mov_b32 v10, 0")
    a(f"s_mov_b64 exec, 1")
    a(f"buffer_store_dword v13, v10, {sr(SRD_DBG,4)}, 0 offen sc1")
    if "xcc" in DIAG:
        a(f"s_getreg_b32 s{sT0}, hwreg(HW_REG_XCC_ID)")
        a(f"v_mov_b32 v12, s{sT0}")
        a(f"buffer_store_dword v12, v10, {sr(SRD_DBG,4)}, 0 offen offset:128")
    a(f"s_mov_b64 exec, -1")
    a.lab(f"{p}_notag")
    srd(a, SRD_DST, dst, dst + 1, E * 4)
    srd(a, SRD_SRC, src, src + 1, E * 4)
    srd(a, SRD_E, e, e + 1, E * 8)
    a(f"s_cmp_ge_u32 s{sWV}, 7")
    a(f"s_cbranch_scc1 {p}_noedge")
    a(f"buffer_load_dwordx4 {vr(vD,4)}, v3, {sr(SRD_DST,4)}, 0 offen")
    a(f"buffer_load_dwordx4 {vr(vS,4)}, v3, {sr(SRD_SRC,4)}, 0 offen")
    if "elate" not in DIAG:
        a(f"buffer_load_dwordx4 {vr(vE,4)}, v4, {sr(SRD_E,4)}, 0 offen")
        a(f"buffer_load_dwordx4 {vr(vE+4,4)}, v4, {sr(SRD_E,4)}, 0 offen offset:16")
    a.lab(f"{p}_noedge")
    a(f"s_lshl_b32 s{sT0}, s{sBIN}, 3")
    a(f"s_add_u32 s{sT0}, s{sT0}, s{sLJ}")
    a(f"s_mul_i32 s{sT0}, s{sT0}, 3125")
    a(f"s_lshr_b32 s{sNODE0}, s{sT0}, 7")
    a(f"s_add_u32 s{sT0}, s{sT0}, 3125")
    a(f"s_lshr_b32 s{sNN}, s{sT0}, 7")
    a(f"s_cmp_eq_u32 s{sNN}, {N}")
    a(f"s_cselect_b32 s{sNR}, 1, 0")
    a(f"s_sub_u32 s{sNN}, s{sNN}, s{sNODE0}")
    a(f"s_add_u32 s{sNR}, s{sNR}, s{sNN}")
    a(f"s_mov_b32 s{sHM}, 0")
    a(f"s_mov_b32 s{sHM+1}, -1")
    srd(a, SRD_X, x, x + 1, N * 256)
    srd(a, SRD_OUT, out, out + 1, N * 256)
    srd(a, SRD_G, g, g + 1, 260 * 256)
    a(f"s_add_u32 s{sT2}, s{ws}, s{sT1}")
    a(f"s_addc_u32 s{sT3}, s{ws+1}, 0")
    srd(a, SRD_TS, sT2, sT3, (N + 1) * 128)
    a(f"s_sub_u32 s{sT2}, s{sT2}, 0x{MAGIC_OFF:x}")
    a(f"s_subb_u32 s{sT3}, s{sT3}, 0")
    srd(a, SRD_TG, sT2, sT3, MAGIC_OFF + (N + 1) * 128)
    a(f"s_add_u32 s{sT2}, s{ws}, 0x{REC_OFF:x}")
    a(f"s_addc_u32 s{sT3}, s{ws+1}, 0")
    srd(a, SRD_REC, sT2, sT3, REC_BYTES)
    a(f"s_add_u32 s{sT2}, s{ws}, 0x{HDR_OFF:x}")
    a(f"s_addc_u32 s{sT3}, s{ws+1}, 0")
    srd(a, SRD_HDR, sT2, sT3, HDR_SRD_BYTES)
    a(f"s_mov_b32 s{sNL2E}, 0xbfb8aa3b")
    a(f"s_mov_b32 s{sMAXF}, 0x7f7f0000")
    a(f"s_mov_b32 s{sSELLO}, 0x07060100")
    a(f"s_mov_b32 s{sSELHI}, 0x07060302")
    a(f"s_mov_b32 s{sMAGIC}, 10995117")
    a(f"s_mov_b32 s{s127}, 127")
    a(f"s_mov_b32 s{sM1}, 0x260000")
    a(f"s_mov_b32 s{sM2}, 0x100000")
    a(f"s_mov_b32 s{sM3}, 0x080000")
    a(f"s_mov_b32 s{sM4}, 0x38000000")
    a(f"s_mov_b32 s{sSTG}, {STG}")
    a(f"s_mov_b32 s{sKMAX}, {EB - 4}")
    a(f"v_mov_b32 v{vONE}, 1")
    a(f"v_mov_b32 v10, 0")


def spin(a, lab, off, val, nap=0):
    if nap:
        a(f"s_branch {lab}")
        a.lab(lab + "_nap")
        a(f"s_sleep {nap}")
    a.lab(lab)
    a(f"ds_read_b32 v11, v10 offset:{off}")
    a(f"s_waitcnt lgkmcnt(0)")
    a(f"v_readfirstlane_b32 s{sT0}, v11")
    a(f"s_cmp_lt_u32 s{sT0}, {val}")
    a(f"s_cbranch_scc1 {lab + '_nap' if nap else lab}")


def signal(a, off):
    a(f"s_mov_b64 exec, 1")
    a(f"ds_add_u32 v10, v{vONE} offset:{off}")
    a(f"s_mov_b64 exec, -1")


def cursor_starts(a, d, t):
    a(f"v_lshrrev_b32 v{d}, 1, v{vLANE}")
    a(f"v_mul_u32_u24 v{d}, {LS*4}, v{d}")
    a(f"v_and_b32 v{t}, 1, v{vLANE}")
    a(f"v_mul_u32_u24 v{t}, {CAP*4}, v{t}")
    a(f"v_add_u32 v{d}, v{d}, v{t}")
    a(f"v_add_u32 v{d}, {KEYB}, v{d}")


def init_counters(a, p, tag):
    a.c("wave 0: list cursors = list starts")
    a(f"s_cmp_lg_u32 s{sWV}, 0")
    a(f"s_cbranch_scc1 {p}_ic{tag}")
    a(f"v_lshlrev_b32 v7, 2, v{vLANE}")
    cursor_starts(a, 8, 9)
    a(f"v_cmp_gt_u32 vcc, 16, v{vLANE}")
    a(f"s_nop 1")
    a(f"v_cndmask_b32 v8, 0, v8, vcc")
    a(f"s_not_b64 exec, {sr(sHM,2)}")
    a(f"ds_write_b32 v7, v8 offset:{LCNT}")
    a(f"s_mov_b64 exec, -1")
    a.lab(f"{p}_ic{tag}")


def scan64(a, v):
    for sh in (1, 2, 4, 8):
        a(f"s_nop 1")
        a(f"v_add_u32_dpp v{v}, v{v}, v{v} row_shr:{sh} row_mask:0xf bank_mask:0xf bound_ctrl:0")
    a(f"s_nop 1")
    a(f"v_add_u32_dpp v{v}, v{v}, v{v} row_bcast:15 row_mask:0xa bank_mask:0xf")
    a(f"s_nop 1")
    a(f"v_add_u32_dpp v{v}, v{v}, v{v} row_bcast:31 row_mask:0xc bank_mask:0xf")


vD, vS, vE, vK, vB, vR = 72, 76, 80, 88, 92, 96
vTa, vTb, vTc = 100, 101, 102
vONE = 2
NQ = (51, 55, 123, 127)


vC2, vO2 = 104, 106
def offsets_scan(a):
    a(f"v_lshlrev_b32 v{vTa}, 3, v{vLANE}")
    a(f"ds_read_b64 {vr(vC2,2)}, v{vTa} offset:{CNT}")
    a(f"s_waitcnt lgkmcnt(0)")
    a(f"v_add_u32 v{vTb}, v{vC2}, v{vC2+1}")
    a(f"v_mov_b32 v{vTc}, v{vTb}")
    scan64(a, vTc)
    a(f"v_sub_u32 v{vO2}, v{vTc}, v{vTb}")
    a(f"v_add_u32 v{vO2+1}, v{vO2}, v{vC2}")


def noh_from_non(a):
    a(f"s_mul_i32 s{sNOH}, s{sNON}, 0x9e3779b1")
    a(f"s_and_b32 s{sNOH}, s{sNOH}, 0xf800f800")


def w_dma(a, first):
    u, v, g = KP + 8, KP + 10, KP + 12
    a(f"s_sub_u32 s{sT2}, s{sWV}, {first}")
    a(f"s_and_b32 s{sT3}, s{sT2}, 6")
    a(f"s_lshr_b32 s{sT3}, 0xc9, s{sT3}")
    a(f"s_and_b32 s{sT3}, s{sT3}, 3")
    a(f"s_cmp_eq_u32 s{sT3}, 2")
    a(f"s_cselect_b64 {sr(SRD_W,2)}, {sr(v,2)}, {sr(u,2)}")
    a(f"s_mov_b32 s{SRD_W+2}, 32768")
    a(f"s_cmp_lt_u32 s{sT3}, 2")
    a(f"s_cselect_b64 {sr(SRD_W,2)}, {sr(g,2)}, {sr(SRD_W,2)}")
    a(f"s_cselect_b32 s{SRD_W+2}, 65536, s{SRD_W+2}")
    a(f"s_mov_b32 s{SRD_W+3}, 0x00020000")
    a(f"s_cmp_eq_u32 s{sT3}, 1")
    a(f"s_cselect_b32 s{sT0}, 32768, 0")
    a(f"s_and_b32 s{sT2}, s{sT2}, 1")
    a(f"s_lshl_b32 s{sT1}, s{sT2}, 14")
    a(f"s_add_u32 s{sT0}, s{sT0}, s{sT1}")
    a(f"s_lshr_b32 s{sT1}, s{sSL}, 1")
    a(f"s_lshl_b32 s{sT1}, s{sT1}, 7")
    a(f"s_add_u32 s{sT0}, s{sT0}, s{sT1}")
    a.c("row lane>>3, 16-byte piece lane&7; the 64-byte halves of rows 2,3 (mod 4) are swapped")
    a(f"v_lshrrev_b32 v4, 3, v{vLANE}")
    a(f"v_lshl_add_u32 v4, v4, 8, s{sT0}")
    a(f"v_bfe_u32 v6, v{vLANE}, 4, 1")
    a(f"v_lshlrev_b32 v6, 2, v6")
    a(f"v_xor_b32 v6, v6, v{vLANE}")
    a(f"v_and_b32 v6, 7, v6")
    a(f"v_lshl_add_u32 v4, v6, 4, v4")
    a(f"s_lshl_b32 s{sT0}, s{sT3}, 14")
    a(f"s_lshl_b32 s{sT2}, s{sT2}, 13")
    a(f"s_add_u32 s{sT0}, s{sT0}, s{sT2}")
    for d in range(8):
        a(f"s_add_u32 m0, s{sT0}, {WB + 1024 * d}")
        a(f"s_mov_b32 s{sT1}, {2048 * d}")
        a(f"buffer_load_dwordx4 v4, {sr(SRD_W,4)}, s{sT1} offen lds")


def front(a, p):
    if "nowpf" not in DIAG:
        a(f"s_sub_u32 s{sT0}, s{sWV}, 11")
        a(f"s_cmp_ge_u32 s{sT0}, 4")
        a(f"s_cbranch_scc1 {p}_f_nowpf")
        a(f"s_lshl_b32 s{sIT}, s{sT0}, 10")
        a.c("waves 11-14: touch 16 of the 512 weight lines this XCD needs (its 32 workgroups share them out)")
        u, v, g = KP + 8, KP + 10, KP + 12
        a(f"s_lshr_b32 s{sT2}, s2, 3")
        a(f"s_lshr_b32 s{sT3}, s{sT2}, 3")
        a(f"s_cmp_eq_u32 s{sT3}, 2")
        a(f"s_cselect_b64 {sr(SRD_W,2)}, {sr(v,2)}, {sr(u,2)}")
        a(f"s_mov_b32 s{SRD_W+2}, 32768")
        a(f"s_cmp_lt_u32 s{sT3}, 2")
        a(f"s_cselect_b64 {sr(SRD_W,2)}, {sr(g,2)}, {sr(SRD_W,2)}")
        a(f"s_cselect_b32 s{SRD_W+2}, 65536, s{SRD_W+2}")
        a(f"s_cselect_b32 s{sT0}, 15, 7")
        a(f"s_mov_b32 s{SRD_W+3}, 0x00020000")
        a(f"s_and_b32 s{sT2}, s{sT2}, s{sT0}")
        a(f"s_lshl_b32 s{sT2}, s{sT2}, 12")
        a(f"s_lshr_b32 s{sT1}, s{sSL}, 1")
        a(f"s_lshl_b32 s{sT1}, s{sT1}, 7")
        a(f"s_add_u32 s{sT2}, s{sT2}, s{sT1}")
        a(f"s_add_u32 s{sT2}, s{sT2}, s{sIT}")
        a(f"v_lshl_add_u32 v6, v{vLANE}, 8, s{sT2}")
        a(f"s_mov_b64 exec, 15")
        a(f"buffer_load_dword v104, v6, {sr(SRD_W,4)}, 0 offen")
        a(f"s_mov_b64 exec, -1")
        a.lab(f"{p}_f_nowpf")
    a(f"s_cmp_lg_u32 s{sWV}, 7")
    a(f"s_cbranch_scc1 {p}_f_noinit")
    a.c("wave 7: bin counters, checksums, flags = 0, list cursors = list starts")
    a(f"v_lshlrev_b32 v7, 2, v{vLANE}")
    cursor_starts(a, 8, 9)
    a(f"v_cmp_gt_u32 vcc, 16, v{vLANE}")
    for k in range(4):
        a(f"ds_write_b32 v7, v10 offset:{CNT + 256 * k}")
    a(f"v_cndmask_b32 v8, 0, v8, vcc")
    a(f"ds_write_b32 v7, v8 offset:{LCNT}")
    if "noicpf" not in DIAG:
        a.c("read the kernel's own code once so that later instruction fetches find it in the L2")
        a(f"s_getpc_b64 {sr(sT2,2)}")
        a.lab(f"{p}_pc")
        a(f"v_lshlrev_b32 v9, 7, v{vLANE}")
        a(f"global_load_dword v104, v9, {sr(sT2,2)}")
        a(f"v_add_u32 v9, 8192, v9")
        a(f"v_cmp_gt_u32 vcc, {p}_code_end - {p}_pc - 4, v9")
        a(f"s_mov_b64 exec, vcc")
        a(f"global_load_dword v105, v9, {sr(sT2,2)}")
        a(f"s_mov_b64 exec, -1")
    a(f"s_waitcnt lgkmcnt(0)")
    a.lab(f"{p}_f_noinit")
    a(f"s_cmp_lg_u32 s{sWV}, 15")
    a(f"s_cbranch_scc1 {p}_tag_done")
    srd(a, SRD_DBG, KP + 16, KP + 17, 256)
    a(f"buffer_load_dword v{NQ[0]}, v10, {sr(SRD_DBG,4)}, 0 offen sc1")
    a.lab(f"{p}_tag_done")
    a(f"s_barrier")
    a(f"s_cmp_eq_u32 s{sWV}, 15")
    a(f"s_cbranch_scc1 {p}_f_w15")
    a(f"s_cmp_ge_u32 s{sWV}, 7")
    a(f"s_cbranch_scc1 {p}_f_loader")

    a.c("---------------- waves 0-6: sort this workgroup's 1600 edges by destination bin")
    a(f"s_setprio {XP[3]}")
    a(f"s_cmp_lt_u32 s2, 250")
    a(f"s_cselect_b32 s{sT0}, 400, 0")
    a(f"v_cmp_gt_u32 vcc, s{sT0}, v0")
    a(f"s_mov_b64 {sr(sEX,2)}, vcc")
    a(f"s_waitcnt vmcnt({1 if 'elate' in DIAG else 3})")
    stamp(a, 1)
    for e in range(4):
        a(f"v_lshl_or_b32 v{vK+e}, v{vD+e}, 7, s{s127}")
        a(f"v_mul_hi_u32 v{vK+e}, v{vK+e}, s{sMAGIC}")
        a(f"v_lshrrev_b32 v{vB+e}, 4, v{vK+e}")
        a(f"v_and_b32 v{vB+e}, 0x1fc, v{vB+e}")
    a(f"s_mov_b64 exec, {sr(sEX,2)}")
    for e in range(4):
        a(f"ds_add_rtn_u32 v{vR+e}, v{vB+e}, v{vONE} offset:{CNT}")
    signal(a, S2)
    if "elate" in DIAG:
        a(f"buffer_load_dwordx4 {vr(vE,4)}, v4, {sr(SRD_E,4)}, 0 offen")
        a(f"buffer_load_dwordx4 {vr(vE+4,4)}, v4, {sr(SRD_E,4)}, 0 offen offset:16")
    for e in range(4):
        d, k = vD + e, vK + e
        a(f"v_lshrrev_b32 v{vTa}, 3, v{k}")
        a(f"v_mul_u32_u24 v{vTb}, 3125, v{vTa}")
        a(f"v_lshrrev_b32 v{vTb}, 7, v{vTb}")
        a(f"v_sub_u32 v{vTb}, v{d}, v{vTb}")
        a(f"v_lshlrev_b32 v{k}, 27, v{vTa}")
        a(f"v_and_b32 v{k}, s{sM4}, v{k}")
        a(f"v_lshlrev_b32 v{vTc}, 17, v{vTb}")
        a(f"v_and_or_b32 v{k}, v{vTc}, s{sM1}, v{k}")
        a(f"v_lshlrev_b32 v{vTc}, 18, v{vTb}")
        a(f"v_and_or_b32 v{k}, v{vTc}, s{sM2}, v{k}")
        a(f"v_lshlrev_b32 v{vTc}, 16, v{vTb}")
        a(f"v_and_or_b32 v{k}, v{vTc}, s{sM3}, v{k}")
    a(f"s_lshl_b32 s{sT1}, s{sWV}, 10")
    a(f"v_lshl_add_u32 v3, v{vLANE}, 4, s{sT1}")
    a(f"v_add_u32 v7, {STG}, v3")
    a(f"s_mul_i32 s{sT1}, s2, 19200")
    a(f"v_add_u32 v3, s{sT1}, v3")
    spin(a, f"{p}_f_s2", S2, 7)
    stamp(a, 10)
    offsets_scan(a)
    a(f"ds_write_b64 v{vTa}, {vr(vO2,2)} offset:{OFFS}")
    for e in range(4):
        a(f"ds_read_b32 v{vD+e}, v{vB+e} offset:{OFFS}")
    a(f"s_mov_b32 s{sT2}, {32768 - N // 2}")
    a(f"s_mov_b32 s{sT3}, 0x04000000")
    a(f"s_waitcnt vmcnt(0)")
    for e in range(4):
        a(f"v_add_lshl_u32 v{vTb}, v{vS+e}, s{sT2}, 11")
        a(f"v_or_b32 v{vK+e}, v{vK+e}, v{vS+e}")
        a(f"v_and_or_b32 v{vK+e}, v{vTb}, s{sT3}, v{vK+e}")
        a(f"v_add3_u32 v{vS+e}, v{vE+2*e}, v{vE+2*e+1}, v{vK+e}")
    a(f"s_waitcnt lgkmcnt(0)")
    for e in range(4):
        a(f"v_add_u32 v{vR+e}, v{vR+e}, v{vD+e}")
        a(f"v_mad_u32_u24 v{vR+e}, v{vR+e}, 12, s{sSTG}")
    a(f"s_mov_b64 exec, {sr(sEX,2)}")
    for e in range(4):
        a(f"ds_write2_b32 v{vR+e}, v{vE+2*e}, v{vE+2*e+1} offset0:0 offset1:1")
        a(f"ds_write_b32 v{vR+e}, v{vK+e} offset:8")
        a(f"ds_add_u32 v{vB+e}, v{vS+e} offset:{CSUM}")
    signal(a, S3)
    spin(a, f"{p}_f_s3", S3, 7)
    a.c("copy the sorted records out: 1 KiB pieces wv, wv + 7, wv + 14")
    for k in range(3):
        a(f"ds_read_b128 {vr(104 + 4*k, 4)}, v7 offset:{7168*k}")
    signal(a, S3)
    a(f"v_add_u32 v4, 7168, v3")
    a(f"v_add_u32 v5, 14336, v3")
    a(f"s_waitcnt lgkmcnt(3)")
    a(f"buffer_store_dwordx4 {vr(104,4)}, v3, {sr(SRD_REC,4)}, 0 offen sc1")
    a(f"s_waitcnt lgkmcnt(2)")
    a(f"buffer_store_dwordx4 {vr(108,4)}, v4, {sr(SRD_REC,4)}, 0 offen sc1")
    a(f"s_cmp_gt_u32 s{sWV}, 4")
    a(f"s_cbranch_scc1 {p}_f_x0")
    a(f"s_cmp_eq_u32 s{sWV}, 4")
    a(f"s_cselect_b32 exec_hi, 0xffff, -1")
    a(f"s_waitcnt lgkmcnt(1)")
    a(f"buffer_store_dwordx4 {vr(112,4)}, v5, {sr(SRD_REC,4)}, 0 offen sc1")
    a(f"s_mov_b64 exec, -1")
    a.lab(f"{p}_f_x0")
    a(f"s_setprio 0")
    a(f"s_branch {p}_f_done")

    a.c("---------------- waves 7-10: two x tiles each into LDS; waves 11-14: the weights")
    a.lab(f"{p}_f_loader")
    a(f"s_cmp_ge_u32 s{sWV}, 11")
    a(f"s_cbranch_scc1 {p}_f_w")
    a.c("x tile: row (lane>>4) + 4i, slot lane&15 holds chunk slot ^ (row & 15)")
    a(f"v_lshrrev_b32 v6, 4, v{vLANE}")
    a(f"v_xor_b32 v7, v6, v{vLANE}")
    a(f"v_and_b32 v7, 15, v7")
    a(f"v_lshlrev_b32 v72, 8, v6")
    a(f"v_lshl_add_u32 v72, v7, 4, v72")
    for k in range(1, 4):
        a(f"v_xor_b32 v{72+k}, {64*k}, v72")
    for n in range(2):
        a(f"s_sub_u32 s{sT3}, s{sWV}, {7 - 4 * XORD[n]}")
        a(f"s_mul_i32 s{sT2}, s{sT3}, {XT}")
        a(f"s_lshl_b32 s{sT1}, s{sBIN}, 3")
        a(f"s_add_u32 s{sT1}, s{sT1}, s{sT3}")
        a(f"s_mul_i32 s{sT1}, s{sT1}, 3125")
        a(f"s_lshr_b32 s{sT1}, s{sT1}, 7")
        a(f"s_lshl_b32 s{sT1}, s{sT1}, 8")
        a(f"s_lshl_b32 s{sT0}, s{sT3}, 2")
        a(f"v_mov_b32 v{12+n}, s{sT0}")
        for i in range(7):
            a(f"s_add_u32 m0, s{sT2}, {XB + 1024 * i}")
            a(f"v_add_u32 v6, s{sT1}, v{72 + (i & 3)}")
            if i < 6:
                a(f"s_add_u32 s{sT1}, s{sT1}, 1024")
            else:
                a(f"s_not_b64 exec, {sr(sHM,2)}")
            a(f"buffer_load_dwordx4 v6, {sr(SRD_X,4)}, 0 offen lds")
        a(f"s_mov_b64 exec, -1")
    a(f"s_waitcnt vmcnt(7)")
    a(f"ds_write_b32 v12, v{vONE} offset:{XFL}")
    stamp(a, 10)
    a(f"s_waitcnt vmcnt(0)")
    a(f"ds_write_b32 v13, v{vONE} offset:{XFL}")
    a(f"s_branch {p}_f_done")
    a.lab(f"{p}_f_w")
    a(f"s_waitcnt vmcnt(0)")
    a(f"s_setprio 3")
    w_dma(a, 11)
    a(f"s_setprio 0")
    a(f"s_waitcnt vmcnt(0)")
    signal(a, WF)
    stamp(a, 10)
    w_dma(a, 7)
    a(f"s_cmp_lg_u32 s{sWV}, 11")
    a(f"s_cbranch_scc1 {p}_f_done")
    a(f"v_and_b32 v6, 7, v{vLANE}")
    a(f"v_lshrrev_b32 v4, 3, v{vLANE}")
    a(f"v_lshlrev_b32 v4, 8, v4")
    a(f"v_lshl_add_u32 v4, v6, 4, v4")
    a(f"s_lshr_b32 s{sT1}, s{sSL}, 1")
    a(f"s_lshl_b32 s{sT1}, s{sT1}, 7")
    a(f"s_add_u32 s{sT1}, s{sT1}, 65536")
    a(f"s_mov_b32 m0, {CB}")
    a(f"s_not_b64 exec, {sr(sHM,2)}")
    a(f"buffer_load_dwordx4 v4, {sr(SRD_G,4)}, s{sT1} offen lds")
    a(f"s_mov_b64 exec, -1")
    a(f"s_branch {p}_f_done")

    a.c("---------------- wave 15 publishes / collects the headers")
    a.lab(f"{p}_f_w15")
    a(f"s_setprio 3")
    a(f"s_lshl_b32 s{sT0}, s2, 11")
    a(f"v_lshl_add_u32 v4, v{vLANE}, 5, s{sT0}")
    a(f"s_mov_b32 s{sSPIN}, {SPIN_MAX}")
    for k in range(1, 4):
        a(f"s_sleep {NS_SL}")
        a(f"buffer_load_dword v{NQ[k]}, v10, {sr(SRD_DBG,4)}, 0 offen sc1")
    for k in range(4):
        a(f"s_waitcnt vmcnt({3-k})")
        a(f"v_readfirstlane_b32 s{sNON}, v{NQ[k]}")
        a(f"s_cmp_lg_u32 s{sNON}, 0")
        a(f"s_cbranch_scc1 {p}_tag_ok")
    a.lab(f"{p}_tag_loop")
    a(f"buffer_load_dword v13, v10, {sr(SRD_DBG,4)}, 0 offen sc1")
    a(f"s_waitcnt vmcnt(0)")
    a(f"v_readfirstlane_b32 s{sNON}, v13")
    a(f"s_cmp_lg_u32 s{sNON}, 0")
    a(f"s_cbranch_scc1 {p}_tag_ok")
    a(f"s_sub_u32 s{sSPIN}, s{sSPIN}, 1")
    a(f"s_cbranch_scc0 {p}_tag_loop")
    a(f"s_mov_b32 s{sNON}, 1")
    a.lab(f"{p}_tag_ok")
    stamp(a, 11)
    a(f"v_mov_b32 v13, s{sNON}")
    a(f"ds_write_b32 v10, v13 offset:{NON2}")
    noh_from_non(a)
    spin(a, f"{p}_f_s2b", S2, 7)
    offsets_scan(a)
    for k in range(2):
        a(f"v_lshl_or_b32 v{108+4*k}, v{vC2+k}, 16, v{vO2+k}")
        a(f"v_or_b32 v{108+4*k}, s{sNOH}, v{108+4*k}")
        a(f"v_mov_b32 v{109+4*k}, v13")
    spin(a, f"{p}_f_s3b", S3, 7)
    a(f"ds_read_b32 v110, v{vTa} offset:{CSUM}")
    a(f"ds_read_b32 v114, v{vTa} offset:{CSUM+4}")
    a(f"s_waitcnt lgkmcnt(0)")
    a(f"buffer_store_dwordx4 v[108:111], v4, {sr(SRD_HDR,4)}, 0 offen sc1")
    a(f"buffer_store_dwordx4 v[112:115], v4, {sr(SRD_HDR,4)}, 0 offen offset:16 sc1")
    stamp(a, 1)
    a(f"s_setprio 0")
    a.lab(f"{p}_f_done")


HP = (48, 52, 120, 124)
sPM = 44
def poll(a, p, tag, first=False, last=False):
    if first:
        a(f"s_lshl_b32 s{sT0}, s{sBIN}, 4")
        a(f"v_lshl_add_u32 v8, v{vLANE}, 13, s{sT0}")
        a(f"v_add_u32 v9, 4096, v8")
    a(f"s_cmp_lg_u32 s{sWV}, 15")
    a(f"s_cbranch_scc1 {p}_po{tag}")
    if first:
        a(f"s_mov_b64 {sr(sPM,2)}, -1")
        a(f"s_mov_b32 s{sSPIN}, {SPIN_MAX}")
    else:
        a(f"s_cmp_eq_u64 {sr(sPM,2)}, 0")
        a(f"s_cbranch_scc1 {p}_po{tag}")
        a.lab(f"{p}_pl{tag}")
        a(f"s_waitcnt vmcnt(0)")
        for k, h in enumerate(HP):
            a(f"v_xor_b32 v{h+3}, s{sNOH}, v{h}")
            a(f"v_and_b32 v{h+3}, 0xf800f800, v{h+3}")
            a(f"v_xor_b32 v7, s{sNON}, v{h+1}")
            a(f"v_or3_b32 v6, v{h+3}, v7, {'0' if k == 0 else 'v6'}")
        a(f"v_cmp_ne_u32 {sr(sPM,2)}, 0, v6")
        a(f"s_sub_u32 s{sSPIN}, s{sSPIN}, 1")
        a(f"s_cselect_b64 {sr(sPM,2)}, 0, {sr(sPM,2)}")
        a(f"s_cmp_lg_u64 {sr(sPM,2)}, 0")
        a(f"s_cbranch_scc1 {p}_pa{tag}")
        a(f"v_lshlrev_b32 v7, 5, v{vLANE}")
        a(f"v_add_u32 v7, {STG}, v7")
        a(f"v_mov_b32 v6, s{sNON}")
        for k, h in enumerate(HP):
            a(f"ds_write2_b32 v7, v{h}, v{h+2} offset0:{2*k} offset1:{2*k+1}")
        a(f"ds_write_b32 v10, v6 offset:{NONCE}")
        stamp(a, 10)
        a(f"s_branch {p}_po{tag}")
        a.lab(f"{p}_pa{tag}")
        if last:
            a(f"s_sleep {PS2}")
    a(f"s_mov_b64 exec, {sr(sPM,2)}")
    for k, h in enumerate(HP):
        a(f"buffer_load_dwordx3 {vr(h,3)}, v{8 + (k>>1)}, {sr(SRD_HDR,4)}, 0 offen offset:{2048*(k&1)} sc1")
    a(f"s_mov_b64 exec, -1")
    if last:
        a(f"s_branch {p}_pl{tag}")
    a.lab(f"{p}_po{tag}")


vZ0 = 2
vXA, vWA, vTMP = 3, 4, 5
def w_addr(a):
    a(f"s_and_b32 s{sT1}, s{sWV}, 1")
    a(f"v_lshrrev_b32 v6, 5, v{vLANE}")
    a(f"v_lshlrev_b32 v{vWA}, 10, v6")
    a(f"v_bfe_u32 v6, v{vLANE}, 2, 2")
    a(f"v_lshl_add_u32 v{vWA}, v6, 7, v{vWA}")
    a(f"v_bfe_u32 v6, v{vLANE}, 3, 1")
    a(f"v_xor_b32 v6, s{sT1}, v6")
    a(f"v_lshl_add_u32 v{vWA}, v6, 6, v{vWA}")
    a(f"v_and_b32 v6, 1, v{vLANE}")
    a(f"v_lshl_add_u32 v{vWA}, v6, 5, v{vWA}")
    a(f"v_and_b32 v6, 16, v{vLANE}")
    a(f"v_add_u32 v{vWA}, v6, v{vWA}")
    a(f"v_and_b32 v6, 2, v{vLANE}")
    a(f"v_lshl_add_u32 v{vWA}, v6, 2, v{vWA}")
    a(f"v_add_u32 v{vWA}, {WB}, v{vWA}")


def xf(s):
    return 16 + 4 * s if s < 4 else 56 + 4 * (s - 4)

def x_reads(a):
    a.c("x fragments of this wave's sub-block")
    a(f"s_mul_i32 s{sT1}, s{sLJ}, {XT}")
    a(f"s_add_u32 s{sT1}, s{sT1}, {XB}")
    a(f"v_and_b32 v6, 31, v{vLANE}")
    a(f"v_lshrrev_b32 v7, 5, v{vLANE}")
    a(f"v_xor_b32 v7, v7, v6")
    a(f"v_and_b32 v7, 15, v7")
    a(f"v_lshl_add_u32 v6, v6, 8, s{sT1}")
    a(f"v_lshl_add_u32 v6, v7, 4, v6")
    for s in range(8):
        if s:
            a(f"v_xor_b32 v7, {32*s}, v6")
        a(f"ds_read_b128 {vr(xf(s),4)}, v{7 if s else 6}")
    signal(a, XR)


def w_reads(a, m1, m2, s):
    for k, m in enumerate((m1, m2)):
        for u in range(2):
            a(f"ds_read_b64_tr_b16 {vr(RA+8*(s%4)+4*k+2*u,2)}, v{vWA} offset:{m*16384 + s*2048 + u*512}")


def gemm_pass(a, m1, m2, swap2, first_issued=False, nxt=None):
    if not first_issued:
        for s in range(4):
            w_reads(a, m1, m2, s)
    for s in range(8):
        r = RA + 8 * (s % 4)
        a(f"s_waitcnt lgkmcnt({12 if s <= 4 else 4 * (7 - s)})")
        c1 = "0" if s == 0 else vr(Z, 16)
        c2 = "0" if s == 0 else vr(ACC, 16)
        a(f"v_mfma_f32_32x32x16_bf16 {vr(Z,16)}, {vr(xf(s),4)}, {vr(r,4)}, {c1}")
        if swap2:
            a(f"v_mfma_f32_32x32x16_bf16 {vr(ACC,16)}, {vr(r+4,4)}, {vr(xf(s),4)}, {c2}")
        else:
            a(f"v_mfma_f32_32x32x16_bf16 {vr(ACC,16)}, {vr(xf(s),4)}, {vr(r+4,4)}, {c2}")
        if s < 4:
            w_reads(a, m1, m2, s + 4)


G2 = 72
def pu_pass(a, p):
    slot = (88, 48)
    def rd(st):
        for k, m in enumerate((0, 3)):
            for u in range(2):
                a(f"ds_read_b64_tr_b16 {vr(slot[st%2]+4*k+2*u,2)}, v{vWA} offset:{m*16384 + st*2048 + u*512}")
    rd(0)
    rd(1)
    for st in range(8):
        r = slot[st % 2]
        a(f"s_waitcnt lgkmcnt({4 if st < 7 else 0})")
        c1 = "0" if st == 0 else vr(G2, 16)
        c2 = "0" if st == 0 else vr(ACC, 16)
        a(f"v_mfma_f32_32x32x16_bf16 {vr(G2,16)}, {vr(xf(st),4)}, {vr(r,4)}, {c1}")
        a(f"v_mfma_f32_32x32x16_bf16 {vr(ACC,16)}, {vr(r+4,4)}, {vr(xf(st),4)}, {c2}")
        if st + 2 < 8:
            rd(st + 2)
        if st == MIDPUB:
            a(f"s_cmp_lg_u32 s{sNT}, 0")
            a(f"s_cbranch_scc1 {p}_mp_done")
            a(f"s_cmp_lg_u32 s{sNON}, 0")
            a(f"s_cbranch_scc1 {p}_mp_rec")
            a(f"s_waitcnt vmcnt(0)")
            a.lab(f"{p}_mp_rec")
            a(f"s_waitcnt vmcnt({NI})")
            a(f"s_call_b64 {sr(sRET,2)}, {p}_sub_pub")
            a(f"s_mov_b32 s{sNT}, 1")
            a.lab(f"{p}_mp_done")


def table_store(a, fused):
    a.c("table rows: hi16 = -log2e * (x B), lo16 = bf16(1 / (x V)); 8 rows at a time through LDS, whole lines out")
    a(f"s_lshl_b32 s{sT1}, s{sWV}, 10")
    a(f"s_add_u32 s{sT1}, s{sT1}, {STG + 2048}")
    a(f"v_lshrrev_b32 v6, 5, v{vLANE}")
    a(f"v_lshl_add_u32 v6, v6, 9, s{sT1}")
    a(f"v_and_b32 v7, 31, v{vLANE}")
    a(f"v_lshl_add_u32 v6, v7, 2, v6")
    a(f"v_lshl_add_u32 v7, v{vLANE}, 4, s{sT1}")
    a(f"s_lshl_b32 s{sT0}, s{sNODE0}, 7")
    a(f"v_lshl_add_u32 v{vTMP}, v{vLANE}, 4, s{sT0}")
    a(f"s_nop 5")
    for j in range(0, 14, 2):
        for k in (j, j + 1):
            a(f"v_rcp_f32 v{ACC+k}, v{ACC+k}")
            a(f"v_mul_f32 v{Z+k}, s{sNL2E}, v{Z+k}")
        for k in (j, j + 1):
            a(f"v_med3_f32 v{ACC+k}, v{ACC+k}, s{sMAXF}, -s{sMAXF}")
        a(f"v_cvt_pk_bf16_f32 v{ACC+j}, v{ACC+j}, v{ACC+j+1}")
        a(f"v_perm_b32 v{Z+j}, v{Z+j}, v{ACC+j}, s{sSELLO}")
        a(f"v_perm_b32 v{Z+j+1}, v{Z+j+1}, v{ACC+j}, s{sSELHI}")
        for k in (j, j + 1):
            a(f"ds_write_b32 v6, v{Z+k} offset:{(k&3)*128}")
        if j % 4 == 2 or j == 12:
            g = j // 4
            a(f"ds_read_b128 {vr(RA+4*g,4)}, v7")
    for g in range(4):
        a(f"s_waitcnt lgkmcnt({(10, 5, 3, 0)[g] if False else 0})") if g == 0 else None
        if g == 3:
            a(f"s_sub_u32 s{sT0}, s{sNR}, 24")
            a(f"s_lshl_b32 s{sT0}, s{sT0}, 3")
            a(f"s_bfm_b64 exec, s{sT0}, 0")
        a(f"buffer_store_dwordx4 {vr(RA+4*g,4)}, v{vTMP}, {sr(SRD_TS,4)}, 0 offen offset:{1024*g} sc1")
    a(f"s_mov_b64 exec, -1")
    a(f"s_nop 0")


vC0 = 88
def load_C(a):
    a.c("edge-feature weights g_w[256+k][32*slice + pi(n)]")
    a(f"v_bfe_u32 v6, v{vLANE}, 2, 1")
    a(f"v_lshlrev_b32 v6, 5, v6")
    a(f"v_bfe_u32 v7, v{vLANE}, 3, 2")
    a(f"v_lshl_add_u32 v6, v7, 3, v6")
    a(f"v_and_b32 v7, 3, v{vLANE}")
    a(f"v_lshl_add_u32 v6, v7, 1, v6")
    a(f"s_and_b32 s{sT0}, s{sWV}, 1")
    a(f"s_lshl_b32 s{sT0}, s{sT0}, 6")
    a(f"s_add_u32 s{sT0}, s{sT0}, {CB}")
    a(f"v_add_u32 v6, s{sT0}, v6")
    for k in range(4):
        a(f"ds_read_u16 v{vC0+k}, v6 offset:{128*k}")


def pop_pack(a):
    a.c("P' operand (rows 26.. replaced by the edge-feature weights / zero)")
    a(f"s_waitcnt lgkmcnt(0)")
    for k in range(4):
        a(f"v_lshlrev_b32 v{vC0+k}, 16, v{vC0+k}")
    for k in range(4):
        a(f"v_mul_f32 v{vC0+k}, s{sNL2E}, v{vC0+k}")
    a(f"v_cvt_pk_bf16_f32 v6, v{vC0}, v{vC0+1}")
    a(f"v_cvt_pk_bf16_f32 v7, v{vC0+2}, v{vC0+3}")
    a(f"s_nop 3")
    for k in range(14):
        a(f"v_mul_f32 v{G2+k}, s{sNL2E}, v{G2+k}")
    for k in range(7):
        a(f"v_cvt_pk_bf16_f32 v{POP+k}, v{G2+2*k}, v{G2+2*k+1}")
    a(f"s_cmp_eq_u32 s{sNN}, 25")
    a(f"s_cselect_b32 s{sT0}, 0xffff, 0")
    a(f"v_and_b32 v{POP+6}, s{sT0}, v{POP+6}")
    a(f"v_cndmask_b32 v{POP+6}, v{POP+6}, v6, {sr(sHM,2)}")
    a(f"v_cndmask_b32 v{POP+7}, 0, v7, {sr(sHM,2)}")


vHS, vHL = 12, 13
def hdr_load(a, fused, addr=7):
    a(f"buffer_load_dwordx2 v[14:15], v{addr}, {sr(SRD_HDR,4)}, 0 offen{' sc1' if fused else ''}")

def hdr_addr(a, addr=7):
    a(f"v_lshrrev_b32 v{addr}, 2, v0")
    a(f"s_lshl_b32 s{sT0}, s{sBIN}, 4")
    a(f"v_lshl_add_u32 v{addr}, v{addr}, 10, s{sT0}")


def hdr_decode(a):
    a(f"v_and_b32 v6, 3, v0")
    a(f"v_and_b32 v7, 0x7ff, v14")
    a(f"v_add_u32 v7, v7, v6")
    a(f"v_mul_u32_u24 v7, 12, v7")
    a(f"v_lshrrev_b32 v{vHS}, 2, v0")
    a(f"v_mul_u32_u24 v{vHS}, 19200, v{vHS}")
    a(f"v_add_u32 v{vHS}, v{vHS}, v7")
    a(f"v_bfe_u32 v{vHL}, v14, 16, 11")
    a(f"v_sub_u32 v{vHL}, v{vHL}, v6")
    a(f"s_mov_b32 s{sRB}, 0")
    a(f"s_mov_b32 s{sC}, {CFAST}")


def rec_loads(a, p, tag, fused, fixed=False):
    sc = " sc1" if fused else ""
    a(f"v_subrev_u32 v7, s{sRB}, v{vHL}")
    a(f"v_and_b32 v6, 3, v0")
    a(f"v_sub_u32 v6, s{sC}, v6")
    a(f"v_min_i32 v7, v7, v6")
    a(f"s_mul_i32 s{sT0}, s{sRB}, 12")
    a(f"v_add_u32 v6, s{sT0}, v{vHS}")
    for i in range(NI):
        a(f"v_cmp_lt_i32 {sr(MASKS[i],2)}, {4*i}, v7")
    for i in range(NI):
        a(f"s_mov_b64 exec, {sr(MASKS[i],2)}")
        if not fixed: a(f"s_cbranch_execz {p}_rl_done{tag}")
        a(f"buffer_load_dwordx3 {vr(REC+4*i,3)}, v6, {sr(SRD_REC,4)}, 0 offen offset:{48*i}{sc}")
    a.lab(f"{p}_rl_done{tag}")
    a(f"s_mov_b64 exec, -1")


def append1(a, p, tag):
    a.c("---------------- list slots for the records (16 sub-block lists)")
    a(f"s_add_u32 s{sT0}, s{sRB}, s{sC}")
    a(f"v_and_b32 v6, 3, v0")
    a(f"v_add_u32 v6, v6, v{vHL}")
    a(f"v_cmp_lt_i32 vcc, s{sT0}, v6")
    a(f"v_mov_b32 v6, 4")
    a(f"v_mov_b32 v7, 64")
    a(f"s_mov_b64 exec, vcc")
    a(f"ds_add_u32 v7, v6 offset:{LCNT}")
    a(f"s_mov_b64 exec, -1")
    a(f"v_mov_b32 v7, 0x3c")
    for i in range(NI):
        q = REC + 4 * i
        a(f"s_mov_b64 exec, {sr(MASKS[i],2)}")
        a(f"s_cbranch_execz {p}_ap1{tag}")
        a(f"v_and_b32_sdwa v{q+3}, v{q+2}, v7 dst_sel:DWORD dst_unused:UNUSED_PAD src0_sel:BYTE_3 src1_sel:DWORD")
        a(f"ds_add_rtn_u32 v{q+3}, v{q+3}, v6 offset:{LCNT}")
    a.lab(f"{p}_ap1{tag}")
    a(f"s_mov_b64 exec, -1")


def append2(a, p):
    for i in range(NI):
        q = REC + 4 * i
        a(f"s_mov_b64 exec, {sr(MASKS[i],2)}")
        a(f"s_cbranch_execz {p}_ap2")
        a(f"v_min_u32 v{q+3}, s{sKMAX}, v{q+3}")
        a(f"v_lshlrev_b32 v6, 1, v{q+3}")
        a(f"ds_write_b32 v{q+3}, v{q+2}")
        a(f"ds_write_b64 v6, {vr(q,2)} offset:{EOFF}")
    a.lab(f"{p}_ap2")
    a(f"s_mov_b64 exec, -1")


vKR, vER, vIW, vIE, vIA0, vIA1, vIT0, vIT1, vOLD, vKEY = 4, 5, 120, 121, 122, 123, 124, 125, 126, 127
vEE, vB16, vZERO = 8, 10, 11
AD, BD = 2, 14


def image_setup(a):
    a.c("---------------- selection image addresses; zero the image")
    a(f"s_lshl_b32 s{sT0}, s{sWV}, 11")
    a(f"s_add_u32 s{sT0}, s{sT0}, {IMG}")
    a(f"v_lshl_add_u32 v{vER}, v{vLANE}, 4, s{sT0}")
    for k in range(4):
        a(f"v_mov_b32 v{Z+k}, 0")
    a(f"v_mov_b32 v{vB16}, 0x3f80")
    a(f"v_mov_b32 v{vZERO}, 0")
    a(f"v_and_b32 v6, 31, v{vLANE}")
    a(f"v_mov_b32 v{AD+1}, 0x3f803f80")
    a(f"v_lshlrev_b32 v7, 2, v6")
    a(f"v_cvt_f32_u32 v7, v7")
    a(f"v_lshrrev_b32 v7, 16, v7")
    a(f"v_or_b32 v7, 0x4b000000, v7")
    a(f"v_mov_b32 v{BD}, 0x47004300")
    a(f"v_cndmask_b32 v{BD}, v{BD}, v{vZERO}, {sr(sHM,2)}")
    a(f"v_cndmask_b32 v{BD+1}, v7, v{vZERO}, {sr(sHM,2)}")
    a(f"v_lshl_add_u32 v6, v6, 6, s{sT0}")
    a(f"v_bfe_u32 v7, v{vLANE}, 2, 2")
    a(f"v_lshl_add_u32 v{vIW}, v7, 4, v6")
    a(f"v_xor_b32 v{vIE}, 56, v{vIW}")
    a(f"v_lshrrev_b32 v6, 5, v{vLANE}")
    a(f"v_lshlrev_b32 v{vIA0}, 4, v6")
    a(f"v_xor_b32 v{vIA0}, v{vIA0}, v{vIW}")
    a(f"v_xor_b32 v{vIA1}, 32, v{vIA0}")
    a(f"v_mov_b32 v{vOLD}, v{vIW}")
    a(f"v_lshl_add_u32 v7, v6, 2, v7")
    a(f"v_lshl_add_u32 v{vIT0}, v7, 6, s{sT0}")
    a(f"v_bfe_u32 v7, v{vLANE}, 4, 1")
    a(f"v_lshlrev_b32 v7, 1, v7")
    a(f"v_and_b32 v{vIT1}, 1, v{vLANE}")
    a(f"v_or_b32 v7, v7, v{vIT1}")
    a(f"v_xor_b32 v7, v7, v6")
    a(f"v_lshl_add_u32 v{vIT0}, v7, 4, v{vIT0}")
    a(f"v_and_b32 v7, 2, v{vLANE}")
    a(f"v_lshl_add_u32 v{vIT0}, v7, 2, v{vIT0}")
    a(f"v_xor_b32 v{vIT1}, 32, v{vIT0}")
    a(f"v_add_u32 v{vIT1}, 512, v{vIT1}")


def gathers(a, R, fused):
    sc = " sc1" if fused and "sc1g" in DIAG else ""
    if "nogather" in DIAG: return
    for k in range(16):
        a(f"buffer_load_dword v{R+k}, v{OFF+k}, {sr(SRD_TG,4)}, 0 offen{sc}")

sN0, sJMP = sM2, sM3
def rec_reads(a):
    a(f"ds_read_b32 v{vKEY}, v{vKR}")
    a(f"ds_read_b64 {vr(vEE,2)}, v{vER} offset:{EOFF}")

def step_calc(a, cur):
    a(f"s_cmp_eq_u32 s{sN0}, {cur}")
    a(f"s_cselect_b32 s{sT1}, s{sJMP}, 128")
    a(f"s_lshl_b32 s{sT2}, s{sT1}, 1")

def step(a):
    a(f"v_add_u32 v{vKR}, s{sT1}, v{vKR}")
    a(f"v_add_u32 v{vER}, s{sT2}, v{vER}")

def image_build(a):
    a(f"ds_write_b16 v{vOLD}, v{vZERO}")
    a(f"v_xor_b32_sdwa v{vOLD}, v{vKEY}, v{vIW} dst_sel:DWORD dst_unused:UNUSED_PAD src0_sel:BYTE_2 src1_sel:DWORD")
    a(f"ds_write_b64 v{vIE}, {vr(vEE,2)}")
    a(f"ds_write_b16 v{vOLD}, v{vB16}")

def aex_reads(a):
    a(f"ds_read_b128 {vr(AEX,4)}, v{vIA0}")
    a(f"ds_read_b128 {vr(AEX+4,4)}, v{vIA1}")

def sag_reads(a):
    for s in range(2):
        a(f"ds_read_b64_tr_b16 {vr(SAG+4*s,2)}, v{vIT0} offset:{1024*s}")
        a(f"ds_read_b64_tr_b16 {vr(SAG+4*s+2,2)}, v{vIT1} offset:{1024*s}")

def addr_cvt(a):
    a(f"v_cvt_f32_ubyte0 v6, v{vKEY}")
    a(f"v_cvt_f32_ubyte1 v7, v{vKEY}")
def addr_pack(a):
    a(f"v_perm_b32 v{AD}, v7, v6, s{sSELHI}")
def addr_mfma(a):
    a(f"v_mfma_f32_32x32x8_bf16 {vr(OFF,16)}, {vr(AD,2)}, {vr(BD,2)}, 0")


def tile_body(a, R, Rn, fused, lb):
    if "spread" not in DIAG: gathers(a, Rn, fused)
    step_calc(a, f"s{sIT}")
    if PRIO:
        a(f"s_sub_u32 s{sT0}, s{sNT}, s{sIT}")
        for lvl, r in enumerate(PRL):
            a(f"s_cmp_lg_u32 s{sT0}, {r}")
            a(f"s_cbranch_scc1 {lb}_p{lvl}")
            a(f"s_setprio {lvl}")
            a.lab(f"{lb}_p{lvl}")
    a(f"s_waitcnt vmcnt({0 if 'spread' in DIAG else 16})")
    a(f"v_mfma_f32_32x32x16_bf16 {vr(Z,16)}, {vr(AEX,4)}, {vr(POP,4)}, {vr(R,16)}")
    a(f"v_mfma_f32_32x32x16_bf16 {vr(Z,16)}, {vr(AEX+4,4)}, {vr(POP+4,4)}, {vr(Z,16)}")
    if "nolds" not in DIAG:
        sag_reads(a)
        image_build(a)
        aex_reads(a)
    else:
        a("s_nop 9")
    rec_reads(a)
    step(a)
    if PPB is not None:
        a(f"s_cmp_lg_u32 s{sIT}, {PPB}")
        a(f"s_cbranch_scc1 {lb}_nopp")
        phase_prefetch(a, 1)
        a.lab(f"{lb}_nopp")
    for j in range(16):
        if "notrans" not in DIAG: a(f"v_exp_f32 v{Z+j}, v{Z+j}")
        if "spread" in DIAG: a(f"buffer_load_dword v{Rn+j}, v{OFF+j}, {sr(SRD_TG,4)}, 0 offen")
        if "b64" in DIAG:
            if j % 2: a(f"v_lshlrev_b64 {vr(R+j-1,2)}, 16, {vr(R+j-1,2)}")
        else:
            a(f"v_lshlrev_b32 v{R+j}, 16, v{R+j}")
    a(f"s_waitcnt lgkmcnt(0)")
    addr_cvt(a)
    for j in range(0, 16, 2):
        if "nopk" in DIAG:
            a(f"v_fma_f32 v{Z+j}, v{Z+j}, v{R+j}, v{R+j}")
            a(f"v_fma_f32 v{Z+j+1}, v{Z+j+1}, v{R+j+1}, v{R+j+1}")
        else:
            a(f"v_pk_fma_f32 {vr(Z+j,2)}, {vr(Z+j,2)}, {vr(R+j,2)}, {vr(R+j,2)}")
        if j == 0:
            addr_pack(a)
    addr_mfma(a)
    for j in range(16):
        if "notrans" not in DIAG: a(f"v_rcp_f32 v{Z+j}, v{Z+j}")
        if j >= 3 and j % 2 == 1:
            k = (j - 3) // 2
            a(f"v_cvt_pk_bf16_f32 v{R+k}, v{Z+2*k}, v{Z+2*k+1}")
    a(f"s_add_u32 s{sIT}, s{sIT}, 1")
    a(f"v_cvt_pk_bf16_f32 v{R+7}, v{Z+14}, v{Z+15}")
    a(f"s_cmp_lt_u32 s{sIT}, s{sNT}")
    a(f"v_mfma_f32_32x32x16_bf16 {vr(ACC,16)}, {vr(R,4)}, {vr(SAG,4)}, {vr(ACC,16)}")
    a(f"v_mfma_f32_32x32x16_bf16 {vr(ACC,16)}, {vr(R+4,4)}, {vr(SAG+4,4)}, {vr(ACC,16)}")


sHALF = sM4
def half_body(a, R):
    a(f"s_waitcnt vmcnt(0)")
    a(f"v_mfma_f32_32x32x16_bf16 {vr(Z,16)}, {vr(AEX,4)}, {vr(POP,4)}, {vr(R,16)}")
    a(f"v_mfma_f32_32x32x16_bf16 {vr(Z,16)}, {vr(AEX+4,4)}, {vr(POP+4,4)}, {vr(Z,16)}")
    a(f"ds_read_b64_tr_b16 {vr(SAG,2)}, v{vIT0}")
    a(f"ds_read_b64_tr_b16 {vr(SAG+2,2)}, v{vIT1}")
    a(f"s_nop 9")
    for j in range(8):
        a(f"v_exp_f32 v{Z+j}, v{Z+j}")
        a(f"v_lshlrev_b32 v{R+j}, 16, v{R+j}")
    for j in range(0, 8, 2):
        a(f"v_pk_fma_f32 {vr(Z+j,2)}, {vr(Z+j,2)}, {vr(R+j,2)}, {vr(R+j,2)}")
    for j in range(8):
        a(f"v_rcp_f32 v{Z+j}, v{Z+j}")
    for k in range(4):
        a(f"v_cvt_pk_bf16_f32 v{R+k}, v{Z+2*k}, v{Z+2*k+1}")
    a(f"s_waitcnt lgkmcnt(0)")
    a(f"s_nop 0")
    a(f"v_mfma_f32_32x32x16_bf16 {vr(ACC,16)}, {vr(R,4)}, {vr(SAG,4)}, {vr(ACC,16)}")


def t_prefetch(a):
    a.c("read this wave's own table rows back once (streams them into the outer caches ahead of the random reads)")
    a(f"s_lshl_b32 s{sT0}, s{sNODE0}, 7")
    a(f"v_lshl_add_u32 v6, v{vLANE}, 4, s{sT0}")
    for kk in range(3):
        a(f"s_mov_b32 m0, {PFS - 1024*kk}")
        a(f"s_nop 0")
        a(f"buffer_load_dwordx4 v6, {sr(SRD_TS,4)}, 0 offen offset:{1024*kk}{' sc1' if 'pfsc1' in DIAG else ''} lds")


def phase_prefetch(a, phase):
    a(f"s_lshr_b32 s{sT0}, s2, 3")
    a(f"s_lshl_b32 s{sT0}, s{sT0}, 3")
    a(f"s_add_u32 s{sT0}, s{sT0}, s{sLJ}")
    a(f"s_mul_i32 s{sT0}, s{sT0}, 12500")
    a(f"s_lshr_b32 s{sT0}, s{sT0}, 8")
    a(f"s_lshl_b32 s{sT0}, s{sT0}, 7")
    if phase:
        a(f"s_add_u32 s{sT0}, s{sT0}, {12500*128}")
    a(f"v_lshl_add_u32 v6, v{vLANE}, 4, s{sT0}")
    a(f"v_add_u32 v7, 3072, v6")
    for kk in range(6):
        a(f"s_mov_b32 m0, {PFS - 1024*(kk%3)}")
        a(f"s_nop 0")
        a(f"buffer_load_dwordx4 v{6 + kk//3}, {sr(SRD_TS,4)}, 0 offen offset:{1024*(kk%3)} lds")


def tflag_addr(a, v):
    a(f"s_lshr_b32 s{sT0}, s{sSL}, 1")
    a(f"s_lshl_b32 s{sT0}, s{sT0}, 14")
    a(f"s_add_u32 s{sT0}, s{sT0}, {TFL_OFF}")
    a(f"v_lshl_add_u32 v{v}, v{vLANE}, 8, s{sT0}")


def tflag_loads(a, v):
    a(f"buffer_load_dwordx2 v[16:17], v{v}, {sr(SRD_HDR,4)}, 0 offen sc1")
    a(f"buffer_load_dwordx2 v[18:19], v{v}, {sr(SRD_HDR,4)}, 0 offen offset:128 sc1")


def tflag_issue(a, p):
    a(f"s_cmp_lg_u32 s{sWV}, {TFW}")
    a(f"s_cbranch_scc1 {p}_tf_noissue")
    tflag_addr(a, 3)
    tflag_loads(a, 3)
    a.lab(f"{p}_tf_noissue")


def tflag_wait(a, p):
    a.c("one wave waits until all 128 workgroups of this feature half have published their table rows")
    a(f"s_cmp_lg_u32 s{sWV}, {TFW}")
    a(f"s_cbranch_scc1 {p}_tf_done")
    a(f"s_cmp_lg_u32 s{sNOH}, 0")
    a(f"s_cbranch_scc1 {p}_tf_done")
    tflag_addr(a, 6)
    a(f"s_not_b32 s{sT1}, s{sNON}")
    a(f"s_mov_b32 s{sSPIN}, {SPIN_MAX}")
    a(f"s_branch {p}_tf_first")
    a.lab(f"{p}_tf_loop")
    tflag_loads(a, 6)
    a.lab(f"{p}_tf_first")
    a(f"s_waitcnt vmcnt(0)")
    a(f"v_xor_b32 v20, s{sNON}, v16")
    a(f"v_xor_b32 v21, s{sT1}, v17")
    a(f"v_xor_b32 v22, s{sNON}, v18")
    a(f"v_xor_b32 v23, s{sT1}, v19")
    a(f"v_or3_b32 v20, v20, v21, v22")
    a(f"v_or_b32 v20, v20, v23")
    a(f"v_cmp_ne_u32 vcc, 0, v20")
    a(f"s_and_b64 exec, exec, vcc")
    a(f"s_cbranch_scc0 {p}_tf_end")
    a(f"s_sleep 2")
    a(f"s_sub_u32 s{sSPIN}, s{sSPIN}, 1")
    a(f"s_cbranch_scc0 {p}_tf_loop")
    a.lab(f"{p}_tf_end")
    a(f"s_mov_b64 exec, -1")
    a(f"s_mov_b32 s{sNOH}, 1")
    a.lab(f"{p}_tf_done")


def main_phase(a, p, fused):
    a.lab(f"{p}_round")
    append1(a, p, "a")
    a(f"s_waitcnt lgkmcnt(0)")
    append2(a, p)
    stamp(a, 5)
    image_setup(a)
    tflag_wait(a, p)
    if "nopf" not in DIAG and "pfearly" not in DIAG and "pflate" not in DIAG: t_prefetch(a)
    a(f"s_waitcnt lgkmcnt(0)")
    a(f"s_barrier")
    stamp(a, 6)
    if STAMPS:
        a("s_memtime s[100:101]")
        a("s_waitcnt lgkmcnt(0)")
        a(f"s_mov_b32 s{sM1}, s100")
    a(f"ds_write_b128 v{vER}, {vr(Z,4)}")
    a(f"ds_write_b128 v{vER}, {vr(Z,4)} offset:1024")
    if "pflate" in DIAG or "pf2x" in DIAG: t_prefetch(a)
    a(f"v_and_b32 v6, 31, v{vLANE}")
    a(f"v_lshlrev_b32 v{vKR}, 2, v6")
    a(f"ds_read_b32 v7, v{vKR} offset:{LCNT}")
    cursor_starts(a, 6, 8)
    a(f"v_add_u32 v6, {4*CAP}, v6")
    a(f"s_mul_i32 s{sT0}, s{sLJ}, {LS*4}")
    a(f"s_add_u32 s{sT0}, s{sT0}, {KEYB}")
    a(f"s_and_b32 s{sNT}, s{sWV}, 14")
    a(f"s_or_b32 s{sIT}, s{sWV}, 1")
    a(f"s_waitcnt lgkmcnt(0)")
    a(f"v_readlane_b32 s{sT1}, v7, s{sNT}")
    a(f"v_readlane_b32 s{sT2}, v7, s{sIT}")
    a(f"v_readlane_b32 s{sT3}, v7, 16")
    a(f"v_cmp_lt_u32 vcc, v6, v7")
    a(f"s_and_b32 s{sNT}, vcc_lo, 0xffff")
    a(f"s_cbranch_scc1 {p}_overflow")
    a.c("the last partial tile of the first half moves behind the second half; 64 dummy edges behind that")
    a(f"s_sub_u32 s{sN0}, s{sT1}, s{sT0}")
    a(f"s_and_b32 s{sIT}, s{sN0}, 127")
    a(f"s_sub_u32 s{sT1}, s{sT1}, s{sIT}")
    a(f"v_lshl_add_u32 v6, v{vLANE}, 2, s{sT1}")
    a(f"v_lshlrev_b32 v7, 1, v6")
    a(f"ds_read_b32 v{vKEY}, v6")
    a(f"ds_read_b64 v[8:9], v7 offset:{EOFF}")
    a(f"s_lshr_b32 s{sN0}, s{sN0}, 7")
    a(f"v_lshlrev_b32 v6, 2, v{vLANE}")
    a(f"v_cmp_gt_u32 vcc, s{sIT}, v6")
    a(f"v_add_u32 v6, s{sT2}, v6")
    a(f"v_lshlrev_b32 v7, 1, v6")
    a(f"v_mov_b32 v{AEX}, 0x{N | (46 << 16):x}")
    a(f"s_add_u32 s{sJMP}, s{sT0}, {4*CAP}")
    a(f"s_sub_u32 s{sNT}, s{sT2}, s{sJMP}")
    a(f"s_add_u32 s{sNT}, s{sNT}, s{sIT}")
    a(f"s_add_u32 s{sNT}, s{sNT}, 63")
    a(f"s_lshr_b32 s{sNT}, s{sNT}, 6")
    a(f"s_and_b32 s{sHALF}, s{sNT}, 1")
    a(f"s_lshr_b32 s{sNT}, s{sNT}, 1")
    a(f"s_cmp_eq_u32 s{sN0}, 0")
    a(f"s_cselect_b32 s{sT0}, s{sJMP}, s{sT0}")
    a(f"v_add_u32 v{vKR}, s{sT0}, v{vKR}")
    a(f"v_lshlrev_b32 v{vER}, 1, v{vKR}")
    a(f"s_sub_u32 s{sJMP}, s{sJMP}, s{sT1}")
    a(f"s_add_u32 s{sJMP}, s{sJMP}, 128")
    a(f"s_waitcnt lgkmcnt(0)")
    a(f"v_cndmask_b32 v{vKEY}, v{AEX}, v{vKEY}, vcc")
    a(f"v_cndmask_b32 v8, 0, v8, vcc")
    a(f"v_cndmask_b32 v9, 0, v9, vcc")
    a(f"ds_write_b32 v6, v{vKEY}")
    a(f"ds_write_b64 v7, v[8:9] offset:{EOFF}")
    a(f"s_not_b64 exec, {sr(sHM,2)}")
    a(f"ds_write_b32 v6, v{AEX} offset:256")
    a(f"ds_write_b64 v7, {vr(Z,2)} offset:{EOFF + 512}")
    a(f"s_mov_b64 exec, -1")
    a(f"s_add_u32 s{sNT}, s{sNT}, s{sN0}")
    a(f"s_or_b32 s{sT0}, s{sNT}, s{sHALF}")
    a(f"s_cbranch_scc0 {p}_tiles_done")
    a(f"s_mov_b32 s{sIT}, 0")
    if "ppa" in DIAG: phase_prefetch(a, 0)
    rec_reads(a)
    step_calc(a, 1)
    step(a)
    a(f"s_waitcnt lgkmcnt(0)")
    addr_cvt(a)
    addr_pack(a)
    image_build(a)
    addr_mfma(a)
    aex_reads(a)
    rec_reads(a)
    step_calc(a, 2)
    step(a)
    a(f"s_sub_u32 s{sN0}, s{sN0}, 3")
    a(f"s_nop 15")
    a(f"s_waitcnt lgkmcnt(0)")
    addr_cvt(a)
    addr_pack(a)
    gathers(a, RA, fused)
    addr_mfma(a)
    a(f"s_nop 15")
    a(f"s_nop 3")
    if PRIO: a(f"s_setprio 3")
    a(f"s_cmp_eq_u32 s{sNT}, 0")
    a(f"s_cbranch_scc1 {p}_half0")
    a.lab(f"{p}_tile")
    tile_body(a, RA, RBUF, fused, f"{p}_b0")
    a(f"s_cbranch_scc0 {p}_exit1")
    tile_body(a, RBUF, RA, fused, f"{p}_b1")
    a(f"s_cbranch_scc1 {p}_tile")
    a(f"s_cmp_eq_u32 s{sHALF}, 0")
    a(f"s_cbranch_scc1 {p}_tiles_done")
    a.lab(f"{p}_half0")
    half_body(a, RA)
    a(f"s_branch {p}_tiles_done")
    a.lab(f"{p}_exit1")
    a(f"s_cmp_eq_u32 s{sHALF}, 0")
    a(f"s_cbranch_scc1 {p}_tiles_done")
    half_body(a, RBUF)
    a.lab(f"{p}_tiles_done")
    a(f"s_cmp_eq_u32 s{sT3}, 0")
    a(f"s_cbranch_scc1 {p}_epi")
    a(f"s_add_u32 s{sRB}, s{sRB}, s{sC}")
    a(f"s_branch {p}_next")
    a.lab(f"{p}_overflow")
    a(f"s_mov_b32 s{sC}, 1")
    a.lab(f"{p}_next")
    a.c("rare path: another round over the runs")
    a(f"s_waitcnt vmcnt(0) lgkmcnt(0)")
    a(f"s_barrier")
    init_counters(a, p, "r")
    rec_loads(a, p, "r", fused)
    a(f"s_waitcnt vmcnt(0) lgkmcnt(0)")
    a(f"s_barrier")
    a(f"s_branch {p}_round")
    a.lab(f"{p}_epi")
    stamp(a, 7)
    if STAMPS:
        a("s_memtime s[100:101]")
        a("s_waitcnt lgkmcnt(0)")
        a(f"s_sub_u32 s{sreg(9)}, s100, s{sM1}")
    a.c("---------------- epilogue: silu, pack, store")
    a(f"v_and_b32 v6, 31, v{vLANE}")
    a(f"v_cmp_gt_u32 vcc, s{sNN}, v6")
    a(f"v_add_u32 v6, s{sNODE0}, v6")
    a(f"v_lshlrev_b32 v6, 8, v6")
    a(f"v_lshrrev_b32 v7, 5, v{vLANE}")
    a(f"v_lshl_add_u32 v6, v7, 5, v6")
    a(f"s_lshl_b32 s{sT0}, s{sSL}, 6")
    a(f"v_add_u32 v6, s{sT0}, v6")
    a(f"s_nop 7")
    for j in range(16):
        a(f"v_mul_f32 v{Z+j}, s{sNL2E}, v{ACC+j}")
    for j in range(16):
        a(f"v_exp_f32 v{Z+j}, v{Z+j}")
    for j in range(16):
        a(f"v_add_f32 v{Z+j}, 1.0, v{Z+j}")
    for j in range(16):
        a(f"v_rcp_f32 v{Z+j}, v{Z+j}")
    for j in range(16):
        a(f"v_mul_f32 v{Z+j}, v{Z+j}, v{ACC+j}")
    for k in range(8):
        a(f"v_cvt_pk_bf16_f32 v{AEX+k}, v{Z+2*k}, v{Z+2*k+1}")
    a(f"s_mov_b64 exec, vcc")
    osc = " sc1" if "osc1" in DIAG else "" if "oplain" in DIAG else " nt"
    a(f"buffer_store_dwordx4 {vr(AEX,4)}, v6, {sr(SRD_OUT,4)}, 0 offen{osc}")
    a(f"buffer_store_dwordx4 {vr(AEX+4,4)}, v6, {sr(SRD_OUT,4)}, 0 offen offset:16{osc}")


def kernel_header(name):
    return f""".globl {name}
.p2align 8
.type {name},@function
{name}:
"""

def kernel_desc(name):
    return f""".amdhsa_kernel {name}
  .amdhsa_next_free_vgpr 128
  .amdhsa_next_free_sgpr 102
  .amdhsa_accum_offset 128
  .amdhsa_group_segment_fixed_size 0
  .amdhsa_kernarg_size 80
  .amdhsa_user_sgpr_count 2
  .amdhsa_user_sgpr_kernarg_segment_ptr 1
  .amdhsa_system_sgpr_workgroup_id_x 1
.end_amdhsa_kernel
"""

DOC = """;
;     wave 15 publishes per-bin headers {start, len, launch tag, checksum} and collects the 250 headers of its bin.
;  2. every wave computes, with MFMA, its rows of the table T[slice][node][32] = {bf16(-log2e * x B), bf16(1 / (x V))},
"""

def file_head():
    return open("cdna_kernels/" + NAME + ".s.ref").read().split("; Override launch geometry")[0]


def finish(a, kidx):
    stamp(a, 8)
    stamp_out(a, kidx, 12)


def hdr_peek(a):
    a(f"v_mov_b32 v7, 0")
    a(f"ds_read_b32 v13, v7 offset:{NONCE}")
    a(f"ds_read_b64 v[14:15], v{vHS}")


def csum_acc(a, p, tag):
    for i in range(NI):
        q = REC + 4 * i
        a(f"s_mov_b64 exec, {sr(MASKS[i],2)}")
        a(f"s_cbranch_execz {p}_cs{tag}")
        a(f"v_add3_u32 v2, v2, v{q}, v{q+1}")
        a(f"v_add_u32 v2, v2, v{q+2}")
    a.lab(f"{p}_cs{tag}")
    a(f"s_mov_b64 exec, -1")


def csum_check(a):
    a(f"s_nop 1")
    a(f"v_add_u32_dpp v2, v2, v2 quad_perm:[1,0,3,2] row_mask:0xf bank_mask:0xf")
    a(f"s_nop 1")
    a(f"v_add_u32_dpp v2, v2, v2 quad_perm:[2,3,0,1] row_mask:0xf bank_mask:0xf")
    a(f"v_cmp_ne_u32 vcc, v2, v15")
    a(f"s_cmp_lg_u64 vcc, 0")


def gen_1k():
    k = NAME + "_kernel"
    a = A(); p = "K"
    setup(a, p)
    stamp(a, 0)
    front(a, p)
    stamp(a, 2)
    if "frontonly" in DIAG:
        stamp_out(a, 0, 12)
        a("s_endpgm")
    w_addr(a)
    a.c("wait for the weights, the end of the record copy-out (staging area reused) and the x rows")
    a(f"s_lshl_b32 s{sT0}, s{sLJ}, 2")
    a(f"v_mov_b32 v12, s{sT0}")
    a.lab(f"{p}_xw")
    a(f"ds_read_b32 v15, v10 offset:{WF}")
    a(f"ds_read_b32 v13, v12 offset:{XFL}")
    a(f"s_waitcnt lgkmcnt(0)")
    a(f"v_add_u32 v7, v15, v13")
    a(f"s_nop 0")
    a(f"v_readfirstlane_b32 s{sT0}, v7")
    a(f"s_cmp_eq_u32 s{sT0}, {1 + 4}")
    a(f"s_cbranch_scc1 {p}_xok")
    a(f"s_sleep {NAP2}")
    a(f"s_branch {p}_xw")
    a.lab(f"{p}_xok")
    a(f"s_setprio {XP[4]}")
    a(f"s_cmp_lg_u32 s{sWV}, 15")
    a(f"s_cbranch_scc1 {p}_xp")
    a(f"s_setprio 3")
    a.lab(f"{p}_xp")
    stamp(a, 3)
    poll(a, p, "a", first=True)
    x_reads(a)
    for st in range(4):
        w_reads(a, 1, 2, st)
    gemm_pass(a, 1, 2, False, True)
    spin(a, f"{p}_s3w", S3, 14, 1)
    poll(a, p, "b")
    if True:
        a(f"s_sub_u32 s{sT0}, s{sWV}, 11")
        a(f"s_cmp_ge_u32 s{sT0}, 4")
        a(f"s_cbranch_scc1 {p}_noau")
        a(f"s_waitcnt vmcnt(0)")
        signal(a, WF2)
        a.lab(f"{p}_noau")
    table_store(a, True)
    stamp(a, 4)
    a(f"s_setprio {XP[5]}")
    a(f"v_mov_b32 v{vZ0}, 0")
    a(f"s_mov_b32 s{sNT}, 0")
    poll(a, p, "c", last=True)
    a(f"s_cmp_lt_u32 s{sWV}, {PUBW}")
    a(f"s_cbranch_scc1 {p}_pass2")
    a(f"s_waitcnt vmcnt(0)")
    a(f"s_call_b64 {sr(sRET,2)}, {p}_sub_pub")
    a(f"s_mov_b32 s{sNT}, 1")
    a.lab(f"{p}_pass2")
    spin(a, f"{p}_wf2", WF2, 4, NAP)
    a(f"v_lshrrev_b32 v{vHS}, 2, v0")
    a(f"v_lshlrev_b32 v{vHS}, 3, v{vHS}")
    a(f"v_add_u32 v{vHS}, {STG}, v{vHS}")
    hdr_peek(a)
    a(f"s_waitcnt lgkmcnt(0)")
    a(f"v_readfirstlane_b32 s{sNON}, v13")
    a(f"s_cmp_eq_u32 s{sNON}, 0")
    a(f"s_cbranch_scc1 {p}_hlate")
    a(f"s_call_b64 {sr(sRET,2)}, {p}_sub_first")
    a.lab(f"{p}_hlate")
    pu_pass(a, p)
    load_C(a)
    pop_pack(a)
    spin(a, f"{p}_xr", XR, 16, NAP)
    a(f"s_cmp_lg_u32 s{sNON}, 0")
    a(f"s_cbranch_scc1 {p}_hgone")
    a.lab(f"{p}_hwait")
    hdr_peek(a)
    a(f"s_waitcnt lgkmcnt(0)")
    a(f"v_readfirstlane_b32 s{sNON}, v13")
    a(f"s_cmp_lg_u32 s{sNON}, 0")
    a(f"s_cbranch_scc1 {p}_hgo")
    a(f"s_cmp_lg_u32 s{sNT}, 0")
    a(f"s_cbranch_scc1 {p}_hsleep")
    a(f"s_waitcnt vmcnt(0)")
    a(f"s_call_b64 {sr(sRET,2)}, {p}_sub_pub")
    a(f"s_mov_b32 s{sNT}, 1")
    a.lab(f"{p}_hsleep")
    a(f"s_sleep 1")
    a(f"s_branch {p}_hwait")
    a.lab(f"{p}_hgo")
    a(f"s_call_b64 {sr(sRET,2)}, {p}_sub_first")
    a.lab(f"{p}_hgone")
    stamp(a, 1)
    a(f"s_cmp_lg_u32 s{sNT}, 0")
    a(f"s_cbranch_scc1 {p}_pubdone")
    a(f"s_waitcnt vmcnt(0)")
    a(f"s_call_b64 {sr(sRET,2)}, {p}_sub_pub")
    a.lab(f"{p}_pubdone")
    if "pfearly" in DIAG:
        t_prefetch(a)
        a("s_waitcnt vmcnt(3)")
    else:
        a("s_waitcnt vmcnt(0)")
    stamp(a, 11)
    a(f"s_mov_b32 s{sNOH}, 0")
    tflag_issue(a, p)
    a.c("the records must add up to the checksums published with the headers")
    csum_acc(a, p, "a")
    a(f"v_and_b32 v6, 3, v0")
    a(f"v_add_u32 v6, v6, v{vHL}")
    a(f"v_cmp_lt_i32 {sr(sEX,2)}, {CFAST}, v6")
    csum_check(a)
    a(f"s_cbranch_scc1 {p}_vslow")
    a(f"s_cmp_lg_u64 {sr(sEX,2)}, 0")
    a(f"s_cbranch_scc1 {p}_vslow")
    a.lab(f"{p}_valid")
    main_phase(a, p, True)
    finish(a, 0)
    a.lab(f"{p}_end")
    a("s_endpgm")
    a.c("---------------- subroutines / rare paths")
    a.lab(f"{p}_sub_pub")
    a.c("the last wave whose table rows are out publishes the workgroup's flag")
    a(f"v_mov_b32 v6, 1")
    a(f"s_mov_b64 exec, 1")
    a(f"ds_add_rtn_u32 v6, v{vZ0}, v6 offset:{DONE}")
    a(f"ds_read_b32 v7, v{vZ0} offset:{NON2}")
    a(f"s_waitcnt lgkmcnt(0)")
    a(f"v_readfirstlane_b32 s{sT0}, v6")
    a(f"v_readfirstlane_b32 s{sT2}, v7")
    a(f"s_cmp_lg_u32 s{sT0}, 15")
    a(f"s_cbranch_scc1 {p}_nopub")
    a(f"s_lshr_b32 s{sT0}, s{sSL}, 1")
    a(f"s_lshl_b32 s{sT0}, s{sT0}, 7")
    a(f"s_add_u32 s{sT0}, s{sT0}, s{sBIN}")
    a(f"s_lshl_b32 s{sT0}, s{sT0}, 7")
    a(f"s_add_u32 s{sT0}, s{sT0}, {TFL_OFF}")
    a(f"s_not_b32 s{sT1}, s{sT2}")
    a(f"v_mov_b32 v6, s{sT0}")
    a(f"v_mov_b32 v8, s{sT2}")
    a(f"v_mov_b32 v9, s{sT1}")
    a(f"buffer_store_dwordx2 v[8:9], v6, {sr(SRD_HDR,4)}, 0 offen sc1")
    a.lab(f"{p}_nopub")
    a(f"s_mov_b64 exec, -1")
    a(f"s_setpc_b64 {sr(sRET,2)}")
    a.lab(f"{p}_sub_first")
    hdr_decode(a)
    rec_loads(a, p, "f", False, True)
    a(f"s_setpc_b64 {sr(sRET,2)}")
    a.lab(f"{p}_sub_loads")
    rec_loads(a, p, "s", True)
    a(f"s_setpc_b64 {sr(sRET,2)}")
    a.lab(f"{p}_vslow")
    a.c("long runs, or records not yet visible: add up every run completely, again until it fits")
    a(f"s_mov_b32 s{sSPIN}, {SPIN_MAX}")
    a.lab(f"{p}_vs_retry")
    a(f"s_mov_b32 s{sRB}, 0")
    a(f"v_mov_b32 v2, 0")
    a.lab(f"{p}_vs_part")
    a(f"s_call_b64 {sr(sRET,2)}, {p}_sub_loads")
    a(f"s_waitcnt vmcnt(0)")
    csum_acc(a, p, "v")
    a(f"s_add_u32 s{sRB}, s{sRB}, {CFAST}")
    a(f"v_and_b32 v6, 3, v0")
    a(f"v_add_u32 v6, v6, v{vHL}")
    a(f"v_cmp_lt_i32 vcc, s{sRB}, v6")
    a(f"s_cmp_lg_u64 vcc, 0")
    a(f"s_cbranch_scc1 {p}_vs_part")
    csum_check(a)
    a(f"s_cbranch_scc0 {p}_vs_ok")
    a(f"s_sub_u32 s{sSPIN}, s{sSPIN}, 1")
    a(f"s_cbranch_scc0 {p}_vs_retry")
    a.lab(f"{p}_vs_ok")
    a(f"s_mov_b32 s{sRB}, 0")
    a(f"s_call_b64 {sr(sRET,2)}, {p}_sub_loads")
    a(f"s_waitcnt vmcnt(0)")
    a(f"s_branch {p}_valid")
    a.lab(f"{p}_code_end")
    s = file_head()
    s += f"; @launch grid=(256,1,1) block=(1024,1,1) lds={LDS_BYTES}\n"
    s += DOC
    s += '.amdgcn_target "amdgcn-amd-amdhsa--gfx950"\n.text\n'
    s += kernel_header(k) + a.text()
    s += '.section .rodata,"a"\n.p2align 6\n' + kernel_desc(k)
    return s


if __name__ == "__main__":
    if "-stamps" in sys.argv:
        STAMPS = True; sys.argv.remove("-stamps")
    if "-noprio" in sys.argv:
        PRIO = False; sys.argv.remove("-noprio")
    for x in list(sys.argv):
        if x.startswith("-TF"):
            TFW = int(x[3:]); sys.argv.remove(x)
        if x.startswith("-PR"):
            PREW = int(x[3:]); sys.argv.remove(x)
        if x.startswith("-MP"):
            MIDPUB = int(x[3:]); sys.argv.remove(x)
        if x.startswith("-WB"):
            WS_BASE = int(x[3:]) << 20; sys.argv.remove(x)
        if x.startswith("-PB"):
            PPB = int(x[3:]); sys.argv.remove(x)
        if x.startswith("-NP"):
            NAP, NAP2 = map(int, x[3:].split(",")); sys.argv.remove(x)
        if x.startswith("-PL"):
            PRL = tuple(map(int, x[3:].split(","))); sys.argv.remove(x)
        if x.startswith("-PW"):
            PUBW = int(x[3:]); sys.argv.remove(x)
        if x.startswith("-XP"):
            XP = [int(c) for c in x[3:]]; sys.argv.remove(x)
        if x.startswith("-XE"):
            XEARLY = int(x[3:]); sys.argv.remove(x)
        if x.startswith("-PS"):
            PS1, PS2 = map(int, x[3:].split(",")); sys.argv.remove(x)
        if x.startswith("-D"):
            DIAG.add(x[2:]); sys.argv.remove(x)
    mode = gen_1k
    if "-1k" in sys.argv:
        mode = gen_1k; sys.argv.remove("-1k")
    out = sys.argv[1] if len(sys.argv) > 1 else "cdna_kernels/" + NAME + ".s"
    open(out, "w").write(mode())
    print("wrote", out, "LDS", LDS_BYTES)
```

```python
import sys

N = 25000
E = 400000
NAME = "gather_scatter__edge_featured_mpnn_egc__graph"

TS = 25024 * 128
REC_OFF = 0x1000000
REC_BYTES = 250 * 19200
HDR_OFF = 0x1800000
HDR_BYTES = 128 * 256 * 16
TFL_OFF = HDR_BYTES
HDR_SRD_BYTES = HDR_BYTES + 256 * 128
MAGIC_OFF = 0x4B000000

CNT = 0
CSUM = 512
OFFS = 1024
LCNT = 1536
NONCE, DONE, NON2, S2, S3, WF, WF2, XR = [LCNT + 128 + 4 * i for i in range(8)]
XFL = LCNT + 192
assert S3 % 8 == 0
CAP = 270
LS = 2 * CAP + 96
KEYB = 1792
EB = KEYB + 8 * LS * 4
EOFF = EB - 2 * KEYB
IMG = EB + 8 * LS * 8
XB = KEYB
XT = 26 * 256
assert XB % 256 == 0 and XB + 8 * XT + 6 * 256 <= IMG + 2048
STG = IMG
WB = IMG + 32768
PFS = WB + 65536
CB = PFS + 1024
LDS_BYTES = CB + 512
NI = 8
CFAST = 4 * NI

SRD_X, SRD_E, SRD_SRC, SRD_DST, SRD_W, SRD_OUT, SRD_TS, SRD_TG, SRD_REC, SRD_HDR, SRD_G = [4 + 4 * i for i in range(11)]
SRD_DBG = SRD_E
KP = 48
sLJ = 3
sNR = 71
sWV, sBIN, sSL, sNODE0, sNN = 68, 69, 70, 72, 73
sSPIN = 95
sNL2E, sMAXF, sSELLO, sSELHI, sMAGIC, s127, sM1, sM2, sM3, sM4, sSTG, sKMAX = range(74, 86)
sHM = 86
sT0, sT1, sT2, sT3 = 88, 89, 90, 91
sRB, sC, sNT, sIT = 92, 93, 94, 95
sEX = 96
sNON, sNOH = 98, 99
sDEB = 96
sRET = 64
MASKS = [4 + 2 * i for i in range(8)]
SPIN_MAX = 1000000

vLANE = 1
ACC = 32; REC = 96
POP, AEX, SAG = 48, 56, 64
OFF = 16
RA, RBUF, Z = 72, 88, 104


class A:
    def __init__(self):
        self.l = []
    def __call__(self, s):
        for x in s.strip("\n").split("\n"):
            self.l.append("    " + x.strip())
    def lab(self, s):
        self.l.append(s + ":")
    def c(self, s):
        self.l.append("    ; " + s)
    def text(self):
        return "\n".join(self.l) + "\n"


def vr(a, n):
    return f"v[{a}:{a+n-1}]"
def sr(a, n):
    return f"s[{a}:{a+n-1}]"


STAMPS = False
PRIO = True
PS1, PS2 = 8, 8
XEARLY = 4
XP = [0, 0, 0, 0, 2, 1]
PUBW = 4
NS_SL = 3
PREW = 0
MIDPUB = -1
WS_BASE = 0
PPB = None
XORD = (1, 0)
NAP, NAP2 = 3, 1
PRL = (1, 3, 6)
TFW = 14
DIAG = set()
STAMP_OFF = 0x2000000
def sreg(i):
    return KP + i if i < 8 else KP + 4 + i
def stamp(a, i):
    if not STAMPS: return
    a(f"s_memrealtime s[100:101]")
    a(f"s_waitcnt lgkmcnt(0)")
    a(f"s_mov_b32 s{sreg(i)}, s100")

def stamp_out(a, kidx, n):
    if not STAMPS: return
    a(f"s_mov_b64 exec, -1")
    if "dbgmax" in DIAG:
        a(f"s_load_dwordx2 {sr(sT2,2)}, s[0:1], 64")
        a(f"s_waitcnt lgkmcnt(0)")
        srd(a, SRD_W, sT2, sT3, 256)
        a(f"v_mov_b32 v6, 0")
        a(f"ds_read_b32 v8, v6 offset:{NON2}")
        a(f"s_waitcnt lgkmcnt(0)")
        a(f"s_mov_b64 exec, 1")
        for i in (0, 2, 3, 4, 11, 5, 6, 7, 8):
            a(f"v_sub_u32 v7, s{sreg(i)}, v8")
            a(f"v_max_i32 v7, 0, v7")
            a(f"buffer_atomic_umax v7, v6, {sr(SRD_W,4)}, 0 offen offset:{4*(i+1)}")
        return
    a(f"s_add_u32 s{sT2}, s{KP+18}, 0x{STAMP_OFF + kidx * 0x100000:x}")
    a(f"s_addc_u32 s{sT3}, s{KP+19}, 0")
    srd(a, SRD_W, sT2, sT3, 0x100000)
    a(f"s_lshl_b32 s{sT0}, s2, 4")
    a(f"s_add_u32 s{sT0}, s{sT0}, s{sWV}")
    a(f"s_lshl_b32 s{sT0}, s{sT0}, 6")
    a(f"v_mov_b32 v6, s{sT0}")
    for i in range(n):
        a(f"v_mov_b32 v7, s{sreg(i)}")
        a(f"buffer_store_dword v7, v6, {sr(SRD_W,4)}, 0 offen offset:{4*i}")


def srd(a, d, lo, hi, nbytes):
    a(f"s_mov_b32 s{d}, s{lo}")
    a(f"s_mov_b32 s{d+1}, s{hi}")
    a(f"s_mov_b32 s{d+2}, {nbytes}")
    a(f"s_mov_b32 s{d+3}, 0x00020000")


def setup(a, p):
    a.c("---------------- setup")
    a(f"s_cmp_ge_u32 s2, 256")
    a(f"s_cbranch_scc1 {p}_end")
    a(f"s_load_dwordx16 {sr(KP,16)}, s[0:1], 0")
    a(f"s_load_dwordx4 {sr(KP+16,4)}, s[0:1], 64")
    a(f"s_memrealtime s[100:101]")
    a(f"v_lshrrev_b32 v2, 6, v0")
    a(f"v_and_b32 v{vLANE}, 63, v0")
    a(f"v_readfirstlane_b32 s{sWV}, v2")
    a(f"s_lshr_b32 s{sBIN}, s2, 3")
    a(f"s_and_b32 s{sT0}, s2, 3")
    a(f"s_lshl_b32 s{sT0}, s{sT0}, 5")
    a(f"s_or_b32 s{sBIN}, s{sBIN}, s{sT0}")
    a(f"s_lshr_b32 s{sSL}, s2, 1")
    a(f"s_and_b32 s{sSL}, s{sSL}, 2")
    a(f"s_and_b32 s{sT0}, s{sWV}, 1")
    a(f"s_or_b32 s{sSL}, s{sSL}, s{sT0}")
    a(f"s_lshr_b32 s{sLJ}, s{sWV}, 1")
    a(f"s_mul_i32 s{sT0}, s2, 6400")
    a(f"v_lshl_add_u32 v3, v0, 4, s{sT0}")
    a(f"v_lshlrev_b32 v4, 1, v3")
    a(f"s_mul_i32 s{sT1}, s{sSL}, {TS}")
    a(f"s_waitcnt lgkmcnt(0)")
    x, e, src, dst, u, v, g, out, dbg, ws = [KP + 2 * i for i in range(10)]
    if WS_BASE:
        a(f"s_add_u32 s{ws}, s{ws}, 0x{WS_BASE:x}")
        a(f"s_addc_u32 s{ws+1}, s{ws+1}, 0")
    a(f"s_or_b32 s{sT0}, s2, s{sWV}")
    a(f"s_cbranch_scc1 {p}_notag")
    a.c("launch tag: the first wave of workgroup 0 publishes a clock value in d_debug, everyone picks it up")
    srd(a, SRD_DBG, dbg, dbg + 1, 256)
    a(f"s_or_b32 s{sT0}, s100, 1")
    a(f"v_mov_b32 v13, s{sT0}")
    a(f"v_mov_b32 v10, 0")
    a(f"s_mov_b64 exec, 1")
    a(f"buffer_store_dword v13, v10, {sr(SRD_DBG,4)}, 0 offen sc1")
    if "xcc" in DIAG:
        a(f"s_getreg_b32 s{sT0}, hwreg(HW_REG_XCC_ID)")
        a(f"v_mov_b32 v12, s{sT0}")
        a(f"buffer_store_dword v12, v10, {sr(SRD_DBG,4)}, 0 offen offset:128")
    a(f"s_mov_b64 exec, -1")
    a.lab(f"{p}_notag")
    srd(a, SRD_DST, dst, dst + 1, E * 4)
    srd(a, SRD_SRC, src, src + 1, E * 4)
    srd(a, SRD_E, e, e + 1, E * 8)
    a(f"s_cmp_ge_u32 s{sWV}, 7")
    a(f"s_cbranch_scc1 {p}_noedge")
    a(f"buffer_load_dwordx4 {vr(vD,4)}, v3, {sr(SRD_DST,4)}, 0 offen")
    a(f"buffer_load_dwordx4 {vr(vS,4)}, v3, {sr(SRD_SRC,4)}, 0 offen")
    if "elate" not in DIAG:
        a(f"buffer_load_dwordx4 {vr(vE,4)}, v4, {sr(SRD_E,4)}, 0 offen")
        a(f"buffer_load_dwordx4 {vr(vE+4,4)}, v4, {sr(SRD_E,4)}, 0 offen offset:16")
    a.lab(f"{p}_noedge")
    a(f"s_lshl_b32 s{sT0}, s{sBIN}, 3")
    a(f"s_add_u32 s{sT0}, s{sT0}, s{sLJ}")
    a(f"s_mul_i32 s{sT0}, s{sT0}, 3125")
    a(f"s_lshr_b32 s{sNODE0}, s{sT0}, 7")
    a(f"s_add_u32 s{sT0}, s{sT0}, 3125")
    a(f"s_lshr_b32 s{sNN}, s{sT0}, 7")
    a(f"s_cmp_eq_u32 s{sNN}, {N}")
    a(f"s_cselect_b32 s{sNR}, 1, 0")
    a(f"s_sub_u32 s{sNN}, s{sNN}, s{sNODE0}")
    a(f"s_add_u32 s{sNR}, s{sNR}, s{sNN}")
    a(f"s_mov_b32 s{sHM}, 0")
    a(f"s_mov_b32 s{sHM+1}, -1")
    srd(a, SRD_X, x, x + 1, N * 256)
    srd(a, SRD_OUT, out, out + 1, N * 256)
    srd(a, SRD_G, g, g + 1, 260 * 256)
    a(f"s_add_u32 s{sT2}, s{ws}, s{sT1}")
    a(f"s_addc_u32 s{sT3}, s{ws+1}, 0")
    srd(a, SRD_TS, sT2, sT3, (N + 1) * 128)
    a(f"s_sub_u32 s{sT2}, s{sT2}, 0x{MAGIC_OFF:x}")
    a(f"s_subb_u32 s{sT3}, s{sT3}, 0")
    srd(a, SRD_TG, sT2, sT3, MAGIC_OFF + (N + 1) * 128)
    a(f"s_add_u32 s{sT2}, s{ws}, 0x{REC_OFF:x}")
    a(f"s_addc_u32 s{sT3}, s{ws+1}, 0")
    srd(a, SRD_REC, sT2, sT3, REC_BYTES)
    a(f"s_add_u32 s{sT2}, s{ws}, 0x{HDR_OFF:x}")
    a(f"s_addc_u32 s{sT3}, s{ws+1}, 0")
    srd(a, SRD_HDR, sT2, sT3, HDR_SRD_BYTES)
    a(f"s_mov_b32 s{sNL2E}, 0xbfb8aa3b")
    a(f"s_mov_b32 s{sMAXF}, 0x7f7f0000")
    a(f"s_mov_b32 s{sSELLO}, 0x07060100")
    a(f"s_mov_b32 s{sSELHI}, 0x07060302")
    a(f"s_mov_b32 s{sMAGIC}, 10995117")
    a(f"s_mov_b32 s{s127}, 127")
    a(f"s_mov_b32 s{sM1}, 0x260000")
    a(f"s_mov_b32 s{sM2}, 0x100000")
    a(f"s_mov_b32 s{sM3}, 0x080000")
    a(f"s_mov_b32 s{sM4}, 0x38000000")
    a(f"s_mov_b32 s{sSTG}, {STG}")
    a(f"s_mov_b32 s{sKMAX}, {EB - 4}")
    a(f"v_mov_b32 v{vONE}, 1")
    a(f"v_mov_b32 v10, 0")


def spin(a, lab, off, val, nap=0):
    if nap:
        a(f"s_branch {lab}")
        a.lab(lab + "_nap")
        a(f"s_sleep {nap}")
    a.lab(lab)
    a(f"ds_read_b32 v11, v10 offset:{off}")
    a(f"s_waitcnt lgkmcnt(0)")
    a(f"v_readfirstlane_b32 s{sT0}, v11")
    a(f"s_cmp_lt_u32 s{sT0}, {val}")
    a(f"s_cbranch_scc1 {lab + '_nap' if nap else lab}")


def signal(a, off):
    a(f"s_mov_b64 exec, 1")
    a(f"ds_add_u32 v10, v{vONE} offset:{off}")
    a(f"s_mov_b64 exec, -1")


def cursor_starts(a, d, t):
    a(f"v_lshrrev_b32 v{d}, 1, v{vLANE}")
    a(f"v_mul_u32_u24 v{d}, {LS*4}, v{d}")
    a(f"v_and_b32 v{t}, 1, v{vLANE}")
    a(f"v_mul_u32_u24 v{t}, {CAP*4}, v{t}")
    a(f"v_add_u32 v{d}, v{d}, v{t}")
    a(f"v_add_u32 v{d}, {KEYB}, v{d}")


def init_counters(a, p, tag):
    a.c("wave 0: list cursors = list starts")
    a(f"s_cmp_lg_u32 s{sWV}, 0")
    a(f"s_cbranch_scc1 {p}_ic{tag}")
    a(f"v_lshlrev_b32 v7, 2, v{vLANE}")
    cursor_starts(a, 8, 9)
    a(f"v_cmp_gt_u32 vcc, 16, v{vLANE}")
    a(f"s_nop 1")
    a(f"v_cndmask_b32 v8, 0, v8, vcc")
    a(f"s_not_b64 exec, {sr(sHM,2)}")
    a(f"ds_write_b32 v7, v8 offset:{LCNT}")
    a(f"s_mov_b64 exec, -1")
    a.lab(f"{p}_ic{tag}")


def scan64(a, v):
    for sh in (1, 2, 4, 8):
        a(f"s_nop 1")
        a(f"v_add_u32_dpp v{v}, v{v}, v{v} row_shr:{sh} row_mask:0xf bank_mask:0xf bound_ctrl:0")
    a(f"s_nop 1")
    a(f"v_add_u32_dpp v{v}, v{v}, v{v} row_bcast:15 row_mask:0xa bank_mask:0xf")
    a(f"s_nop 1")
    a(f"v_add_u32_dpp v{v}, v{v}, v{v} row_bcast:31 row_mask:0xc bank_mask:0xf")


vD, vS, vE, vK, vB, vR = 72, 76, 80, 88, 92, 96
vTa, vTb, vTc = 100, 101, 102
vONE = 2
NQ = (51, 55, 123, 127)


vC2, vO2 = 104, 106
def offsets_scan(a):
    a(f"v_lshlrev_b32 v{vTa}, 3, v{vLANE}")
    a(f"ds_read_b64 {vr(vC2,2)}, v{vTa} offset:{CNT}")
    a(f"s_waitcnt lgkmcnt(0)")
    a(f"v_add_u32 v{vTb}, v{vC2}, v{vC2+1}")
    a(f"v_mov_b32 v{vTc}, v{vTb}")
    scan64(a, vTc)
    a(f"v_sub_u32 v{vO2}, v{vTc}, v{vTb}")
    a(f"v_add_u32 v{vO2+1}, v{vO2}, v{vC2}")


def noh_from_non(a):
    a(f"s_mul_i32 s{sNOH}, s{sNON}, 0x9e3779b1")
    a(f"s_and_b32 s{sNOH}, s{sNOH}, 0xf800f800")


def w_dma(a, first):
    u, v, g = KP + 8, KP + 10, KP + 12
    a(f"s_sub_u32 s{sT2}, s{sWV}, {first}")
    a(f"s_and_b32 s{sT3}, s{sT2}, 6")
    a(f"s_lshr_b32 s{sT3}, 0xc9, s{sT3}")
    a(f"s_and_b32 s{sT3}, s{sT3}, 3")
    a(f"s_cmp_eq_u32 s{sT3}, 2")
    a(f"s_cselect_b64 {sr(SRD_W,2)}, {sr(v,2)}, {sr(u,2)}")
    a(f"s_mov_b32 s{SRD_W+2}, 32768")
    a(f"s_cmp_lt_u32 s{sT3}, 2")
    a(f"s_cselect_b64 {sr(SRD_W,2)}, {sr(g,2)}, {sr(SRD_W,2)}")
    a(f"s_cselect_b32 s{SRD_W+2}, 65536, s{SRD_W+2}")
    a(f"s_mov_b32 s{SRD_W+3}, 0x00020000")
    a(f"s_cmp_eq_u32 s{sT3}, 1")
    a(f"s_cselect_b32 s{sT0}, 32768, 0")
    a(f"s_and_b32 s{sT2}, s{sT2}, 1")
    a(f"s_lshl_b32 s{sT1}, s{sT2}, 14")
    a(f"s_add_u32 s{sT0}, s{sT0}, s{sT1}")
    a(f"s_lshr_b32 s{sT1}, s{sSL}, 1")
    a(f"s_lshl_b32 s{sT1}, s{sT1}, 7")
    a(f"s_add_u32 s{sT0}, s{sT0}, s{sT1}")
    a.c("row lane>>3, 16-byte piece lane&7; the 64-byte halves of rows 2,3 (mod 4) are swapped")
    a(f"v_lshrrev_b32 v4, 3, v{vLANE}")
    a(f"v_lshl_add_u32 v4, v4, 8, s{sT0}")
    a(f"v_bfe_u32 v6, v{vLANE}, 4, 1")
    a(f"v_lshlrev_b32 v6, 2, v6")
    a(f"v_xor_b32 v6, v6, v{vLANE}")
    a(f"v_and_b32 v6, 7, v6")
    a(f"v_lshl_add_u32 v4, v6, 4, v4")
    a(f"s_lshl_b32 s{sT0}, s{sT3}, 14")
    a(f"s_lshl_b32 s{sT2}, s{sT2}, 13")
    a(f"s_add_u32 s{sT0}, s{sT0}, s{sT2}")
    for d in range(8):
        a(f"s_add_u32 m0, s{sT0}, {WB + 1024 * d}")
        a(f"s_mov_b32 s{sT1}, {2048 * d}")
        a(f"buffer_load_dwordx4 v4, {sr(SRD_W,4)}, s{sT1} offen lds")


def au_dma(a, p, tag, keep=False):
    if keep: a(f"v_mov_b32 v3, v4")
    w_dma(a, 7)
    a(f"s_cmp_lg_u32 s{sWV}, 11")
    a(f"s_cbranch_scc1 {p}_noc{tag}")
    a(f"v_and_b32 v6, 7, v{vLANE}")
    a(f"v_lshrrev_b32 v4, 3, v{vLANE}")
    a(f"v_lshlrev_b32 v4, 8, v4")
    a(f"v_lshl_add_u32 v4, v6, 4, v4")
    a(f"s_lshr_b32 s{sT1}, s{sSL}, 1")
    a(f"s_lshl_b32 s{sT1}, s{sT1}, 7")
    a(f"s_add_u32 s{sT1}, s{sT1}, 65536")
    a(f"s_mov_b32 m0, {CB}")
    a(f"s_not_b64 exec, {sr(sHM,2)}")
    a(f"buffer_load_dwordx4 v4, {sr(SRD_G,4)}, s{sT1} offen lds")
    a(f"s_mov_b64 exec, -1")
    a.lab(f"{p}_noc{tag}")
    if keep: a(f"v_mov_b32 v4, v3")


def x_tiles(a, consts, which):
    a.c("x tile: row (lane>>4) + 4i, slot lane&15 holds chunk slot ^ (row & 15)")
    if consts:
        a(f"v_lshrrev_b32 v6, 4, v{vLANE}")
        a(f"v_xor_b32 v7, v6, v{vLANE}")
        a(f"v_and_b32 v7, 15, v7")
        a(f"v_lshlrev_b32 v72, 8, v6")
        a(f"v_lshl_add_u32 v72, v7, 4, v72")
        for k in range(1, 4):
            a(f"v_xor_b32 v{72+k}, {64*k}, v72")
    for n in which:
        a(f"s_sub_u32 s{sT3}, s{sWV}, {7 - 4 * XORD[n]}")
        a(f"s_mul_i32 s{sT2}, s{sT3}, {XT}")
        a(f"s_lshl_b32 s{sT1}, s{sBIN}, 3")
        a(f"s_add_u32 s{sT1}, s{sT1}, s{sT3}")
        a(f"s_mul_i32 s{sT1}, s{sT1}, 3125")
        a(f"s_lshr_b32 s{sT1}, s{sT1}, 7")
        a(f"s_lshl_b32 s{sT1}, s{sT1}, 8")
        a(f"s_lshl_b32 s{sT0}, s{sT3}, 2")
        a(f"v_mov_b32 v{12+n}, s{sT0}")
        for i in range(7):
            a(f"s_add_u32 m0, s{sT2}, {XB + 1024 * i}")
            a(f"v_add_u32 v6, s{sT1}, v{72 + (i & 3)}")
            if i < 6:
                a(f"s_add_u32 s{sT1}, s{sT1}, 1024")
            else:
                a(f"s_not_b64 exec, {sr(sHM,2)}")
            a(f"buffer_load_dwordx4 v6, {sr(SRD_X,4)}, 0 offen lds")
        a(f"s_mov_b64 exec, -1")


def front(a, p):
    if "xpre" in DIAG:
        a(f"s_sub_u32 s{sT0}, s{sWV}, 7")
        a(f"s_cmp_ge_u32 s{sT0}, 4")
        a(f"s_cbranch_scc1 {p}_f_noxpre")
        x_tiles(a, True, (0,))
        a.lab(f"{p}_f_noxpre")
    if "nowpf" not in DIAG:
        a(f"s_sub_u32 s{sT0}, s{sWV}, 11")
        a(f"s_cmp_ge_u32 s{sT0}, 4")
        a(f"s_cbranch_scc1 {p}_f_nowpf")
        a(f"s_lshl_b32 s{sIT}, s{sT0}, 10")
        a.c("waves 11-14: touch 16 of the 512 weight lines this XCD needs (its 32 workgroups share them out)")
        u, v, g = KP + 8, KP + 10, KP + 12
        a(f"s_lshr_b32 s{sT2}, s2, 3")
        a(f"s_lshr_b32 s{sT3}, s{sT2}, 3")
        a(f"s_cmp_eq_u32 s{sT3}, 2")
        a(f"s_cselect_b64 {sr(SRD_W,2)}, {sr(v,2)}, {sr(u,2)}")
        a(f"s_mov_b32 s{SRD_W+2}, 32768")
        a(f"s_cmp_lt_u32 s{sT3}, 2")
        a(f"s_cselect_b64 {sr(SRD_W,2)}, {sr(g,2)}, {sr(SRD_W,2)}")
        a(f"s_cselect_b32 s{SRD_W+2}, 65536, s{SRD_W+2}")
        a(f"s_cselect_b32 s{sT0}, 15, 7")
        a(f"s_mov_b32 s{SRD_W+3}, 0x00020000")
        a(f"s_and_b32 s{sT2}, s{sT2}, s{sT0}")
        a(f"s_lshl_b32 s{sT2}, s{sT2}, 12")
        a(f"s_lshr_b32 s{sT1}, s{sSL}, 1")
        a(f"s_lshl_b32 s{sT1}, s{sT1}, 7")
        a(f"s_add_u32 s{sT2}, s{sT2}, s{sT1}")
        a(f"s_add_u32 s{sT2}, s{sT2}, s{sIT}")
        a(f"v_lshl_add_u32 v6, v{vLANE}, 8, s{sT2}")
        a(f"s_mov_b64 exec, 15")
        a(f"buffer_load_dword v104, v6, {sr(SRD_W,4)}, 0 offen")
        a(f"s_mov_b64 exec, -1")
        a.lab(f"{p}_f_nowpf")
    a(f"s_cmp_lg_u32 s{sWV}, 7")
    a(f"s_cbranch_scc1 {p}_f_noinit")
    a.c("wave 7: bin counters, checksums, flags = 0, list cursors = list starts")
    a(f"v_lshlrev_b32 v7, 2, v{vLANE}")
    cursor_starts(a, 8, 9)
    a(f"v_cmp_gt_u32 vcc, 16, v{vLANE}")
    for k in range(4):
        a(f"ds_write_b32 v7, v10 offset:{CNT + 256 * k}")
    a(f"v_cndmask_b32 v8, 0, v8, vcc")
    a(f"ds_write_b32 v7, v8 offset:{LCNT}")
    if "noicpf" not in DIAG:
        a.c("read the kernel's own code once so that later instruction fetches find it in the L2")
        a(f"s_getpc_b64 {sr(sT2,2)}")
        a.lab(f"{p}_pc")
        a(f"v_lshlrev_b32 v9, 7, v{vLANE}")
        a(f"global_load_dword v104, v9, {sr(sT2,2)}")
        a(f"v_add_u32 v9, 8192, v9")
        a(f"v_cmp_gt_u32 vcc, {p}_code_end - {p}_pc - 4, v9")
        a(f"s_mov_b64 exec, vcc")
        a(f"global_load_dword v105, v9, {sr(sT2,2)}")
        a(f"s_mov_b64 exec, -1")
    a(f"s_waitcnt lgkmcnt(0)")
    a.lab(f"{p}_f_noinit")
    a(f"s_cmp_lg_u32 s{sWV}, 15")
    a(f"s_cbranch_scc1 {p}_tag_done")
    srd(a, SRD_DBG, KP + 16, KP + 17, 256)
    a(f"buffer_load_dword v{NQ[0]}, v10, {sr(SRD_DBG,4)}, 0 offen sc1")
    a.lab(f"{p}_tag_done")
    a(f"s_barrier")
    a(f"s_cmp_eq_u32 s{sWV}, 15")
    a(f"s_cbranch_scc1 {p}_f_w15")
    a(f"s_cmp_ge_u32 s{sWV}, 7")
    a(f"s_cbranch_scc1 {p}_f_loader")

    a.c("---------------- waves 0-6: sort this workgroup's 1600 edges by destination bin")
    a(f"s_setprio {XP[3]}")
    a(f"s_cmp_lt_u32 s2, 250")
    a(f"s_cselect_b32 s{sT0}, 400, 0")
    a(f"v_cmp_gt_u32 vcc, s{sT0}, v0")
    a(f"s_mov_b64 {sr(sEX,2)}, vcc")
    a(f"s_waitcnt vmcnt({1 if 'elate' in DIAG else 3})")
    stamp(a, 1)
    for e in range(4):
        a(f"v_lshl_or_b32 v{vK+e}, v{vD+e}, 7, s{s127}")
        a(f"v_mul_hi_u32 v{vK+e}, v{vK+e}, s{sMAGIC}")
        a(f"v_lshrrev_b32 v{vB+e}, 4, v{vK+e}")
        a(f"v_and_b32 v{vB+e}, 0x1fc, v{vB+e}")
    a(f"s_mov_b64 exec, {sr(sEX,2)}")
    for e in range(4):
        a(f"ds_add_rtn_u32 v{vR+e}, v{vB+e}, v{vONE} offset:{CNT}")
    signal(a, S2)
    if "elate" in DIAG:
        a(f"buffer_load_dwordx4 {vr(vE,4)}, v4, {sr(SRD_E,4)}, 0 offen")
        a(f"buffer_load_dwordx4 {vr(vE+4,4)}, v4, {sr(SRD_E,4)}, 0 offen offset:16")
    for e in range(4):
        d, k = vD + e, vK + e
        a(f"v_lshrrev_b32 v{vTa}, 3, v{k}")
        a(f"v_mul_u32_u24 v{vTb}, 3125, v{vTa}")
        a(f"v_lshrrev_b32 v{vTb}, 7, v{vTb}")
        a(f"v_sub_u32 v{vTb}, v{d}, v{vTb}")
        a(f"v_lshlrev_b32 v{k}, 27, v{vTa}")
        a(f"v_and_b32 v{k}, s{sM4}, v{k}")
        a(f"v_lshlrev_b32 v{vTc}, 17, v{vTb}")
        a(f"v_and_or_b32 v{k}, v{vTc}, s{sM1}, v{k}")
        a(f"v_lshlrev_b32 v{vTc}, 18, v{vTb}")
        a(f"v_and_or_b32 v{k}, v{vTc}, s{sM2}, v{k}")
        a(f"v_lshlrev_b32 v{vTc}, 16, v{vTb}")
        a(f"v_and_or_b32 v{k}, v{vTc}, s{sM3}, v{k}")
    a(f"s_lshl_b32 s{sT1}, s{sWV}, 10")
    a(f"v_lshl_add_u32 v3, v{vLANE}, 4, s{sT1}")
    a(f"v_add_u32 v7, {STG}, v3")
    a(f"s_mul_i32 s{sT1}, s2, 19200")
    a(f"v_add_u32 v3, s{sT1}, v3")
    spin(a, f"{p}_f_s2", S2, 7)
    stamp(a, 10)
    offsets_scan(a)
    a(f"ds_write_b64 v{vTa}, {vr(vO2,2)} offset:{OFFS}")
    for e in range(4):
        a(f"ds_read_b32 v{vD+e}, v{vB+e} offset:{OFFS}")
    a(f"s_mov_b32 s{sT2}, {32768 - N // 2}")
    a(f"s_mov_b32 s{sT3}, 0x04000000")
    a(f"s_waitcnt vmcnt(0)")
    for e in range(4):
        a(f"v_add_lshl_u32 v{vTb}, v{vS+e}, s{sT2}, 11")
        a(f"v_or_b32 v{vK+e}, v{vK+e}, v{vS+e}")
        a(f"v_and_or_b32 v{vK+e}, v{vTb}, s{sT3}, v{vK+e}")
        a(f"v_add3_u32 v{vS+e}, v{vE+2*e}, v{vE+2*e+1}, v{vK+e}")
    a(f"s_waitcnt lgkmcnt(0)")
    for e in range(4):
        a(f"v_add_u32 v{vR+e}, v{vR+e}, v{vD+e}")
        a(f"v_mad_u32_u24 v{vR+e}, v{vR+e}, 12, s{sSTG}")
    a(f"s_mov_b64 exec, {sr(sEX,2)}")
    for e in range(4):
        a(f"ds_write2_b32 v{vR+e}, v{vE+2*e}, v{vE+2*e+1} offset0:0 offset1:1")
        a(f"ds_write_b32 v{vR+e}, v{vK+e} offset:8")
        a(f"ds_add_u32 v{vB+e}, v{vS+e} offset:{CSUM}")
    signal(a, S3)
    spin(a, f"{p}_f_s3", S3, 7)
    a.c("copy the sorted records out: 1 KiB pieces wv, wv + 7, wv + 14")
    for k in range(3):
        a(f"ds_read_b128 {vr(104 + 4*k, 4)}, v7 offset:{7168*k}")
    signal(a, S3)
    a(f"v_add_u32 v4, 7168, v3")
    a(f"v_add_u32 v5, 14336, v3")
    a(f"s_waitcnt lgkmcnt(3)")
    a(f"buffer_store_dwordx4 {vr(104,4)}, v3, {sr(SRD_REC,4)}, 0 offen sc1")
    a(f"s_waitcnt lgkmcnt(2)")
    a(f"buffer_store_dwordx4 {vr(108,4)}, v4, {sr(SRD_REC,4)}, 0 offen sc1")
    a(f"s_cmp_gt_u32 s{sWV}, 4")
    a(f"s_cbranch_scc1 {p}_f_x0")
    a(f"s_cmp_eq_u32 s{sWV}, 4")
    a(f"s_cselect_b32 exec_hi, 0xffff, -1")
    a(f"s_waitcnt lgkmcnt(1)")
    a(f"buffer_store_dwordx4 {vr(112,4)}, v5, {sr(SRD_REC,4)}, 0 offen sc1")
    a(f"s_mov_b64 exec, -1")
    a.lab(f"{p}_f_x0")
    a(f"s_setprio 0")
    a(f"s_branch {p}_f_done")

    a.c("---------------- waves 7-10: two x tiles each into LDS; waves 11-14: the weights")
    a.lab(f"{p}_f_loader")
    a(f"s_cmp_ge_u32 s{sWV}, 11")
    a(f"s_cbranch_scc1 {p}_f_w")
    if "xpre" not in DIAG: x_tiles(a, True, (0, 1))
    else: x_tiles(a, False, (1,))
    a(f"s_waitcnt vmcnt(7)")
    a(f"ds_write_b32 v12, v{vONE} offset:{XFL}")
    stamp(a, 10)
    a(f"s_waitcnt vmcnt(0)")
    a(f"ds_write_b32 v13, v{vONE} offset:{XFL}")
    a(f"s_branch {p}_f_done")
    a.lab(f"{p}_f_w")
    a(f"s_waitcnt vmcnt(0)")
    a(f"s_setprio 3")
    w_dma(a, 11)
    a(f"s_setprio 0")
    a(f"s_waitcnt vmcnt(0)")
    signal(a, WF)
    stamp(a, 10)
    if "aupost" not in DIAG: au_dma(a, p, "f")
    a(f"s_branch {p}_f_done")

    a.c("---------------- wave 15 publishes / collects the headers")
    a.lab(f"{p}_f_w15")
    a(f"s_setprio 3")
    a(f"s_lshl_b32 s{sT0}, s2, 11")
    a(f"v_lshl_add_u32 v4, v{vLANE}, 5, s{sT0}")
    a(f"s_mov_b32 s{sSPIN}, {SPIN_MAX}")
    for k in range(1, 4):
        a(f"s_sleep {NS_SL}")
        a(f"buffer_load_dword v{NQ[k]}, v10, {sr(SRD_DBG,4)}, 0 offen sc1")
    for k in range(4):
        a(f"s_waitcnt vmcnt({3-k})")
        a(f"v_readfirstlane_b32 s{sNON}, v{NQ[k]}")
        a(f"s_cmp_lg_u32 s{sNON}, 0")
        a(f"s_cbranch_scc1 {p}_tag_ok")
    a.lab(f"{p}_tag_loop")
    a(f"buffer_load_dword v13, v10, {sr(SRD_DBG,4)}, 0 offen sc1")
    a(f"s_waitcnt vmcnt(0)")
    a(f"v_readfirstlane_b32 s{sNON}, v13")
    a(f"s_cmp_lg_u32 s{sNON}, 0")
    a(f"s_cbranch_scc1 {p}_tag_ok")
    a(f"s_sub_u32 s{sSPIN}, s{sSPIN}, 1")
    a(f"s_cbranch_scc0 {p}_tag_loop")
    a(f"s_mov_b32 s{sNON}, 1")
    a.lab(f"{p}_tag_ok")
    stamp(a, 11)
    a(f"v_mov_b32 v13, s{sNON}")
    a(f"ds_write_b32 v10, v13 offset:{NON2}")
    noh_from_non(a)
    spin(a, f"{p}_f_s2b", S2, 7)
    offsets_scan(a)
    for k in range(2):
        a(f"v_lshl_or_b32 v{108+4*k}, v{vC2+k}, 16, v{vO2+k}")
        a(f"v_or_b32 v{108+4*k}, s{sNOH}, v{108+4*k}")
        a(f"v_mov_b32 v{109+4*k}, v13")
    spin(a, f"{p}_f_s3b", S3, 7)
    a(f"ds_read_b32 v110, v{vTa} offset:{CSUM}")
    a(f"ds_read_b32 v114, v{vTa} offset:{CSUM+4}")
    a(f"s_waitcnt lgkmcnt(0)")
    a(f"buffer_store_dwordx4 v[108:111], v4, {sr(SRD_HDR,4)}, 0 offen sc1")
    a(f"buffer_store_dwordx4 v[112:115], v4, {sr(SRD_HDR,4)}, 0 offen offset:16 sc1")
    stamp(a, 1)
    a(f"s_setprio 0")
    a.lab(f"{p}_f_done")


HP = (48, 52, 120, 124)
sPM = 44
def poll(a, p, tag, first=False, last=False):
    if first:
        a(f"s_lshl_b32 s{sT0}, s{sBIN}, 4")
        a(f"v_lshl_add_u32 v8, v{vLANE}, 13, s{sT0}")
        a(f"v_add_u32 v9, 4096, v8")
    a(f"s_cmp_lg_u32 s{sWV}, 15")
    a(f"s_cbranch_scc1 {p}_po{tag}")
    if first:
        a(f"s_mov_b64 {sr(sPM,2)}, -1")
        a(f"s_mov_b32 s{sSPIN}, {SPIN_MAX}")
    else:
        a(f"s_cmp_eq_u64 {sr(sPM,2)}, 0")
        a(f"s_cbranch_scc1 {p}_po{tag}")
        a.lab(f"{p}_pl{tag}")
        a(f"s_waitcnt vmcnt(0)")
        for k, h in enumerate(HP):
            a(f"v_xor_b32 v{h+3}, s{sNOH}, v{h}")
            a(f"v_and_b32 v{h+3}, 0xf800f800, v{h+3}")
            a(f"v_xor_b32 v7, s{sNON}, v{h+1}")
            a(f"v_or3_b32 v6, v{h+3}, v7, {'0' if k == 0 else 'v6'}")
        a(f"v_cmp_ne_u32 {sr(sPM,2)}, 0, v6")
        a(f"s_sub_u32 s{sSPIN}, s{sSPIN}, 1")
        a(f"s_cselect_b64 {sr(sPM,2)}, 0, {sr(sPM,2)}")
        a(f"s_cmp_lg_u64 {sr(sPM,2)}, 0")
        a(f"s_cbranch_scc1 {p}_pa{tag}")
        a(f"v_lshlrev_b32 v7, 5, v{vLANE}")
        a(f"v_add_u32 v7, {STG}, v7")
        a(f"v_mov_b32 v6, s{sNON}")
        for k, h in enumerate(HP):
            a(f"ds_write2_b32 v7, v{h}, v{h+2} offset0:{2*k} offset1:{2*k+1}")
        a(f"ds_write_b32 v10, v6 offset:{NONCE}")
        stamp(a, 10)
        a(f"s_branch {p}_po{tag}")
        a.lab(f"{p}_pa{tag}")
        if last:
            a(f"s_sleep {PS2}")
    a(f"s_mov_b64 exec, {sr(sPM,2)}")
    for k, h in enumerate(HP):
        a(f"buffer_load_dwordx3 {vr(h,3)}, v{8 + (k>>1)}, {sr(SRD_HDR,4)}, 0 offen offset:{2048*(k&1)} sc1")
    a(f"s_mov_b64 exec, -1")
    if last:
        a(f"s_branch {p}_pl{tag}")
    a.lab(f"{p}_po{tag}")


vZ0 = 2
vXA, vWA, vTMP = 3, 4, 5
def w_addr(a):
    a(f"s_and_b32 s{sT1}, s{sWV}, 1")
    a(f"v_lshrrev_b32 v6, 5, v{vLANE}")
    a(f"v_lshlrev_b32 v{vWA}, 10, v6")
    a(f"v_bfe_u32 v6, v{vLANE}, 2, 2")
    a(f"v_lshl_add_u32 v{vWA}, v6, 7, v{vWA}")
    a(f"v_bfe_u32 v6, v{vLANE}, 3, 1")
    a(f"v_xor_b32 v6, s{sT1}, v6")
    a(f"v_lshl_add_u32 v{vWA}, v6, 6, v{vWA}")
    a(f"v_and_b32 v6, 1, v{vLANE}")
    a(f"v_lshl_add_u32 v{vWA}, v6, 5, v{vWA}")
    a(f"v_and_b32 v6, 16, v{vLANE}")
    a(f"v_add_u32 v{vWA}, v6, v{vWA}")
    a(f"v_and_b32 v6, 2, v{vLANE}")
    a(f"v_lshl_add_u32 v{vWA}, v6, 2, v{vWA}")
    a(f"v_add_u32 v{vWA}, {WB}, v{vWA}")


def xf(s):
    return 16 + 4 * s if s < 4 else 56 + 4 * (s - 4)

def x_reads(a):
    a.c("x fragments of this wave's sub-block")
    a(f"s_mul_i32 s{sT1}, s{sLJ}, {XT}")
    a(f"s_add_u32 s{sT1}, s{sT1}, {XB}")
    a(f"v_and_b32 v6, 31, v{vLANE}")
    a(f"v_lshrrev_b32 v7, 5, v{vLANE}")
    a(f"v_xor_b32 v7, v7, v6")
    a(f"v_and_b32 v7, 15, v7")
    a(f"v_lshl_add_u32 v6, v6, 8, s{sT1}")
    a(f"v_lshl_add_u32 v6, v7, 4, v6")
    for s in range(8):
        if s:
            a(f"v_xor_b32 v7, {32*s}, v6")
        a(f"ds_read_b128 {vr(xf(s),4)}, v{7 if s else 6}")
    signal(a, XR)


def w_reads(a, m1, m2, s):
    for k, m in enumerate((m1, m2)):
        for u in range(2):
            a(f"ds_read_b64_tr_b16 {vr(RA+8*(s%4)+4*k+2*u,2)}, v{vWA} offset:{m*16384 + s*2048 + u*512}")


def gemm_pass(a, m1, m2, swap2, first_issued=False, nxt=None):
    if not first_issued:
        for s in range(4):
            w_reads(a, m1, m2, s)
    for s in range(8):
        r = RA + 8 * (s % 4)
        a(f"s_waitcnt lgkmcnt({12 if s <= 4 else 4 * (7 - s)})")
        c1 = "0" if s == 0 else vr(Z, 16)
        c2 = "0" if s == 0 else vr(ACC, 16)
        a(f"v_mfma_f32_32x32x16_bf16 {vr(Z,16)}, {vr(xf(s),4)}, {vr(r,4)}, {c1}")
        if swap2:
            a(f"v_mfma_f32_32x32x16_bf16 {vr(ACC,16)}, {vr(r+4,4)}, {vr(xf(s),4)}, {c2}")
        else:
            a(f"v_mfma_f32_32x32x16_bf16 {vr(ACC,16)}, {vr(xf(s),4)}, {vr(r+4,4)}, {c2}")
        if s < 4:
            w_reads(a, m1, m2, s + 4)


G2 = 72
def pu_pass(a, p):
    slot = (88, 48)
    def rd(st):
        for k, m in enumerate((0, 3)):
            for u in range(2):
                a(f"ds_read_b64_tr_b16 {vr(slot[st%2]+4*k+2*u,2)}, v{vWA} offset:{m*16384 + st*2048 + u*512}")
    rd(0)
    rd(1)
    for st in range(8):
        r = slot[st % 2]
        a(f"s_waitcnt lgkmcnt({4 if st < 7 else 0})")
        c1 = "0" if st == 0 else vr(G2, 16)
        c2 = "0" if st == 0 else vr(ACC, 16)
        a(f"v_mfma_f32_32x32x16_bf16 {vr(G2,16)}, {vr(xf(st),4)}, {vr(r,4)}, {c1}")
        a(f"v_mfma_f32_32x32x16_bf16 {vr(ACC,16)}, {vr(r+4,4)}, {vr(xf(st),4)}, {c2}")
        if st + 2 < 8:
            rd(st + 2)
        if st == MIDPUB:
            a(f"s_cmp_lg_u32 s{sNT}, 0")
            a(f"s_cbranch_scc1 {p}_mp_done")
            a(f"s_cmp_lg_u32 s{sNON}, 0")
            a(f"s_cbranch_scc1 {p}_mp_rec")
            a(f"s_waitcnt vmcnt(0)")
            a.lab(f"{p}_mp_rec")
            a(f"s_waitcnt vmcnt({NI})")
            a(f"s_call_b64 {sr(sRET,2)}, {p}_sub_pub")
            a(f"s_mov_b32 s{sNT}, 1")
            a.lab(f"{p}_mp_done")


def table_store(a, fused):
    a.c("table rows: hi16 = -log2e * (x B), lo16 = bf16(1 / (x V)); 8 rows at a time through LDS, whole lines out")
    a(f"s_lshl_b32 s{sT1}, s{sWV}, 10")
    a(f"s_add_u32 s{sT1}, s{sT1}, {STG + 2048}")
    a(f"v_lshrrev_b32 v6, 5, v{vLANE}")
    a(f"v_lshl_add_u32 v6, v6, 9, s{sT1}")
    a(f"v_and_b32 v7, 31, v{vLANE}")
    a(f"v_lshl_add_u32 v6, v7, 2, v6")
    a(f"v_lshl_add_u32 v7, v{vLANE}, 4, s{sT1}")
    a(f"s_lshl_b32 s{sT0}, s{sNODE0}, 7")
    a(f"v_lshl_add_u32 v{vTMP}, v{vLANE}, 4, s{sT0}")
    if "b64" in DIAG:
        a(f"s_mov_b32 s{sDEB}, 0x3f7fa788")
        a(f"s_mov_b32 s{sDEB+1}, 0x3f7fa788")
    a(f"s_nop 5")
    for j in range(0, 14, 2):
        for k in (j, j + 1):
            a(f"v_rcp_f32 v{ACC+k}, v{ACC+k}")
            a(f"v_mul_f32 v{Z+k}, s{sNL2E}, v{Z+k}")
        if "b64" in DIAG:
            a(f"v_pk_mul_f32 {vr(ACC+j,2)}, {vr(ACC+j,2)}, {sr(sDEB,2)}")
        for k in (j, j + 1):
            a(f"v_med3_f32 v{ACC+k}, v{ACC+k}, s{sMAXF}, -s{sMAXF}")
        a(f"v_cvt_pk_bf16_f32 v{ACC+j}, v{ACC+j}, v{ACC+j+1}")
        a(f"v_perm_b32 v{Z+j}, v{Z+j}, v{ACC+j}, s{sSELLO}")
        a(f"v_perm_b32 v{Z+j+1}, v{Z+j+1}, v{ACC+j}, s{sSELHI}")
        for k in (j, j + 1):
            a(f"ds_write_b32 v6, v{Z+k} offset:{(k&3)*128}")
        if j % 4 == 2 or j == 12:
            g = j // 4
            a(f"ds_read_b128 {vr(RA+4*g,4)}, v7")
    for g in range(4):
        a(f"s_waitcnt lgkmcnt({(10, 5, 3, 0)[g] if False else 0})") if g == 0 else None
        if g == 3:
            a(f"s_sub_u32 s{sT0}, s{sNR}, 24")
            a(f"s_lshl_b32 s{sT0}, s{sT0}, 3")
            a(f"s_bfm_b64 exec, s{sT0}, 0")
        a(f"buffer_store_dwordx4 {vr(RA+4*g,4)}, v{vTMP}, {sr(SRD_TS,4)}, 0 offen offset:{1024*g} sc1")
    a(f"s_mov_b64 exec, -1")
    a(f"s_nop 0")


vC0 = 88
def load_C(a):
    a.c("edge-feature weights g_w[256+k][32*slice + pi(n)]")
    a(f"v_bfe_u32 v6, v{vLANE}, 2, 1")
    a(f"v_lshlrev_b32 v6, 5, v6")
    a(f"v_bfe_u32 v7, v{vLANE}, 3, 2")
    a(f"v_lshl_add_u32 v6, v7, 3, v6")
    a(f"v_and_b32 v7, 3, v{vLANE}")
    a(f"v_lshl_add_u32 v6, v7, 1, v6")
    a(f"s_and_b32 s{sT0}, s{sWV}, 1")
    a(f"s_lshl_b32 s{sT0}, s{sT0}, 6")
    a(f"s_add_u32 s{sT0}, s{sT0}, {CB}")
    a(f"v_add_u32 v6, s{sT0}, v6")
    for k in range(4):
        a(f"ds_read_u16 v{vC0+k}, v6 offset:{128*k}")


def pop_pack(a):
    a.c("P' operand (rows 26.. replaced by the edge-feature weights / zero)")
    a(f"s_waitcnt lgkmcnt(0)")
    for k in range(4):
        a(f"v_lshlrev_b32 v{vC0+k}, 16, v{vC0+k}")
    for k in range(4):
        a(f"v_mul_f32 v{vC0+k}, s{sNL2E}, v{vC0+k}")
    a(f"v_cvt_pk_bf16_f32 v6, v{vC0}, v{vC0+1}")
    a(f"v_cvt_pk_bf16_f32 v7, v{vC0+2}, v{vC0+3}")
    a(f"s_nop 3")
    for k in range(14):
        a(f"v_mul_f32 v{G2+k}, s{sNL2E}, v{G2+k}")
    for k in range(7):
        a(f"v_cvt_pk_bf16_f32 v{POP+k}, v{G2+2*k}, v{G2+2*k+1}")
    a(f"s_cmp_eq_u32 s{sNN}, 25")
    a(f"s_cselect_b32 s{sT0}, 0xffff, 0")
    a(f"v_and_b32 v{POP+6}, s{sT0}, v{POP+6}")
    a(f"v_cndmask_b32 v{POP+6}, v{POP+6}, v6, {sr(sHM,2)}")
    a(f"v_cndmask_b32 v{POP+7}, 0, v7, {sr(sHM,2)}")


vHS, vHL = 12, 13
def hdr_load(a, fused, addr=7):
    a(f"buffer_load_dwordx2 v[14:15], v{addr}, {sr(SRD_HDR,4)}, 0 offen{' sc1' if fused else ''}")

def hdr_addr(a, addr=7):
    a(f"v_lshrrev_b32 v{addr}, 2, v0")
    a(f"s_lshl_b32 s{sT0}, s{sBIN}, 4")
    a(f"v_lshl_add_u32 v{addr}, v{addr}, 10, s{sT0}")


def hdr_decode(a):
    a(f"v_and_b32 v6, 3, v0")
    a(f"v_and_b32 v7, 0x7ff, v14")
    a(f"v_add_u32 v7, v7, v6")
    a(f"v_mul_u32_u24 v7, 12, v7")
    a(f"v_lshrrev_b32 v{vHS}, 2, v0")
    a(f"v_mul_u32_u24 v{vHS}, 19200, v{vHS}")
    a(f"v_add_u32 v{vHS}, v{vHS}, v7")
    a(f"v_bfe_u32 v{vHL}, v14, 16, 11")
    a(f"v_sub_u32 v{vHL}, v{vHL}, v6")
    a(f"s_mov_b32 s{sRB}, 0")
    a(f"s_mov_b32 s{sC}, {CFAST}")


def rec_loads(a, p, tag, fused, fixed=False):
    sc = " sc1" if fused else ""
    a(f"v_subrev_u32 v7, s{sRB}, v{vHL}")
    a(f"v_and_b32 v6, 3, v0")
    a(f"v_sub_u32 v6, s{sC}, v6")
    a(f"v_min_i32 v7, v7, v6")
    a(f"s_mul_i32 s{sT0}, s{sRB}, 12")
    a(f"v_add_u32 v6, s{sT0}, v{vHS}")
    for i in range(NI):
        a(f"v_cmp_lt_i32 {sr(MASKS[i],2)}, {4*i}, v7")
    for i in range(NI):
        a(f"s_mov_b64 exec, {sr(MASKS[i],2)}")
        if not fixed: a(f"s_cbranch_execz {p}_rl_done{tag}")
        a(f"buffer_load_dwordx3 {vr(REC+4*i,3)}, v6, {sr(SRD_REC,4)}, 0 offen offset:{48*i}{sc}")
    a.lab(f"{p}_rl_done{tag}")
    a(f"s_mov_b64 exec, -1")


def append1(a, p, tag):
    a.c("---------------- list slots for the records (16 sub-block lists)")
    a(f"s_add_u32 s{sT0}, s{sRB}, s{sC}")
    a(f"v_and_b32 v6, 3, v0")
    a(f"v_add_u32 v6, v6, v{vHL}")
    a(f"v_cmp_lt_i32 vcc, s{sT0}, v6")
    a(f"v_mov_b32 v6, 4")
    a(f"v_mov_b32 v7, 64")
    a(f"s_mov_b64 exec, vcc")
    a(f"ds_add_u32 v7, v6 offset:{LCNT}")
    a(f"s_mov_b64 exec, -1")
    a(f"v_mov_b32 v7, 0x3c")
    for i in range(NI):
        q = REC + 4 * i
        a(f"s_mov_b64 exec, {sr(MASKS[i],2)}")
        a(f"s_cbranch_execz {p}_ap1{tag}")
        a(f"v_and_b32_sdwa v{q+3}, v{q+2}, v7 dst_sel:DWORD dst_unused:UNUSED_PAD src0_sel:BYTE_3 src1_sel:DWORD")
        a(f"ds_add_rtn_u32 v{q+3}, v{q+3}, v6 offset:{LCNT}")
    a.lab(f"{p}_ap1{tag}")
    a(f"s_mov_b64 exec, -1")


def append2(a, p):
    for i in range(NI):
        q = REC + 4 * i
        a(f"s_mov_b64 exec, {sr(MASKS[i],2)}")
        a(f"s_cbranch_execz {p}_ap2")
        a(f"v_min_u32 v{q+3}, s{sKMAX}, v{q+3}")
        a(f"v_lshlrev_b32 v6, 1, v{q+3}")
        a(f"ds_write_b32 v{q+3}, v{q+2}")
        a(f"ds_write_b64 v6, {vr(q,2)} offset:{EOFF}")
    a.lab(f"{p}_ap2")
    a(f"s_mov_b64 exec, -1")


vKR, vER, vIW, vIE, vIA0, vIA1, vIT0, vIT1, vOLD, vKEY = 4, 5, 120, 121, 122, 123, 124, 125, 126, 127
vEE, vB16, vZERO = 8, 10, 11
AD, BD = 2, 14


def image_setup(a):
    a.c("---------------- selection image addresses; zero the image")
    a(f"s_lshl_b32 s{sT0}, s{sWV}, 11")
    a(f"s_add_u32 s{sT0}, s{sT0}, {IMG}")
    a(f"v_lshl_add_u32 v{vER}, v{vLANE}, 4, s{sT0}")
    for k in range(4):
        a(f"v_mov_b32 v{Z+k}, 0")
    a(f"v_mov_b32 v{vB16}, 0x3f80")
    a(f"v_mov_b32 v{vZERO}, 0")
    a(f"v_and_b32 v6, 31, v{vLANE}")
    a(f"v_mov_b32 v{AD+1}, 0x3f803f80")
    a(f"v_lshlrev_b32 v7, 2, v6")
    a(f"v_cvt_f32_u32 v7, v7")
    a(f"v_lshrrev_b32 v7, 16, v7")
    a(f"v_or_b32 v7, 0x4b000000, v7")
    a(f"v_mov_b32 v{BD}, 0x47004300")
    a(f"v_cndmask_b32 v{BD}, v{BD}, v{vZERO}, {sr(sHM,2)}")
    a(f"v_cndmask_b32 v{BD+1}, v7, v{vZERO}, {sr(sHM,2)}")
    a(f"v_lshl_add_u32 v6, v6, 6, s{sT0}")
    a(f"v_bfe_u32 v7, v{vLANE}, 2, 2")
    a(f"v_lshl_add_u32 v{vIW}, v7, 4, v6")
    a(f"v_xor_b32 v{vIE}, 56, v{vIW}")
    a(f"v_lshrrev_b32 v6, 5, v{vLANE}")
    a(f"v_lshlrev_b32 v{vIA0}, 4, v6")
    a(f"v_xor_b32 v{vIA0}, v{vIA0}, v{vIW}")
    a(f"v_xor_b32 v{vIA1}, 32, v{vIA0}")
    a(f"v_mov_b32 v{vOLD}, v{vIW}")
    a(f"v_lshl_add_u32 v7, v6, 2, v7")
    a(f"v_lshl_add_u32 v{vIT0}, v7, 6, s{sT0}")
    a(f"v_bfe_u32 v7, v{vLANE}, 4, 1")
    a(f"v_lshlrev_b32 v7, 1, v7")
    a(f"v_and_b32 v{vIT1}, 1, v{vLANE}")
    a(f"v_or_b32 v7, v7, v{vIT1}")
    a(f"v_xor_b32 v7, v7, v6")
    a(f"v_lshl_add_u32 v{vIT0}, v7, 4, v{vIT0}")
    a(f"v_and_b32 v7, 2, v{vLANE}")
    a(f"v_lshl_add_u32 v{vIT0}, v7, 2, v{vIT0}")
    a(f"v_xor_b32 v{vIT1}, 32, v{vIT0}")
    a(f"v_add_u32 v{vIT1}, 512, v{vIT1}")


def gathers(a, R, fused):
    sc = " sc1" if fused and "sc1g" in DIAG else ""
    if "nogather" in DIAG: return
    for k in range(16):
        a(f"buffer_load_dword v{R+k}, v{OFF+k}, {sr(SRD_TG,4)}, 0 offen{sc}")

sN0, sJMP = sM2, sM3
def rec_reads(a):
    a(f"ds_read_b32 v{vKEY}, v{vKR}")
    a(f"ds_read_b64 {vr(vEE,2)}, v{vER} offset:{EOFF}")

def step_calc(a, cur):
    a(f"s_cmp_eq_u32 s{sN0}, {cur}")
    a(f"s_cselect_b32 s{sT1}, s{sJMP}, 128")
    a(f"s_lshl_b32 s{sT2}, s{sT1}, 1")

def step(a):
    a(f"v_add_u32 v{vKR}, s{sT1}, v{vKR}")
    a(f"v_add_u32 v{vER}, s{sT2}, v{vER}")

def image_build(a):
    a(f"ds_write_b16 v{vOLD}, v{vZERO}")
    a(f"v_xor_b32_sdwa v{vOLD}, v{vKEY}, v{vIW} dst_sel:DWORD dst_unused:UNUSED_PAD src0_sel:BYTE_2 src1_sel:DWORD")
    a(f"ds_write_b64 v{vIE}, {vr(vEE,2)}")
    a(f"ds_write_b16 v{vOLD}, v{vB16}")

def aex_reads(a):
    a(f"ds_read_b128 {vr(AEX,4)}, v{vIA0}")
    a(f"ds_read_b128 {vr(AEX+4,4)}, v{vIA1}")

def sag_reads(a):
    for s in range(2):
        a(f"ds_read_b64_tr_b16 {vr(SAG+4*s,2)}, v{vIT0} offset:{1024*s}")
        a(f"ds_read_b64_tr_b16 {vr(SAG+4*s+2,2)}, v{vIT1} offset:{1024*s}")

def addr_cvt(a):
    a(f"v_cvt_f32_ubyte0 v6, v{vKEY}")
    a(f"v_cvt_f32_ubyte1 v7, v{vKEY}")
def addr_pack(a):
    a(f"v_perm_b32 v{AD}, v7, v6, s{sSELHI}")
def addr_mfma(a):
    a(f"v_mfma_f32_32x32x8_bf16 {vr(OFF,16)}, {vr(AD,2)}, {vr(BD,2)}, 0")


def tile_body(a, R, Rn, fused, lb):
    if "spread" not in DIAG: gathers(a, Rn, fused)
    step_calc(a, f"s{sIT}")
    if PRIO:
        a(f"s_sub_u32 s{sT0}, s{sNT}, s{sIT}")
        for lvl, r in enumerate(PRL):
            a(f"s_cmp_lg_u32 s{sT0}, {r}")
            a(f"s_cbranch_scc1 {lb}_p{lvl}")
            a(f"s_setprio {lvl}")
            a.lab(f"{lb}_p{lvl}")
    a(f"s_waitcnt vmcnt({0 if 'spread' in DIAG else 16})")
    a(f"v_mfma_f32_32x32x16_bf16 {vr(Z,16)}, {vr(AEX,4)}, {vr(POP,4)}, {vr(R,16)}")
    a(f"v_mfma_f32_32x32x16_bf16 {vr(Z,16)}, {vr(AEX+4,4)}, {vr(POP+4,4)}, {vr(Z,16)}")
    if "nolds" not in DIAG:
        sag_reads(a)
        image_build(a)
        aex_reads(a)
    else:
        a("s_nop 9")
    rec_reads(a)
    step(a)
    if PPB is not None:
        a(f"s_cmp_lg_u32 s{sIT}, {PPB}")
        a(f"s_cbranch_scc1 {lb}_nopp")
        phase_prefetch(a, 1)
        a.lab(f"{lb}_nopp")
    for j in range(16):
        if "notrans" not in DIAG: a(f"v_exp_f32 v{Z+j}, v{Z+j}")
        if "spread" in DIAG: a(f"buffer_load_dword v{Rn+j}, v{OFF+j}, {sr(SRD_TG,4)}, 0 offen")
        if "b64" in DIAG:
            if j % 2: a(f"v_lshlrev_b64 {vr(R+j-1,2)}, 16, {vr(R+j-1,2)}")
        else:
            a(f"v_lshlrev_b32 v{R+j}, 16, v{R+j}")
    a(f"s_waitcnt lgkmcnt(0)")
    addr_cvt(a)
    for j in range(0, 16, 2):
        if "nopk" in DIAG:
            a(f"v_fma_f32 v{Z+j}, v{Z+j}, v{R+j}, v{R+j}")
            a(f"v_fma_f32 v{Z+j+1}, v{Z+j+1}, v{R+j+1}, v{R+j+1}")
        else:
            a(f"v_pk_fma_f32 {vr(Z+j,2)}, {vr(Z+j,2)}, {vr(R+j,2)}, {vr(R+j,2)}")
        if j == 0:
            addr_pack(a)
    addr_mfma(a)
    for j in range(16):
        if "notrans" not in DIAG: a(f"v_rcp_f32 v{Z+j}, v{Z+j}")
        if j >= 3 and j % 2 == 1:
            k = (j - 3) // 2
            a(f"v_cvt_pk_bf16_f32 v{R+k}, v{Z+2*k}, v{Z+2*k+1}")
    a(f"s_add_u32 s{sIT}, s{sIT}, 1")
    a(f"v_cvt_pk_bf16_f32 v{R+7}, v{Z+14}, v{Z+15}")
    a(f"s_cmp_lt_u32 s{sIT}, s{sNT}")
    a(f"v_mfma_f32_32x32x16_bf16 {vr(ACC,16)}, {vr(R,4)}, {vr(SAG,4)}, {vr(ACC,16)}")
    a(f"v_mfma_f32_32x32x16_bf16 {vr(ACC,16)}, {vr(R+4,4)}, {vr(SAG+4,4)}, {vr(ACC,16)}")


sHALF = sM4
def half_body(a, R):
    a(f"s_waitcnt vmcnt(0)")
    a(f"v_mfma_f32_32x32x16_bf16 {vr(Z,16)}, {vr(AEX,4)}, {vr(POP,4)}, {vr(R,16)}")
    a(f"v_mfma_f32_32x32x16_bf16 {vr(Z,16)}, {vr(AEX+4,4)}, {vr(POP+4,4)}, {vr(Z,16)}")
    a(f"ds_read_b64_tr_b16 {vr(SAG,2)}, v{vIT0}")
    a(f"ds_read_b64_tr_b16 {vr(SAG+2,2)}, v{vIT1}")
    a(f"s_nop 9")
    for j in range(8):
        a(f"v_exp_f32 v{Z+j}, v{Z+j}")
        a(f"v_lshlrev_b32 v{R+j}, 16, v{R+j}")
    for j in range(0, 8, 2):
        a(f"v_pk_fma_f32 {vr(Z+j,2)}, {vr(Z+j,2)}, {vr(R+j,2)}, {vr(R+j,2)}")
    for j in range(8):
        a(f"v_rcp_f32 v{Z+j}, v{Z+j}")
    for k in range(4):
        a(f"v_cvt_pk_bf16_f32 v{R+k}, v{Z+2*k}, v{Z+2*k+1}")
    a(f"s_waitcnt lgkmcnt(0)")
    a(f"s_nop 0")
    a(f"v_mfma_f32_32x32x16_bf16 {vr(ACC,16)}, {vr(R,4)}, {vr(SAG,4)}, {vr(ACC,16)}")


def t_prefetch(a):
    a.c("read this wave's own table rows back once (streams them into the outer caches ahead of the random reads)")
    a(f"s_lshl_b32 s{sT0}, s{sNODE0}, 7")
    a(f"v_lshl_add_u32 v6, v{vLANE}, 4, s{sT0}")
    for kk in range(3):
        a(f"s_mov_b32 m0, {PFS - 1024*kk}")
        a(f"s_nop 0")
        a(f"buffer_load_dwordx4 v6, {sr(SRD_TS,4)}, 0 offen offset:{1024*kk}{' sc1' if 'pfsc1' in DIAG else ''} lds")


def phase_prefetch(a, phase):
    a(f"s_lshr_b32 s{sT0}, s2, 3")
    a(f"s_lshl_b32 s{sT0}, s{sT0}, 3")
    a(f"s_add_u32 s{sT0}, s{sT0}, s{sLJ}")
    a(f"s_mul_i32 s{sT0}, s{sT0}, 12500")
    a(f"s_lshr_b32 s{sT0}, s{sT0}, 8")
    a(f"s_lshl_b32 s{sT0}, s{sT0}, 7")
    if phase:
        a(f"s_add_u32 s{sT0}, s{sT0}, {12500*128}")
    a(f"v_lshl_add_u32 v6, v{vLANE}, 4, s{sT0}")
    a(f"v_add_u32 v7, 3072, v6")
    for kk in range(6):
        a(f"s_mov_b32 m0, {PFS - 1024*(kk%3)}")
        a(f"s_nop 0")
        a(f"buffer_load_dwordx4 v{6 + kk//3}, {sr(SRD_TS,4)}, 0 offen offset:{1024*(kk%3)} lds")


def tflag_addr(a, v):
    a(f"s_lshr_b32 s{sT0}, s{sSL}, 1")
    a(f"s_lshl_b32 s{sT0}, s{sT0}, 14")
    a(f"s_add_u32 s{sT0}, s{sT0}, {TFL_OFF}")
    a(f"v_lshl_add_u32 v{v}, v{vLANE}, 8, s{sT0}")


def tflag_loads(a, v):
    a(f"buffer_load_dwordx2 v[16:17], v{v}, {sr(SRD_HDR,4)}, 0 offen sc1")
    a(f"buffer_load_dwordx2 v[18:19], v{v}, {sr(SRD_HDR,4)}, 0 offen offset:128 sc1")


def tflag_issue(a, p):
    a(f"s_cmp_lg_u32 s{sWV}, {TFW}")
    a(f"s_cbranch_scc1 {p}_tf_noissue")
    tflag_addr(a, 3)
    tflag_loads(a, 3)
    a.lab(f"{p}_tf_noissue")


def tflag_wait(a, p):
    a.c("one wave waits until all 128 workgroups of this feature half have published their table rows")
    a(f"s_cmp_lg_u32 s{sWV}, {TFW}")
    a(f"s_cbranch_scc1 {p}_tf_done")
    a(f"s_cmp_lg_u32 s{sNOH}, 0")
    a(f"s_cbranch_scc1 {p}_tf_done")
    tflag_addr(a, 6)
    a(f"s_not_b32 s{sT1}, s{sNON}")
    a(f"s_mov_b32 s{sSPIN}, {SPIN_MAX}")
    a(f"s_branch {p}_tf_first")
    a.lab(f"{p}_tf_loop")
    tflag_loads(a, 6)
    a.lab(f"{p}_tf_first")
    a(f"s_waitcnt vmcnt(0)")
    a(f"v_xor_b32 v20, s{sNON}, v16")
    a(f"v_xor_b32 v21, s{sT1}, v17")
    a(f"v_xor_b32 v22, s{sNON}, v18")
    a(f"v_xor_b32 v23, s{sT1}, v19")
    a(f"v_or3_b32 v20, v20, v21, v22")
    a(f"v_or_b32 v20, v20, v23")
    a(f"v_cmp_ne_u32 vcc, 0, v20")
    a(f"s_and_b64 exec, exec, vcc")
    a(f"s_cbranch_scc0 {p}_tf_end")
    a(f"s_sleep 2")
    a(f"s_sub_u32 s{sSPIN}, s{sSPIN}, 1")
    a(f"s_cbranch_scc0 {p}_tf_loop")
    a.lab(f"{p}_tf_end")
    a(f"s_mov_b64 exec, -1")
    a(f"s_mov_b32 s{sNOH}, 1")
    a.lab(f"{p}_tf_done")


def main_phase(a, p, fused):
    a.lab(f"{p}_round")
    append1(a, p, "a")
    a(f"s_waitcnt lgkmcnt(0)")
    append2(a, p)
    stamp(a, 5)
    image_setup(a)
    tflag_wait(a, p)
    if "nopf" not in DIAG and "pfearly" not in DIAG and "pflate" not in DIAG: t_prefetch(a)
    a(f"s_waitcnt lgkmcnt(0)")
    a(f"s_barrier")
    stamp(a, 6)
    if STAMPS:
        a("s_memtime s[100:101]")
        a("s_waitcnt lgkmcnt(0)")
        a(f"s_mov_b32 s{sM1}, s100")
    a(f"ds_write_b128 v{vER}, {vr(Z,4)}")
    a(f"ds_write_b128 v{vER}, {vr(Z,4)} offset:1024")
    if "pflate" in DIAG or "pf2x" in DIAG: t_prefetch(a)
    a(f"v_and_b32 v6, 31, v{vLANE}")
    a(f"v_lshlrev_b32 v{vKR}, 2, v6")
    a(f"ds_read_b32 v7, v{vKR} offset:{LCNT}")
    cursor_starts(a, 6, 8)
    a(f"v_add_u32 v6, {4*CAP}, v6")
    a(f"s_mul_i32 s{sT0}, s{sLJ}, {LS*4}")
    a(f"s_add_u32 s{sT0}, s{sT0}, {KEYB}")
    a(f"s_and_b32 s{sNT}, s{sWV}, 14")
    a(f"s_or_b32 s{sIT}, s{sWV}, 1")
    a(f"s_waitcnt lgkmcnt(0)")
    a(f"v_readlane_b32 s{sT1}, v7, s{sNT}")
    a(f"v_readlane_b32 s{sT2}, v7, s{sIT}")
    a(f"v_readlane_b32 s{sT3}, v7, 16")
    a(f"v_cmp_lt_u32 vcc, v6, v7")
    a(f"s_and_b32 s{sNT}, vcc_lo, 0xffff")
    a(f"s_cbranch_scc1 {p}_overflow")
    a.c("the last partial tile of the first half moves behind the second half; 64 dummy edges behind that")
    a(f"s_sub_u32 s{sN0}, s{sT1}, s{sT0}")
    a(f"s_and_b32 s{sIT}, s{sN0}, 127")
    a(f"s_sub_u32 s{sT1}, s{sT1}, s{sIT}")
    a(f"v_lshl_add_u32 v6, v{vLANE}, 2, s{sT1}")
    a(f"v_lshlrev_b32 v7, 1, v6")
    a(f"ds_read_b32 v{vKEY}, v6")
    a(f"ds_read_b64 v[8:9], v7 offset:{EOFF}")
    a(f"s_lshr_b32 s{sN0}, s{sN0}, 7")
    a(f"v_lshlrev_b32 v6, 2, v{vLANE}")
    a(f"v_cmp_gt_u32 vcc, s{sIT}, v6")
    a(f"v_add_u32 v6, s{sT2}, v6")
    a(f"v_lshlrev_b32 v7, 1, v6")
    a(f"v_mov_b32 v{AEX}, 0x{N | (46 << 16):x}")
    a(f"s_add_u32 s{sJMP}, s{sT0}, {4*CAP}")
    a(f"s_sub_u32 s{sNT}, s{sT2}, s{sJMP}")
    a(f"s_add_u32 s{sNT}, s{sNT}, s{sIT}")
    a(f"s_add_u32 s{sNT}, s{sNT}, 63")
    a(f"s_lshr_b32 s{sNT}, s{sNT}, 6")
    a(f"s_and_b32 s{sHALF}, s{sNT}, 1")
    a(f"s_lshr_b32 s{sNT}, s{sNT}, 1")
    a(f"s_cmp_eq_u32 s{sN0}, 0")
    a(f"s_cselect_b32 s{sT0}, s{sJMP}, s{sT0}")
    a(f"v_add_u32 v{vKR}, s{sT0}, v{vKR}")
    a(f"v_lshlrev_b32 v{vER}, 1, v{vKR}")
    a(f"s_sub_u32 s{sJMP}, s{sJMP}, s{sT1}")
    a(f"s_add_u32 s{sJMP}, s{sJMP}, 128")
    a(f"s_waitcnt lgkmcnt(0)")
    a(f"v_cndmask_b32 v{vKEY}, v{AEX}, v{vKEY}, vcc")
    a(f"v_cndmask_b32 v8, 0, v8, vcc")
    a(f"v_cndmask_b32 v9, 0, v9, vcc")
    a(f"ds_write_b32 v6, v{vKEY}")
    a(f"ds_write_b64 v7, v[8:9] offset:{EOFF}")
    a(f"s_not_b64 exec, {sr(sHM,2)}")
    a(f"ds_write_b32 v6, v{AEX} offset:256")
    a(f"ds_write_b64 v7, {vr(Z,2)} offset:{EOFF + 512}")
    a(f"s_mov_b64 exec, -1")
    a(f"s_add_u32 s{sNT}, s{sNT}, s{sN0}")
    a(f"s_or_b32 s{sT0}, s{sNT}, s{sHALF}")
    a(f"s_cbranch_scc0 {p}_tiles_done")
    a(f"s_mov_b32 s{sIT}, 0")
    if "ppa" in DIAG: phase_prefetch(a, 0)
    rec_reads(a)
    step_calc(a, 1)
    step(a)
    a(f"s_waitcnt lgkmcnt(0)")
    addr_cvt(a)
    addr_pack(a)
    image_build(a)
    addr_mfma(a)
    aex_reads(a)
    rec_reads(a)
    step_calc(a, 2)
    step(a)
    a(f"s_sub_u32 s{sN0}, s{sN0}, 3")
    a(f"s_nop 15")
    a(f"s_waitcnt lgkmcnt(0)")
    addr_cvt(a)
    addr_pack(a)
    gathers(a, RA, fused)
    addr_mfma(a)
    a(f"s_nop 15")
    a(f"s_nop 3")
    if PRIO: a(f"s_setprio 3")
    a(f"s_cmp_eq_u32 s{sNT}, 0")
    a(f"s_cbranch_scc1 {p}_half0")
    a.lab(f"{p}_tile")
    tile_body(a, RA, RBUF, fused, f"{p}_b0")
    a(f"s_cbranch_scc0 {p}_exit1")
    tile_body(a, RBUF, RA, fused, f"{p}_b1")
    a(f"s_cbranch_scc1 {p}_tile")
    a(f"s_cmp_eq_u32 s{sHALF}, 0")
    a(f"s_cbranch_scc1 {p}_tiles_done")
    a.lab(f"{p}_half0")
    half_body(a, RA)
    a(f"s_branch {p}_tiles_done")
    a.lab(f"{p}_exit1")
    a(f"s_cmp_eq_u32 s{sHALF}, 0")
    a(f"s_cbranch_scc1 {p}_tiles_done")
    half_body(a, RBUF)
    a.lab(f"{p}_tiles_done")
    a(f"s_cmp_eq_u32 s{sT3}, 0")
    a(f"s_cbranch_scc1 {p}_epi")
    a(f"s_add_u32 s{sRB}, s{sRB}, s{sC}")
    a(f"s_branch {p}_next")
    a.lab(f"{p}_overflow")
    a(f"s_mov_b32 s{sC}, 1")
    a.lab(f"{p}_next")
    a.c("rare path: another round over the runs")
    a(f"s_waitcnt vmcnt(0) lgkmcnt(0)")
    a(f"s_barrier")
    init_counters(a, p, "r")
    rec_loads(a, p, "r", fused)
    a(f"s_waitcnt vmcnt(0) lgkmcnt(0)")
    a(f"s_barrier")
    a(f"s_branch {p}_round")
    a.lab(f"{p}_epi")
    stamp(a, 7)
    if STAMPS:
        a("s_memtime s[100:101]")
        a("s_waitcnt lgkmcnt(0)")
        a(f"s_sub_u32 s{sreg(9)}, s100, s{sM1}")
    a.c("---------------- epilogue: silu, pack, store")
    a(f"v_and_b32 v6, 31, v{vLANE}")
    a(f"v_cmp_gt_u32 vcc, s{sNN}, v6")
    a(f"v_add_u32 v6, s{sNODE0}, v6")
    a(f"v_lshlrev_b32 v6, 8, v6")
    a(f"v_lshrrev_b32 v7, 5, v{vLANE}")
    a(f"v_lshl_add_u32 v6, v7, 5, v6")
    a(f"s_lshl_b32 s{sT0}, s{sSL}, 6")
    a(f"v_add_u32 v6, s{sT0}, v6")
    a(f"s_nop 7")
    for j in range(16):
        a(f"v_mul_f32 v{Z+j}, s{sNL2E}, v{ACC+j}")
    for j in range(16):
        a(f"v_exp_f32 v{Z+j}, v{Z+j}")
    for j in range(16):
        a(f"v_add_f32 v{Z+j}, 1.0, v{Z+j}")
    for j in range(16):
        a(f"v_rcp_f32 v{Z+j}, v{Z+j}")
    for j in range(16):
        a(f"v_mul_f32 v{Z+j}, v{Z+j}, v{ACC+j}")
    for k in range(8):
        a(f"v_cvt_pk_bf16_f32 v{AEX+k}, v{Z+2*k}, v{Z+2*k+1}")
    a(f"s_mov_b64 exec, vcc")
    osc = " sc1" if "osc1" in DIAG else "" if "oplain" in DIAG else " nt"
    a(f"buffer_store_dwordx4 {vr(AEX,4)}, v6, {sr(SRD_OUT,4)}, 0 offen{osc}")
    a(f"buffer_store_dwordx4 {vr(AEX+4,4)}, v6, {sr(SRD_OUT,4)}, 0 offen offset:16{osc}")


def kernel_header(name):
    return f""".globl {name}
.p2align 8
.type {name},@function
{name}:
"""

def kernel_desc(name):
    return f""".amdhsa_kernel {name}
  .amdhsa_next_free_vgpr 128
  .amdhsa_next_free_sgpr 102
  .amdhsa_accum_offset 128
  .amdhsa_group_segment_fixed_size 0
  .amdhsa_kernarg_size 80
  .amdhsa_user_sgpr_count 2
  .amdhsa_user_sgpr_kernarg_segment_ptr 1
  .amdhsa_system_sgpr_workgroup_id_x 1
.end_amdhsa_kernel
"""

DOC = """;
;     wave 15 publishes per-bin headers {start, len, launch tag, checksum} and collects the 250 headers of its bin.
;  2. every wave computes, with MFMA, its rows of the table T[slice][node][32] = {bf16(-log2e * x B), bf16(1 / (x V))},
"""

def file_head():
    return open("cdna_kernels/" + NAME + ".s.ref").read().split("; Override launch geometry")[0]


def finish(a, kidx):
    stamp(a, 8)
    stamp_out(a, kidx, 12)


def hdr_peek(a):
    a(f"v_mov_b32 v7, 0")
    a(f"ds_read_b32 v13, v7 offset:{NONCE}")
    a(f"ds_read_b64 v[14:15], v{vHS}")


def csum_acc(a, p, tag):
    for i in range(NI):
        q = REC + 4 * i
        a(f"s_mov_b64 exec, {sr(MASKS[i],2)}")
        a(f"s_cbranch_execz {p}_cs{tag}")
        a(f"v_add3_u32 v2, v2, v{q}, v{q+1}")
        a(f"v_add_u32 v2, v2, v{q+2}")
    a.lab(f"{p}_cs{tag}")
    a(f"s_mov_b64 exec, -1")


def csum_check(a):
    a(f"s_nop 1")
    a(f"v_add_u32_dpp v2, v2, v2 quad_perm:[1,0,3,2] row_mask:0xf bank_mask:0xf")
    a(f"s_nop 1")
    a(f"v_add_u32_dpp v2, v2, v2 quad_perm:[2,3,0,1] row_mask:0xf bank_mask:0xf")
    a(f"v_cmp_ne_u32 vcc, v2, v15")
    a(f"s_cmp_lg_u64 vcc, 0")


def gen_1k():
    k = NAME + "_kernel"
    a = A(); p = "K"
    setup(a, p)
    stamp(a, 0)
    front(a, p)
    stamp(a, 2)
    if "frontonly" in DIAG:
        stamp_out(a, 0, 12)
        a("s_endpgm")
    w_addr(a)
    a.c("wait for the weights, the end of the record copy-out (staging area reused) and the x rows")
    a(f"s_lshl_b32 s{sT0}, s{sLJ}, 2")
    a(f"v_mov_b32 v12, s{sT0}")
    a.lab(f"{p}_xw")
    a(f"ds_read_b32 v15, v10 offset:{WF}")
    a(f"ds_read_b32 v13, v12 offset:{XFL}")
    a(f"s_waitcnt lgkmcnt(0)")
    a(f"v_add_u32 v7, v15, v13")
    a(f"s_nop 0")
    a(f"v_readfirstlane_b32 s{sT0}, v7")
    a(f"s_cmp_eq_u32 s{sT0}, {1 + 4}")
    a(f"s_cbranch_scc1 {p}_xok")
    a(f"s_sleep {NAP2}")
    a(f"s_branch {p}_xw")
    a.lab(f"{p}_xok")
    a(f"s_setprio {XP[4]}")
    a(f"s_cmp_lg_u32 s{sWV}, 15")
    a(f"s_cbranch_scc1 {p}_xp")
    a(f"s_setprio 3")
    a.lab(f"{p}_xp")
    stamp(a, 3)
    poll(a, p, "a", first=True)
    x_reads(a)
    for st in range(4):
        w_reads(a, 1, 2, st)
    gemm_pass(a, 1, 2, False, True)
    spin(a, f"{p}_s3w", S3, 14, 1)
    poll(a, p, "b")
    if "aupost" not in DIAG:
        a(f"s_sub_u32 s{sT0}, s{sWV}, 11")
        a(f"s_cmp_ge_u32 s{sT0}, 4")
        a(f"s_cbranch_scc1 {p}_noau")
        a(f"s_waitcnt vmcnt(0)")
        signal(a, WF2)
        a.lab(f"{p}_noau")
    table_store(a, True)
    if "aupost" in DIAG:
        a(f"s_sub_u32 s{sT0}, s{sWV}, 11")
        a(f"s_cmp_ge_u32 s{sT0}, 4")
        a(f"s_cbranch_scc1 {p}_noau")
        au_dma(a, p, "g", True)
        a(f"s_waitcnt vmcnt(0)")
        signal(a, WF2)
        a.lab(f"{p}_noau")
    stamp(a, 4)
    a(f"s_setprio {XP[5]}")
    a(f"v_mov_b32 v{vZ0}, 0")
    a(f"s_mov_b32 s{sNT}, 0")
    poll(a, p, "c", last=True)
    a(f"s_cmp_lt_u32 s{sWV}, {PUBW}")
    a(f"s_cbranch_scc1 {p}_pass2")
    a(f"s_waitcnt vmcnt(0)")
    a(f"s_call_b64 {sr(sRET,2)}, {p}_sub_pub")
    a(f"s_mov_b32 s{sNT}, 1")
    a.lab(f"{p}_pass2")
    spin(a, f"{p}_wf2", WF2, 4, NAP)
    a(f"v_lshrrev_b32 v{vHS}, 2, v0")
    a(f"v_lshlrev_b32 v{vHS}, 3, v{vHS}")
    a(f"v_add_u32 v{vHS}, {STG}, v{vHS}")
    hdr_peek(a)
    a(f"s_waitcnt lgkmcnt(0)")
    a(f"v_readfirstlane_b32 s{sNON}, v13")
    a(f"s_cmp_eq_u32 s{sNON}, 0")
    a(f"s_cbranch_scc1 {p}_hlate")
    a(f"s_call_b64 {sr(sRET,2)}, {p}_sub_first")
    a.lab(f"{p}_hlate")
    pu_pass(a, p)
    load_C(a)
    pop_pack(a)
    spin(a, f"{p}_xr", XR, 16, NAP)
    a(f"s_cmp_lg_u32 s{sNON}, 0")
    a(f"s_cbranch_scc1 {p}_hgone")
    a.lab(f"{p}_hwait")
    hdr_peek(a)
    a(f"s_waitcnt lgkmcnt(0)")
    a(f"v_readfirstlane_b32 s{sNON}, v13")
    a(f"s_cmp_lg_u32 s{sNON}, 0")
    a(f"s_cbranch_scc1 {p}_hgo")
    a(f"s_cmp_lg_u32 s{sNT}, 0")
    a(f"s_cbranch_scc1 {p}_hsleep")
    a(f"s_waitcnt vmcnt(0)")
    a(f"s_call_b64 {sr(sRET,2)}, {p}_sub_pub")
    a(f"s_mov_b32 s{sNT}, 1")
    a.lab(f"{p}_hsleep")
    a(f"s_sleep 1")
    a(f"s_branch {p}_hwait")
    a.lab(f"{p}_hgo")
    a(f"s_call_b64 {sr(sRET,2)}, {p}_sub_first")
    a.lab(f"{p}_hgone")
    stamp(a, 1)
    a(f"s_cmp_lg_u32 s{sNT}, 0")
    a(f"s_cbranch_scc1 {p}_pubdone")
    a(f"s_waitcnt vmcnt(0)")
    a(f"s_call_b64 {sr(sRET,2)}, {p}_sub_pub")
    a.lab(f"{p}_pubdone")
    if "pfearly" in DIAG:
        t_prefetch(a)
        a("s_waitcnt vmcnt(3)")
    else:
        a("s_waitcnt vmcnt(0)")
    stamp(a, 11)
    a(f"s_mov_b32 s{sNOH}, 0")
    tflag_issue(a, p)
    a.c("the records must add up to the checksums published with the headers")
    csum_acc(a, p, "a")
    a(f"v_and_b32 v6, 3, v0")
    a(f"v_add_u32 v6, v6, v{vHL}")
    a(f"v_cmp_lt_i32 {sr(sEX,2)}, {CFAST}, v6")
    csum_check(a)
    a(f"s_cbranch_scc1 {p}_vslow")
    a(f"s_cmp_lg_u64 {sr(sEX,2)}, 0")
    a(f"s_cbranch_scc1 {p}_vslow")
    a.lab(f"{p}_valid")
    main_phase(a, p, True)
    finish(a, 0)
    a.lab(f"{p}_end")
    a("s_endpgm")
    a.c("---------------- subroutines / rare paths")
    a.lab(f"{p}_sub_pub")
    a.c("the last wave whose table rows are out publishes the workgroup's flag")
    a(f"v_mov_b32 v6, 1")
    a(f"s_mov_b64 exec, 1")
    a(f"ds_add_rtn_u32 v6, v{vZ0}, v6 offset:{DONE}")
    a(f"ds_read_b32 v7, v{vZ0} offset:{NON2}")
    a(f"s_waitcnt lgkmcnt(0)")
    a(f"v_readfirstlane_b32 s{sT0}, v6")
    a(f"v_readfirstlane_b32 s{sT2}, v7")
    a(f"s_cmp_lg_u32 s{sT0}, 15")
    a(f"s_cbranch_scc1 {p}_nopub")
    a(f"s_lshr_b32 s{sT0}, s{sSL}, 1")
    a(f"s_lshl_b32 s{sT0}, s{sT0}, 7")
    a(f"s_add_u32 s{sT0}, s{sT0}, s{sBIN}")
    a(f"s_lshl_b32 s{sT0}, s{sT0}, 7")
    a(f"s_add_u32 s{sT0}, s{sT0}, {TFL_OFF}")
    a(f"s_not_b32 s{sT1}, s{sT2}")
    a(f"v_mov_b32 v6, s{sT0}")
    a(f"v_mov_b32 v8, s{sT2}")
    a(f"v_mov_b32 v9, s{sT1}")
    a(f"buffer_store_dwordx2 v[8:9], v6, {sr(SRD_HDR,4)}, 0 offen sc1")
    a.lab(f"{p}_nopub")
    a(f"s_mov_b64 exec, -1")
    a(f"s_setpc_b64 {sr(sRET,2)}")
    a.lab(f"{p}_sub_first")
    hdr_decode(a)
    rec_loads(a, p, "f", False, True)
    a(f"s_setpc_b64 {sr(sRET,2)}")
    a.lab(f"{p}_sub_loads")
    rec_loads(a, p, "s", True)
    a(f"s_setpc_b64 {sr(sRET,2)}")
    a.lab(f"{p}_vslow")
    a.c("long runs, or records not yet visible: add up every run completely, again until it fits")
    a(f"s_mov_b32 s{sSPIN}, {SPIN_MAX}")
    a.lab(f"{p}_vs_retry")
    a(f"s_mov_b32 s{sRB}, 0")
    a(f"v_mov_b32 v2, 0")
    a.lab(f"{p}_vs_part")
    a(f"s_call_b64 {sr(sRET,2)}, {p}_sub_loads")
    a(f"s_waitcnt vmcnt(0)")
    csum_acc(a, p, "v")
    a(f"s_add_u32 s{sRB}, s{sRB}, {CFAST}")
    a(f"v_and_b32 v6, 3, v0")
    a(f"v_add_u32 v6, v6, v{vHL}")
    a(f"v_cmp_lt_i32 vcc, s{sRB}, v6")
    a(f"s_cmp_lg_u64 vcc, 0")
    a(f"s_cbranch_scc1 {p}_vs_part")
    csum_check(a)
    a(f"s_cbranch_scc0 {p}_vs_ok")
    a(f"s_sub_u32 s{sSPIN}, s{sSPIN}, 1")
    a(f"s_cbranch_scc0 {p}_vs_retry")
    a.lab(f"{p}_vs_ok")
    a(f"s_mov_b32 s{sRB}, 0")
    a(f"s_call_b64 {sr(sRET,2)}, {p}_sub_loads")
    a(f"s_waitcnt vmcnt(0)")
    a(f"s_branch {p}_valid")
    a.lab(f"{p}_code_end")
    s = file_head()
    s += f"; @launch grid=(256,1,1) block=(1024,1,1) lds={LDS_BYTES}\n"
    s += DOC
    s += '.amdgcn_target "amdgcn-amd-amdhsa--gfx950"\n.text\n'
    s += kernel_header(k) + a.text()
    s += '.section .rodata,"a"\n.p2align 6\n' + kernel_desc(k)
    return s


if __name__ == "__main__":
    if "-stamps" in sys.argv:
        STAMPS = True; sys.argv.remove("-stamps")
    if "-noprio" in sys.argv:
        PRIO = False; sys.argv.remove("-noprio")
    for x in list(sys.argv):
        if x.startswith("-TF"):
            TFW = int(x[3:]); sys.argv.remove(x)
        if x.startswith("-PR"):
            PREW = int(x[3:]); sys.argv.remove(x)
        if x.startswith("-MP"):
            MIDPUB = int(x[3:]); sys.argv.remove(x)
        if x.startswith("-WB"):
            WS_BASE = int(x[3:]) << 20; sys.argv.remove(x)
        if x.startswith("-PB"):
            PPB = int(x[3:]); sys.argv.remove(x)
        if x.startswith("-NP"):
            NAP, NAP2 = map(int, x[3:].split(",")); sys.argv.remove(x)
        if x.startswith("-PL"):
            PRL = tuple(map(int, x[3:].split(","))); sys.argv.remove(x)
        if x.startswith("-PW"):
            PUBW = int(x[3:]); sys.argv.remove(x)
        if x.startswith("-XP"):
            XP = [int(c) for c in x[3:]]; sys.argv.remove(x)
        if x.startswith("-XE"):
            XEARLY = int(x[3:]); sys.argv.remove(x)
        if x.startswith("-PS"):
            PS1, PS2 = map(int, x[3:].split(",")); sys.argv.remove(x)
        if x.startswith("-D"):
            DIAG.add(x[2:]); sys.argv.remove(x)
    mode = gen_1k
    if "-1k" in sys.argv:
        mode = gen_1k; sys.argv.remove("-1k")
    out = sys.argv[1] if len(sys.argv) > 1 else "cdna_kernels/" + NAME + ".s"
    open(out, "w").write(mode())
    print("wrote", out, "LDS", LDS_BYTES)
```
